```python
import torch

def _softmax(x, axis=-1):
    return torch.softmax(x, dim=axis)
def _gelu(x):
    return torch.nn.functional.gelu(x, approximate="tanh")
def _silu(x):
    return torch.nn.functional.silu(x)
def _sigmoid(x):
    return torch.sigmoid(x)
def _layernorm(x, axis=-1, eps=1e-5):
    m = x.mean(dim=axis, keepdim=True)
    v = x.var(dim=axis, keepdim=True, unbiased=False)
    return (x - m) / torch.sqrt(v + eps)
def _scatter_add(tgt, idx, src, axis=0):
    return tgt.clone().index_add_(axis, idx, src)
def _segment_sum(src, seg, n):
    out = torch.zeros((n,) + src.shape[1:], dtype=src.dtype)
    return out.index_add_(0, seg, src)
def _pad(x, pw):
    flat = tuple(v for pair in reversed(pw) for v in pair)
    return torch.nn.functional.pad(x, flat)

kernel_name = 'parallel_sum__sliding_local_dilated__dense_activation_relu__prompt'

def setup_inputs():

    _w = (lambda a: (lambda t: t.to(torch.bfloat16) if t.is_floating_point() else t)(torch.as_tensor(a)))
    def _A_setup():
        B, S, D = 1, 2048, 640
        return {
            "x": _w((lambda *s: torch.randn(*s, dtype=torch.bfloat16) * 0.05)(B, S, D)),
            "wqkv": _w((lambda *s: torch.randn(*s, dtype=torch.bfloat16) * 0.05)(D, 3 * D)),
            "wo": _w((lambda *s: torch.randn(*s, dtype=torch.bfloat16) * 0.05)(D, D)),
        }
    _A_in = _A_setup()

    def _B_setup():
        B, S, D, Dff = 1, 2048, 640, 1536
        return {
            "x": _w((lambda *s: torch.randn(*s, dtype=torch.bfloat16) * 0.05)(B, S, D)),
            "w1": _w((lambda *s: torch.randn(*s, dtype=torch.bfloat16) * 0.05)(D, Dff)),
            "w2": _w((lambda *s: torch.randn(*s, dtype=torch.bfloat16) * 0.05)(Dff, D)),
        }
    _B_in = _B_setup()

    return {
        "A_x": _A_in["x"],
        "A_wqkv": _A_in["wqkv"],
        "A_wo": _A_in["wo"],
        "B_x": _B_in["x"],
        "B_w1": _B_in["w1"],
        "B_w2": _B_in["w2"],
    }

def reference(A_x, A_wqkv, A_wo, B_x, B_w1, B_w2):
    def _A_ref(x, wqkv, wo):
        B, S, D = x.shape
        H = 32; Dh = D // H
        W, dil = 8, 2
        qkv = (lambda x, *d: x.permute(*d))((x @ wqkv).reshape(B, S, 3, H, Dh), 2, 0, 3, 1, 4)
        q, k, v = qkv[0], qkv[1], qkv[2]
        scale = Dh ** -0.5
        pos = torch.arange(S)
        off = torch.arange(W) * dil
        idx = pos[:, None] - off[None, :]
        mask = idx >= 0
        idx_c = torch.where(mask, idx, 0).reshape(-1)
        kg = k[:, :, idx_c, :].reshape(B, H, S, W, Dh)
        vg = v[:, :, idx_c, :].reshape(B, H, S, W, Dh)
        logits = torch.einsum("bhsd,bhswd->bhsw", q, kg) * scale
        logits = torch.where(mask[None, None, :, :], logits, -1e9)
        attn = _softmax(logits, axis=-1)
        o = torch.einsum("bhsw,bhswd->bhsd", attn, vg)
        return (lambda x, *d: x.permute(*d))(o, 0, 2, 1, 3).reshape(B, S, D) @ wo

    def _B_ref(x, w1, w2):
        h = torch.einsum("bsd,df->bsf", x, w1)
        zero = torch.zeros_like(h)
        h = torch.maximum(h, zero)
        return torch.einsum("bsf,fd->bsd", h, w2)

    x = A_x
    xn = _layernorm(x, axis=-1)
    return x + _A_ref(xn, A_wqkv, A_wo) + _B_ref(xn, B_w1, B_w2)
```

```python
import re

def v(i, n=1):
    return f"v{i}" if n == 1 else f"v[{i}:{i+n-1}]"
def s(i, n=1):
    return f"s{i}" if n == 1 else f"s[{i}:{i+n-1}]"

_REG = re.compile(r"^-?\|?(v|s|a)(?:(\d+)|\[(\d+):(\d+)\])\|?$")

def regs_of(tok):
    tok = tok.strip()
    if tok in ("vcc",):
        return {("s", 106), ("s", 107)}
    if tok == "m0":
        return {("s", 124)}
    if tok == "exec":
        return {("s", 126), ("s", 127)}
    m = _REG.match(tok)
    if not m:
        return set()
    k = m.group(1)
    if m.group(2) is not None:
        return {(k, int(m.group(2)))}
    return {(k, i) for i in range(int(m.group(3)), int(m.group(4)) + 1)}

TRANS = ("v_exp_f32", "v_log_f32", "v_rcp_f32", "v_rsq_f32", "v_sqrt_f32", "v_sin_f32", "v_cos_f32")

class Ins:
    def __init__(self, text):
        self.text = text
        t = text.split(";")[0].strip()
        parts = t.split(None, 1)
        self.mn = mn = parts[0]
        rest = parts[1] if len(parts) > 1 else ""
        ops = [o.strip() for o in rest.split(",")] if rest else []
        mods = ""
        if ops:
            last = ops[-1].split(None, 1)
        m = re.search(r"\s(op_sel|op_sel_hi|neg_lo|neg_hi|offset|offset0|offset1|offen|lds|sc0|sc1|nt|clamp|row_|quad_perm|bitop3)", " " + rest)
        if m:
            mods = (" " + rest)[m.start():]
            rest = (" " + rest)[: m.start()]
        ops = [o.strip() for o in rest.split(",")] if rest.strip() else []
        self.ops, self.mods = ops, mods
        R = [regs_of(o) for o in ops]
        self.w, self.r = set(), set()
        self.kind = "other"
        self.srcc = set()
        U = lambda l: set().union(*l) if l else set()
        if mn.startswith("v_mfma"):
            self.kind = "mfma"; self.w = R[0]; self.r = U(R[1:]); self.srcc = R[3]; self.ab = R[1] | R[2]
            self.passes = 8 if "32x32" in mn else 4
        elif mn.startswith("ds_read") or "_rtn" in mn or mn.startswith("ds_bpermute") or mn.startswith("ds_swizzle"):
            self.kind = "ds"; self.w = R[0]; self.r = U(R[1:])
        elif mn.startswith("ds_"):
            self.kind = "ds"; self.r = U(R)
        elif mn.startswith("buffer_load") or mn.startswith("global_load"):
            self.kind = "vmem"
            if " lds" in mods or "_lds_" in mn:
                self.r = U(R) | {("s", 124)}; self.dma = True
            else:
                self.w = R[0]; self.r = U(R[1:])
        elif mn.startswith("buffer_store") or mn.startswith("buffer_atomic") or mn.startswith("global_store") or mn.startswith("global_atomic"):
            self.kind = "vmem"; self.r = U(R)
            self.wide = R[0] if ("x4" in mn or "x3" in mn) and mn.startswith("buffer") else set()
            if "atomic" in mn and " sc0" in mods:
                self.w = R[0]
        elif mn.startswith("buffer_"):
            self.kind = "vmem"
        elif mn.startswith("v_cmp"):
            self.kind = "valu"; self.w = R[0]; self.r = U(R[1:])
        elif mn.startswith("v_readfirstlane") or mn.startswith("v_readlane"):
            self.kind = "valu"; self.w = R[0]; self.r = U(R[1:]); self.rdlane = True
        elif mn.startswith("v_permlane") or mn.startswith("v_swap"):
            self.kind = "valu"; self.w = U(R); self.r = U(R); self.perm = mn.startswith("v_permlane")
        elif mn.startswith("v_add_co") or mn.startswith("v_sub_co") or mn.startswith("v_addc_co"):
            self.kind = "valu"; self.w = R[0] | R[1]; self.r = U(R[2:])
        elif mn.startswith("v_"):
            self.kind = "valu"; self.w = R[0]; self.r = U(R[1:])
            if mn.startswith("v_fmac") or mn.startswith("v_dot2c"):
                self.r |= R[0]
        elif mn.startswith("s_"):
            self.kind = "salu"
            if mn.startswith(("s_cmp", "s_cbranch", "s_branch", "s_waitcnt", "s_barrier", "s_nop", "s_endpgm", "s_sleep", "s_setprio", "s_bitcmp")):
                self.r = U(R)
            else:
                self.w = R[0] if R else set(); self.r = U(R[1:])
                if "saveexec" in mn:
                    self.w |= regs_of("exec")
        self.states = int(ops[0], 0) + 1 if mn == "s_nop" else 1
        self.trans = mn.replace("_e32", "").replace("_e64", "") in TRANS
        self.dot = mn.startswith("v_dot")
        self.dpp = "row_" in mods or "quad_perm" in mods or "wave_" in text

def need(p, c):
    n = 0
    vs = lambda x: {r for r in x if r[0] in "va"}
    ss = lambda x: {r for r in x if r[0] == "s"}
    if p.kind == "valu":
        pw = vs(p.w)
        if c.kind == "mfma" and pw & c.r and not p.dot: n = max(n, 2)
        if p.dot and (pw & (c.r | c.w)):
            if not (c.dot and c.mn == p.mn and not (pw & (regs_of(c.ops[1]) | regs_of(c.ops[2])))): n = max(n, 3)
        if getattr(c, "perm", False) and pw & c.r: n = max(n, 2)
        if c.dpp and pw & c.r: n = max(n, 2)
        if getattr(c, "rdlane", False) and pw & c.r: n = max(n, 1)
        if p.trans and c.kind == "valu" and pw & c.r: n = max(n, 1)
        sw = ss(p.w)
        if sw:
            if c.kind == "vmem" and sw & c.r: n = max(n, 5)
            if c.kind == "valu" and sw & c.r: n = max(n, 4 if getattr(c, "rdlane", False) else 2)
            if c.kind == "salu" and sw & c.r: n = max(n, 1)
    if p.kind == "mfma":
        d = p.w
        big = {4: 8, 8: 12}[p.passes]
        if c.kind == "mfma":
            if d & c.ab: n = max(n, big)
            if d & c.srcc and c.srcc != d: n = max(n, big - 2)
            if d & c.w and c.srcc != d: n = max(n, big - 2)
        elif c.kind in ("valu", "ds", "vmem") and d & (c.r | c.w): n = max(n, big)
        if c.kind == "valu" and p.srcc & c.w: n = max(n, {4: 3, 8: 7}[p.passes])
    if p.kind == "vmem" and getattr(p, "wide", None) and p.wide & c.w: n = max(n, 2)
    if p.kind == "salu" and ("s", 124) in p.w and getattr(c, "dma", False): n = max(n, 1)
    return n

def pad_hazards(lines):
    out, hist = [], []
    for l in lines:
        t = l.strip()
        if not t or t.startswith(";") or t.startswith(".") or t.endswith(":"):
            out.append(l); continue
        c = Ins(t)
        dist, req = 0, 0
        for p in reversed(hist):
            req = max(req, need(p, c) - dist)
            dist += p.states
            if dist >= 20: break
        while req > 0:
            k = min(req, 16)
            nop = f"s_nop {k-1}"
            out.append(nop); hist.append(Ins(nop)); req -= k
        out.append(l); hist.append(c)
        if c.mn in ("s_branch", "s_endpgm"):
            hist = []
    return out

class Asm:
    def __init__(self):
        self.lines = []
    def __call__(self, txt=""):
        for l in txt.split("\n"):
            self.lines.append(l)
    def label(self, name):
        self.lines.append(name + ":")
    def extend(self, ls):
        self.lines.extend(ls)
    def text(self, pad=True):
        out = []
        for l in (pad_hazards(self.lines) if pad else self.lines):
            t = l.strip()
            if not t:
                continue
            if t.endswith(":") or t.startswith(".") or t.startswith(";"):
                out.append(t)
            else:
                out.append("    " + t)
        return "\n".join(out) + "\n"

class Counter:
    def __init__(self, A, name, cap):
        self.A, self.name, self.cap = A, name, cap
        self.n = 0
        self.done = 0
    def issue(self, text):
        self.A(text); self.n += 1
        return self.n
    def wait(self, tag):
        if tag is None or tag <= self.done:
            return
        k = min(self.n - tag, self.cap)
        self.A(f"s_waitcnt {self.name}({k})")
        self.done = self.n - k
    def wait_all(self):
        self.wait(self.n)

def kernel_header(name):
    return f""".text
.globl {name}
.p2align 8
.type {name},@function
{name}:
"""

def kernel_desc(name, nvgpr, accum, nsgpr=102):
    return f""".section .rodata,"a"
.p2align 6
.amdhsa_kernel {name}
  .amdhsa_next_free_vgpr {nvgpr}
  .amdhsa_next_free_sgpr {nsgpr}
  .amdhsa_accum_offset {accum}
  .amdhsa_group_segment_fixed_size 0
  .amdhsa_kernarg_size 72
  .amdhsa_user_sgpr_count 2
  .amdhsa_user_sgpr_kernarg_segment_ptr 1
  .amdhsa_system_sgpr_workgroup_id_x 1
.end_amdhsa_kernel
"""
```

```python
import sys
from asmlib import *

NAME = "parallel_sum__sliding_local_dilated__dense_activation_relu__prompt"
MF = "v_mfma_f32_16x16x32_bf16"

H_BLK = 24 * 8192
O_BLK = 10 * 8192
H_BASE = 0
O_BASE = 32 * H_BLK
FLAG_BASE = 16 << 20
STAMP_BASE = 20 << 20
WS_BYTES = 32 << 20

X_, W1_, W2_, WO_, WS_, DBG_, FLEX_, OUT_ = 20, 24, 28, 32, 36, 40, 44, 48
sWAVE, sW, sRB, sJ, sBLK, sCOL, sROT, sCNT = 52, 53, 54, 55, 56, 57, 58, 59
sT0, sT1, sT2, sT3 = 60, 61, 62, 63
sA, sB, sC, sD, sE, sF = 64, 65, 66, 67, 68, 69
mG1, mG2, mG3, mU0 = 70, 72, 74, 76
sROT2, sROT3 = 78, 79
sG, sH = 3, 80
sSTAMP = 82

Q_SLOT, H_SLOT = 49152, 40960
Q_XOFF, H_XOFF = 30720, 24576
Q_MISC, H_MISC = 147456, 155648
ST_RSTD = 576
CS_OFF = 1152
CTR_OFF = 2304
LDS_BYTES = 163840
SPIN_LIMIT = 20000

class Cfg:
    def __init__(self, **kw):
        self.split = False
        self.stamps = False
        self.phase2 = True
        self.rot = True
        self.cs_helper = True
        self.abl = ''
        self.__dict__.update(kw)

def srd(A, d, b, n):
    A(f"s_mov_b32 s{d}, s{b}\ns_mov_b32 s{d+1}, s{b+1}\ns_mov_b32 s{d+2}, {n}\ns_mov_b32 s{d+3}, 0x20000")

class Gen:
    def __init__(self, cfg):
        self.c = cfg
        self.A = Asm()
        self.nstamp = {}
        self.uid = 0

    def lab(self, p):
        self.uid += 1
        return f"L_{p}_{self.uid}"

    def stamp(self, i):
        if self.c.stamps:
            op = "s_memtime" if self.c.stamps == "cyc" else "s_memrealtime"
            self.A(f"{op} s[{sSTAMP+2*i}:{sSTAMP+2*i+1}]")

    def stamp_out(self, n, row):
        if not self.c.stamps:
            return
        A = self.A
        l = self.lab("st")
        A(f"s_waitcnt lgkmcnt(0)\ns_cmp_lg_u32 s{sW}, 0\ns_cbranch_scc1 {l}")
        A(f"s_lshl_b32 s{sT0}, s2, 7\ns_add_u32 s{sT0}, s{sT0}, {STAMP_BASE + 64*row}\nv_mov_b32 v1, s{sT0}")
        for i in range(n):
            A(f"v_mov_b32 v2, s{sSTAMP+2*i}\nbuffer_store_dword v2, v1, {s(WS_,4)}, 0 offen offset:{4*i}")
        A("s_waitcnt vmcnt(0)")
        A.label(l)

    def entry(self, name, first):
        A = self.A
        A(kernel_header(name))
        A("s_cmp_ge_u32 s2, 256\ns_cbranch_scc1 L_end_" + first)
        self.stamp(0)
        A("s_load_dwordx4 s[4:7], s[0:1], 0\ns_load_dwordx2 s[8:9], s[0:1], 16")
        A("s_load_dwordx4 s[12:15], s[0:1], 32\ns_load_dwordx4 s[16:19], s[0:1], 48\ns_load_dwordx2 s[10:11], s[0:1], 64")
        A(f"v_lshrrev_b32 v1, 6, v0\nv_and_b32 v0, 63, v0\nv_readfirstlane_b32 s{sWAVE}, v1")
        A(f"s_bfe_u32 s{sT0}, s2, 0x20001\ns_bfe_u32 s{sT1}, s2, 0x20003\ns_lshl2_add_u32 s{sRB}, s{sT0}, s{sT1}")
        A(f"s_and_b32 s{sT0}, s2, 1\ns_bfe_u32 s{sT2}, s2, 0x20005\ns_lshl2_add_u32 s{sJ}, s{sT0}, s{sT2}")
        A(f"s_and_b32 s{sT3}, s{sT2}, 1\ns_lshl1_add_u32 s{sBLK}, s{sRB}, s{sT3}")
        A(f"s_lshr_b32 s{sT3}, s{sT2}, 1\ns_lshl1_add_u32 s{sCOL}, s{sT0}, s{sT3}")
        A(f"s_lshr_b32 s{sA}, s2, 7")
        if self.c.rot:
            A(f"s_mul_i32 s{sROT}, s{sT1}, 3\ns_add_u32 s{sROT}, s{sROT}, s{sT2}\ns_lshl2_add_u32 s{sROT}, s{sA}, s{sROT}")
            A(f"s_cmp_ge_u32 s{sROT}, 10\ns_cselect_b32 s{sT0}, 10, 0\ns_sub_u32 s{sROT}, s{sROT}, s{sT0}")
            A(f"s_and_b32 s{sT0}, s{sBLK}, 7\ns_mul_i32 s{sROT2}, s{sT0}, 3\ns_add_u32 s{sROT2}, s{sROT2}, s{sT3}\ns_add_u32 s{sROT2}, s{sROT2}, s{sA}")
            A(f"s_add_u32 s{sROT3}, s{sT0}, s{sT3}\ns_add_u32 s{sROT3}, s{sROT3}, s{sA}")
        else:
            A(f"s_mov_b32 s{sROT}, 0\ns_mov_b32 s{sROT2}, 0\ns_mov_b32 s{sROT3}, 0")
        A(f"s_and_b32 s{sW}, s{sWAVE}, 3")
        A(f"s_cmp_ge_u32 s{sWAVE}, 4\ns_cbranch_scc1 L_helper_{first}")
        A(f"s_cmp_eq_u32 s{sA}, 0\ns_cbranch_scc1 L_QC_{first}\ns_branch L_HC_{first}")
        A.label(f"L_helper_{first}")
        A(f"s_cmp_eq_u32 s{sA}, 0\ns_cbranch_scc0 L_HH_{first}")

    def srds_helper1(self, role):
        A = self.A
        A("s_waitcnt lgkmcnt(0)")
        if role == "q":
            srd(A, W1_, 6, 640 * 3840)
        else:
            srd(A, W1_, 12, 640 * 3072)
        srd(A, X_, 4, 2048 * 1280)

    def srds_helper2(self):
        A = self.A
        srd(A, W2_, 14, 1536 * 1280); srd(A, WO_, 8, 640 * 1280); srd(A, WS_, 10, WS_BYTES); srd(A, DBG_, 18, 256)

    def srds_compute(self):
        A = self.A
        A("s_waitcnt lgkmcnt(0)")
        srd(A, WS_, 10, WS_BYTES); srd(A, DBG_, 18, 256); srd(A, X_, 4, 2048 * 1280); srd(A, OUT_, 16, 2048 * 1280)

    def bitswap23(self, k, rho, t):
        self.A(f"v_and_b32 v{t}, 4, v{rho}\nv_add_u32 v{k}, v{rho}, v{t}\nv_bfe_u32 v{t}, v{rho}, 3, 1\nv_mad_i32_i24 v{k}, v{t}, -4, v{k}")

    def xfrag_addr(self, d0, d1, base_s, t):
        A = self.A
        A(f"v_and_b32 v{t}, 15, v0\nv_lshrrev_b32 v{d1}, 1, v{t}\nv_lshrrev_b32 v{d0}, 4, v0\nv_xor_b32 v{d0}, v{d0}, v{d1}")
        A(f"v_lshlrev_b32 v{d0}, 4, v{d0}\nv_lshl_add_u32 v{d0}, v{t}, 7, v{d0}\nv_add_u32 v{d0}, s{base_s}, v{d0}\nv_xor_b32 v{d1}, 64, v{d0}")

    def reduce_pair(self, a, b, t):
        A = self.A
        A(f"v_permlane32_swap_b32 v{a}, v{b}\nv_add_f32 v{a}, v{a}, v{b}\nv_mov_b32 v{t}, v{a}")
        A(f"v_permlane16_swap_b32 v{a}, v{t}\nv_add_f32 v{a}, v{a}, v{t}\nv_mov_b32 v{t}, v{a}\nv_permlane32_swap_b32 v{a}, v{t}")

    def helper1(self, role):
        A, c = self.A, self.c
        q = role == "q"
        nW, nX, nF = (7, 4, 1) if q else (6, 4, 0)
        n = nW + nX + nF
        vW, vF, vX = 8, 15, 16
        slot, xoff, misc = (Q_SLOT, Q_XOFF, Q_MISC) if q else (H_SLOT, H_XOFF, H_MISC)
        wstep = 64 * (3840 if q else 3072)
        sMW, sMX, sMF, sOW, sOX, sOF, sISS = sA, sB, sC, sD, sE, sF, sG
        A("v_lshrrev_b32 v2, 3, v0\nv_mul_u32_u24 v2, 2560, v2\nv_and_b32 v3, 7, v0\nv_lshrrev_b32 v4, 4, v0\nv_xor_b32 v3, v3, v4\nv_lshl_add_u32 v7, v3, 4, v2")
        if q:
            A(f"s_cmp_eq_u32 s{sW}, 3\ns_cselect_b32 s{sT0}, 1, 0\ns_lshl_b32 s{sMW}, s{sW}, 3\ns_sub_u32 s{sMW}, s{sMW}, s{sT0}")
            A(f"s_lshl2_add_u32 s{sMX}, s{sW}, s{sT0}")
            A(f"s_mul_i32 s{sH}, s{sJ}, 160\ns_movk_i32 s{sCNT}, 1120")
        else:
            A(f"s_mul_i32 s{sMW}, s{sW}, 6\ns_lshl_b32 s{sMX}, s{sW}, 2\ns_mul_i32 s{sH}, s{sJ}, 384")

        def woff(d, kb_add):
            A(f"s_add_u32 s{sT0}, s{sMW}, {kb_add}\ns_lshl_b32 s{sT0}, s{sT0}, 6\nv_add_u32 v2, s{sT0}, v0")
            if q:
                A("v_mul_u32_u24 v3, 2185, v2\nv_lshrrev_b32 v3, 16, v3\nv_mul_u32_u24 v4, 30, v3\nv_sub_u32 v2, v2, v4")
                self.bitswap23(5, 3, 4)
                A("v_mul_u32_u24 v4, 26, v2\nv_lshrrev_b32 v4, 8, v4\nv_mul_u32_u24 v5, 3840, v5")
                A(f"v_mad_u32_u24 v5, v4, s{sCNT}, v5\nv_lshl_add_u32 v5, v2, 4, v5\nv_add_u32 v{d}, s{sH}, v5")
            else:
                A("v_mul_u32_u24 v3, 2731, v2\nv_lshrrev_b32 v3, 16, v3\nv_mul_u32_u24 v4, 24, v3\nv_sub_u32 v2, v2, v4")
                A("v_and_b32 v4, 6, v3\nv_xor_b32 v2, v2, v4")
                self.bitswap23(5, 3, 4)
                A(f"v_mul_u32_u24 v5, 3072, v5\nv_lshl_add_u32 v5, v2, 4, v5\nv_add_u32 v{d}, s{sH}, v5")

        def xoffs(d, kb_add):
            A(f"s_add_u32 s{sT0}, s{sMX}, {kb_add}\ns_and_b32 s{sT1}, s{sT0}, 1\ns_lshr_b32 s{sT0}, s{sT0}, 1")
            if q:
                A(f"s_sub_u32 s{sT2}, s{sT0}, 1\ns_and_b32 s{sT3}, s{sT2}, 1\ns_lshr_b32 s{sT2}, s{sT2}, 1\ns_lshl_b32 s{sT2}, s{sT2}, 5")
                A(f"s_add_u32 s{sT2}, s{sT2}, s{sT3}\ns_lshl4_add_u32 s{sT2}, s{sT1}, s{sT2}\ns_sub_u32 s{sT3}, s{sT1}, 16")
                A(f"s_cmp_eq_u32 s{sT0}, 0\ns_cselect_b32 s{sT2}, s{sT3}, s{sT2}")
            else:
                A(f"s_and_b32 s{sT3}, s{sT0}, 1\ns_lshr_b32 s{sT2}, s{sT0}, 1\ns_lshl_b32 s{sT2}, s{sT2}, 5")
                A(f"s_add_u32 s{sT2}, s{sT2}, s{sT3}\ns_lshl4_add_u32 s{sT2}, s{sT1}, s{sT2}")
            A(f"s_lshl_b32 s{sT3}, s{sRB}, 7\ns_add_u32 s{sT2}, s{sT2}, s{sT3}\ns_mul_i32 s{sT2}, s{sT2}, 1280\ns_lshl_b32 s{sT1}, s{sT1}, 6")
            A(f"v_xor_b32 v2, s{sT1}, v7\nv_add_u32 v{d}, s{sT2}, v2")

        def soffs():
            A(f"s_mul_i32 s{sOW}, s{sROT}, {wstep}\ns_lshl_b32 s{sOX}, s{sROT}, 7")
            if q:
                A(f"s_cmp_lt_u32 s{sW}, 2\ns_cselect_b32 s{sOF}, s{sOW}, s{sOX}")
            A(f"s_add_u32 s{sROT}, s{sROT}, 1\ns_cmp_ge_u32 s{sROT}, 10\ns_cselect_b32 s{sROT}, 0, s{sROT}")

        def dma(vr, srd_, so, m0s, add):
            A(f"s_add_u32 m0, s{m0s}, {add}\nbuffer_load_dwordx4 v{vr}, {s(srd_,4)}, s{so} offen lds")

        def next_slot():
            if q:
                A(f"s_add_u32 s{sISS}, s{sISS}, {slot}\ns_cmp_ge_u32 s{sISS}, {3*slot}\ns_cselect_b32 s{sISS}, 0, s{sISS}")
            else:
                A(f"s_sub_u32 s{sISS}, s{sISS}, {slot}\ns_cselect_b32 s{sISS}, {2*slot}, s{sISS}")

        def issue():
            soffs()
            A(f"s_add_u32 s{sT0}, s{sMW}, s{sISS}\ns_add_u32 s{sT1}, s{sMX}, s{sISS}")
            if q:
                A(f"s_add_u32 s{sT2}, s{sMF}, s{sISS}")
            for i in range(nX):
                dma(vX + i, X_, sOX, sT1, i * 1024)
            for i in range(nW):
                dma(vW + i, W1_, sOW, sT0, i * 1024)
            if q:
                dma(vF, FLEX_, sOF, sT2, 0)
            next_slot()

        xoffs(vX, 0)
        self.srds_helper1(role)
        soffs()
        A(f"s_lshl_b32 s{sISS}, s{sMX}, 10\ns_add_u32 s{sISS}, s{sISS}, {xoff}")
        for i in range(nX):
            if i:
                xoffs(vX + i, i)
            dma(vX + i, X_, sOX, sISS, i * 1024)
        A(f"s_lshl_b32 s{sISS}, s{sMW}, 10")
        for i in range(nW):
            woff(vW + i, i)
            dma(vW + i, W1_, sOW, sISS, i * 1024)
        if q:
            l1, l2 = self.lab("fx"), self.lab("fd")
            A(f"s_cmp_lt_u32 s{sW}, 2\ns_cbranch_scc0 {l1}")
            woff(vF, 7)
            A(f"s_add_u32 s{sMF}, s{sMW}, 7\ns_lshl_b32 s{sMF}, s{sMF}, 10")
            srd(A, FLEX_, 6, 640 * 3840)
            A(f"s_branch {l2}")
            A.label(l1)
            xoffs(vF, 4)
            A(f"s_add_u32 s{sMF}, s{sMX}, 4\ns_lshl_b32 s{sMF}, s{sMF}, 10\ns_add_u32 s{sMF}, s{sMF}, {xoff}")
            srd(A, FLEX_, 4, 2048 * 1280)
            A.label(l2)
            dma(vF, FLEX_, sOF, sMF, 0)
        A(f"s_lshl_b32 s{sMW}, s{sMW}, 10\ns_lshl_b32 s{sMX}, s{sMX}, 10\ns_add_u32 s{sMX}, s{sMX}, {xoff}")
        A(f"s_mov_b32 s{sISS}, 0")
        next_slot()
        issue(); issue()
        self.srds_helper2()
        vS0, vS1, vH0, vH1, vC = 20, 21, 22, 23, 24
        acc, buf = 28, 40
        A(f"s_lshl_b32 s{sT0}, s{sW}, 12\ns_add_u32 s{sT0}, s{sT0}, {xoff + (2048 if q else 0)}")
        self.xfrag_addr(vS0, vS1, sT0, 2)
        if q:
            A(f"s_mov_b32 s{sT0}, {xoff}")
            self.xfrag_addr(vH0, vH1, sT0, 2)
        cs = (not q) and c.cs_helper
        if cs:
            self.wfrag_addr_h(vC, 3, 3)
        for i in range(10):
            A(f"v_mov_b32 v{acc+i}, 0")
        A("v_mov_b32 v27, 0x3f803f80")
        self.p2_loader_setup(role)
        vm_after_init = 2 * n
        A(f"s_waitcnt vmcnt({vm_after_init})\ns_barrier")
        self.stamp(1)
        A(f"s_mov_b32 s{sCNT}, 0\ns_mov_b32 s{sH}, 0")
        loop = self.lab("hl")
        A.label(loop)
        mark0 = len(A.lines)
        for t in range(2):
            A(f"ds_read_b128 {v(buf+8*t,4)}, v{vS0} offset:{2048*t}\nds_read_b128 {v(buf+8*t+4,4)}, v{vS1} offset:{2048*t}")
        if cs:
            for t in range(3):
                for st in range(2):
                    for hf in range(2):
                        A(f"ds_read_b64_tr_b16 {v(buf+24+8*t+4*st+2*hf,2)}, v{vC+t} offset:{(32*st+8*hf)*384}")
        lh = self.lab("nh")
        if q:
            A(f"s_cmp_lg_u32 s{sW}, 3\ns_cbranch_scc1 {lh}")
            A(f"ds_read_b128 {v(buf+16,4)}, v{vH0}\nds_read_b128 {v(buf+20,4)}, v{vH1}")
            A.label(lh)
        l8, l9, ld = self.lab("c8"), self.lab("c9"), self.lab("cd")
        A(f"s_cmp_eq_u32 s{sCNT}, 0\ns_cbranch_scc1 {ld}\ns_cmp_ge_u32 s{sCNT}, 8\ns_cbranch_scc1 {l8}")
        issue()
        A(f"s_branch {ld}")
        A.label(l8)
        A(f"s_cmp_eq_u32 s{sCNT}, 9\ns_cbranch_scc1 {l9}")
        k1 = self.p2_prefetch(role, 0)
        A(f"s_branch {ld}")
        A.label(l9)
        k2 = self.p2_prefetch(role, 1)
        A.label(ld)
        A("s_waitcnt lgkmcnt(0)")
        for t in range(2):
            for r in range(8):
                A(f"v_dot2c_f32_bf16 v{acc+2*t}, v{buf+8*t+r}, v27\nv_dot2c_f32_bf16 v{acc+2*t+1}, v{buf+8*t+r}, v{buf+8*t+r}")
        if cs:
            for r in range(8):
                for t in range(3):
                    A(f"v_dot2c_f32_bf16 v{acc+6+t}, v{buf+24+8*t+r}, v27")
        if q:
            lh = self.lab("nh")
            A(f"s_cmp_lg_u32 s{sW}, 3\ns_cbranch_scc1 {lh}")
            for r in range(8):
                A(f"v_dot2c_f32_bf16 v{acc+4}, v{buf+16+r}, v27\nv_dot2c_f32_bf16 v{acc+5}, v{buf+16+r}, v{buf+16+r}")
            A.label(lh)
        if q:
            A(f"s_add_u32 s{sH}, s{sH}, 1\ns_cmp_eq_u32 s{sH}, 3\ns_cselect_b32 s{sH}, 0, s{sH}\ns_mov_b32 s{sT0}, {slot}\ns_cselect_b32 s{sT0}, {-2*slot}, s{sT0}")
            regs = [vS0, vS1, vH0, vH1]
        else:
            A(f"s_cmp_eq_u32 s{sH}, 0\ns_cselect_b32 s{sH}, 3, s{sH}\ns_mov_b32 s{sT0}, {-slot}\ns_cselect_b32 s{sT0}, {2*slot}, s{sT0}\ns_sub_u32 s{sH}, s{sH}, 1")
            regs = [vS0, vS1] + ([vC, vC + 1, vC + 2] if cs else [])
        for r in regs:
            A(f"v_add_u32 v{r}, s{sT0}, v{r}")
        body = A.lines[mark0:]
        if "nostats" in c.abl:
            body = [l for l in body if not l.startswith(("ds_read", "v_dot2c"))]
        if "nodot" in c.abl:
            body = [l for l in body if not l.startswith("v_dot2c")]
        if "nodma" in c.abl:
            body = [l for l in body if not l.startswith("buffer_load")]
        A.lines[mark0:] = body
        lw8, lf, lb = self.lab("w8"), self.lab("fin"), self.lab("bar")
        A(f"s_cmp_ge_u32 s{sCNT}, 8\ns_cbranch_scc1 {lw8}\ns_waitcnt vmcnt({n})\ns_branch {lb}")
        A.label(lw8)
        A(f"s_cmp_eq_u32 s{sCNT}, 9\ns_cbranch_scc1 {lf}\ns_waitcnt vmcnt({k1})")
        A.label(lb)
        A(f"s_barrier\ns_add_u32 s{sCNT}, s{sCNT}, 1\ns_branch {loop}")
        A.label(lf)
        A(f"v_and_b32 v2, 15, v0\ns_lshl_b32 s{sT0}, s{sW}, 7\ns_add_u32 s{sT0}, s{sT0}, {misc + (64 if q else 0)}\nv_lshl_add_u32 v3, v2, 2, s{sT0}")
        A(f"s_mov_b32 s{sT1}, 0x3acccccd\ns_mov_b32 s{sT2}, 0x3727c5ac")

        def fin(a, off, addr):
            self.reduce_pair(a, a + 1, 4)
            A(f"v_mul_f32 v{a}, s{sT1}, v{a}\nv_mul_f32 v5, v{a}, v{a}\nv_fma_f32 v4, v4, s{sT1}, -v5\nv_max_f32 v4, 0, v4\nv_add_f32 v4, s{sT2}, v4\nv_rsq_f32 v4, v4")
            A(f"ds_write_b32 v{addr}, v{a} offset:{off}\nds_write_b32 v{addr}, v4 offset:{off + ST_RSTD}")
        fin(acc, 0, 3); fin(acc + 2, 64, 3)
        if q:
            lh = self.lab("nh")
            A(f"s_cmp_lg_u32 s{sW}, 3\ns_cbranch_scc1 {lh}")
            A(f"s_mov_b32 s{sT0}, {misc}\nv_lshl_add_u32 v3, v2, 2, s{sT0}")
            fin(acc + 4, 0, 3)
            A.label(lh)
        if cs:
            A(f"s_mul_i32 s{sT0}, s{sW}, 192\ns_add_u32 s{sT0}, s{sT0}, {misc + CS_OFF}\nv_lshl_add_u32 v3, v2, 2, s{sT0}")
            self.reduce_pair(acc + 6, acc + 7, 4)
            A(f"ds_write_b32 v3, v{acc+6}\nds_write_b32 v3, v4 offset:64")
            self.reduce_pair(acc + 8, acc + 9, 4)
            A(f"ds_write_b32 v3, v{acc+8} offset:128")
        A("s_waitcnt lgkmcnt(0)\ns_barrier")
        self.stamp(2)
        k3 = self.p2_prefetch(role, 2)
        A("s_barrier")
        if q:
            A("s_barrier")
        return k1 + k2 + k3

    def wfrag_addr_h(self, d, nt, mul):
        A = self.A
        if mul == 3:
            A(f"s_mul_i32 s{sT3}, s{sW}, 3")
        else:
            A(f"s_lshr_b32 s{sT3}, s{sW}, 1\ns_mul_i32 s{sT3}, s{sT3}, 6")
        A("v_bfe_u32 v2, v0, 2, 3\nv_lshrrev_b32 v3, 5, v0\nv_lshl_add_u32 v3, v3, 4, v2\nv_mul_u32_u24 v3, 384, v3")
        A("v_and_b32 v4, 3, v0\nv_lshl_add_u32 v3, v4, 3, v3\nv_lshrrev_b32 v2, 1, v2")
        for t in range(nt):
            A(f"s_add_u32 s{sT2}, s{sT3}, {t}\nv_xor_b32 v4, s{sT2}, v2\nv_lshl_add_u32 v{d+t}, v4, 5, v3")

    def mfma_loop(self, mfmas, frags, bpos, at_barrier, fixups, niter):
        A = self.A
        nm = len(mfmas)
        first, last = {}, {}
        for i, (_, fs) in enumerate(mfmas):
            for f in fs:
                first.setdefault(f, i); last[f] = i
        order = sorted(frags, key=lambda f: first[f])
        seq = [(it, f) for it in range(4) for f in order]
        occupant, ready = {}, {}
        for it, f in seq:
            key = frags[f][0]
            e = -10**9
            if key in occupant:
                pit, pf = occupant[key]
                e = pit * nm + last[pf]
            e = max(e, (it - 1) * nm + bpos)
            ready[(it, f)] = e
            occupant[key] = (it, f)
        bodies, pend, tags = [], list(seq), {}
        T = Asm(); C = Counter(T, "lgkmcnt", 14)
        pro = []
        for it in range(-1, 3):
            T.lines = []
            for i in range(nm):
                g = it * nm + i
                if it >= 0:
                    for f, pre, txt in fixups:
                        if (first[f] - pre) % nm == i:
                            tit = it if first[f] - pre >= 0 else it + 1
                            C.wait(tags[(tit, f)]); T(txt)
                    C.wait(max(tags[(it, f)] for f in mfmas[i][1]))
                    T(mfmas[i][0])
                if i == bpos:
                    assert all(x[0] > it for x in pend), "chunk reads not all issued before its barrier"
                    if it >= 0:
                        C.wait_all(); T("s_barrier"); T(at_barrier)
                budget = 2
                while pend and ready[pend[0]] <= g and budget > 0:
                    x = pend.pop(0)
                    for r in frags[x[1]][1]:
                        tags[x] = C.issue(r)
                        budget -= 1
            if it == -1:
                pro = list(T.lines); C.done = C.n
            else:
                bodies.append(list(T.lines))
        assert bodies[1] == bodies[2], "loop body is not periodic"
        A.extend(pro)
        A("s_waitcnt lgkmcnt(0)")
        for f, pre, txt in fixups:
            if first[f] - pre < 0:
                A(txt)
        loop = self.lab("ml")
        A(f"s_mov_b32 s{sCNT}, {niter}")
        A.label(loop)
        body = bodies[1]
        if "nomfma" in self.c.abl:
            body = [l for l in body if not l.startswith("v_mfma")]
        if "notr" in self.c.abl:
            body = [l for l in body if not l.startswith("ds_read_b64_tr")]
        if "nox" in self.c.abl:
            body = [l for l in body if not l.startswith("ds_read_b128")]
        A.extend(body)
        A(f"s_sub_u32 s{sCNT}, s{sCNT}, 1\ns_cmp_lg_u32 s{sCNT}, 0\ns_cbranch_scc1 {loop}")

    def slot_step(self, role, regs):
        if role == "q":
            t = f"s_add_u32 s{sH}, s{sH}, 1\ns_cmp_eq_u32 s{sH}, 3\ns_cselect_b32 s{sH}, 0, s{sH}\ns_cselect_b32 s{sT0}, s{sB}, s{sA}"
        else:
            t = f"s_cmp_eq_u32 s{sH}, 0\ns_cselect_b32 s{sH}, 3, s{sH}\ns_cselect_b32 s{sT0}, s{sB}, s{sA}\ns_sub_u32 s{sH}, s{sH}, 1"
        for r in regs:
            t += f"\nv_add_u32 v{r}, s{sT0}, v{r}"
        return t

    def init_flags(self):
        A = self.A
        if self.c.split:
            return
        l = self.lab("nf")
        A(f"s_or_b32 s{sT0}, s2, s{sW}\ns_cmp_lg_u32 s{sT0}, 0\ns_cbranch_scc1 {l}")
        A(f"v_lshlrev_b32 v2, 8, v0\nv_add_u32 v2, {FLAG_BASE}, v2\nv_mov_b32 v3, 0")
        A(f"buffer_store_dword v3, v2, {s(WS_,4)}, 0 offen sc0 sc1\ns_waitcnt vmcnt(0)")
        A(f"v_mov_b32 v2, 1\ns_mov_b64 exec, 1\nbuffer_store_dword v2, v3, {s(DBG_,4)}, 0 offen sc0 sc1\ns_mov_b64 exec, -1")
        A.label(l)

    def spin(self, vaddr, srd_, target, vt):
        A = self.A
        l, d = self.lab("sp"), self.lab("sd")
        A(f"s_mov_b32 s{sT1}, {SPIN_LIMIT}")
        A.label(l)
        A(f"buffer_load_dword v{vt}, v{vaddr}, {s(srd_,4)}, 0 offen sc0 sc1\ns_waitcnt vmcnt(0)\nv_readfirstlane_b32 s{sT0}, v{vt}")
        A(f"s_cmp_ge_u32 s{sT0}, {target}\ns_cbranch_scc1 {d}\ns_sub_u32 s{sT1}, s{sT1}, 1\ns_cmp_lg_u32 s{sT1}, 0\ns_cbranch_scc1 {l}")
        A.label(d)

    def publish(self, role, misc, vrdy):
        A = self.A
        A("s_waitcnt vmcnt(0)")
        if self.c.split:
            return
        l, r = self.lab("pb"), self.lab("rd")
        A(f"v_mov_b32 v2, {misc + CTR_OFF}\nv_mov_b32 v3, 1\ns_mov_b64 exec, 1\nds_add_rtn_u32 v4, v2, v3\ns_waitcnt lgkmcnt(0)\ns_mov_b64 exec, -1")
        A(f"v_readfirstlane_b32 s{sT0}, v4\ns_cmp_lg_u32 s{sT0}, 3\ns_cbranch_scc1 {l}")
        A(f"v_readfirstlane_b32 s{sT0}, v{vrdy}\ns_cmp_lg_u32 s{sT0}, 0\ns_cbranch_scc1 {r}")
        A("v_mov_b32 v2, 0")
        self.spin(2, DBG_, 1, 4)
        A.label(r)
        A(f"s_lshl_b32 s{sT0}, s{sRB}, 8\ns_add_u32 s{sT0}, s{sT0}, {FLAG_BASE + (4096 if role == 'q' else 0)}\nv_mov_b32 v2, s{sT0}")
        A(f"s_mov_b64 exec, 1\nbuffer_atomic_add v3, v2, {s(WS_,4)}, 0 offen sc1\ns_mov_b64 exec, -1")
        A.label(l)

    def compute_h(self):
        A, c = self.A, self.c
        vWa, vX0, vX1 = 8, 14, 15
        XF, WF, ACC = 24, 56, 80
        self.srds_compute()
        self.wfrag_addr_h(vWa, 6, 6)
        A(f"s_and_b32 s{sT0}, s{sW}, 1\ns_lshl_b32 s{sT0}, s{sT0}, 13\ns_add_u32 s{sT0}, s{sT0}, {H_XOFF}")
        self.xfrag_addr(vX0, vX1, sT0, 2)
        for i in range(96):
            A(f"v_mov_b32 v{ACC+i}, 0")
        A(f"v_mov_b32 v2, {H_MISC + CTR_OFF}\nv_mov_b32 v3, 0\nds_write_b32 v2, v3")
        A(f"s_mov_b32 s{sA}, {-H_SLOT}\ns_mov_b32 s{sB}, {2*H_SLOT}\ns_mov_b32 s{sH}, 0")
        A("s_waitcnt lgkmcnt(0)\ns_barrier")
        self.stamp(1)
        mf, fr = [], {}
        for st in range(2):
            for i in range(4):
                fr[("X", st, i)] = (("X", st, i), [f"ds_read_b128 {v(XF+16*st+4*i,4)}, v{vX1 if st else vX0} offset:{2048*i}"])
            for t in range(6):
                fr[("W", st, t)] = (("W", t), [f"ds_read_b64_tr_b16 {v(WF+4*t+2*hf,2)}, v{vWa+t} offset:{(32*st+8*hf)*384}" for hf in range(2)])
                for i in range(4):
                    a = v(ACC + 4 * (6 * i + t), 4)
                    mf.append((f"{MF} {a}, {v(WF+4*t,4)}, {v(XF+16*st+4*i,4)}, {a}", [("W", st, t), ("X", st, i)]))
        self.mfma_loop(mf, fr, 24 + 5, self.slot_step("h", list(range(vWa, vWa + 6)) + [vX0, vX1]), [], 10)
        self.stamp(2)
        vRDY = 23
        if not c.split:
            A(f"v_mov_b32 v2, 0\nbuffer_load_dword v{vRDY}, v2, {s(DBG_,4)}, 0 offen sc0 sc1")
        A(f"v_and_b32 v2, 15, v0\ns_and_b32 s{sT0}, s{sW}, 1\ns_lshl_b32 s{sT1}, s{sT0}, 8\ns_add_u32 s{sT1}, s{sT1}, {H_MISC}\nv_lshl_add_u32 v8, v2, 2, s{sT1}")
        A(f"v_lshrrev_b32 v2, 4, v0\ns_lshr_b32 s{sT2}, s{sW}, 1\ns_mul_i32 s{sT1}, s{sT2}, 384\ns_add_u32 s{sT1}, s{sT1}, {H_MISC + CS_OFF}\nv_lshl_add_u32 v9, v2, 4, s{sT1}")
        A(f"v_lshlrev_b32 v10, 4, v0\nv_add_u32 v11, 4096, v10")
        A(f"s_lshl1_add_u32 s{sT0}, s{sRB}, s{sT0}\ns_mul_i32 s{sT0}, s{sT0}, {H_BLK}")
        A(f"s_mul_i32 s{sT1}, s{sJ}, 6\ns_mul_i32 s{sT2}, s{sT2}, 3\ns_add_u32 s{sT1}, s{sT1}, s{sT2}")
        for pr, d in enumerate([sC, sD, sE]):
            A(f"s_add_u32 s{sT2}, s{sT1}, {pr}\ns_lshr_b32 s{sT3}, s{sT2}, 1\ns_lshl_b32 s{sT3}, s{sT3}, 13\ns_and_b32 s{sT2}, s{sT2}, 1\ns_lshl_b32 s{sT2}, s{sT2}, 10")
            A(f"s_add_u32 s{d}, s{sT0}, s{sT3}\ns_add_u32 s{d}, s{d}, s{sT2}")
        A("s_waitcnt lgkmcnt(0)\ns_barrier")
        C = Counter(A, "lgkmcnt", 14)
        MR, CS = 24, 32
        tm = [C.issue(f"ds_read2_b32 {v(MR+2*i,2)}, v8 offset0:{16*i} offset1:{16*i+144}") for i in range(4)]
        tc = [C.issue(f"ds_read_b128 {v(CS+4*t,4)}, v9 offset:{64*t}") for t in range(6)]
        st_mod = "" if c.split else " sc0 sc1"
        for pr in range(3):
            C.wait(tc[2 * pr + 1])
            for i in range(4):
                o = 56 + 4 * ((4 * pr + i) % 6)
                for tt in range(2):
                    t = 2 * pr + tt
                    a = ACC + 4 * (6 * i + t)
                    self.fold_t(a, CS + 4 * t, MR + 2 * i)
                    A(f"v_cvt_pk_bf16_f32 v{o+2*tt}, v{a}, v{a+1}\nv_cvt_pk_bf16_f32 v{o+2*tt+1}, v{a+2}, v{a+3}")
                for r in range(4):
                    A(f"v_pk_max_i16 v{o+r}, v{o+r}, 0")
                A(f"buffer_store_dwordx4 {v(o,4)}, v{11 if i >= 2 else 10}, {s(WS_,4)}, s{[sC,sD,sE][pr]} offen offset:{2048*(i&1)}{st_mod}")
        self.stamp(3)
        if c.phase2 and not c.split:
            self.p2_xload(96)
        self.publish("h", H_MISC, vRDY)
        self.stamp(4)

    def fold_t(self, a, cs, mr):
        A = self.A
        for h in (0, 2):
            A(f"v_pk_fma_f32 {v(a+h,2)}, {v(cs+h,2)}, {v(mr,2)}, {v(a+h,2)} op_sel_hi:[1,0,1] neg_lo:[0,1,0] neg_hi:[0,1,0]")
        for h in (0, 2):
            A(f"v_pk_mul_f32 {v(a+h,2)}, {v(a+h,2)}, {v(mr,2)} op_sel:[0,1] op_sel_hi:[1,1]")

    def fold_v(self, a, csreg, mean4, rstd4):
        A = self.A
        p = csreg & ~1
        sel = csreg & 1
        for h in (0, 2):
            A(f"v_pk_fma_f32 {v(a+h,2)}, {v(mean4+h,2)}, {v(p,2)}, {v(a+h,2)} op_sel:[0,{sel},0] op_sel_hi:[1,{sel},1] neg_lo:[0,1,0] neg_hi:[0,1,0]")
        for h in (0, 2):
            A(f"v_pk_mul_f32 {v(a+h,2)}, {v(a+h,2)}, {v(rstd4+h,2)}")

    def compute_q(self):
        A, c = self.A, self.c
        vW, vX0, vX1, vH0, vH1 = 1, 2, 3, 4, 5
        BC, BP, AC, AP, ONE = 8, 12, 20, 22, 28
        vT = 32
        XF, WF, AQ, AK, AV, AH = 56, 80, 120, 160, 200, 240
        self.srds_compute()
        self.init_flags()
        A(f"v_lshrrev_b32 v6, 4, v0\nv_and_b32 v7, 15, v0\nv_cmp_le_u32 {s(mG1,2)}, 1, v6\nv_cmp_le_u32 {s(mG2,2)}, 2, v6\nv_cmp_le_u32 {s(mG3,2)}, 3, v6\nv_cmp_eq_u32 {s(mU0,2)}, 0, v7")
        A(f"s_or_b32 s{sT3}, s{sRB}, s{sW}\ns_cmp_eq_u32 s{sT3}, 0\ns_cselect_b32 s{sF}, 64, 0\ns_cmp_eq_u32 s{sW}, 0\ns_cselect_b32 s{sE}, 1, 9\ns_cselect_b32 s{sD}, 7, 15")
        A(f"v_mov_b32 v40, 0xf149f2ca\nv_mov_b32 v41, 0\nv_mov_b32 v42, 0xffff\nv_mov_b32 v43, 0xffff0000")
        for k in range(3):
            A(f"v_mov_b32 v{AC+2*k}, 0\nv_mov_b32 v{AC+2*k+1}, 0")
        for r in range(4):
            A(f"v_lshl_add_u32 v44, v6, 2, {r}\nv_sub_u32 v45, v7, v44")
            A(f"v_cmp_ge_u32 vcc, 7, v45\nv_cndmask_b32 v{BC+r}, v40, v41, vcc\nv_cndmask_b32 v46, v41, v{42+(r&1)}, vcc\nv_or_b32 v{AC+(r>>1)}, v{AC+(r>>1)}, v46")
            A(f"v_add_u32 v45, s{sF}, v7\nv_add_u32 v46, s{sE}, v45\nv_cmp_ge_u32 {s(sA,2)}, v44, v46\nv_cmp_ge_u32 vcc, s{sD}, v44\ns_and_b64 vcc, vcc, {s(sA,2)}")
            A(f"v_cndmask_b32 v{BP+r}, v40, v41, vcc\nv_cndmask_b32 v46, v41, v{42+(r&1)}, vcc\nv_or_b32 v{AP+(r>>1)}, v{AP+(r>>1)}, v46")
            A(f"v_add_u32 v46, 9, v45\nv_cmp_ge_u32 vcc, v44, v46")
            A(f"v_cndmask_b32 v{BP+4+r}, v40, v41, vcc\nv_cndmask_b32 v46, v41, v{42+(r&1)}, vcc\nv_or_b32 v{AP+2+(r>>1)}, v{AP+2+(r>>1)}, v46")
        for r in range(4):
            A(f"v_mov_b32 v{ONE+r}, 0x3f803f80")
        A(f"s_lshl_b32 s{sT0}, s{sW}, 7\ns_add_u32 s{sT0}, s{sT0}, {Q_MISC + 64}\ns_mov_b32 s{sT1}, {Q_MISC}\ns_mov_b32 s{sT2}, {Q_MISC + CS_OFF}")
        A(f"v_lshl_add_u32 v{vT}, v7, 2, s{sT0}\nv_lshl_add_u32 v{vT+1}, v7, 2, s{sT1}\nv_lshl_add_u32 v{vT+2}, v6, 4, s{sT0}\nv_lshl_add_u32 v{vT+3}, v6, 4, s{sT1}")
        A(f"v_lshl_add_u32 v{vT+4}, v6, 4, s{sT2}\nv_lshl_add_u32 v{vT+5}, v7, 2, s{sT2}")
        A(f"v_bfe_u32 v6, v0, 2, 3\nv_lshrrev_b32 v7, 5, v0\nv_lshl_add_u32 v6, v7, 4, v6\nv_mul_u32_u24 v6, 480, v6\nv_and_b32 v7, 3, v0\nv_lshl_add_u32 v{vW}, v7, 3, v6")
        A(f"s_lshl_b32 s{sT0}, s{sW}, 12\ns_add_u32 s{sT0}, s{sT0}, {Q_XOFF + 2048}")
        self.xfrag_addr(vX0, vX1, sT0, 6)
        A(f"s_mov_b32 s{sT0}, {Q_XOFF}")
        self.xfrag_addr(vH0, vH1, sT0, 6)
        for i in range(AQ, 256):
            A(f"v_mov_b32 v{i}, 0")
        A(f"v_mov_b32 v6, {Q_MISC + CTR_OFF}\nv_mov_b32 v7, 0\nds_write_b32 v6, v7")
        A(f"s_mov_b32 s{sA}, {Q_SLOT}\ns_mov_b32 s{sB}, {-2*Q_SLOT}\ns_mov_b32 s{sH}, 0")
        A("s_waitcnt lgkmcnt(0)\ns_barrier")
        self.stamp(1)
        lw = [self.lab("qw") for _ in range(4)]
        le1 = self.lab("e1")
        A(f"s_cmp_eq_u32 s{sW}, 1\ns_cbranch_scc1 {lw[1]}\ns_cmp_eq_u32 s{sW}, 2\ns_cbranch_scc1 {lw[2]}\ns_cmp_eq_u32 s{sW}, 3\ns_cbranch_scc1 {lw[3]}")
        accq = lambda t, p: [AQ, AK, AV][t // 5] + 20 * p + 4 * (t % 5)
        for w in range(4):
            A.label(lw[w])
            mf, fr, fix = [], {}, []
            for st in range(2):
                for i in range(3):
                    xa = [vH0, vH1][st] if i == 2 else [vX0, vX1][st]
                    fr[("X", st, i)] = (("X", st, i), [f"ds_read_b128 {v(XF+12*st+4*i,4)}, v{xa} offset:{2048*i if i < 2 else 0}"])
                hx = XF + 12 * st + 8
                fix.append((("X", st, 2), 2, "\n".join(f"v_cndmask_b32 v{hx+r}, v{hx+r}, v{ONE}, {s(mU0,2)}" for r in range(4))))
                for t in range(15):
                    sl = (15 * st + t) % 10
                    fr[("W", st, t)] = (("W", sl), [f"ds_read_b64_tr_b16 {v(WF+4*sl+2*hf,2)}, v{vW} offset:{(32*st+8*hf)*480+32*t}" for hf in range(2)])
                    for i in [0, 1] + ([2] if t % 4 == w else []):
                        a = v(accq(t, i) if i < 2 else AH + 4 * (t // 4), 4)
                        wf, xf = v(WF + 4 * sl, 4), v(XF + 12 * st + 4 * i, 4)
                        ops = f"{wf}, {xf}" if t < 10 else f"{xf}, {wf}"
                        mf.append((f"{MF} {a}, {ops}, {a}", [("W", st, t), ("X", st, i)]))
            half = len(mf) // 2
            bpos = max(i for i, m in enumerate(mf) if ("W", 1, 7) in m[1])
            self.mfma_loop(mf, fr, bpos, self.slot_step("q", [vW, vX0, vX1, vH0, vH1]), fix, 10)
            A(f"s_mov_b64 exec, {s(mU0,2)}")
            for t in range(w, 10, 4):
                A(f"ds_write_b128 v{vT+4}, {v(AH+4*(t//4),4)} offset:{64*t}")
            A("s_mov_b64 exec, 0xffff")
            for t in range(w, 15, 4):
                if t >= 10:
                    A(f"ds_write_b32 v{vT+5}, v{AH+4*(t//4)} offset:{64*t}")
            A("s_mov_b64 exec, -1")
            if w < 3:
                A(f"s_branch {le1}")
        A.label(le1)
        self.stamp(2)
        vRDY = 26
        if not c.split:
            A(f"v_mov_b32 v6, 0\nbuffer_load_dword v{vRDY}, v6, {s(DBG_,4)}, 0 offen sc0 sc1")
        A(f"s_mul_i32 s{sT0}, s{sW}, 10240\ns_add_u32 s{sT1}, s{sT0}, 10240\nv_lshl_add_u32 v1, v0, 4, s{sT1}\nv_lshl_add_u32 v2, v0, 3, s{sT1}")
        A(f"s_cmp_eq_u32 s{sW}, 0\ns_cselect_b32 s{sT1}, 0, 2560\ns_add_u32 s{sT1}, s{sT1}, s{sT0}")
        A(f"v_lshl_add_u32 v3, v0, 4, s{sT0}\nv_lshl_add_u32 v4, v0, 4, s{sT1}\nv_lshl_add_u32 v5, v0, 3, s{sT0}\nv_lshl_add_u32 v6, v0, 3, s{sT1}")
        A("v_lshlrev_b32 v7, 4, v0\nv_lshlrev_b32 v27, 3, v0")
        A("s_waitcnt lgkmcnt(0)\ns_barrier")
        C = Counter(A, "lgkmcnt", 14)
        MR, VM, CSK, CSV, CSQ = 38, 44, 68, 88, 94
        t_mr = [C.issue(f"ds_read2_b32 {v(MR,2)}, v{vT} offset0:0 offset1:144"),
                C.issue(f"ds_read2_b32 {v(MR+2,2)}, v{vT} offset0:16 offset1:160"),
                C.issue(f"ds_read2_b32 {v(MR+4,2)}, v{vT+1} offset0:0 offset1:144")]
        t_ck = [C.issue(f"ds_read_b128 {v(CSK+4*t,4)}, v{vT+4} offset:{64*(5+t)}") for t in range(5)]
        t_vm = []
        for i in range(3):
            ad, off = (vT + 2, 64 * i) if i < 2 else (vT + 3, 0)
            C.issue(f"ds_read_b128 {v(VM+8*i,4)}, v{ad} offset:{off}")
            t_vm.append(C.issue(f"ds_read_b128 {v(VM+8*i+4,4)}, v{ad} offset:{off + ST_RSTD}"))
        C.wait(t_ck[4])
        t_cv = [C.issue(f"ds_read_b32 v{CSV+t}, v{vT+5} offset:{64*(10+t)}") for t in range(5)]
        t_cq = [C.issue(f"ds_read_b128 {v(CSQ+4*t,4)}, v{vT+4} offset:{64*t}") for t in range(5)]
        KC = lambda p: AK + 10 * p
        KP = lambda p: AK + 20 + 10 * p
        for p in range(2):
            for t in range(5):
                a = AK + 20 * p + 4 * t
                self.fold_t(a, CSK + 4 * t, MR + 2 * p)
                A(f"v_cvt_pk_bf16_f32 v{KC(p)+2*t}, v{a}, v{a+1}\nv_cvt_pk_bf16_f32 v{KC(p)+2*t+1}, v{a+2}, v{a+3}")
        C.wait(t_cv[4])
        for p in range(2):
            for t in range(5):
                a = AV + 20 * p + 4 * t
                self.fold_v(a, CSV + t, VM + 8 * p, VM + 8 * p + 4)
                A(f"v_cvt_pk_bf16_f32 v{a+3}, v{a+2}, v{a+3}\nv_cvt_pk_bf16_f32 v{a+2}, v{a}, v{a+1}")
        l3 = self.lab("nx")
        A(f"s_cmp_eq_u32 s{sW}, 3\ns_cbranch_scc1 {l3}")
        for p in range(2):
            A(f"ds_write_b128 v1, {v(KC(p),4)} offset:{2560*p}\nds_write_b128 v1, {v(KC(p)+4,4)} offset:{2560*p+1024}\nds_write_b64 v2, {v(KC(p)+8,2)} offset:{2560*p+2048}")
            for t in range(5):
                A(f"ds_write_b64 v2, {v(AV+20*p+4*t+2,2)} offset:{5120+2560*p+512*t}")
        A.label(l3)
        lh = [self.lab("hw") for _ in range(5)]
        A(f"s_cmp_eq_u32 s{sW}, 1\ns_cbranch_scc1 {lh[1]}\ns_cmp_eq_u32 s{sW}, 2\ns_cbranch_scc1 {lh[2]}\ns_cmp_eq_u32 s{sW}, 3\ns_cbranch_scc1 {lh[3]}")
        for w in range(4):
            A.label(lh[w])
            for t in range(w, 15, 4):
                a = AH + 4 * (t // 4)
                if t < 5:
                    continue
                if t < 10:
                    k = t - 5
                    self.fold_t(a, CSK + 4 * k, MR + 4)
                    A(f"v_cvt_pk_bf16_f32 v{a}, v{a}, v{a+1}\nv_cvt_pk_bf16_f32 v{a+1}, v{a+2}, v{a+3}")
                    if k < 4:
                        A(f"ds_write_b64 v7, {v(a,2)} offset:{1024*(k>>1)+8*(k&1)}")
                    else:
                        A(f"ds_write_b64 v27, {v(a,2)} offset:2048")
                else:
                    k = t - 10
                    self.fold_v(a, CSV + k, VM + 16, VM + 20)
                    A(f"v_cvt_pk_bf16_f32 v{a}, v{a}, v{a+1}\nv_cvt_pk_bf16_f32 v{a+1}, v{a+2}, v{a+3}")
                    A(f"ds_write_b64 v27, {v(a,2)} offset:{5120+512*k}")
            if w < 3:
                A(f"s_branch {lh[4]}")
        A.label(lh[4])
        A(f"s_waitcnt lgkmcnt(0)\ns_mov_b32 s{sT0}, 0x3ea52b5c\nv_mul_f32 v{MR+1}, s{sT0}, v{MR+1}\nv_mul_f32 v{MR+3}, s{sT0}, v{MR+3}")
        A("s_barrier")
        C = Counter(A, "lgkmcnt", 14)
        t_kp, t_vp = [], []
        for p in range(2):
            C.issue(f"ds_read_b128 {v(KP(p),4)}, v{3+p}")
            C.issue(f"ds_read_b128 {v(KP(p)+4,4)}, v{3+p} offset:1024")
            t_kp.append(C.issue(f"ds_read_b64 {v(KP(p)+8,2)}, v{5+p} offset:2048"))
        for p in range(2):
            for t in range(5):
                t_vp.append(C.issue(f"ds_read_b64 {v(AV+20*p+4*t,2)}, v{5+p} offset:{5120+512*t}"))
        QH = lambda p, h: 44 + 16 * p + 4 * h
        masks = [None, mG1, mG2, mG3]
        for p in range(2):
            for t in range(5):
                a = AQ + 20 * p + 4 * t
                self.fold_t(a, CSQ + 4 * t, MR + 2 * p)
                d = QH(p, 0) if t == 0 else (QH(p, 3) + 2 if t == 4 else a)
                A(f"v_cvt_pk_bf16_f32 v{d}, v{a}, v{a+1}\nv_cvt_pk_bf16_f32 v{d+1}, v{a+2}, v{a+3}")
                if 1 <= t <= 3:
                    for r in range(2):
                        A(f"v_cndmask_b32 v{QH(p,t)+r}, 0, v{a+r}, {s(masks[t],2)}\nv_cndmask_b32 v{QH(p,t-1)+2+r}, v{a+r}, 0, {s(masks[t],2)}")
        SP = lambda p, h: 76 + 8 * (4 * p + h)
        for p in range(2):
            for h in range(4):
                A(f"{MF} {v(SP(p,h)+4,4)}, {v(KC(p)+2*h,4)}, {v(QH(p,h),4)}, {v(BC,4)}")
        for p in range(2):
            C.wait(t_kp[p])
            for h in range(4):
                A(f"{MF} {v(SP(p,h),4)}, {v(KP(p)+2*h,4)}, {v(QH(p,h),4)}, {v(BP+4*p,4)}")
        MX = 140
        for n in range(8):
            b = 76 + 8 * n
            for r in range(4):
                A(f"v_max_f32 v{b+4+r}, v{b+r}, v{b+4+r}")
            A(f"v_max3_f32 v{MX+n}, v{b+4}, v{b+5}, v{b+6}\nv_max_f32 v{MX+n}, v{MX+n}, v{b+7}")
        for n in range(0, 8, 2):
            A(f"v_permlane32_swap_b32 v{MX+n}, v{MX+n+1}")
        for n in range(0, 8, 2):
            A(f"v_max_f32 v{MX+n}, v{MX+n}, v{MX+n+1}")
        for n in (0, 4):
            A(f"v_permlane16_swap_b32 v{MX+n}, v{MX+n+2}")
        for n in (0, 4):
            A(f"v_max_f32 v{MX+n}, v{MX+n}, v{MX+n+2}\nv_mov_b32 v{MX+n+2}, v{MX+n}")
        for n in (0, 4):
            A(f"v_permlane16_swap_b32 v{MX+n}, v{MX+n+2}")
        for n in range(0, 8, 2):
            A(f"v_mov_b32 v{MX+n+1}, v{MX+n}")
        for n in range(0, 8, 2):
            A(f"v_permlane32_swap_b32 v{MX+n}, v{MX+n+1}")
        for n in range(8):
            b = 76 + 8 * n
            m = MX + n
            for r in (0, 2):
                A(f"v_pk_add_f32 {v(b+4+r,2)}, {v(b+4+r,2)}, {v(m & ~1,2)} op_sel:[0,{m&1}] op_sel_hi:[1,{m&1}] neg_lo:[0,1] neg_hi:[0,1]")
            for r in range(4):
                A(f"v_exp_f32 v{b+4+r}, v{b+4+r}")
        for n in range(8):
            b, p = 76 + 8 * n, n >> 2
            A(f"v_cvt_pk_bf16_f32 v{b+4}, v{b+4}, v{b+5}\nv_cvt_pk_bf16_f32 v{b+5}, v{b+6}, v{b+7}")
            A(f"v_and_b32 v{b}, v{AP+2*p}, v{b+4}\nv_and_b32 v{b+1}, v{AP+2*p+1}, v{b+5}\nv_and_b32 v{b+2}, v{AC}, v{b+4}\nv_and_b32 v{b+3}, v{AC+1}, v{b+5}")
        for n in range(8):
            b = 76 + 8 * n
            A(f"{MF} {v(b+4,4)}, {v(ONE,4)}, {v(b,4)}, 0")
        C.wait_all()
        OT = {}
        pool = list(range(44, 76, 4)) + list(range(160, 200, 4))
        for p in range(2):
            for t in range(5):
                for h in ([t - 1] if t >= 1 else []) + ([t] if t <= 3 else []):
                    OT[(p, t, h)] = pool.pop(0)
                    A(f"{MF} {v(OT[(p,t,h)],4)}, {v(AV+20*p+4*t,4)}, {v(SP(p,h),4)}, 0")
        for n in range(8):
            A(f"v_rcp_f32 v{MX+n}, v{76+8*n+4}")
        A(f"s_lshr_b32 s{sT0}, s{sW}, 1\ns_lshl1_add_u32 s{sT0}, s{sRB}, s{sT0}\ns_mul_i32 s{sT0}, s{sT0}, {O_BLK}\ns_and_b32 s{sT1}, s{sW}, 1\ns_lshl_b32 s{sT1}, s{sT1}, 12")
        A(f"s_add_u32 s{sT0}, s{sT0}, s{sT1}\ns_add_u32 s{sT0}, s{sT0}, {O_BASE}\ns_mul_i32 s{sT1}, s{sJ}, 5")
        so = [sA, sB, sC, sD, sE]
        for t in range(5):
            A(f"s_add_u32 s{sT2}, s{sT1}, {t}\ns_lshr_b32 s{sT3}, s{sT2}, 2\ns_lshl_b32 s{sT3}, s{sT3}, 13\ns_and_b32 s{sT2}, s{sT2}, 3\ns_lshl_b32 s{sT2}, s{sT2}, 9")
            A(f"s_add_u32 s{so[t]}, s{sT0}, s{sT3}\ns_add_u32 s{so[t]}, s{so[t]}, s{sT2}")
        st_mod = "" if c.split else " sc0 sc1"
        for p in range(2):
            for t in range(5):
                if 1 <= t <= 3:
                    a, b2 = OT[(p, t, t - 1)], OT[(p, t, t)]
                    for r in range(4):
                        A(f"v_cndmask_b32 v{a+r}, v{a+r}, v{b2+r}, {s(masks[t],2)}")
                    A(f"v_cndmask_b32 v{b2}, v{MX+4*p+t-1}, v{MX+4*p+t}, {s(masks[t],2)}")
                    m = b2
                else:
                    a = OT[(p, t, min(t, 3))]
                    m = MX + 4 * p + min(t, 3)
                for r in (0, 2):
                    A(f"v_pk_mul_f32 {v(a+r,2)}, {v(a+r,2)}, {v(m & ~1,2)} op_sel:[0,{m&1}] op_sel_hi:[1,{m&1}]")
                A(f"v_cvt_pk_bf16_f32 v{a}, v{a}, v{a+1}\nv_cvt_pk_bf16_f32 v{a+1}, v{a+2}, v{a+3}")
                A(f"buffer_store_dwordx2 {v(a,2)}, v27, {s(WS_,4)}, s{so[t]} offen offset:{2048*p}{st_mod}")
        self.stamp(3)
        if c.phase2 and not c.split:
            self.p2_xload(64)
        self.publish("q", Q_MISC, vRDY)
        self.stamp(4)

    @staticmethod
    def p2geom(role):
        if role == "q":
            return dict(N=64, nW=2, RW=8, RA=4, wslot=lambda i: 49152 + 8192 * i, abase=114688, pre=[6, 8, 8])
        return dict(N=96, nW=3, RW=10, RA=4, wslot=lambda i: 155648 - 12288 * (i + 1), abase=0, pre=[6, 9, 10])

    P2W, P2A, P2F = 96, 99, 100

    def p2_loader_setup(self, role):
        A, g = self.A, self.p2geom(role)
        if not self.c.phase2:
            return
        if role == "q":
            A(f"s_lshl_b32 s{sCOL}, s{sCOL}, 7\ns_add_u32 s{sCOL}, s{sCOL}, 768")
            A(f"v_lshrrev_b32 v2, 3, v0\nv_and_b32 v3, 6, v2\nv_and_b32 v4, 7, v0\nv_xor_b32 v3, v3, v4\nv_mul_u32_u24 v2, 1280, v2\nv_lshl_add_u32 v2, v3, 4, v2")
            A(f"s_mul_i32 s{sT0}, s{sW}, {16*1280}\ns_add_u32 s{sT0}, s{sT0}, s{sCOL}\nv_add_u32 v{self.P2W}, s{sT0}, v2\nv_add_u32 v{self.P2W+1}, {8*1280-1024}, v{self.P2W}")
        else:
            A(f"s_mul_i32 s{sCOL}, s{sCOL}, 192")
            for i in range(3):
                A(f"s_mul_i32 s{sT0}, s{sW}, 192\ns_add_u32 s{sT0}, s{sT0}, {64*i}\nv_add_u32 v2, s{sT0}, v0")
                A("v_mul_u32_u24 v3, 5462, v2\nv_lshrrev_b32 v3, 16, v3\nv_mul_u32_u24 v4, 12, v3\nv_sub_u32 v2, v2, v4")
                A("v_lshrrev_b32 v4, 1, v3\nv_and_b32 v4, 2, v4\nv_xor_b32 v2, v2, v4\nv_mul_u32_u24 v3, 1280, v3\nv_lshl_add_u32 v2, v2, 4, v3")
                A(f"s_sub_u32 s{sT0}, s{sCOL}, {1024*i}\nv_add_u32 v{self.P2W+i}, s{sT0}, v2")
        A(f"s_lshl_b32 s{sT0}, s{sW}, 11\nv_lshl_add_u32 v{self.P2A}, v0, 4, s{sT0}")
        A(f"s_lshr_b32 s{sT0}, s{sBLK}, 1\ns_lshl_b32 s{sT0}, s{sT0}, 8\ns_add_u32 s{sT0}, s{sT0}, {FLAG_BASE}\nv_mov_b32 v{self.P2F}, s{sT0}\nv_add_u32 v{self.P2F+1}, 4096, v{self.P2F}\nv_mov_b32 v{self.P2F+2}, 0")
        self.wnext = 0

    sPW, sPA, sPM, sPN = 4, 5, 6, 7

    def p2_issue_w(self, role, cw, C=None):
        A, g = self.A, self.p2geom(role)
        emit = (C.issue if C else A)
        if cw == 0:
            A(f"s_mov_b32 s{self.sPW}, s{sROT2}\ns_mul_i32 s{self.sPM}, s{sW}, {1024*g['nW']}")
        if cw == 24:
            A(f"s_mov_b32 s{self.sPW}, s{sROT3}")
        lim = 24 if cw < 24 else 10
        A(f"s_cmp_ge_u32 s{self.sPW}, {lim}\ns_cselect_b32 s{sT0}, {lim}, 0\ns_sub_u32 s{self.sPW}, s{self.sPW}, s{sT0}\ns_mul_i32 s{sT0}, s{self.sPW}, {64*1280}")
        A(f"s_add_u32 s{self.sPW}, s{self.sPW}, 1\ns_add_u32 m0, s{self.sPM}, {g['wslot'](cw % g['RW'])}")
        tag = None
        for i in range(g["nW"]):
            tag = emit(f"buffer_load_dwordx4 v{self.P2W+i}, {s(W2_ if cw < 24 else WO_,4)}, s{sT0} offen offset:{1024*i} lds")
        return tag

    def p2_issue_a(self, role, ca, C):
        A, g = self.A, self.p2geom(role)
        if ca == 0:
            A(f"s_mov_b32 s{self.sPA}, s{sROT2}\ns_lshl_b32 s{self.sPN}, s{sW}, 11\ns_mul_i32 s8, s{sBLK}, {H_BLK}")
        if ca == 24:
            A(f"s_mov_b32 s{self.sPA}, s{sROT3}\ns_mul_i32 s8, s{sBLK}, {O_BLK}\ns_add_u32 s8, s8, {O_BASE}")
        lim = 24 if ca < 24 else 10
        A(f"s_cmp_ge_u32 s{self.sPA}, {lim}\ns_cselect_b32 s{sT0}, {lim}, 0\ns_sub_u32 s{self.sPA}, s{self.sPA}, s{sT0}\ns_lshl_b32 s{sT0}, s{self.sPA}, 13\ns_add_u32 s{sT0}, s{sT0}, s8")
        A(f"s_add_u32 s{self.sPA}, s{self.sPA}, 1\ns_add_u32 m0, s{self.sPN}, {g['abase'] + 8192*(ca % g['RA'])}")
        mod = "" if self.c.split else " sc0 sc1"
        for i in range(2):
            tag = C.issue(f"buffer_load_dwordx4 v{self.P2A}, {s(WS_,4)}, s{sT0} offen offset:{1024*i}{mod} lds")
        return tag

    def p2_prefetch(self, role, stage):
        if not self.c.phase2 or self.c.split:
            return 0
        g = self.p2geom(role)
        k = 0
        if stage == 0:
            self.A(f"buffer_load_dword v{self.P2F+3}, v{self.P2F+2}, {s(DBG_,4)}, 0 offen sc0 sc1")
            k += 1
        while self.wnext < g["pre"][stage]:
            self.p2_issue_w(role, self.wnext)
            self.wnext += 1
            k += g["nW"]
        return k

    def p2_check(self, C, tag, vres, vaddr, srd_, target):
        A = self.A
        l = self.lab("ok")
        C.wait(tag)
        A(f"v_readfirstlane_b32 s{sT0}, v{vres}\ns_cmp_ge_u32 s{sT0}, {target}\ns_cbranch_scc1 {l}")
        self.spin(vaddr, srd_, target, vres)
        A.label(l)

    def p2_loader(self, role, pending):
        A, g, c = self.A, self.p2geom(role), self.c
        C = Counter(A, "vmcnt", 62)
        tw, ta = {}, {}
        if c.split:
            for cw in range(2):
                tw[cw] = self.p2_issue_w(role, cw, C)
            for ca in range(g["RA"]):
                ta[ca] = self.p2_issue_a(role, ca, C)
                if ca >= 2:
                    tw[ca] = self.p2_issue_w(role, ca, C)
            for cw in range(g["RA"], g["RW"]):
                tw[cw] = self.p2_issue_w(role, cw, C)
        else:
            C.n = pending
            for cw in range(g["RW"]):
                tw[cw] = 1 + g["nW"] * (cw + 1)
            self.p2_check(C, 1, self.P2F + 3, self.P2F + 2, DBG_, 1)
            tag = C.issue(f"buffer_load_dword v{self.P2F+3}, v{self.P2F}, {s(WS_,4)}, 0 offen sc0 sc1")
            self.p2_check(C, tag, self.P2F + 3, self.P2F, WS_, 8)
            self.stamp(3)
            for ca in range(g["RA"]):
                ta[ca] = self.p2_issue_a(role, ca, C)
        pollt = None
        for ch in range(34):
            C.wait(max(tw[ch], ta[ch]))
            A("s_barrier")
            ca, cw = ch - 1 + g["RA"], ch - 1 + g["RW"]
            if ch >= 1:
                if ca == 22 and not c.split:
                    pollt = C.issue(f"buffer_load_dword v{self.P2F+3}, v{self.P2F+1}, {s(WS_,4)}, 0 offen sc0 sc1")
                if ca == 24 and not c.split:
                    self.stamp(4)
                    self.p2_check(C, pollt, self.P2F + 3, self.P2F + 1, WS_, 8)
                    self.stamp(5)
                if ca < 34:
                    ta[ca] = self.p2_issue_a(role, ca, C)
                if cw < 34:
                    tw[cw] = self.p2_issue_w(role, cw, C)
        self.stamp(6)

    P2X = 200

    def p2_colbytes(self, N):
        A = self.A
        if N == 64:
            A(f"s_lshl_b32 s{sCOL}, s{sCOL}, 7\ns_add_u32 s{sCOL}, s{sCOL}, 768")
        else:
            A(f"s_mul_i32 s{sCOL}, s{sCOL}, 192")

    def p2_xload(self, N):
        A = self.A
        NT = N // 32
        self.p2_colbytes(N)
        A(f"s_and_b32 s{sT0}, s{sW}, 1\ns_lshl1_add_u32 s{sT0}, s{sBLK}, s{sT0}\ns_mul_i32 s{sT0}, s{sT0}, {32*1280}\ns_add_u32 s{sT0}, s{sT0}, s{sCOL}")
        A(f"s_lshr_b32 s{sT1}, s{sW}, 1\ns_mul_i32 s{sT1}, s{sT1}, {32*NT}\ns_add_u32 s{sF}, s{sT0}, s{sT1}")
        A(f"v_and_b32 v2, 15, v0\nv_mul_u32_u24 v{self.P2X+14}, 2560, v2\nv_lshrrev_b32 v3, 4, v0\nv_lshl_add_u32 v2, v3, 3, v{self.P2X+14}")
        for p in range(2):
            for i in range(NT):
                A(f"buffer_load_dwordx2 {v(self.P2X+2*(NT*p+i),2)}, v2, {s(X_,4)}, s{sF} offen offset:{1280*p+32*i}")

    def p2_compute(self, role):
        A, g, c = self.A, self.p2geom(role), self.c
        N = g["N"]; NT = N // 32; RB = 2 * N
        vWa, vB, vO = 8, 11, 12
        ACC, FB, FW = 16, 40, 72
        if c.split:
            self.p2_xload(N)
        A(f"v_bfe_u32 v2, v0, 2, 2\nv_lshrrev_b32 v3, 4, v0\nv_lshl_add_u32 v2, v3, 2, v2\nv_mul_u32_u24 v4, {RB}, v2\nv_and_b32 v5, 3, v0\nv_lshl_add_u32 v4, v5, 3, v4")
        if N == 64:
            A("v_bfe_u32 v2, v2, 1, 2")
        else:
            A("v_and_b32 v2, 1, v3")
        A(f"s_lshr_b32 s{sT0}, s{sW}, 1\ns_mul_i32 s{sT0}, s{sT0}, {NT}")
        for i in range(NT):
            A(f"s_add_u32 s{sT1}, s{sT0}, {i}\nv_xor_b32 v3, s{sT1}, v2\nv_lshl_add_u32 v3, v3, 5, v4\nv_add_u32 v{vWa+i}, {g['wslot'](0)}, v3")
        A(f"s_and_b32 s{sT0}, s{sW}, 1\ns_lshl_b32 s{sT0}, s{sT0}, 12\ns_add_u32 s{sT0}, s{sT0}, {g['abase']}\nv_lshl_add_u32 v{vB}, v0, 4, s{sT0}\nv_lshl_add_u32 v{vO}, v0, 3, s{sT0}")
        for r in list(range(FB + 16, FB + 32)) + list(range(FW + 8 * NT, FW + 16 * NT)):
            A(f"v_mov_b32 v{r}, 0")
        A("s_waitcnt vmcnt(0)")
        for k in range(2 * NT):
            x = self.P2X + 2 * k
            A(f"v_lshlrev_b32 v{ACC+4*k}, 16, v{x}\nv_and_b32 v{ACC+4*k+1}, 0xffff0000, v{x}\nv_lshlrev_b32 v{ACC+4*k+2}, 16, v{x+1}\nv_and_b32 v{ACC+4*k+3}, 0xffff0000, v{x+1}")
        wd = g["wslot"](1) - g["wslot"](0)
        A(f"s_mov_b32 s{sA}, {wd}\ns_mov_b32 s{sB}, {-wd*(g['RW']-1)}\ns_mov_b32 s{sC}, 0\ns_mov_b32 s{sD}, 0\ns_movk_i32 s{sE}, 0x2000\ns_mov_b32 s{sG}, {-8192*(g['RA']-1)}")

        def mfmas(st):
            out = []
            for ks in range(2):
                for i in range(NT):
                    for p in range(2):
                        a = v(ACC + 4 * (NT * p + i), 4)
                        out.append(f"{MF} {a}, {v(FW+8*NT*st+4*(NT*ks+i),4)}, {v(FB+16*st+8*ks+4*p,4)}, {a}")
            return out

        def half(st, opart):
            A("s_barrier")
            rd = []
            for ks in range(2):
                for p in range(2):
                    d = FB + 16 * st + 8 * ks + 4 * p
                    if opart:
                        rd += [f"ds_read_b64 {v(d+2*hf,2)}, v{vO} offset:{2048*p+512*(2*ks+hf)}" for hf in range(2)]
                    else:
                        rd.append(f"ds_read_b128 {v(d,4)}, v{vB} offset:{2048*p+1024*ks}")
                for i in range(NT):
                    d = FW + 8 * NT * st + 4 * (NT * ks + i)
                    rd += [f"ds_read_b64_tr_b16 {v(d+2*hf,2)}, v{vWa+i} offset:{(32*ks+16*hf)*RB}" for hf in range(2)]
            ms = mfmas(1 - st)
            per = -(-len(rd) // len(ms))
            A.extend(rd[:2]); rd = rd[2:]
            for m in ms:
                A(m); A.extend(rd[:per]); rd = rd[per:]
            A(f"s_add_u32 s{sC}, s{sC}, 1\ns_cmp_eq_u32 s{sC}, {g['RW']}\ns_cselect_b32 s{sC}, 0, s{sC}\ns_cselect_b32 s{sT0}, s{sB}, s{sA}")
            A(f"s_add_u32 s{sD}, s{sD}, 1\ns_cmp_eq_u32 s{sD}, {g['RA']}\ns_cselect_b32 s{sD}, 0, s{sD}\ns_cselect_b32 s{sT1}, s{sG}, s{sE}")
            for i in range(NT):
                A(f"v_add_u32 v{vWa+i}, s{sT0}, v{vWa+i}")
            A(f"v_add_u32 v{vB}, s{sT1}, v{vB}\nv_add_u32 v{vO}, s{sT1}, v{vO}")
            A("s_waitcnt lgkmcnt(0)")

        for opart, n in ((False, 12), (True, 5)):
            l = self.lab("p2")
            A(f"s_mov_b32 s{sCNT}, {n}")
            A.label(l)
            half(0, opart); half(1, opart)
            A(f"s_sub_u32 s{sCNT}, s{sCNT}, 1\ns_cmp_lg_u32 s{sCNT}, 0\ns_cbranch_scc1 {l}")
            if not opart:
                self.stamp(5)
        A.extend(mfmas(1))
        self.stamp(6)
        A(f"v_lshrrev_b32 v3, 4, v0\nv_and_b32 v4, 1, v3\nv_lshrrev_b32 v3, 1, v3\nv_lshlrev_b32 v3, 4, v3\nv_add_u32 v3, v{self.P2X+14}, v3")
        A(f"v_lshl_add_u32 v2, v4, 5, v3\nv_mul_u32_u24 v4, 1280, v4\nv_add_u32 v3, v3, v4")
        O = FB
        def pack(d, k):
            A(f"v_cvt_pk_bf16_f32 v{d}, v{ACC+4*k}, v{ACC+4*k+1}\nv_cvt_pk_bf16_f32 v{d+1}, v{ACC+4*k+2}, v{ACC+4*k+3}")
        jobs = [(NT * p, NT * p + 1, 2, 1280 * p) for p in range(2)]
        if NT == 3:
            jobs.append((2, 5, 3, 64))
        for n, (k0, k1, va, off) in enumerate(jobs):
            pack(O + 4 * n, k0); pack(O + 4 * n + 2, k1)
        for n, (k0, k1, va, off) in enumerate(jobs):
            d = O + 4 * n
            A(f"v_permlane16_swap_b32 v{d}, v{d+2}\nv_permlane16_swap_b32 v{d+1}, v{d+3}")
            A(f"buffer_store_dwordx4 {v(d,4)}, v{va}, {s(OUT_,4)}, s{sF} offen offset:{off}")

    def kernel(self, name, tag, do1, do2):
        A = self.A
        self.entry(name, tag)
        for role in ("q", "h"):
            if role == "h":
                A.label(f"L_HH_{tag}")
            pending = 0
            if do1:
                pending = self.helper1(role)
            else:
                A("s_waitcnt lgkmcnt(0)")
                self.srds_helper2()
                self.p2_loader_setup(role)
            if do2:
                self.p2_loader(role, pending)
            self.stamp_out(7, 1)
            A("s_endpgm")
        for role in ("q", "h"):
            A.label(f"L_{role.upper()}C_{tag}")
            if do1:
                (self.compute_q if role == "q" else self.compute_h)()
            else:
                self.srds_compute()
            if do2:
                self.p2_compute(role)
            self.stamp(7)
            self.stamp_out(8, 0)
            A("s_endpgm")
        A.label(f"L_end_{tag}")
        A("s_endpgm")

    def build(self):
        A, c = self.A, self.c
        head = open(__file__.rsplit("/", 1)[0] + "/header.txt").read() if "/" in __file__ else open("header.txt").read()
        A(head.rstrip())
        if c.split:
            A(f"; @launch kernel=phase1_kernel grid=(256,1,1) block=(512,1,1) lds={LDS_BYTES}")
            A(f"; @launch kernel=phase2_kernel grid=(256,1,1) block=(512,1,1) lds={LDS_BYTES}")
        else:
            A(f"; @launch grid=(256,1,1) block=(512,1,1) lds={LDS_BYTES}")
        A('.amdgcn_target "amdgcn-amd-amdhsa--gfx950"')
        if c.split:
            p2 = c.phase2
            c.phase2 = False
            self.kernel("phase1_kernel", "a", True, False)
            c.phase2 = p2
            self.kernel("phase2_kernel", "b", False, True)
            A(kernel_desc("phase1_kernel", 256, 256)); A(kernel_desc("phase2_kernel", 256, 256))
        else:
            self.kernel(NAME + "_kernel", "a", True, c.phase2)
            A(kernel_desc(NAME + "_kernel", 256, 256))
        return A.text()

def make(**kw):
    return Gen(Cfg(**kw)).build()

if __name__ == "__main__":
    kw = {}
    for a_ in sys.argv[2:]:
        k, val = a_.split("=")
        kw[k] = eval(val)
    open(sys.argv[1], "w").write(make(**kw))
```

```python
import sys
from asmlib import *

NAME = "parallel_sum__sliding_local_dilated__dense_activation_relu__prompt"
MF = "v_mfma_f32_16x16x32_bf16"

H_BLK = 24 * 8192
O_BLK = 10 * 8192
H_BASE = 0
O_BASE = 32 * H_BLK
FLAG_BASE = 16 << 20
STAMP_BASE = 20 << 20
WS_BYTES = 32 << 20

X_, W1_, W2_, WO_, WS_, DBG_, FLEX_, OUT_ = 20, 24, 28, 32, 36, 40, 44, 48
sWAVE, sW, sRB, sJ, sBLK, sCOL, sROT, sCNT = 52, 53, 54, 55, 56, 57, 58, 59
sT0, sT1, sT2, sT3 = 60, 61, 62, 63
sA, sB, sC, sD, sE, sF = 64, 65, 66, 67, 68, 69
mG1, mG2, mG3, mU0 = 70, 72, 74, 76
sROT2, sROT3 = 78, 79
sG, sH = 3, 80
sSTAMP = 82

Q_SLOT, H_SLOT = 49152, 40960
Q_XOFF, H_XOFF = 30720, 24576
Q_MISC, H_MISC = 147456, 155648
ST_RSTD = 576
CS_OFF = 1152
CTR_OFF = 2304
LDS_BYTES = 163840
SPIN_LIMIT = 20000

class Cfg:
    def __init__(self, **kw):
        self.split = False
        self.stamps = False
        self.phase2 = True
        self.rot = True
        self.cs_helper = True
        self.abl = ''
        self.dbgstamps = False
        self.__dict__.update(kw)

def srd(A, d, b, n):
    A(f"s_mov_b32 s{d}, s{b}\ns_mov_b32 s{d+1}, s{b+1}\ns_mov_b32 s{d+2}, {n}\ns_mov_b32 s{d+3}, 0x20000")

class Gen:
    def __init__(self, cfg):
        self.c = cfg
        self.A = Asm()
        self.nstamp = {}
        self.uid = 0

    def lab(self, p):
        self.uid += 1
        return f"L_{p}_{self.uid}"

    def stamp(self, i):
        if self.c.stamps:
            op = "s_memtime" if self.c.stamps == "cyc" else "s_memrealtime"
            self.A(f"{op} s[{sSTAMP+2*i}:{sSTAMP+2*i+1}]")

    def stamp_out(self, n, row):
        if not self.c.stamps:
            return
        A = self.A
        l = self.lab("st")
        A(f"s_waitcnt lgkmcnt(0)\ns_cmp_lg_u32 s{sW}, 0\ns_cbranch_scc1 {l}")
        if self.c.dbgstamps:
            if row == 0:
                A(f"s_lshr_b32 s{sT1}, s2, 7\ns_mul_i32 s{sT1}, s{sT1}, 28\nv_mov_b32 v1, s{sT1}\nv_mov_b32 v3, 0\ns_mov_b64 exec, 1")
                A(f"s_not_b32 s{sT0}, s{sSTAMP}\nv_mov_b32 v2, s{sT0}\nbuffer_atomic_umax v2, v3, {s(DBG_,4)}, 0 offen offset:4 sc1")
                for i in range(1, 8):
                    A(f"v_mov_b32 v2, s{sSTAMP+2*i}\nbuffer_atomic_umax v2, v1, {s(DBG_,4)}, 0 offen offset:{4+4*i} sc1")
                A("s_waitcnt vmcnt(0)")
            A.label(l)
            return
        A(f"s_lshl_b32 s{sT0}, s2, 7\ns_add_u32 s{sT0}, s{sT0}, {STAMP_BASE + 64*row}\nv_mov_b32 v1, s{sT0}")
        for i in range(n):
            A(f"v_mov_b32 v2, s{sSTAMP+2*i}\nbuffer_store_dword v2, v1, {s(WS_,4)}, 0 offen offset:{4*i}")
        A("s_waitcnt vmcnt(0)")
        A.label(l)

    def entry(self, name, first):
        A = self.A
        A(kernel_header(name))
        A("s_cmp_ge_u32 s2, 256\ns_cbranch_scc1 L_end_" + first)
        self.stamp(0)
        A("s_load_dwordx4 s[4:7], s[0:1], 0\ns_load_dwordx2 s[8:9], s[0:1], 16")
        A("s_load_dwordx4 s[12:15], s[0:1], 32\ns_load_dwordx4 s[16:19], s[0:1], 48\ns_load_dwordx2 s[10:11], s[0:1], 64")
        A(f"v_lshrrev_b32 v1, 6, v0\nv_and_b32 v0, 63, v0\nv_readfirstlane_b32 s{sWAVE}, v1")
        A(f"s_bfe_u32 s{sT0}, s2, 0x20001\ns_bfe_u32 s{sT1}, s2, 0x20003\ns_lshl2_add_u32 s{sRB}, s{sT0}, s{sT1}")
        A(f"s_and_b32 s{sT0}, s2, 1\ns_bfe_u32 s{sT2}, s2, 0x20005\ns_lshl2_add_u32 s{sJ}, s{sT0}, s{sT2}")
        A(f"s_and_b32 s{sT3}, s{sT2}, 1\ns_lshl1_add_u32 s{sBLK}, s{sRB}, s{sT3}")
        A(f"s_lshr_b32 s{sT3}, s{sT2}, 1\ns_lshl1_add_u32 s{sCOL}, s{sT0}, s{sT3}")
        A(f"s_lshr_b32 s{sA}, s2, 7")
        if self.c.rot:
            A(f"s_mul_i32 s{sROT}, s{sT1}, 3\ns_add_u32 s{sROT}, s{sROT}, s{sT2}\ns_lshl2_add_u32 s{sROT}, s{sA}, s{sROT}")
            A(f"s_cmp_ge_u32 s{sROT}, 10\ns_cselect_b32 s{sT0}, 10, 0\ns_sub_u32 s{sROT}, s{sROT}, s{sT0}")
            A(f"s_and_b32 s{sT0}, s{sBLK}, 7\ns_mul_i32 s{sROT2}, s{sT0}, 3\ns_add_u32 s{sROT2}, s{sROT2}, s{sT3}\ns_add_u32 s{sROT2}, s{sROT2}, s{sA}")
            A(f"s_add_u32 s{sROT3}, s{sT0}, s{sT3}\ns_add_u32 s{sROT3}, s{sROT3}, s{sA}")
        else:
            A(f"s_mov_b32 s{sROT}, 0\ns_mov_b32 s{sROT2}, 0\ns_mov_b32 s{sROT3}, 0")
        A(f"s_and_b32 s{sW}, s{sWAVE}, 3")
        A(f"s_cmp_ge_u32 s{sWAVE}, 4\ns_cbranch_scc1 L_helper_{first}")
        A(f"s_cmp_eq_u32 s{sA}, 0\ns_cbranch_scc1 L_QC_{first}\ns_branch L_HC_{first}")
        A.label(f"L_helper_{first}")
        A(f"s_cmp_eq_u32 s{sA}, 0\ns_cbranch_scc0 L_HH_{first}")

    def srds_helper1(self, role):
        A = self.A
        A("s_waitcnt lgkmcnt(0)")
        if role == "q":
            srd(A, W1_, 6, 640 * 3840)
        else:
            srd(A, W1_, 12, 640 * 3072)
        srd(A, X_, 4, 2048 * 1280)

    def srds_helper2(self):
        A = self.A
        srd(A, W2_, 14, 1536 * 1280); srd(A, WO_, 8, 640 * 1280); srd(A, WS_, 10, WS_BYTES); srd(A, DBG_, 18, 256)

    def srds_compute(self):
        A = self.A
        A("s_waitcnt lgkmcnt(0)")
        srd(A, WS_, 10, WS_BYTES); srd(A, DBG_, 18, 256); srd(A, X_, 4, 2048 * 1280); srd(A, OUT_, 16, 2048 * 1280)

    def bitswap23(self, k, rho, t):
        self.A(f"v_and_b32 v{t}, 4, v{rho}\nv_add_u32 v{k}, v{rho}, v{t}\nv_bfe_u32 v{t}, v{rho}, 3, 1\nv_mad_i32_i24 v{k}, v{t}, -4, v{k}")

    def xfrag_addr(self, d0, d1, base_s, t):
        A = self.A
        A(f"v_and_b32 v{t}, 15, v0\nv_lshrrev_b32 v{d1}, 1, v{t}\nv_lshrrev_b32 v{d0}, 4, v0\nv_xor_b32 v{d0}, v{d0}, v{d1}")
        A(f"v_lshlrev_b32 v{d0}, 4, v{d0}\nv_lshl_add_u32 v{d0}, v{t}, 7, v{d0}\nv_add_u32 v{d0}, s{base_s}, v{d0}\nv_xor_b32 v{d1}, 64, v{d0}")

    def reduce_pair(self, a, b, t):
        A = self.A
        A(f"v_permlane32_swap_b32 v{a}, v{b}\nv_add_f32 v{a}, v{a}, v{b}\nv_mov_b32 v{t}, v{a}")
        A(f"v_permlane16_swap_b32 v{a}, v{t}\nv_add_f32 v{a}, v{a}, v{t}\nv_mov_b32 v{t}, v{a}\nv_permlane32_swap_b32 v{a}, v{t}")

    def helper1(self, role):
        A, c = self.A, self.c
        q = role == "q"
        nW, nX, nF = (7, 4, 1) if q else (6, 4, 0)
        n = nW + nX + nF
        vW, vF, vX = 8, 15, 16
        slot, xoff, misc = (Q_SLOT, Q_XOFF, Q_MISC) if q else (H_SLOT, H_XOFF, H_MISC)
        wstep = 64 * (3840 if q else 3072)
        sMW, sMX, sMF, sOW, sOX, sOF, sISS = sA, sB, sC, sD, sE, sF, sG
        A("v_lshrrev_b32 v2, 3, v0\nv_mul_u32_u24 v2, 2560, v2\nv_and_b32 v3, 7, v0\nv_lshrrev_b32 v4, 4, v0\nv_xor_b32 v3, v3, v4\nv_lshl_add_u32 v7, v3, 4, v2")
        if q:
            A(f"s_cmp_eq_u32 s{sW}, 3\ns_cselect_b32 s{sT0}, 1, 0\ns_lshl_b32 s{sMW}, s{sW}, 3\ns_sub_u32 s{sMW}, s{sMW}, s{sT0}")
            A(f"s_lshl2_add_u32 s{sMX}, s{sW}, s{sT0}")
            A(f"s_mul_i32 s{sH}, s{sJ}, 160\ns_movk_i32 s{sCNT}, 1120")
        else:
            A(f"s_mul_i32 s{sMW}, s{sW}, 6\ns_lshl_b32 s{sMX}, s{sW}, 2\ns_mul_i32 s{sH}, s{sJ}, 384")

        def woff(d, kb_add):
            A(f"s_add_u32 s{sT0}, s{sMW}, {kb_add}\ns_lshl_b32 s{sT0}, s{sT0}, 6\nv_add_u32 v2, s{sT0}, v0")
            if q:
                A("v_mul_u32_u24 v3, 2185, v2\nv_lshrrev_b32 v3, 16, v3\nv_mul_u32_u24 v4, 30, v3\nv_sub_u32 v2, v2, v4")
                self.bitswap23(5, 3, 4)
                A("v_mul_u32_u24 v4, 26, v2\nv_lshrrev_b32 v4, 8, v4\nv_mul_u32_u24 v5, 3840, v5")
                A(f"v_mad_u32_u24 v5, v4, s{sCNT}, v5\nv_lshl_add_u32 v5, v2, 4, v5\nv_add_u32 v{d}, s{sH}, v5")
            else:
                A("v_mul_u32_u24 v3, 2731, v2\nv_lshrrev_b32 v3, 16, v3\nv_mul_u32_u24 v4, 24, v3\nv_sub_u32 v2, v2, v4")
                A("v_and_b32 v4, 6, v3\nv_xor_b32 v2, v2, v4")
                self.bitswap23(5, 3, 4)
                A(f"v_mul_u32_u24 v5, 3072, v5\nv_lshl_add_u32 v5, v2, 4, v5\nv_add_u32 v{d}, s{sH}, v5")

        def xoffs(d, kb_add):
            A(f"s_add_u32 s{sT0}, s{sMX}, {kb_add}\ns_and_b32 s{sT1}, s{sT0}, 1\ns_lshr_b32 s{sT0}, s{sT0}, 1")
            if q:
                A(f"s_sub_u32 s{sT2}, s{sT0}, 1\ns_and_b32 s{sT3}, s{sT2}, 1\ns_lshr_b32 s{sT2}, s{sT2}, 1\ns_lshl_b32 s{sT2}, s{sT2}, 5")
                A(f"s_add_u32 s{sT2}, s{sT2}, s{sT3}\ns_lshl4_add_u32 s{sT2}, s{sT1}, s{sT2}\ns_sub_u32 s{sT3}, s{sT1}, 16")
                A(f"s_cmp_eq_u32 s{sT0}, 0\ns_cselect_b32 s{sT2}, s{sT3}, s{sT2}")
            else:
                A(f"s_and_b32 s{sT3}, s{sT0}, 1\ns_lshr_b32 s{sT2}, s{sT0}, 1\ns_lshl_b32 s{sT2}, s{sT2}, 5")
                A(f"s_add_u32 s{sT2}, s{sT2}, s{sT3}\ns_lshl4_add_u32 s{sT2}, s{sT1}, s{sT2}")
            A(f"s_lshl_b32 s{sT3}, s{sRB}, 7\ns_add_u32 s{sT2}, s{sT2}, s{sT3}\ns_mul_i32 s{sT2}, s{sT2}, 1280\ns_lshl_b32 s{sT1}, s{sT1}, 6")
            A(f"v_xor_b32 v2, s{sT1}, v7\nv_add_u32 v{d}, s{sT2}, v2")

        def soffs():
            A(f"s_mul_i32 s{sOW}, s{sROT}, {wstep}\ns_lshl_b32 s{sOX}, s{sROT}, 7")
            if q:
                A(f"s_cmp_lt_u32 s{sW}, 2\ns_cselect_b32 s{sOF}, s{sOW}, s{sOX}")
            A(f"s_add_u32 s{sROT}, s{sROT}, 1\ns_cmp_ge_u32 s{sROT}, 10\ns_cselect_b32 s{sROT}, 0, s{sROT}")

        def dma(vr, srd_, so, m0s, add):
            A(f"s_add_u32 m0, s{m0s}, {add}\nbuffer_load_dwordx4 v{vr}, {s(srd_,4)}, s{so} offen lds")

        def next_slot():
            if q:
                A(f"s_add_u32 s{sISS}, s{sISS}, {slot}\ns_cmp_ge_u32 s{sISS}, {3*slot}\ns_cselect_b32 s{sISS}, 0, s{sISS}")
            else:
                A(f"s_sub_u32 s{sISS}, s{sISS}, {slot}\ns_cselect_b32 s{sISS}, {2*slot}, s{sISS}")

        def issue():
            soffs()
            A(f"s_add_u32 s{sT0}, s{sMW}, s{sISS}\ns_add_u32 s{sT1}, s{sMX}, s{sISS}")
            if q:
                A(f"s_add_u32 s{sT2}, s{sMF}, s{sISS}")
            for i in range(nX):
                dma(vX + i, X_, sOX, sT1, i * 1024)
            for i in range(nW):
                dma(vW + i, W1_, sOW, sT0, i * 1024)
            if q:
                dma(vF, FLEX_, sOF, sT2, 0)
            next_slot()

        xoffs(vX, 0)
        self.srds_helper1(role)
        soffs()
        A(f"s_lshl_b32 s{sISS}, s{sMX}, 10\ns_add_u32 s{sISS}, s{sISS}, {xoff}")
        for i in range(nX):
            if i:
                xoffs(vX + i, i)
            dma(vX + i, X_, sOX, sISS, i * 1024)
        A(f"s_lshl_b32 s{sISS}, s{sMW}, 10")
        for i in range(nW):
            woff(vW + i, i)
            dma(vW + i, W1_, sOW, sISS, i * 1024)
        if q:
            l1, l2 = self.lab("fx"), self.lab("fd")
            A(f"s_cmp_lt_u32 s{sW}, 2\ns_cbranch_scc0 {l1}")
            woff(vF, 7)
            A(f"s_add_u32 s{sMF}, s{sMW}, 7\ns_lshl_b32 s{sMF}, s{sMF}, 10")
            srd(A, FLEX_, 6, 640 * 3840)
            A(f"s_branch {l2}")
            A.label(l1)
            xoffs(vF, 4)
            A(f"s_add_u32 s{sMF}, s{sMX}, 4\ns_lshl_b32 s{sMF}, s{sMF}, 10\ns_add_u32 s{sMF}, s{sMF}, {xoff}")
            srd(A, FLEX_, 4, 2048 * 1280)
            A.label(l2)
            dma(vF, FLEX_, sOF, sMF, 0)
        A(f"s_lshl_b32 s{sMW}, s{sMW}, 10\ns_lshl_b32 s{sMX}, s{sMX}, 10\ns_add_u32 s{sMX}, s{sMX}, {xoff}")
        A(f"s_mov_b32 s{sISS}, 0")
        next_slot()
        issue(); issue()
        self.srds_helper2()
        vS0, vS1, vH0, vH1, vC = 20, 21, 22, 23, 24
        acc, buf = 28, 40
        A(f"s_lshl_b32 s{sT0}, s{sW}, 12\ns_add_u32 s{sT0}, s{sT0}, {xoff + (2048 if q else 0)}")
        self.xfrag_addr(vS0, vS1, sT0, 2)
        if q:
            A(f"s_mov_b32 s{sT0}, {xoff}")
            self.xfrag_addr(vH0, vH1, sT0, 2)
        cs = (not q) and c.cs_helper
        if cs:
            self.wfrag_addr_h(vC, 3, 3)
        for i in range(10):
            A(f"v_mov_b32 v{acc+i}, 0")
        A("v_mov_b32 v27, 0x3f803f80")
        self.p2_loader_setup(role)
        vm_after_init = 2 * n
        A(f"s_waitcnt vmcnt({vm_after_init})\ns_barrier")
        self.stamp(1)
        A(f"s_mov_b32 s{sCNT}, 0\ns_mov_b32 s{sH}, 0")
        loop = self.lab("hl")
        A.label(loop)
        mark0 = len(A.lines)
        for t in range(2):
            A(f"ds_read_b128 {v(buf+8*t,4)}, v{vS0} offset:{2048*t}\nds_read_b128 {v(buf+8*t+4,4)}, v{vS1} offset:{2048*t}")
        if cs:
            for t in range(3):
                for st in range(2):
                    for hf in range(2):
                        A(f"ds_read_b64_tr_b16 {v(buf+24+8*t+4*st+2*hf,2)}, v{vC+t} offset:{(32*st+8*hf)*384}")
        lh = self.lab("nh")
        if q:
            A(f"s_cmp_lg_u32 s{sW}, 3\ns_cbranch_scc1 {lh}")
            A(f"ds_read_b128 {v(buf+16,4)}, v{vH0}\nds_read_b128 {v(buf+20,4)}, v{vH1}")
            A.label(lh)
        l8, l9, ld = self.lab("c8"), self.lab("c9"), self.lab("cd")
        A(f"s_cmp_eq_u32 s{sCNT}, 0\ns_cbranch_scc1 {ld}\ns_cmp_ge_u32 s{sCNT}, 8\ns_cbranch_scc1 {l8}")
        issue()
        A(f"s_branch {ld}")
        A.label(l8)
        A(f"s_cmp_eq_u32 s{sCNT}, 9\ns_cbranch_scc1 {l9}")
        k1 = self.p2_prefetch(role, 0)
        A(f"s_branch {ld}")
        A.label(l9)
        k2 = self.p2_prefetch(role, 1)
        A.label(ld)
        A("s_waitcnt lgkmcnt(0)")
        for t in range(2):
            for r in range(8):
                A(f"v_dot2c_f32_bf16 v{acc+2*t}, v{buf+8*t+r}, v27\nv_dot2c_f32_bf16 v{acc+2*t+1}, v{buf+8*t+r}, v{buf+8*t+r}")
        if cs:
            for r in range(8):
                for t in range(3):
                    A(f"v_dot2c_f32_bf16 v{acc+6+t}, v{buf+24+8*t+r}, v27")
        if q:
            lh = self.lab("nh")
            A(f"s_cmp_lg_u32 s{sW}, 3\ns_cbranch_scc1 {lh}")
            for r in range(8):
                A(f"v_dot2c_f32_bf16 v{acc+4}, v{buf+16+r}, v27\nv_dot2c_f32_bf16 v{acc+5}, v{buf+16+r}, v{buf+16+r}")
            A.label(lh)
        if q:
            A(f"s_add_u32 s{sH}, s{sH}, 1\ns_cmp_eq_u32 s{sH}, 3\ns_cselect_b32 s{sH}, 0, s{sH}\ns_mov_b32 s{sT0}, {slot}\ns_cselect_b32 s{sT0}, {-2*slot}, s{sT0}")
            regs = [vS0, vS1, vH0, vH1]
        else:
            A(f"s_cmp_eq_u32 s{sH}, 0\ns_cselect_b32 s{sH}, 3, s{sH}\ns_mov_b32 s{sT0}, {-slot}\ns_cselect_b32 s{sT0}, {2*slot}, s{sT0}\ns_sub_u32 s{sH}, s{sH}, 1")
            regs = [vS0, vS1] + ([vC, vC + 1, vC + 2] if cs else [])
        for r in regs:
            A(f"v_add_u32 v{r}, s{sT0}, v{r}")
        body = A.lines[mark0:]
        if "nostats" in c.abl:
            body = [l for l in body if not l.startswith(("ds_read", "v_dot2c"))]
        if "nodot" in c.abl:
            body = [l for l in body if not l.startswith("v_dot2c")]
        if "nodma" in c.abl:
            body = [l for l in body if not l.startswith("buffer_load")]
        A.lines[mark0:] = body
        lw8, lf, lb = self.lab("w8"), self.lab("fin"), self.lab("bar")
        A(f"s_cmp_ge_u32 s{sCNT}, 8\ns_cbranch_scc1 {lw8}\ns_waitcnt vmcnt({n})\ns_branch {lb}")
        A.label(lw8)
        A(f"s_cmp_eq_u32 s{sCNT}, 9\ns_cbranch_scc1 {lf}\ns_waitcnt vmcnt({k1})")
        A.label(lb)
        A(f"s_barrier\ns_add_u32 s{sCNT}, s{sCNT}, 1\ns_branch {loop}")
        A.label(lf)
        A(f"v_and_b32 v2, 15, v0\ns_lshl_b32 s{sT0}, s{sW}, 7\ns_add_u32 s{sT0}, s{sT0}, {misc + (64 if q else 0)}\nv_lshl_add_u32 v3, v2, 2, s{sT0}")
        A(f"s_mov_b32 s{sT1}, 0x3acccccd\ns_mov_b32 s{sT2}, 0x3727c5ac")

        def fin(a, off, addr):
            self.reduce_pair(a, a + 1, 4)
            A(f"v_mul_f32 v{a}, s{sT1}, v{a}\nv_mul_f32 v5, v{a}, v{a}\nv_fma_f32 v4, v4, s{sT1}, -v5\nv_max_f32 v4, 0, v4\nv_add_f32 v4, s{sT2}, v4\nv_rsq_f32 v4, v4")
            A(f"ds_write_b32 v{addr}, v{a} offset:{off}\nds_write_b32 v{addr}, v4 offset:{off + ST_RSTD}")
        fin(acc, 0, 3); fin(acc + 2, 64, 3)
        if q:
            lh = self.lab("nh")
            A(f"s_cmp_lg_u32 s{sW}, 3\ns_cbranch_scc1 {lh}")
            A(f"s_mov_b32 s{sT0}, {misc}\nv_lshl_add_u32 v3, v2, 2, s{sT0}")
            fin(acc + 4, 0, 3)
            A.label(lh)
        if cs:
            A(f"s_mul_i32 s{sT0}, s{sW}, 192\ns_add_u32 s{sT0}, s{sT0}, {misc + CS_OFF}\nv_lshl_add_u32 v3, v2, 2, s{sT0}")
            self.reduce_pair(acc + 6, acc + 7, 4)
            A(f"ds_write_b32 v3, v{acc+6}\nds_write_b32 v3, v4 offset:64")
            self.reduce_pair(acc + 8, acc + 9, 4)
            A(f"ds_write_b32 v3, v{acc+8} offset:128")
        A("s_waitcnt lgkmcnt(0)\ns_barrier")
        self.stamp(2)
        k3 = self.p2_prefetch(role, 2)
        A("s_barrier")
        if q:
            A("s_barrier")
        return k1 + k2 + k3

    def wfrag_addr_h(self, d, nt, mul):
        A = self.A
        if mul == 3:
            A(f"s_mul_i32 s{sT3}, s{sW}, 3")
        else:
            A(f"s_lshr_b32 s{sT3}, s{sW}, 1\ns_mul_i32 s{sT3}, s{sT3}, 6")
        A("v_bfe_u32 v2, v0, 2, 3\nv_lshrrev_b32 v3, 5, v0\nv_lshl_add_u32 v3, v3, 4, v2\nv_mul_u32_u24 v3, 384, v3")
        A("v_and_b32 v4, 3, v0\nv_lshl_add_u32 v3, v4, 3, v3\nv_lshrrev_b32 v2, 1, v2")
        for t in range(nt):
            A(f"s_add_u32 s{sT2}, s{sT3}, {t}\nv_xor_b32 v4, s{sT2}, v2\nv_lshl_add_u32 v{d+t}, v4, 5, v3")

    def mfma_loop(self, mfmas, frags, bpos, at_barrier, fixups, niter):
        A = self.A
        nm = len(mfmas)
        first, last = {}, {}
        for i, (_, fs) in enumerate(mfmas):
            for f in fs:
                first.setdefault(f, i); last[f] = i
        order = sorted(frags, key=lambda f: first[f])
        seq = [(it, f) for it in range(4) for f in order]
        occupant, ready = {}, {}
        for it, f in seq:
            key = frags[f][0]
            e = -10**9
            if key in occupant:
                pit, pf = occupant[key]
                e = pit * nm + last[pf]
            e = max(e, (it - 1) * nm + bpos)
            ready[(it, f)] = e
            occupant[key] = (it, f)
        bodies, pend, tags = [], list(seq), {}
        T = Asm(); C = Counter(T, "lgkmcnt", 14)
        pro = []
        for it in range(-1, 3):
            T.lines = []
            for i in range(nm):
                g = it * nm + i
                if it >= 0:
                    for f, pre, txt in fixups:
                        if (first[f] - pre) % nm == i:
                            tit = it if first[f] - pre >= 0 else it + 1
                            C.wait(tags[(tit, f)]); T(txt)
                    C.wait(max(tags[(it, f)] for f in mfmas[i][1]))
                    T(mfmas[i][0])
                if i == bpos:
                    assert all(x[0] > it for x in pend), "chunk reads not all issued before its barrier"
                    if it >= 0:
                        C.wait_all(); T("s_barrier"); T(at_barrier)
                budget = 2
                while pend and ready[pend[0]] <= g and budget > 0:
                    x = pend.pop(0)
                    for r in frags[x[1]][1]:
                        tags[x] = C.issue(r)
                        budget -= 1
            if it == -1:
                pro = list(T.lines); C.done = C.n
            else:
                bodies.append(list(T.lines))
        assert bodies[1] == bodies[2], "loop body is not periodic"
        A.extend(pro)
        A("s_waitcnt lgkmcnt(0)")
        for f, pre, txt in fixups:
            if first[f] - pre < 0:
                A(txt)
        loop = self.lab("ml")
        A(f"s_mov_b32 s{sCNT}, {niter}")
        A.label(loop)
        body = bodies[1]
        if "nomfma" in self.c.abl:
            body = [l for l in body if not l.startswith("v_mfma")]
        if "notr" in self.c.abl:
            body = [l for l in body if not l.startswith("ds_read_b64_tr")]
        if "nox" in self.c.abl:
            body = [l for l in body if not l.startswith("ds_read_b128")]
        A.extend(body)
        A(f"s_sub_u32 s{sCNT}, s{sCNT}, 1\ns_cmp_lg_u32 s{sCNT}, 0\ns_cbranch_scc1 {loop}")

    def slot_step(self, role, regs):
        if role == "q":
            t = f"s_add_u32 s{sH}, s{sH}, 1\ns_cmp_eq_u32 s{sH}, 3\ns_cselect_b32 s{sH}, 0, s{sH}\ns_cselect_b32 s{sT0}, s{sB}, s{sA}"
        else:
            t = f"s_cmp_eq_u32 s{sH}, 0\ns_cselect_b32 s{sH}, 3, s{sH}\ns_cselect_b32 s{sT0}, s{sB}, s{sA}\ns_sub_u32 s{sH}, s{sH}, 1"
        for r in regs:
            t += f"\nv_add_u32 v{r}, s{sT0}, v{r}"
        return t

    def init_flags(self):
        A = self.A
        if self.c.split:
            return
        l = self.lab("nf")
        A(f"s_or_b32 s{sT0}, s2, s{sW}\ns_cmp_lg_u32 s{sT0}, 0\ns_cbranch_scc1 {l}")
        A(f"v_lshlrev_b32 v2, 8, v0\nv_add_u32 v2, {FLAG_BASE}, v2\nv_mov_b32 v3, 0")
        A(f"buffer_store_dword v3, v2, {s(WS_,4)}, 0 offen sc0 sc1\ns_waitcnt vmcnt(0)")
        A(f"v_mov_b32 v2, 1\ns_mov_b64 exec, 1\nbuffer_store_dword v2, v3, {s(DBG_,4)}, 0 offen sc0 sc1\ns_mov_b64 exec, -1")
        A.label(l)

    def spin(self, vaddr, srd_, target, vt):
        A = self.A
        l, d = self.lab("sp"), self.lab("sd")
        A(f"s_mov_b32 s{sT1}, {SPIN_LIMIT}")
        A.label(l)
        A(f"buffer_load_dword v{vt}, v{vaddr}, {s(srd_,4)}, 0 offen sc0 sc1\ns_waitcnt vmcnt(0)\nv_readfirstlane_b32 s{sT0}, v{vt}")
        A(f"s_cmp_ge_u32 s{sT0}, {target}\ns_cbranch_scc1 {d}\ns_sub_u32 s{sT1}, s{sT1}, 1\ns_cmp_lg_u32 s{sT1}, 0\ns_cbranch_scc1 {l}")
        A.label(d)

    def publish(self, role, misc, vrdy):
        A = self.A
        A("s_waitcnt vmcnt(0)")
        if self.c.split:
            return
        l, r = self.lab("pb"), self.lab("rd")
        A(f"v_mov_b32 v2, {misc + CTR_OFF}\nv_mov_b32 v3, 1\ns_mov_b64 exec, 1\nds_add_rtn_u32 v4, v2, v3\ns_waitcnt lgkmcnt(0)\ns_mov_b64 exec, -1")
        A(f"v_readfirstlane_b32 s{sT0}, v4\ns_cmp_lg_u32 s{sT0}, 3\ns_cbranch_scc1 {l}")
        A(f"v_readfirstlane_b32 s{sT0}, v{vrdy}\ns_cmp_lg_u32 s{sT0}, 0\ns_cbranch_scc1 {r}")
        A("v_mov_b32 v2, 0")
        self.spin(2, DBG_, 1, 4)
        A.label(r)
        A(f"s_lshl_b32 s{sT0}, s{sRB}, 8\ns_add_u32 s{sT0}, s{sT0}, {FLAG_BASE + (4096 if role == 'q' else 0)}\nv_mov_b32 v2, s{sT0}")
        A(f"s_mov_b64 exec, 1\nbuffer_atomic_add v3, v2, {s(WS_,4)}, 0 offen sc1\ns_mov_b64 exec, -1")
        A.label(l)

    def compute_h(self):
        A, c = self.A, self.c
        vWa, vX0, vX1 = 8, 14, 15
        XF, WF, ACC = 24, 56, 80
        self.srds_compute()
        self.wfrag_addr_h(vWa, 6, 6)
        A(f"s_and_b32 s{sT0}, s{sW}, 1\ns_lshl_b32 s{sT0}, s{sT0}, 13\ns_add_u32 s{sT0}, s{sT0}, {H_XOFF}")
        self.xfrag_addr(vX0, vX1, sT0, 2)
        for i in range(96):
            A(f"v_mov_b32 v{ACC+i}, 0")
        A(f"v_mov_b32 v2, {H_MISC + CTR_OFF}\nv_mov_b32 v3, 0\nds_write_b32 v2, v3")
        A(f"s_mov_b32 s{sA}, {-H_SLOT}\ns_mov_b32 s{sB}, {2*H_SLOT}\ns_mov_b32 s{sH}, 0")
        A("s_waitcnt lgkmcnt(0)\ns_barrier")
        self.stamp(1)
        mf, fr = [], {}
        for st in range(2):
            for i in range(4):
                fr[("X", st, i)] = (("X", st, i), [f"ds_read_b128 {v(XF+16*st+4*i,4)}, v{vX1 if st else vX0} offset:{2048*i}"])
            for t in range(6):
                fr[("W", st, t)] = (("W", t), [f"ds_read_b64_tr_b16 {v(WF+4*t+2*hf,2)}, v{vWa+t} offset:{(32*st+8*hf)*384}" for hf in range(2)])
                for i in range(4):
                    a = v(ACC + 4 * (6 * i + t), 4)
                    mf.append((f"{MF} {a}, {v(WF+4*t,4)}, {v(XF+16*st+4*i,4)}, {a}", [("W", st, t), ("X", st, i)]))
        self.mfma_loop(mf, fr, 24 + 5, self.slot_step("h", list(range(vWa, vWa + 6)) + [vX0, vX1]), [], 10)
        self.stamp(2)
        vRDY = 23
        if not c.split:
            A(f"v_mov_b32 v2, 0\nbuffer_load_dword v{vRDY}, v2, {s(DBG_,4)}, 0 offen sc0 sc1")
        A(f"v_and_b32 v2, 15, v0\ns_and_b32 s{sT0}, s{sW}, 1\ns_lshl_b32 s{sT1}, s{sT0}, 8\ns_add_u32 s{sT1}, s{sT1}, {H_MISC}\nv_lshl_add_u32 v8, v2, 2, s{sT1}")
        A(f"v_lshrrev_b32 v2, 4, v0\ns_lshr_b32 s{sT2}, s{sW}, 1\ns_mul_i32 s{sT1}, s{sT2}, 384\ns_add_u32 s{sT1}, s{sT1}, {H_MISC + CS_OFF}\nv_lshl_add_u32 v9, v2, 4, s{sT1}")
        A(f"v_lshlrev_b32 v10, 4, v0\nv_add_u32 v11, 4096, v10")
        A(f"s_lshl1_add_u32 s{sT0}, s{sRB}, s{sT0}\ns_mul_i32 s{sT0}, s{sT0}, {H_BLK}")
        A(f"s_mul_i32 s{sT1}, s{sJ}, 6\ns_mul_i32 s{sT2}, s{sT2}, 3\ns_add_u32 s{sT1}, s{sT1}, s{sT2}")
        for pr, d in enumerate([sC, sD, sE]):
            A(f"s_add_u32 s{sT2}, s{sT1}, {pr}\ns_lshr_b32 s{sT3}, s{sT2}, 1\ns_lshl_b32 s{sT3}, s{sT3}, 13\ns_and_b32 s{sT2}, s{sT2}, 1\ns_lshl_b32 s{sT2}, s{sT2}, 10")
            A(f"s_add_u32 s{d}, s{sT0}, s{sT3}\ns_add_u32 s{d}, s{d}, s{sT2}")
        A("s_waitcnt lgkmcnt(0)\ns_barrier")
        C = Counter(A, "lgkmcnt", 14)
        MR, CS = 24, 32
        tm = [C.issue(f"ds_read2_b32 {v(MR+2*i,2)}, v8 offset0:{16*i} offset1:{16*i+144}") for i in range(4)]
        tc = [C.issue(f"ds_read_b128 {v(CS+4*t,4)}, v9 offset:{64*t}") for t in range(6)]
        st_mod = "" if c.split else " sc0 sc1"
        for pr in range(3):
            C.wait(tc[2 * pr + 1])
            for i in range(4):
                o = 56 + 4 * ((4 * pr + i) % 6)
                for tt in range(2):
                    t = 2 * pr + tt
                    a = ACC + 4 * (6 * i + t)
                    self.fold_t(a, CS + 4 * t, MR + 2 * i)
                    A(f"v_cvt_pk_bf16_f32 v{o+2*tt}, v{a}, v{a+1}\nv_cvt_pk_bf16_f32 v{o+2*tt+1}, v{a+2}, v{a+3}")
                for r in range(4):
                    A(f"v_pk_max_i16 v{o+r}, v{o+r}, 0")
                A(f"buffer_store_dwordx4 {v(o,4)}, v{11 if i >= 2 else 10}, {s(WS_,4)}, s{[sC,sD,sE][pr]} offen offset:{2048*(i&1)}{st_mod}")
        self.stamp(3)
        if c.phase2 and not c.split:
            self.p2_xload(96)
        self.publish("h", H_MISC, vRDY)
        self.stamp(4)

    def fold_t(self, a, cs, mr):
        A = self.A
        for h in (0, 2):
            A(f"v_pk_fma_f32 {v(a+h,2)}, {v(cs+h,2)}, {v(mr,2)}, {v(a+h,2)} op_sel_hi:[1,0,1] neg_lo:[0,1,0] neg_hi:[0,1,0]")
        for h in (0, 2):
            A(f"v_pk_mul_f32 {v(a+h,2)}, {v(a+h,2)}, {v(mr,2)} op_sel:[0,1] op_sel_hi:[1,1]")

    def fold_v(self, a, csreg, mean4, rstd4):
        A = self.A
        p = csreg & ~1
        sel = csreg & 1
        for h in (0, 2):
            A(f"v_pk_fma_f32 {v(a+h,2)}, {v(mean4+h,2)}, {v(p,2)}, {v(a+h,2)} op_sel:[0,{sel},0] op_sel_hi:[1,{sel},1] neg_lo:[0,1,0] neg_hi:[0,1,0]")
        for h in (0, 2):
            A(f"v_pk_mul_f32 {v(a+h,2)}, {v(a+h,2)}, {v(rstd4+h,2)}")

    def compute_q(self):
        A, c = self.A, self.c
        vW, vX0, vX1, vH0, vH1 = 1, 2, 3, 4, 5
        BC, BP, AC, AP, ONE = 8, 12, 20, 22, 28
        vT = 32
        XF, WF, AQ, AK, AV, AH = 56, 80, 120, 160, 200, 240
        self.srds_compute()
        self.init_flags()
        A(f"v_lshrrev_b32 v6, 4, v0\nv_and_b32 v7, 15, v0\nv_cmp_le_u32 {s(mG1,2)}, 1, v6\nv_cmp_le_u32 {s(mG2,2)}, 2, v6\nv_cmp_le_u32 {s(mG3,2)}, 3, v6\nv_cmp_eq_u32 {s(mU0,2)}, 0, v7")
        A(f"s_or_b32 s{sT3}, s{sRB}, s{sW}\ns_cmp_eq_u32 s{sT3}, 0\ns_cselect_b32 s{sF}, 64, 0\ns_cmp_eq_u32 s{sW}, 0\ns_cselect_b32 s{sE}, 1, 9\ns_cselect_b32 s{sD}, 7, 15")
        A(f"v_mov_b32 v40, 0xf149f2ca\nv_mov_b32 v41, 0\nv_mov_b32 v42, 0xffff\nv_mov_b32 v43, 0xffff0000")
        for k in range(3):
            A(f"v_mov_b32 v{AC+2*k}, 0\nv_mov_b32 v{AC+2*k+1}, 0")
        for r in range(4):
            A(f"v_lshl_add_u32 v44, v6, 2, {r}\nv_sub_u32 v45, v7, v44")
            A(f"v_cmp_ge_u32 vcc, 7, v45\nv_cndmask_b32 v{BC+r}, v40, v41, vcc\nv_cndmask_b32 v46, v41, v{42+(r&1)}, vcc\nv_or_b32 v{AC+(r>>1)}, v{AC+(r>>1)}, v46")
            A(f"v_add_u32 v45, s{sF}, v7\nv_add_u32 v46, s{sE}, v45\nv_cmp_ge_u32 {s(sA,2)}, v44, v46\nv_cmp_ge_u32 vcc, s{sD}, v44\ns_and_b64 vcc, vcc, {s(sA,2)}")
            A(f"v_cndmask_b32 v{BP+r}, v40, v41, vcc\nv_cndmask_b32 v46, v41, v{42+(r&1)}, vcc\nv_or_b32 v{AP+(r>>1)}, v{AP+(r>>1)}, v46")
            A(f"v_add_u32 v46, 9, v45\nv_cmp_ge_u32 vcc, v44, v46")
            A(f"v_cndmask_b32 v{BP+4+r}, v40, v41, vcc\nv_cndmask_b32 v46, v41, v{42+(r&1)}, vcc\nv_or_b32 v{AP+2+(r>>1)}, v{AP+2+(r>>1)}, v46")
        for r in range(4):
            A(f"v_mov_b32 v{ONE+r}, 0x3f803f80")
        A(f"s_lshl_b32 s{sT0}, s{sW}, 7\ns_add_u32 s{sT0}, s{sT0}, {Q_MISC + 64}\ns_mov_b32 s{sT1}, {Q_MISC}\ns_mov_b32 s{sT2}, {Q_MISC + CS_OFF}")
        A(f"v_lshl_add_u32 v{vT}, v7, 2, s{sT0}\nv_lshl_add_u32 v{vT+1}, v7, 2, s{sT1}\nv_lshl_add_u32 v{vT+2}, v6, 4, s{sT0}\nv_lshl_add_u32 v{vT+3}, v6, 4, s{sT1}")
        A(f"v_lshl_add_u32 v{vT+4}, v6, 4, s{sT2}\nv_lshl_add_u32 v{vT+5}, v7, 2, s{sT2}")
        A(f"v_bfe_u32 v6, v0, 2, 3\nv_lshrrev_b32 v7, 5, v0\nv_lshl_add_u32 v6, v7, 4, v6\nv_mul_u32_u24 v6, 480, v6\nv_and_b32 v7, 3, v0\nv_lshl_add_u32 v{vW}, v7, 3, v6")
        A(f"s_lshl_b32 s{sT0}, s{sW}, 12\ns_add_u32 s{sT0}, s{sT0}, {Q_XOFF + 2048}")
        self.xfrag_addr(vX0, vX1, sT0, 6)
        A(f"s_mov_b32 s{sT0}, {Q_XOFF}")
        self.xfrag_addr(vH0, vH1, sT0, 6)
        for i in range(AQ, 256):
            A(f"v_mov_b32 v{i}, 0")
        A(f"v_mov_b32 v6, {Q_MISC + CTR_OFF}\nv_mov_b32 v7, 0\nds_write_b32 v6, v7")
        A(f"s_mov_b32 s{sA}, {Q_SLOT}\ns_mov_b32 s{sB}, {-2*Q_SLOT}\ns_mov_b32 s{sH}, 0")
        A("s_waitcnt lgkmcnt(0)\ns_barrier")
        self.stamp(1)
        lw = [self.lab("qw") for _ in range(4)]
        le1 = self.lab("e1")
        A(f"s_cmp_eq_u32 s{sW}, 1\ns_cbranch_scc1 {lw[1]}\ns_cmp_eq_u32 s{sW}, 2\ns_cbranch_scc1 {lw[2]}\ns_cmp_eq_u32 s{sW}, 3\ns_cbranch_scc1 {lw[3]}")
        accq = lambda t, p: [AQ, AK, AV][t // 5] + 20 * p + 4 * (t % 5)
        for w in range(4):
            A.label(lw[w])
            mf, fr, fix = [], {}, []
            for st in range(2):
                for i in range(3):
                    xa = [vH0, vH1][st] if i == 2 else [vX0, vX1][st]
                    fr[("X", st, i)] = (("X", st, i), [f"ds_read_b128 {v(XF+12*st+4*i,4)}, v{xa} offset:{2048*i if i < 2 else 0}"])
                hx = XF + 12 * st + 8
                fix.append((("X", st, 2), 2, "\n".join(f"v_cndmask_b32 v{hx+r}, v{hx+r}, v{ONE}, {s(mU0,2)}" for r in range(4))))
                for t in range(15):
                    sl = (15 * st + t) % 10
                    fr[("W", st, t)] = (("W", sl), [f"ds_read_b64_tr_b16 {v(WF+4*sl+2*hf,2)}, v{vW} offset:{(32*st+8*hf)*480+32*t}" for hf in range(2)])
                    for i in [0, 1] + ([2] if t % 4 == w else []):
                        a = v(accq(t, i) if i < 2 else AH + 4 * (t // 4), 4)
                        wf, xf = v(WF + 4 * sl, 4), v(XF + 12 * st + 4 * i, 4)
                        ops = f"{wf}, {xf}" if t < 10 else f"{xf}, {wf}"
                        mf.append((f"{MF} {a}, {ops}, {a}", [("W", st, t), ("X", st, i)]))
            half = len(mf) // 2
            bpos = max(i for i, m in enumerate(mf) if ("W", 1, 7) in m[1])
            self.mfma_loop(mf, fr, bpos, self.slot_step("q", [vW, vX0, vX1, vH0, vH1]), fix, 10)
            A(f"s_mov_b64 exec, {s(mU0,2)}")
            for t in range(w, 10, 4):
                A(f"ds_write_b128 v{vT+4}, {v(AH+4*(t//4),4)} offset:{64*t}")
            A("s_mov_b64 exec, 0xffff")
            for t in range(w, 15, 4):
                if t >= 10:
                    A(f"ds_write_b32 v{vT+5}, v{AH+4*(t//4)} offset:{64*t}")
            A("s_mov_b64 exec, -1")
            if w < 3:
                A(f"s_branch {le1}")
        A.label(le1)
        self.stamp(2)
        vRDY = 26
        if not c.split:
            A(f"v_mov_b32 v6, 0\nbuffer_load_dword v{vRDY}, v6, {s(DBG_,4)}, 0 offen sc0 sc1")
        A(f"s_mul_i32 s{sT0}, s{sW}, 10240\ns_add_u32 s{sT1}, s{sT0}, 10240\nv_lshl_add_u32 v1, v0, 4, s{sT1}\nv_lshl_add_u32 v2, v0, 3, s{sT1}")
        A(f"s_cmp_eq_u32 s{sW}, 0\ns_cselect_b32 s{sT1}, 0, 2560\ns_add_u32 s{sT1}, s{sT1}, s{sT0}")
        A(f"v_lshl_add_u32 v3, v0, 4, s{sT0}\nv_lshl_add_u32 v4, v0, 4, s{sT1}\nv_lshl_add_u32 v5, v0, 3, s{sT0}\nv_lshl_add_u32 v6, v0, 3, s{sT1}")
        A("v_lshlrev_b32 v7, 4, v0\nv_lshlrev_b32 v27, 3, v0")
        A("s_waitcnt lgkmcnt(0)\ns_barrier")
        C = Counter(A, "lgkmcnt", 14)
        MR, VM, CSK, CSV, CSQ = 38, 44, 68, 88, 94
        t_mr = [C.issue(f"ds_read2_b32 {v(MR,2)}, v{vT} offset0:0 offset1:144"),
                C.issue(f"ds_read2_b32 {v(MR+2,2)}, v{vT} offset0:16 offset1:160"),
                C.issue(f"ds_read2_b32 {v(MR+4,2)}, v{vT+1} offset0:0 offset1:144")]
        t_ck = [C.issue(f"ds_read_b128 {v(CSK+4*t,4)}, v{vT+4} offset:{64*(5+t)}") for t in range(5)]
        t_vm = []
        for i in range(3):
            ad, off = (vT + 2, 64 * i) if i < 2 else (vT + 3, 0)
            C.issue(f"ds_read_b128 {v(VM+8*i,4)}, v{ad} offset:{off}")
            t_vm.append(C.issue(f"ds_read_b128 {v(VM+8*i+4,4)}, v{ad} offset:{off + ST_RSTD}"))
        C.wait(t_ck[4])
        t_cv = [C.issue(f"ds_read_b32 v{CSV+t}, v{vT+5} offset:{64*(10+t)}") for t in range(5)]
        t_cq = [C.issue(f"ds_read_b128 {v(CSQ+4*t,4)}, v{vT+4} offset:{64*t}") for t in range(5)]
        KC = lambda p: AK + 10 * p
        KP = lambda p: AK + 20 + 10 * p
        for p in range(2):
            for t in range(5):
                a = AK + 20 * p + 4 * t
                self.fold_t(a, CSK + 4 * t, MR + 2 * p)
                A(f"v_cvt_pk_bf16_f32 v{KC(p)+2*t}, v{a}, v{a+1}\nv_cvt_pk_bf16_f32 v{KC(p)+2*t+1}, v{a+2}, v{a+3}")
        C.wait(t_cv[4])
        for p in range(2):
            for t in range(5):
                a = AV + 20 * p + 4 * t
                self.fold_v(a, CSV + t, VM + 8 * p, VM + 8 * p + 4)
                A(f"v_cvt_pk_bf16_f32 v{a+3}, v{a+2}, v{a+3}\nv_cvt_pk_bf16_f32 v{a+2}, v{a}, v{a+1}")
        l3 = self.lab("nx")
        A(f"s_cmp_eq_u32 s{sW}, 3\ns_cbranch_scc1 {l3}")
        for p in range(2):
            A(f"ds_write_b128 v1, {v(KC(p),4)} offset:{2560*p}\nds_write_b128 v1, {v(KC(p)+4,4)} offset:{2560*p+1024}\nds_write_b64 v2, {v(KC(p)+8,2)} offset:{2560*p+2048}")
            for t in range(5):
                A(f"ds_write_b64 v2, {v(AV+20*p+4*t+2,2)} offset:{5120+2560*p+512*t}")
        A.label(l3)
        lh = [self.lab("hw") for _ in range(5)]
        A(f"s_cmp_eq_u32 s{sW}, 1\ns_cbranch_scc1 {lh[1]}\ns_cmp_eq_u32 s{sW}, 2\ns_cbranch_scc1 {lh[2]}\ns_cmp_eq_u32 s{sW}, 3\ns_cbranch_scc1 {lh[3]}")
        for w in range(4):
            A.label(lh[w])
            for t in range(w, 15, 4):
                a = AH + 4 * (t // 4)
                if t < 5:
                    continue
                if t < 10:
                    k = t - 5
                    self.fold_t(a, CSK + 4 * k, MR + 4)
                    A(f"v_cvt_pk_bf16_f32 v{a}, v{a}, v{a+1}\nv_cvt_pk_bf16_f32 v{a+1}, v{a+2}, v{a+3}")
                    if k < 4:
                        A(f"ds_write_b64 v7, {v(a,2)} offset:{1024*(k>>1)+8*(k&1)}")
                    else:
                        A(f"ds_write_b64 v27, {v(a,2)} offset:2048")
                else:
                    k = t - 10
                    self.fold_v(a, CSV + k, VM + 16, VM + 20)
                    A(f"v_cvt_pk_bf16_f32 v{a}, v{a}, v{a+1}\nv_cvt_pk_bf16_f32 v{a+1}, v{a+2}, v{a+3}")
                    A(f"ds_write_b64 v27, {v(a,2)} offset:{5120+512*k}")
            if w < 3:
                A(f"s_branch {lh[4]}")
        A.label(lh[4])
        A(f"s_waitcnt lgkmcnt(0)\ns_mov_b32 s{sT0}, 0x3ea52b5c\nv_mul_f32 v{MR+1}, s{sT0}, v{MR+1}\nv_mul_f32 v{MR+3}, s{sT0}, v{MR+3}")
        A("s_barrier")
        C = Counter(A, "lgkmcnt", 14)
        t_kp, t_vp = [], []
        for p in range(2):
            C.issue(f"ds_read_b128 {v(KP(p),4)}, v{3+p}")
            C.issue(f"ds_read_b128 {v(KP(p)+4,4)}, v{3+p} offset:1024")
            t_kp.append(C.issue(f"ds_read_b64 {v(KP(p)+8,2)}, v{5+p} offset:2048"))
        for p in range(2):
            for t in range(5):
                t_vp.append(C.issue(f"ds_read_b64 {v(AV+20*p+4*t,2)}, v{5+p} offset:{5120+512*t}"))
        QH = lambda p, h: 44 + 16 * p + 4 * h
        masks = [None, mG1, mG2, mG3]
        for p in range(2):
            for t in range(5):
                a = AQ + 20 * p + 4 * t
                self.fold_t(a, CSQ + 4 * t, MR + 2 * p)
                d = QH(p, 0) if t == 0 else (QH(p, 3) + 2 if t == 4 else a)
                A(f"v_cvt_pk_bf16_f32 v{d}, v{a}, v{a+1}\nv_cvt_pk_bf16_f32 v{d+1}, v{a+2}, v{a+3}")
                if 1 <= t <= 3:
                    for r in range(2):
                        A(f"v_cndmask_b32 v{QH(p,t)+r}, 0, v{a+r}, {s(masks[t],2)}\nv_cndmask_b32 v{QH(p,t-1)+2+r}, v{a+r}, 0, {s(masks[t],2)}")
        SP = lambda p, h: 76 + 8 * (4 * p + h)
        for p in range(2):
            for h in range(4):
                A(f"{MF} {v(SP(p,h)+4,4)}, {v(KC(p)+2*h,4)}, {v(QH(p,h),4)}, {v(BC,4)}")
        for p in range(2):
            C.wait(t_kp[p])
            for h in range(4):
                A(f"{MF} {v(SP(p,h),4)}, {v(KP(p)+2*h,4)}, {v(QH(p,h),4)}, {v(BP+4*p,4)}")
        MX = 140
        for n in range(8):
            b = 76 + 8 * n
            for r in range(4):
                A(f"v_max_f32 v{b+4+r}, v{b+r}, v{b+4+r}")
            A(f"v_max3_f32 v{MX+n}, v{b+4}, v{b+5}, v{b+6}\nv_max_f32 v{MX+n}, v{MX+n}, v{b+7}")
        for n in range(0, 8, 2):
            A(f"v_permlane32_swap_b32 v{MX+n}, v{MX+n+1}")
        for n in range(0, 8, 2):
            A(f"v_max_f32 v{MX+n}, v{MX+n}, v{MX+n+1}")
        for n in (0, 4):
            A(f"v_permlane16_swap_b32 v{MX+n}, v{MX+n+2}")
        for n in (0, 4):
            A(f"v_max_f32 v{MX+n}, v{MX+n}, v{MX+n+2}\nv_mov_b32 v{MX+n+2}, v{MX+n}")
        for n in (0, 4):
            A(f"v_permlane16_swap_b32 v{MX+n}, v{MX+n+2}")
        for n in range(0, 8, 2):
            A(f"v_mov_b32 v{MX+n+1}, v{MX+n}")
        for n in range(0, 8, 2):
            A(f"v_permlane32_swap_b32 v{MX+n}, v{MX+n+1}")
        for n in range(8):
            b = 76 + 8 * n
            m = MX + n
            for r in (0, 2):
                A(f"v_pk_add_f32 {v(b+4+r,2)}, {v(b+4+r,2)}, {v(m & ~1,2)} op_sel:[0,{m&1}] op_sel_hi:[1,{m&1}] neg_lo:[0,1] neg_hi:[0,1]")
            for r in range(4):
                A(f"v_exp_f32 v{b+4+r}, v{b+4+r}")
        for n in range(8):
            b, p = 76 + 8 * n, n >> 2
            A(f"v_cvt_pk_bf16_f32 v{b+4}, v{b+4}, v{b+5}\nv_cvt_pk_bf16_f32 v{b+5}, v{b+6}, v{b+7}")
            A(f"v_and_b32 v{b}, v{AP+2*p}, v{b+4}\nv_and_b32 v{b+1}, v{AP+2*p+1}, v{b+5}\nv_and_b32 v{b+2}, v{AC}, v{b+4}\nv_and_b32 v{b+3}, v{AC+1}, v{b+5}")
        for n in range(8):
            b = 76 + 8 * n
            A(f"{MF} {v(b+4,4)}, {v(ONE,4)}, {v(b,4)}, 0")
        C.wait_all()
        OT = {}
        pool = list(range(44, 76, 4)) + list(range(160, 200, 4))
        for p in range(2):
            for t in range(5):
                for h in ([t - 1] if t >= 1 else []) + ([t] if t <= 3 else []):
                    OT[(p, t, h)] = pool.pop(0)
                    A(f"{MF} {v(OT[(p,t,h)],4)}, {v(AV+20*p+4*t,4)}, {v(SP(p,h),4)}, 0")
        for n in range(8):
            A(f"v_rcp_f32 v{MX+n}, v{76+8*n+4}")
        A(f"s_lshr_b32 s{sT0}, s{sW}, 1\ns_lshl1_add_u32 s{sT0}, s{sRB}, s{sT0}\ns_mul_i32 s{sT0}, s{sT0}, {O_BLK}\ns_and_b32 s{sT1}, s{sW}, 1\ns_lshl_b32 s{sT1}, s{sT1}, 12")
        A(f"s_add_u32 s{sT0}, s{sT0}, s{sT1}\ns_add_u32 s{sT0}, s{sT0}, {O_BASE}\ns_mul_i32 s{sT1}, s{sJ}, 5")
        so = [sA, sB, sC, sD, sE]
        for t in range(5):
            A(f"s_add_u32 s{sT2}, s{sT1}, {t}\ns_lshr_b32 s{sT3}, s{sT2}, 2\ns_lshl_b32 s{sT3}, s{sT3}, 13\ns_and_b32 s{sT2}, s{sT2}, 3\ns_lshl_b32 s{sT2}, s{sT2}, 9")
            A(f"s_add_u32 s{so[t]}, s{sT0}, s{sT3}\ns_add_u32 s{so[t]}, s{so[t]}, s{sT2}")
        st_mod = "" if c.split else " sc0 sc1"
        for p in range(2):
            for t in range(5):
                if 1 <= t <= 3:
                    a, b2 = OT[(p, t, t - 1)], OT[(p, t, t)]
                    for r in range(4):
                        A(f"v_cndmask_b32 v{a+r}, v{a+r}, v{b2+r}, {s(masks[t],2)}")
                    A(f"v_cndmask_b32 v{b2}, v{MX+4*p+t-1}, v{MX+4*p+t}, {s(masks[t],2)}")
                    m = b2
                else:
                    a = OT[(p, t, min(t, 3))]
                    m = MX + 4 * p + min(t, 3)
                for r in (0, 2):
                    A(f"v_pk_mul_f32 {v(a+r,2)}, {v(a+r,2)}, {v(m & ~1,2)} op_sel:[0,{m&1}] op_sel_hi:[1,{m&1}]")
                A(f"v_cvt_pk_bf16_f32 v{a}, v{a}, v{a+1}\nv_cvt_pk_bf16_f32 v{a+1}, v{a+2}, v{a+3}")
                A(f"buffer_store_dwordx2 {v(a,2)}, v27, {s(WS_,4)}, s{so[t]} offen offset:{2048*p}{st_mod}")
        self.stamp(3)
        if c.phase2 and not c.split:
            self.p2_xload(64)
        self.publish("q", Q_MISC, vRDY)
        self.stamp(4)

    @staticmethod
    def p2geom(role):
        if role == "q":
            return dict(N=64, nW=2, RW=8, RA=4, wslot=lambda i: 49152 + 8192 * i, abase=114688, pre=[6, 8, 8])
        return dict(N=96, nW=3, RW=10, RA=4, wslot=lambda i: 155648 - 12288 * (i + 1), abase=0, pre=[6, 9, 10])

    P2W, P2A, P2F = 96, 99, 100

    def p2_loader_setup(self, role):
        A, g = self.A, self.p2geom(role)
        if not self.c.phase2:
            return
        if role == "q":
            A(f"s_lshl_b32 s{sCOL}, s{sCOL}, 7\ns_add_u32 s{sCOL}, s{sCOL}, 768")
            A(f"v_lshrrev_b32 v2, 3, v0\nv_and_b32 v3, 6, v2\nv_and_b32 v4, 7, v0\nv_xor_b32 v3, v3, v4\nv_mul_u32_u24 v2, 1280, v2\nv_lshl_add_u32 v2, v3, 4, v2")
            A(f"s_mul_i32 s{sT0}, s{sW}, {16*1280}\ns_add_u32 s{sT0}, s{sT0}, s{sCOL}\nv_add_u32 v{self.P2W}, s{sT0}, v2\nv_add_u32 v{self.P2W+1}, {8*1280-1024}, v{self.P2W}")
        else:
            A(f"s_mul_i32 s{sCOL}, s{sCOL}, 192")
            for i in range(3):
                A(f"s_mul_i32 s{sT0}, s{sW}, 192\ns_add_u32 s{sT0}, s{sT0}, {64*i}\nv_add_u32 v2, s{sT0}, v0")
                A("v_mul_u32_u24 v3, 5462, v2\nv_lshrrev_b32 v3, 16, v3\nv_mul_u32_u24 v4, 12, v3\nv_sub_u32 v2, v2, v4")
                A("v_lshrrev_b32 v4, 1, v3\nv_and_b32 v4, 2, v4\nv_xor_b32 v2, v2, v4\nv_mul_u32_u24 v3, 1280, v3\nv_lshl_add_u32 v2, v2, 4, v3")
                A(f"s_sub_u32 s{sT0}, s{sCOL}, {1024*i}\nv_add_u32 v{self.P2W+i}, s{sT0}, v2")
        A(f"s_lshl_b32 s{sT0}, s{sW}, 11\nv_lshl_add_u32 v{self.P2A}, v0, 4, s{sT0}")
        A(f"s_lshr_b32 s{sT0}, s{sBLK}, 1\ns_lshl_b32 s{sT0}, s{sT0}, 8\ns_add_u32 s{sT0}, s{sT0}, {FLAG_BASE}\nv_mov_b32 v{self.P2F}, s{sT0}\nv_add_u32 v{self.P2F+1}, 4096, v{self.P2F}\nv_mov_b32 v{self.P2F+2}, 0")
        self.wnext = 0

    sPW, sPA, sPM, sPN = 4, 5, 6, 7

    def p2_issue_w(self, role, cw, C=None):
        A, g = self.A, self.p2geom(role)
        emit = (C.issue if C else A)
        if cw == 0:
            A(f"s_mov_b32 s{self.sPW}, s{sROT2}\ns_mul_i32 s{self.sPM}, s{sW}, {1024*g['nW']}")
        if cw == 24:
            A(f"s_mov_b32 s{self.sPW}, s{sROT3}")
        lim = 24 if cw < 24 else 10
        A(f"s_cmp_ge_u32 s{self.sPW}, {lim}\ns_cselect_b32 s{sT0}, {lim}, 0\ns_sub_u32 s{self.sPW}, s{self.sPW}, s{sT0}\ns_mul_i32 s{sT0}, s{self.sPW}, {64*1280}")
        A(f"s_add_u32 s{self.sPW}, s{self.sPW}, 1\ns_add_u32 m0, s{self.sPM}, {g['wslot'](cw % g['RW'])}")
        tag = None
        for i in range(g["nW"]):
            tag = emit(f"buffer_load_dwordx4 v{self.P2W+i}, {s(W2_ if cw < 24 else WO_,4)}, s{sT0} offen offset:{1024*i} lds")
        return tag

    def p2_issue_a(self, role, ca, C):
        A, g = self.A, self.p2geom(role)
        if ca == 0:
            A(f"s_mov_b32 s{self.sPA}, s{sROT2}\ns_lshl_b32 s{self.sPN}, s{sW}, 11\ns_mul_i32 s8, s{sBLK}, {H_BLK}")
        if ca == 24:
            A(f"s_mov_b32 s{self.sPA}, s{sROT3}\ns_mul_i32 s8, s{sBLK}, {O_BLK}\ns_add_u32 s8, s8, {O_BASE}")
        lim = 24 if ca < 24 else 10
        A(f"s_cmp_ge_u32 s{self.sPA}, {lim}\ns_cselect_b32 s{sT0}, {lim}, 0\ns_sub_u32 s{self.sPA}, s{self.sPA}, s{sT0}\ns_lshl_b32 s{sT0}, s{self.sPA}, 13\ns_add_u32 s{sT0}, s{sT0}, s8")
        A(f"s_add_u32 s{self.sPA}, s{self.sPA}, 1\ns_add_u32 m0, s{self.sPN}, {g['abase'] + 8192*(ca % g['RA'])}")
        mod = "" if self.c.split else " sc0 sc1"
        for i in range(2):
            tag = C.issue(f"buffer_load_dwordx4 v{self.P2A}, {s(WS_,4)}, s{sT0} offen offset:{1024*i}{mod} lds")
        return tag

    def p2_prefetch(self, role, stage):
        if not self.c.phase2 or self.c.split:
            return 0
        g = self.p2geom(role)
        k = 0
        if stage == 0:
            self.A(f"buffer_load_dword v{self.P2F+3}, v{self.P2F+2}, {s(DBG_,4)}, 0 offen sc0 sc1")
            k += 1
        while self.wnext < g["pre"][stage]:
            self.p2_issue_w(role, self.wnext)
            self.wnext += 1
            k += g["nW"]
        return k

    def p2_check(self, C, tag, vres, vaddr, srd_, target):
        A = self.A
        l = self.lab("ok")
        C.wait(tag)
        A(f"v_readfirstlane_b32 s{sT0}, v{vres}\ns_cmp_ge_u32 s{sT0}, {target}\ns_cbranch_scc1 {l}")
        self.spin(vaddr, srd_, target, vres)
        A.label(l)

    def p2_loader(self, role, pending):
        A, g, c = self.A, self.p2geom(role), self.c
        C = Counter(A, "vmcnt", 62)
        tw, ta = {}, {}
        if c.split:
            for cw in range(2):
                tw[cw] = self.p2_issue_w(role, cw, C)
            for ca in range(g["RA"]):
                ta[ca] = self.p2_issue_a(role, ca, C)
                if ca >= 2:
                    tw[ca] = self.p2_issue_w(role, ca, C)
            for cw in range(g["RA"], g["RW"]):
                tw[cw] = self.p2_issue_w(role, cw, C)
        else:
            C.n = pending
            for cw in range(g["RW"]):
                tw[cw] = 1 + g["nW"] * (cw + 1)
            self.p2_check(C, 1, self.P2F + 3, self.P2F + 2, DBG_, 1)
            tag = C.issue(f"buffer_load_dword v{self.P2F+3}, v{self.P2F}, {s(WS_,4)}, 0 offen sc0 sc1")
            self.p2_check(C, tag, self.P2F + 3, self.P2F, WS_, 8)
            self.stamp(3)
            for ca in range(g["RA"]):
                ta[ca] = self.p2_issue_a(role, ca, C)
        pollt = None
        for ch in range(34):
            C.wait(max(tw[ch], ta[ch]))
            A("s_barrier")
            ca, cw = ch - 1 + g["RA"], ch - 1 + g["RW"]
            if ch >= 1:
                if ca == 22 and not c.split:
                    pollt = C.issue(f"buffer_load_dword v{self.P2F+3}, v{self.P2F+1}, {s(WS_,4)}, 0 offen sc0 sc1")
                if ca == 24 and not c.split:
                    self.stamp(4)
                    self.p2_check(C, pollt, self.P2F + 3, self.P2F + 1, WS_, 8)
                    self.stamp(5)
                if ca < 34:
                    ta[ca] = self.p2_issue_a(role, ca, C)
                if cw < 34:
                    tw[cw] = self.p2_issue_w(role, cw, C)
        self.stamp(6)

    P2X = 200

    def p2_colbytes(self, N):
        A = self.A
        if N == 64:
            A(f"s_lshl_b32 s{sCOL}, s{sCOL}, 7\ns_add_u32 s{sCOL}, s{sCOL}, 768")
        else:
            A(f"s_mul_i32 s{sCOL}, s{sCOL}, 192")

    def p2_xload(self, N):
        A = self.A
        NT = N // 32
        self.p2_colbytes(N)
        A(f"s_and_b32 s{sT0}, s{sW}, 1\ns_lshl1_add_u32 s{sT0}, s{sBLK}, s{sT0}\ns_mul_i32 s{sT0}, s{sT0}, {32*1280}\ns_add_u32 s{sT0}, s{sT0}, s{sCOL}")
        A(f"s_lshr_b32 s{sT1}, s{sW}, 1\ns_mul_i32 s{sT1}, s{sT1}, {32*NT}\ns_add_u32 s{sF}, s{sT0}, s{sT1}")
        A(f"v_and_b32 v2, 15, v0\nv_mul_u32_u24 v{self.P2X+14}, 2560, v2\nv_lshrrev_b32 v3, 4, v0\nv_lshl_add_u32 v2, v3, 3, v{self.P2X+14}")
        for p in range(2):
            for i in range(NT):
                A(f"buffer_load_dwordx2 {v(self.P2X+2*(NT*p+i),2)}, v2, {s(X_,4)}, s{sF} offen offset:{1280*p+32*i}")

    def p2_compute(self, role):
        A, g, c = self.A, self.p2geom(role), self.c
        N = g["N"]; NT = N // 32; RB = 2 * N
        vWa, vB, vO = 8, 11, 12
        ACC, FB, FW = 16, 40, 72
        if c.split:
            self.p2_xload(N)
        A(f"v_bfe_u32 v2, v0, 2, 2\nv_lshrrev_b32 v3, 4, v0\nv_lshl_add_u32 v2, v3, 2, v2\nv_mul_u32_u24 v4, {RB}, v2\nv_and_b32 v5, 3, v0\nv_lshl_add_u32 v4, v5, 3, v4")
        if N == 64:
            A("v_bfe_u32 v2, v2, 1, 2")
        else:
            A("v_and_b32 v2, 1, v3")
        A(f"s_lshr_b32 s{sT0}, s{sW}, 1\ns_mul_i32 s{sT0}, s{sT0}, {NT}")
        for i in range(NT):
            A(f"s_add_u32 s{sT1}, s{sT0}, {i}\nv_xor_b32 v3, s{sT1}, v2\nv_lshl_add_u32 v3, v3, 5, v4\nv_add_u32 v{vWa+i}, {g['wslot'](0)}, v3")
        A(f"s_and_b32 s{sT0}, s{sW}, 1\ns_lshl_b32 s{sT0}, s{sT0}, 12\ns_add_u32 s{sT0}, s{sT0}, {g['abase']}\nv_lshl_add_u32 v{vB}, v0, 4, s{sT0}\nv_lshl_add_u32 v{vO}, v0, 3, s{sT0}")
        for r in list(range(FB + 16, FB + 32)) + list(range(FW + 8 * NT, FW + 16 * NT)):
            A(f"v_mov_b32 v{r}, 0")
        A("s_waitcnt vmcnt(0)")
        for k in range(2 * NT):
            x = self.P2X + 2 * k
            A(f"v_lshlrev_b32 v{ACC+4*k}, 16, v{x}\nv_and_b32 v{ACC+4*k+1}, 0xffff0000, v{x}\nv_lshlrev_b32 v{ACC+4*k+2}, 16, v{x+1}\nv_and_b32 v{ACC+4*k+3}, 0xffff0000, v{x+1}")
        wd = g["wslot"](1) - g["wslot"](0)
        A(f"s_mov_b32 s{sA}, {wd}\ns_mov_b32 s{sB}, {-wd*(g['RW']-1)}\ns_mov_b32 s{sC}, 0\ns_mov_b32 s{sD}, 0\ns_movk_i32 s{sE}, 0x2000\ns_mov_b32 s{sG}, {-8192*(g['RA']-1)}")

        def mfmas(st):
            out = []
            for ks in range(2):
                for i in range(NT):
                    for p in range(2):
                        a = v(ACC + 4 * (NT * p + i), 4)
                        out.append(f"{MF} {a}, {v(FW+8*NT*st+4*(NT*ks+i),4)}, {v(FB+16*st+8*ks+4*p,4)}, {a}")
            return out

        def half(st, opart):
            A("s_barrier")
            rd = []
            for ks in range(2):
                for p in range(2):
                    d = FB + 16 * st + 8 * ks + 4 * p
                    if opart:
                        rd += [f"ds_read_b64 {v(d+2*hf,2)}, v{vO} offset:{2048*p+512*(2*ks+hf)}" for hf in range(2)]
                    else:
                        rd.append(f"ds_read_b128 {v(d,4)}, v{vB} offset:{2048*p+1024*ks}")
                for i in range(NT):
                    d = FW + 8 * NT * st + 4 * (NT * ks + i)
                    rd += [f"ds_read_b64_tr_b16 {v(d+2*hf,2)}, v{vWa+i} offset:{(32*ks+16*hf)*RB}" for hf in range(2)]
            ms = mfmas(1 - st)
            per = -(-len(rd) // len(ms))
            A.extend(rd[:2]); rd = rd[2:]
            for m in ms:
                A(m); A.extend(rd[:per]); rd = rd[per:]
            A(f"s_add_u32 s{sC}, s{sC}, 1\ns_cmp_eq_u32 s{sC}, {g['RW']}\ns_cselect_b32 s{sC}, 0, s{sC}\ns_cselect_b32 s{sT0}, s{sB}, s{sA}")
            A(f"s_add_u32 s{sD}, s{sD}, 1\ns_cmp_eq_u32 s{sD}, {g['RA']}\ns_cselect_b32 s{sD}, 0, s{sD}\ns_cselect_b32 s{sT1}, s{sG}, s{sE}")
            for i in range(NT):
                A(f"v_add_u32 v{vWa+i}, s{sT0}, v{vWa+i}")
            A(f"v_add_u32 v{vB}, s{sT1}, v{vB}\nv_add_u32 v{vO}, s{sT1}, v{vO}")
            A("s_waitcnt lgkmcnt(0)")

        for opart, n in ((False, 12), (True, 5)):
            l = self.lab("p2")
            A(f"s_mov_b32 s{sCNT}, {n}")
            A.label(l)
            half(0, opart); half(1, opart)
            A(f"s_sub_u32 s{sCNT}, s{sCNT}, 1\ns_cmp_lg_u32 s{sCNT}, 0\ns_cbranch_scc1 {l}")
            if not opart:
                self.stamp(5)
        A.extend(mfmas(1))
        self.stamp(6)
        A(f"v_lshrrev_b32 v3, 4, v0\nv_and_b32 v4, 1, v3\nv_lshrrev_b32 v3, 1, v3\nv_lshlrev_b32 v3, 4, v3\nv_add_u32 v3, v{self.P2X+14}, v3")
        A(f"v_lshl_add_u32 v2, v4, 5, v3\nv_mul_u32_u24 v4, 1280, v4\nv_add_u32 v3, v3, v4")
        O = FB
        def pack(d, k):
            A(f"v_cvt_pk_bf16_f32 v{d}, v{ACC+4*k}, v{ACC+4*k+1}\nv_cvt_pk_bf16_f32 v{d+1}, v{ACC+4*k+2}, v{ACC+4*k+3}")
        jobs = [(NT * p, NT * p + 1, 2, 1280 * p) for p in range(2)]
        if NT == 3:
            jobs.append((2, 5, 3, 64))
        for n, (k0, k1, va, off) in enumerate(jobs):
            pack(O + 4 * n, k0); pack(O + 4 * n + 2, k1)
        for n, (k0, k1, va, off) in enumerate(jobs):
            d = O + 4 * n
            A(f"v_permlane16_swap_b32 v{d}, v{d+2}\nv_permlane16_swap_b32 v{d+1}, v{d+3}")
            A(f"buffer_store_dwordx4 {v(d,4)}, v{va}, {s(OUT_,4)}, s{sF} offen offset:{off}")

    def kernel(self, name, tag, do1, do2):
        A = self.A
        self.entry(name, tag)
        for role in ("q", "h"):
            if role == "h":
                A.label(f"L_HH_{tag}")
            pending = 0
            if do1:
                pending = self.helper1(role)
            else:
                A("s_waitcnt lgkmcnt(0)")
                self.srds_helper2()
                self.p2_loader_setup(role)
            if do2:
                self.p2_loader(role, pending)
            self.stamp_out(7, 1)
            A("s_endpgm")
        for role in ("q", "h"):
            A.label(f"L_{role.upper()}C_{tag}")
            if do1:
                (self.compute_q if role == "q" else self.compute_h)()
            else:
                self.srds_compute()
            if do2:
                self.p2_compute(role)
            self.stamp(7)
            self.stamp_out(8, 0)
            A("s_endpgm")
        A.label(f"L_end_{tag}")
        A("s_endpgm")

    def build(self):
        A, c = self.A, self.c
        head = open(__file__.rsplit("/", 1)[0] + "/header.txt").read() if "/" in __file__ else open("header.txt").read()
        A(head.rstrip())
        if c.split:
            A(f"; @launch kernel=phase1_kernel grid=(256,1,1) block=(512,1,1) lds={LDS_BYTES}")
            A(f"; @launch kernel=phase2_kernel grid=(256,1,1) block=(512,1,1) lds={LDS_BYTES}")
        else:
            A(f"; @launch grid=(256,1,1) block=(512,1,1) lds={LDS_BYTES}")
        A('.amdgcn_target "amdgcn-amd-amdhsa--gfx950"')
        if c.split:
            p2 = c.phase2
            c.phase2 = False
            self.kernel("phase1_kernel", "a", True, False)
            c.phase2 = p2
            self.kernel("phase2_kernel", "b", False, True)
            A(kernel_desc("phase1_kernel", 256, 256)); A(kernel_desc("phase2_kernel", 256, 256))
        else:
            self.kernel(NAME + "_kernel", "a", True, c.phase2)
            A(kernel_desc(NAME + "_kernel", 256, 256))
        return A.text()

def make(**kw):
    return Gen(Cfg(**kw)).build()

if __name__ == "__main__":
    kw = {}
    for a_ in sys.argv[2:]:
        k, val = a_.split("=")
        kw[k] = eval(val)
    open(sys.argv[1], "w").write(make(**kw))
```

```python
import re

def v(i, n=1):
    return f"v{i}" if n == 1 else f"v[{i}:{i+n-1}]"
def s(i, n=1):
    return f"s{i}" if n == 1 else f"s[{i}:{i+n-1}]"

_REG = re.compile(r"^-?\|?(v|s|a)(?:(\d+)|\[(\d+):(\d+)\])\|?$")

def regs_of(tok):
    tok = tok.strip()
    if tok in ("vcc",):
        return {("s", 106), ("s", 107)}
    if tok == "m0":
        return {("s", 124)}
    if tok == "exec_lo":
        return {("s", 126)}
    if tok == "exec_hi":
        return {("s", 127)}
    if tok == "exec":
        return {("s", 126), ("s", 127)}
    m = _REG.match(tok)
    if not m:
        return set()
    k = m.group(1)
    if m.group(2) is not None:
        return {(k, int(m.group(2)))}
    return {(k, i) for i in range(int(m.group(3)), int(m.group(4)) + 1)}

TRANS = ("v_exp_f32", "v_log_f32", "v_rcp_f32", "v_rsq_f32", "v_sqrt_f32", "v_sin_f32", "v_cos_f32")

class Ins:
    def __init__(self, text):
        self.text = text
        t = text.split(";")[0].strip()
        parts = t.split(None, 1)
        self.mn = mn = parts[0]
        rest = parts[1] if len(parts) > 1 else ""
        ops = [o.strip() for o in rest.split(",")] if rest else []
        mods = ""
        if ops:
            last = ops[-1].split(None, 1)
        m = re.search(r"\s(op_sel|op_sel_hi|neg_lo|neg_hi|offset|offset0|offset1|offen|lds|sc0|sc1|nt|clamp|row_|quad_perm|bitop3)", " " + rest)
        if m:
            mods = (" " + rest)[m.start():]
            rest = (" " + rest)[: m.start()]
        ops = [o.strip() for o in rest.split(",")] if rest.strip() else []
        self.ops, self.mods = ops, mods
        R = [regs_of(o) for o in ops]
        self.w, self.r = set(), set()
        self.kind = "other"
        self.srcc = set()
        U = lambda l: set().union(*l) if l else set()
        if mn.startswith("v_mfma"):
            self.kind = "mfma"; self.w = R[0]; self.r = U(R[1:]); self.srcc = R[3]; self.ab = R[1] | R[2]
            self.passes = 8 if "32x32" in mn else 4
        elif mn.startswith("ds_read") or "_rtn" in mn or mn.startswith("ds_bpermute") or mn.startswith("ds_swizzle"):
            self.kind = "ds"; self.w = R[0]; self.r = U(R[1:])
        elif mn.startswith("ds_"):
            self.kind = "ds"; self.r = U(R)
        elif mn.startswith("buffer_load") or mn.startswith("global_load"):
            self.kind = "vmem"
            if " lds" in mods or "_lds_" in mn:
                self.r = U(R) | {("s", 124)}; self.dma = True
            else:
                self.w = R[0]; self.r = U(R[1:])
        elif mn.startswith("buffer_store") or mn.startswith("buffer_atomic") or mn.startswith("global_store") or mn.startswith("global_atomic"):
            self.kind = "vmem"; self.r = U(R)
            self.wide = R[0] if ("x4" in mn or "x3" in mn) and mn.startswith("buffer") else set()
            if "atomic" in mn and " sc0" in mods:
                self.w = R[0]
        elif mn.startswith("buffer_"):
            self.kind = "vmem"
        elif mn.startswith("v_cmp"):
            self.kind = "valu"; self.w = R[0]; self.r = U(R[1:])
        elif mn.startswith("v_readfirstlane") or mn.startswith("v_readlane"):
            self.kind = "valu"; self.w = R[0]; self.r = U(R[1:]); self.rdlane = True
        elif mn.startswith("v_writelane"):
            self.kind = "valu"; self.w = R[0]; self.r = U(R)
        elif mn.startswith("v_permlane") or mn.startswith("v_swap"):
            self.kind = "valu"; self.w = U(R); self.r = U(R); self.perm = mn.startswith("v_permlane")
        elif mn.startswith("v_add_co") or mn.startswith("v_sub_co") or mn.startswith("v_addc_co"):
            self.kind = "valu"; self.w = R[0] | R[1]; self.r = U(R[2:])
        elif mn.startswith("v_"):
            self.kind = "valu"; self.w = R[0]; self.r = U(R[1:])
            if mn.startswith("v_fmac") or mn.startswith("v_dot2c"):
                self.r |= R[0]
        elif mn.startswith("s_"):
            self.kind = "salu"
            if "vcc" in mn:
                self.r = regs_of("vcc"); self.vccz = True
            elif mn.startswith(("s_cmp", "s_cbranch", "s_branch", "s_waitcnt", "s_barrier", "s_nop", "s_endpgm", "s_sleep", "s_setprio", "s_bitcmp")):
                self.r = U(R)
            else:
                self.w = R[0] if R else set(); self.r = U(R[1:])
                if "saveexec" in mn:
                    self.w |= regs_of("exec")
        self.states = int(ops[0], 0) + 1 if mn == "s_nop" else 1
        self.trans = mn.replace("_e32", "").replace("_e64", "") in TRANS
        self.dot = mn.startswith("v_dot")
        self.dpp = "row_" in mods or "quad_perm" in mods or "wave_" in text

def need(p, c):
    n = 0
    vs = lambda x: {r for r in x if r[0] in "va"}
    ss = lambda x: {r for r in x if r[0] == "s"}
    if p.kind == "valu":
        pw = vs(p.w)
        if c.kind == "mfma" and pw & c.r and not p.dot: n = max(n, 2)
        if p.dot and (pw & (c.r | c.w)):
            if not (c.dot and c.mn == p.mn and not (pw & (regs_of(c.ops[1]) | regs_of(c.ops[2])))): n = max(n, 3)
        if getattr(c, "perm", False) and pw & c.r: n = max(n, 2)
        if c.dpp and pw & c.r: n = max(n, 2)
        if getattr(c, "rdlane", False) and pw & c.r: n = max(n, 1)
        if p.trans and c.kind == "valu" and pw & c.r: n = max(n, 1)
        sw = ss(p.w)
        if sw:
            if c.kind == "vmem" and sw & c.r: n = max(n, 5)
            if c.kind == "valu" and sw & c.r: n = max(n, 4 if getattr(c, "rdlane", False) else 2)
            if c.kind == "salu" and sw & c.r: n = max(n, 5 if getattr(c, "vccz", False) else 1)
    if p.kind == "mfma":
        d = p.w
        big = {4: 8, 8: 12}[p.passes]
        if c.kind == "mfma":
            if d & c.ab: n = max(n, big)
            if d & c.srcc and c.srcc != d: n = max(n, big - 2)
            if d & c.w and c.srcc != d: n = max(n, big - 2)
        elif c.kind in ("valu", "ds", "vmem") and d & (c.r | c.w): n = max(n, big)
        if c.kind == "valu" and p.srcc & c.w: n = max(n, {4: 3, 8: 7}[p.passes])
    if p.kind == "vmem" and getattr(p, "wide", None) and p.wide & c.w: n = max(n, 2)
    if p.kind == "salu" and ("s", 124) in p.w and getattr(c, "dma", False): n = max(n, 1)
    return n

def pad_hazards(lines):
    out, hist = [], []
    for l in lines:
        t = l.strip()
        if not t or t.startswith(";") or t.startswith(".") or t.endswith(":"):
            out.append(l); continue
        c = Ins(t)
        dist, req = 0, 0
        for p in reversed(hist):
            req = max(req, need(p, c) - dist)
            dist += p.states
            if dist >= 20: break
        while req > 0:
            k = min(req, 16)
            nop = f"s_nop {k-1}"
            out.append(nop); hist.append(Ins(nop)); req -= k
        out.append(l); hist.append(c)
        if c.mn in ("s_branch", "s_endpgm"):
            hist = []
    return out

class Asm:
    def __init__(self):
        self.lines = []
    def __call__(self, txt=""):
        for l in txt.split("\n"):
            self.lines.append(l)
    def label(self, name):
        self.lines.append(name + ":")
    def extend(self, ls):
        self.lines.extend(ls)
    def text(self, pad=True):
        out = []
        for l in (pad_hazards(self.lines) if pad else self.lines):
            t = l.strip()
            if not t:
                continue
            if t.endswith(":") or t.startswith(".") or t.startswith(";"):
                out.append(t)
            else:
                out.append("    " + t)
        return "\n".join(out) + "\n"

class Counter:
    def __init__(self, A, name, cap):
        self.A, self.name, self.cap = A, name, cap
        self.n = 0
        self.done = 0
    def issue(self, text):
        self.A(text); self.n += 1
        return self.n
    def wait(self, tag):
        if tag is None or tag <= self.done:
            return
        k = min(self.n - tag, self.cap)
        self.A(f"s_waitcnt {self.name}({k})")
        self.done = self.n - k
    def wait_all(self):
        self.wait(self.n)

def kernel_header(name):
    return f""".text
.globl {name}
.p2align 8
.type {name},@function
{name}:
"""

def kernel_desc(name, nvgpr, accum, nsgpr=102):
    return f""".section .rodata,"a"
.p2align 6
.amdhsa_kernel {name}
  .amdhsa_next_free_vgpr {nvgpr}
  .amdhsa_next_free_sgpr {nsgpr}
  .amdhsa_accum_offset {accum}
  .amdhsa_group_segment_fixed_size 0
  .amdhsa_kernarg_size 72
  .amdhsa_user_sgpr_count 2
  .amdhsa_user_sgpr_kernarg_segment_ptr 1
  .amdhsa_system_sgpr_workgroup_id_x 1
.end_amdhsa_kernel
"""
```

```python
import sys, os
from asmlib import *

NAME = "parallel_sum__sliding_local_dilated__dense_activation_relu__prompt"
MF = "v_mfma_f32_16x16x32_bf16"

H_BLK = 24 * 8192
O_BLK = 10 * 8192
H_BASE = 0
O_BASE = 32 * H_BLK
FLAG_BASE = 16 << 20
STAT_BASE = 18 << 20
STAMP_BASE = 20 << 20
WS_BYTES = 32 << 20

X_, W1_, W2_, WO_, WS_, DBG_, FLEX_, OUT_ = 20, 24, 28, 32, 36, 40, 44, 48
sWAVE, sW, sRB, sJ, sBLK, sCOL, sROT, sCNT = 52, 53, 54, 55, 56, 57, 58, 59
sT0, sT1, sT2, sT3 = 60, 61, 62, 63
sA, sB, sC, sD, sE, sF = 64, 65, 66, 67, 68, 69
mG1, mG2, mG3, mU0 = 70, 72, 74, 76
sROT2, sROT3 = 78, 79
sG, sH, sI = 3, 80, 81
sSTAMP = 82

K = 1024
Q_SLOT, H_SLOT = 48 * K, 40 * K
Q_WH, H_WH = 15 * K, 12 * K
MISC = 157 * K
ST_RSTD = 576
CS_OFF = 1152
CTR_OFF = 2304
LDS_BYTES = 163840
SPIN_LIMIT = 20000
COH = " sc0 sc1"

class Cfg:
    def __init__(self, **kw):
        self.split = False
        self.stamps = False
        self.dbgstamps = False
        self.epi = False
        self.trace = False
        self.phase2 = True
        self.rot = True
        self.rot2 = True
        self.pre1 = 3
        self.prio_h = 1
        self.abl = ''
        self.preq = {8: 4, 9: 8}
        self.preh = {8: 5, 9: 8}
        self.nreg0 = {"q": 10, "h": 8}
        self.warm = 0
        self.warm_c = 0
        self.pubq = 3
        self.out_mod = ''
        self.stage = {'q': 0, 'h': 0}
        self.hold = False
        self.__dict__.update(kw)

def srd(A, d, b, n):
    A(f"s_mov_b32 s{d}, s{b}\ns_mov_b32 s{d+1}, s{b+1}\ns_mov_b32 s{d+2}, {n}\ns_mov_b32 s{d+3}, 0x20000")

def lines(txt):
    return [l for l in txt.split("\n") if l]

def weave(main, extra, every=2, start=0):
    out, extra = [], list(extra)
    for i, l in enumerate(main):
        out.append(l)
        if extra and i + 1 >= start and (i + 1 - start) % every == 0:
            out.append(extra.pop(0))
    return out + extra

class Gen:
    def __init__(self, cfg):
        self.c = cfg
        self.A = Asm()
        self.uid = 0

    def lab(self, p):
        self.uid += 1
        return f"L_{p}_{self.uid}"

    def estamp(self, i):
        if self.c.epi:
            self.stamp(i, True)

    def stamp(self, i, force=False):
        if self.c.epi and not force and i > 0:
            return
        if self.c.stamps:
            op = "s_memtime" if self.c.stamps == "cyc" else "s_memrealtime"
            self.A(f"{op} s[{sSTAMP+2*i}:{sSTAMP+2*i+1}]")

    def trace(self, lane):
        if self.c.trace:
            if isinstance(lane, str):
                self.A(f"s_mov_b32 m0, {lane}")
                lane = "m0"
            self.A(f"s_memrealtime s[98:99]\ns_waitcnt lgkmcnt(0)\nv_writelane_b32 v30, s98, {lane}")

    def stamp_out(self, n, row):
        if not self.c.stamps:
            return
        A = self.A
        if self.c.trace and row == 1:
            l = self.lab("tr")
            A(f"s_cmp_lg_u32 s{sW}, 0\ns_cbranch_scc1 {l}\ns_lshl_b32 s{sT0}, s2, 8\ns_add_u32 s{sT0}, s{sT0}, {STAMP_BASE + (1 << 20)}\nv_lshl_add_u32 v1, v0, 2, s{sT0}")
            A(f"buffer_store_dword v30, v1, {s(WS_,4)}, 0 offen\ns_waitcnt vmcnt(0)")
            A.label(l)
        l = self.lab("st")
        A(f"s_waitcnt lgkmcnt(0)\ns_cmp_lg_u32 s{sW}, 0\ns_cbranch_scc1 {l}")
        if self.c.dbgstamps:
            if row == 0:
                A(f"s_lshr_b32 s{sT1}, s2, 7\ns_mul_i32 s{sT1}, s{sT1}, 28\nv_mov_b32 v1, s{sT1}\nv_mov_b32 v3, 0\ns_mov_b64 exec, 1")
                A(f"s_not_b32 s{sT0}, s{sSTAMP}\nv_mov_b32 v2, s{sT0}\nbuffer_atomic_umax v2, v3, {s(DBG_,4)}, 0 offen offset:4 sc1")
                for i in range(1, 8):
                    A(f"v_mov_b32 v2, s{sSTAMP+2*i}\nbuffer_atomic_umax v2, v1, {s(DBG_,4)}, 0 offen offset:{4+4*i} sc1")
                A("s_waitcnt vmcnt(0)")
            A.label(l)
            return
        A(f"s_lshl_b32 s{sT0}, s2, 7\ns_add_u32 s{sT0}, s{sT0}, {STAMP_BASE + 64*row}\nv_mov_b32 v1, s{sT0}")
        for i in range(n):
            A(f"v_mov_b32 v2, s{sSTAMP+2*i}\nbuffer_store_dword v2, v1, {s(WS_,4)}, 0 offen offset:{4*i}")
        A("s_waitcnt vmcnt(0)")
        A.label(l)

    def entry(self, name, tag):
        A, c = self.A, self.c
        A(kernel_header(name))
        A("s_cmp_ge_u32 s2, 256\ns_cbranch_scc1 L_end_" + tag)
        self.stamp(0)
        A("s_load_dwordx4 s[4:7], s[0:1], 0\ns_load_dwordx2 s[8:9], s[0:1], 16")
        A("s_load_dwordx4 s[12:15], s[0:1], 32\ns_load_dwordx4 s[16:19], s[0:1], 48\ns_load_dwordx2 s[10:11], s[0:1], 64")
        A(f"v_lshrrev_b32 v1, 6, v0\nv_and_b32 v0, 63, v0\nv_readfirstlane_b32 s{sWAVE}, v1")
        A(f"s_bfe_u32 s{sT0}, s2, 0x20001\ns_bfe_u32 s{sT1}, s2, 0x20003\ns_lshl2_add_u32 s{sRB}, s{sT0}, s{sT1}")
        A(f"s_and_b32 s{sT0}, s2, 1\ns_bfe_u32 s{sT2}, s2, 0x20005\ns_lshl2_add_u32 s{sJ}, s{sT0}, s{sT2}")
        A(f"s_and_b32 s{sT3}, s{sT2}, 1\ns_lshl1_add_u32 s{sBLK}, s{sRB}, s{sT3}")
        A(f"s_lshr_b32 s{sT3}, s{sT2}, 1\ns_lshl1_add_u32 s{sCOL}, s{sT0}, s{sT3}")
        A(f"s_lshr_b32 s{sA}, s2, 7")
        if c.rot:
            A(f"s_mul_i32 s{sROT}, s{sT1}, 3\ns_add_u32 s{sROT}, s{sROT}, s{sT2}\ns_lshl2_add_u32 s{sROT}, s{sA}, s{sROT}")
        else:
            A(f"s_mov_b32 s{sROT}, 0")
        if c.rot2:
            A(f"s_and_b32 s{sT0}, s{sBLK}, 7\ns_lshl1_add_u32 s{sT3}, s{sA}, s{sT3}\ns_lshl1_add_u32 s{sROT2}, s{sT3}, s{sT0}\ns_mul_i32 s{sROT2}, s{sROT2}, 3")
            A(f"s_mul_i32 s{sT3}, s{sT3}, 5\ns_lshr_b32 s{sT3}, s{sT3}, 1\ns_add_u32 s{sROT3}, s{sT0}, s{sT3}")
        else:
            A(f"s_mov_b32 s{sROT2}, 0\ns_mov_b32 s{sROT3}, 0")
        A(f"s_and_b32 s{sW}, s{sWAVE}, 3")
        A(f"s_cmp_ge_u32 s{sWAVE}, 4\ns_cbranch_scc1 L_helper_{tag}")
        A(f"s_cmp_eq_u32 s{sA}, 0\ns_cbranch_scc1 L_QC_{tag}\ns_branch L_HC_{tag}")
        A.label(f"L_helper_{tag}")
        if c.prio_h:
            A(f"s_setprio {c.prio_h}")
        A(f"s_cmp_eq_u32 s{sA}, 0\ns_cbranch_scc0 L_HH_{tag}")

    def srds_helper2(self):
        A = self.A
        srd(A, W2_, 14, 1536 * 1280); srd(A, WO_, 8, 640 * 1280); srd(A, WS_, 10, WS_BYTES); srd(A, DBG_, 18, 256)

    def srds_compute(self):
        A = self.A
        A("s_waitcnt lgkmcnt(0)")
        srd(A, X_, 4, 2048 * 1280); srd(A, WS_, 10, WS_BYTES); srd(A, DBG_, 18, 256); srd(A, OUT_, 16, 2048 * 1280)

    def xfrag_addr(self, d0, d1, base_s, t):
        A = self.A
        A(f"v_and_b32 v{t}, 15, v0\nv_lshrrev_b32 v{d1}, 1, v{t}\nv_lshrrev_b32 v{d0}, 4, v0\nv_xor_b32 v{d0}, v{d0}, v{d1}")
        A(f"v_lshlrev_b32 v{d0}, 4, v{d0}\nv_lshl_add_u32 v{d0}, v{t}, 7, v{d0}\nv_add_u32 v{d0}, s{base_s}, v{d0}\nv_xor_b32 v{d1}, 64, v{d0}")

    def check(self, vres, vaddr, srd_, target):
        A = self.A
        l, d = self.lab("sp"), self.lab("sd")
        A(f"v_cmp_gt_u32 vcc, {target}, v{vres}\ns_cbranch_vccz {d}\ns_mov_b32 s{sT1}, {SPIN_LIMIT}")
        A.label(l)
        A(f"buffer_load_dword v{vres}, v{vaddr}, {s(srd_,4)}, 0 offen{COH}\ns_waitcnt vmcnt(0)\nv_cmp_gt_u32 vcc, {target}, v{vres}")
        A(f"s_cbranch_vccz {d}\ns_sub_u32 s{sT1}, s{sT1}, 1\ns_cbranch_scc0 {l}")
        A.label(d)

    def warm_setup(self, s0, s1, rows):
        A = self.A
        A(f"s_lshr_b32 s{sT0}, s2, 3\ns_lshl2_add_u32 s{sT0}, s{sT0}, s{sW}\ns_mul_i32 s{sT0}, s{sT0}, {1280*rows}\ns_and_b32 s{sT1}, s2, 1")
        A(f"s_mul_i32 s{s0}, s{sT1}, 384\ns_add_u32 s{s0}, s{s0}, s{sT0}\ns_lshl_b32 s{s1}, s{sT1}, 8\ns_add_u32 s{s1}, s{s1}, s{sT0}\ns_add_u32 s{s1}, s{s1}, 768")

    @staticmethod
    def warm_row(srd_, s0, s1, row):
        return [f"s_buffer_load_dword s101, {s(srd_,4)}, s{s0} offset:{1280*row+64*i}" for i in range(6)] + \
               [f"s_buffer_load_dword s101, {s(srd_,4)}, s{s1} offset:{1280*row+64*i}" for i in range(4)]

    def helper1(self, role):
        A, c = self.A, self.c
        q = role == "q"
        slot, wh = (Q_SLOT, Q_WH) if q else (H_SLOT, H_WH)
        xoff = 2 * wh
        wstride = 3840 if q else 3072
        vA, vB, vC, vF = 8, 11, 14, 18
        sOWa, sOWb, sOX, sSa, sSb = sA, sB, sC, sD, sE
        sMA, sMX, sF1o, sF1m, sF2o, sF2m = sF, sG, mG1, mG1 + 1, mG1 + 2, mG1 + 3
        sMF1, sMF2, sPa, sPb, sPx = mG1 + 4, mG1 + 5, mG1 + 6, mG1 + 7, sI
        nA, nB = (4, 8) if q else (3, 7)
        per = 4 if q else 3

        A("v_lshrrev_b32 v2, 3, v0\nv_mul_u32_u24 v2, 1280, v2\nv_and_b32 v3, 7, v0\nv_lshrrev_b32 v4, 4, v0\nv_xor_b32 v3, v3, v4\nv_lshl_add_u32 v6, v3, 4, v2\nv_xor_b32 v7, 64, v6")
        A(f"s_lshl_b32 s{sT0}, s{sRB}, 7\ns_lshl_b32 s{sT1}, s{sW}, 5\ns_add_u32 s{sT0}, s{sT0}, s{sT1}")
        if q:
            A(f"s_sub_u32 s{sT0}, s{sT0}, 16")
        A(f"s_mul_i32 s{sPx}, s{sT0}, 1280")
        A(f"s_mul_i32 s{sH}, s{sJ}, {160 if q else 384}\ns_movk_i32 s{sCNT}, 1120\ns_mul_i32 s{sMA}, s{sW}, {per}\ns_lshl_b32 s{sMX}, s{sW}, 12\ns_add_u32 s{sMX}, s{sMX}, {xoff}")

        def xoffs(d, i):
            A(f"s_add_u32 s{sT0}, s{sPx}, {8*1280*i}\nv_add_u32 v{d}, s{sT0}, v{6 + (i & 1)}")

        def woff(d, kb):
            A(f"s_add_u32 s{sT0}, s{sMA}, {kb}\ns_lshl_b32 s{sT0}, s{sT0}, 6\nv_add_u32 v2, s{sT0}, v0")
            if q:
                A("v_mul_u32_u24 v3, 2185, v2\nv_lshrrev_b32 v3, 16, v3\nv_mul_u32_u24 v4, 30, v3\nv_sub_u32 v2, v2, v4")
            else:
                A("v_mul_u32_u24 v3, 2731, v2\nv_lshrrev_b32 v3, 16, v3\nv_mul_u32_u24 v4, 24, v3\nv_sub_u32 v2, v2, v4\nv_and_b32 v4, 6, v3\nv_xor_b32 v2, v2, v4")
            A("v_and_b32 v4, 4, v3\nv_add_u32 v5, v3, v4\nv_bfe_u32 v4, v3, 3, 1\nv_mad_i32_i24 v5, v4, -4, v5")
            A(f"v_mul_u32_u24 v5, {wstride}, v5")
            if q:
                A(f"v_mul_u32_u24 v4, 26, v2\nv_lshrrev_b32 v4, 8, v4\nv_mad_u32_u24 v5, v4, s{sCNT}, v5")
            A(f"v_lshl_add_u32 v5, v2, 4, v5\nv_add_u32 v{d}, s{sH}, v5")

        def advance():
            A(f"s_mov_b32 s{sOWa}, s{sOWb}\ns_add_u32 s{sPa}, s{sSb}, s{sMA}")
            if q:
                A(f"s_add_u32 s{sSb}, s{sSb}, {slot}\ns_cmp_ge_u32 s{sSb}, {3*slot}\ns_cselect_b32 s{sSb}, 0, s{sSb}")
            else:
                A(f"s_sub_u32 s{sSb}, s{sSb}, {slot}\ns_cselect_b32 s{sSb}, {2*slot}, s{sSb}")
            rot()

        def rot():
            A(f"s_cmp_ge_u32 s{sROT}, 10\ns_cselect_b32 s{sT0}, 10, 0\ns_sub_u32 s{sROT}, s{sROT}, s{sT0}")
            A(f"s_mul_i32 s{sOWb}, s{sROT}, {64*wstride}\ns_lshl_b32 s{sOX}, s{sROT}, 7\ns_add_u32 s{sROT}, s{sROT}, 1")
            A(f"s_add_u32 s{sPb}, s{sSb}, s{sMA}\ns_add_u32 s{sPx}, s{sSb}, s{sMX}")
            if q:
                A(f"s_cmp_lt_u32 s{sW}, 3\ns_cselect_b32 s{sF1o}, s{sOWa}, s{sOX}\ns_cselect_b32 s{sF2o}, s{sOWb}, s{sOX}\ns_cselect_b32 s{sF1m}, s{sPa}, s{sPx}\ns_cselect_b32 s{sF2m}, s{sPb}, s{sPx}")
                A(f"s_add_u32 s{sF1m}, s{sF1m}, s{sMF1}\ns_add_u32 s{sF2m}, s{sF2m}, s{sMF2}")

        def dma(vr, srd_, so, m0s, add):
            A(f"s_add_u32 m0, s{m0s}, {add}\nbuffer_load_dwordx4 v{vr}, {s(srd_,4)}, s{so} offen lds")

        opsA = [(vA + i, W1_, sOWa, sPa, i * K) for i in range(3)]
        opF1 = (vF, FLEX_, sF1o, sF1m, 0)
        opF2 = (vF + 1, FLEX_, sF2o, sF2m, 0)
        opsC = [(vC + i, X_, sOX, sPx, i * K) for i in range(4)]
        opsB = [(vB + i, W1_, sOWb, sPb, wh + i * K) for i in range(3)]
        group = opsA + ([opF1] if q else []) + opsC + opsB + ([opF2] if q else [])

        for i in range(4):
            xoffs(vC + i, i)
        if q:
            l1, l2 = self.lab("fx"), self.lab("fd")
            xoffs(vF, 4); xoffs(vF + 1, 5)
        woff(vB, 0)
        A("s_waitcnt lgkmcnt(0)")
        srd(A, X_, 4, 2048 * 1280)
        srd(A, W1_, 6 if q else 12, 640 * wstride)
        if q:
            A(f"s_cmp_lt_u32 s{sW}, 3\ns_cselect_b32 s{FLEX_}, s6, s4\ns_cselect_b32 s{FLEX_+1}, s7, s5\ns_mov_b32 s{FLEX_+2}, {640*3840}\ns_cselect_b32 s{FLEX_+2}, s{FLEX_+2}, s{X_+2}\ns_mov_b32 s{FLEX_+3}, 0x20000")
            A(f"s_movk_i32 s{sMF1}, {3*K}\ns_cselect_b32 s{sMF1}, s{sMF1}, {4*K}\ns_movk_i32 s{sMF2}, {wh + 3*K}\ns_cselect_b32 s{sMF2}, s{sMF2}, {5*K}")
        A(f"s_mov_b32 s{sT3}, s{sMA}\ns_lshl_b32 s{sMA}, s{sMA}, 10\ns_mov_b32 s{sSb}, 0\ns_mov_b32 s{sOWa}, 0\ns_mov_b32 s{sPa}, 0")
        rot()
        A(f"s_mov_b32 s{sSa}, s{sMA}\ns_mov_b32 s{sMA}, s{sT3}")
        for o in opsC:
            dma(*o)
        for i in range(3):
            if i:
                woff(vB + i, i)
            dma(*opsB[i])
            A(f"v_add_u32 v{vA+i}, {32*wstride}, v{vB+i}")
        if q:
            A(f"s_cmp_lt_u32 s{sW}, 3\ns_cbranch_scc0 {l1}")
            woff(vF + 1, 3)
            A(f"v_add_u32 v{vF}, {32*wstride}, v{vF+1}\ns_branch {l2}")
            A.label(l1)
            dma(*opF1)
            A.label(l2)
            dma(*opF2)
        A(f"s_mov_b32 s{sMA}, s{sSa}")
        advance()
        for o in group[: nA + c.pre1]:
            dma(*o)
        self.srds_helper2()
        self.p2_loader_setup(role)
        vZ, vP, vD = 23, 24, 26
        A(f"s_lshl_b32 s{sT0}, s{sRB}, 8\ns_add_u32 s{sT0}, s{sT0}, {FLAG_BASE + 8192}\nv_mov_b32 v20, s{sT0}\nv_mov_b32 v{vZ}, 0")
        A(f"s_lshl_b32 s{sT1}, s{sRB}, 7\ns_lshl_b32 s{sT2}, s{sW}, 5\ns_add_u32 s{sT1}, s{sT1}, s{sT2}\nv_and_b32 v3, 31, v0\nv_add_u32 v21, s{sT1}, v3")
        A(f"s_lshl_b32 s{sT2}, s{sW}, 7\ns_add_u32 s{sT2}, s{sT2}, {MISC + (64 if q else 0)}\nv_lshl_add_u32 v22, v3, 2, s{sT2}")
        if q:
            A(f"s_cmp_eq_u32 s{sRB}, 0\ns_cselect_b32 s{sT2}, 0, 256\ns_sub_u32 s{sT0}, s{sT0}, s{sT2}\nv_mov_b32 v4, s{sT0}")
            A(f"s_lshl_b32 s{sT1}, s{sRB}, 7\ns_sub_u32 s{sT1}, s{sT1}, 16\nv_and_b32 v2, 15, v0\nv_add_u32 v3, s{sT1}, v2")
            A(f"s_mov_b32 s{sT1}, {MISC}\nv_lshl_add_u32 v5, v2, 2, s{sT1}\nv_cmp_le_u32 vcc, 32, v0")
            A("v_cndmask_b32 v20, v20, v4, vcc\nv_cndmask_b32 v21, v21, v3, vcc\nv_cndmask_b32 v22, v22, v5, vcc")
        A(f"v_cmp_gt_i32 vcc, 0, v21\nv_lshlrev_b32 v21, 3, v21\nv_add_u32 v21, {STAT_BASE}, v21\nv_mov_b32 v3, -16\nv_cndmask_b32 v21, v21, v3, vcc")
        warm = c.warm if (c.phase2 and not c.split) else 0
        if warm:
            self.warm_setup(12, 13, 12)
            self.warm_setup(14, 15, 5)
            A.extend(self.warm_row(W2_, 12, 13, 0))
        A(f"s_waitcnt vmcnt({c.pre1})\ns_barrier")
        self.trace(0)
        self.stamp(1)
        for o in group[nA + c.pre1:]:
            dma(*o)
        A(f"s_mov_b32 s{sCNT}, 0")
        loop, li, l8, lb = (self.lab(x) for x in ("hl", "iss", "c8", "bar"))
        pre = (c.preq if q else c.preh) if (c.phase2 and not c.split) else {}
        special = sorted({0, 1, 6, 7} | {k for k in pre if k < 8})
        lx = {k: self.lab("x") for k in special}
        A.label(loop)
        mark0 = len(A.lines)
        for k in lx:
            A(f"s_cmp_eq_u32 s{sCNT}, {k}\ns_cbranch_scc1 {lx[k]}")
        A(f"s_cmp_ge_u32 s{sCNT}, 8\ns_cbranch_scc1 {l8}")
        A.label(li)
        advance()
        for o in group:
            dma(*o)
        if warm:
            A.extend(self.warm_row(W2_, 12, 13, 1))
            A("s_add_u32 s12, s12, 1280\ns_add_u32 s13, s13, 1280")
        A(f"s_waitcnt vmcnt({nB})\ns_barrier\ns_add_u32 s{sCNT}, s{sCNT}, 1")
        self.trace(f"s{sCNT}")
        A(f"s_branch {loop}")
        if "nodma" in c.abl:
            A.lines[mark0:] = [l for l in A.lines[mark0:] if not l.startswith("buffer_load")]
        if "nobar" in c.abl:
            A.lines[mark0:] = [l for l in A.lines[mark0:] if not l.startswith("s_barrier")]
        for k in special:
            A.label(lx[k])
            if k == 0:
                A(f"buffer_load_dword v{vP}, v{vZ}, {s(DBG_,4)}, 0 offen{COH}")
            if k == 1:
                self.check(vP, vZ, DBG_, 1)
                l = self.lab("na")
                A(f"s_cmp_lg_u32 s{sW}, 0\ns_cbranch_scc1 {l}\nv_mov_b32 v2, 1\ns_mov_b64 exec, 1\nbuffer_atomic_add v2, v20, {s(WS_,4)}, 0 offen sc1\ns_mov_b64 exec, -1")
                A.label(l)
            if k == 6:
                A(f"buffer_load_dword v{vP}, v20, {s(WS_,4)}, 0 offen{COH}")
            if k == 7:
                self.check(vP, 20, WS_, 16)
                A(f"buffer_load_dwordx2 {v(vD,2)}, v21, {s(WS_,4)}, 0 offen{COH}")
            self.p2_prefetch(role, pre.get(k, 0))
            A(f"s_branch {li}")
        A.label(l8)
        advance()
        for o in opsA:
            dma(*o)
        if q:
            l = self.lab("nf")
            A(f"s_cmp_lt_u32 s{sW}, 3\ns_cbranch_scc0 {l}")
            dma(*opF1)
            A.label(l)
        A(f"ds_write_b32 v22, v{vD}\nds_write_b32 v22, v{vD+1} offset:{ST_RSTD}")
        k1 = self.p2_prefetch(role, pre.get(8, 0))
        bar = "" if "nobar" in c.abl else "s_barrier"
        A(f"s_waitcnt vmcnt({k1}) lgkmcnt(0)\n{bar}")
        self.trace(9)
        if warm:
            A.extend(self.warm_row(W2_, 12, 13, 1) + self.warm_row(W2_, 12, 13, 3)[5:])
        k2 = self.p2_prefetch(role, pre.get(9, 0))
        A(bar)
        self.trace(10)
        self.stamp(2)
        A("s_barrier")
        if q:
            A("s_barrier")
        return k1 + k2

    def row_stats_load(self, role, base):
        A = self.A
        self.l_ns = self.lab("ns")
        l = self.lab("nl")
        A(f"s_cmp_ge_u32 s{sW}, 2\ns_cbranch_scc1 {l}")
        A(f"s_lshl4_add_u32 s{sT0}, s{sRB}, s{sJ}\ns_add_u32 s{sT0}, s{sT0}, {0 if role == 'q' else 8}\ns_lshl1_add_u32 s{sT0}, s{sT0}, s{sW}\ns_lshl_b32 s{sT0}, s{sT0}, 2")
        A(f"v_lshrrev_b32 v{base+20}, 4, v0\nv_add_u32 v{base+20}, s{sT0}, v{base+20}\nv_mul_u32_u24 v{base+21}, 1280, v{base+20}\nv_and_b32 v{base+22}, 15, v0\nv_lshl_add_u32 v{base+21}, v{base+22}, 4, v{base+21}")
        for i in range(5):
            A(f"buffer_load_dwordx4 {v(base+4*i,4)}, v{base+21}, {s(X_,4)}, 0 offen offset:{256*i}")
        A.label(l)

    def warm_compute(self):
        A, c = self.A, self.c
        if c.warm and c.phase2 and not c.split:
            srd(A, W2_, 14, 1536 * 1280)
            self.warm_setup(34, 35, 12)
            A.extend(self.warm_row(W2_, 34, 35, 10) + self.warm_row(W2_, 34, 35, 11)[:5])

    def row_stats_finish(self, base):
        A = self.A
        a, b = base + 22, base + 23
        A(f"s_cmp_ge_u32 s{sW}, 2\ns_cbranch_scc1 {self.l_ns}")
        A(f"v_mov_b32 v{a}, 0\nv_mov_b32 v{b}, 0\nv_mov_b32 v{base+21}, 0x3f803f80\nv_lshlrev_b32 v{base+20}, 3, v{base+20}\nv_add_u32 v{base+20}, {STAT_BASE}, v{base+20}")
        for i in range(5):
            A(f"s_waitcnt vmcnt({4-i})")
            for r in range(4):
                d = base + 4 * i + r
                A(f"v_dot2c_f32_bf16 v{a}, v{d}, v{base+21}\nv_dot2c_f32_bf16 v{b}, v{d}, v{d}")
        for sh in (8, 4, 2, 1):
            A(f"v_add_f32_dpp v{a}, v{a}, v{a} row_ror:{sh} row_mask:0xf bank_mask:0xf\nv_add_f32_dpp v{b}, v{b}, v{b} row_ror:{sh} row_mask:0xf bank_mask:0xf")
        A(f"s_mov_b32 s{sT1}, 0x3acccccd\ns_mov_b32 s{sT2}, 0x3727c5ac")
        A(f"v_mul_f32 v{a}, s{sT1}, v{a}\nv_mul_f32 v{base}, v{a}, v{a}\nv_fma_f32 v{b}, v{b}, s{sT1}, -v{base}\nv_max_f32 v{b}, 0, v{b}\nv_add_f32 v{b}, s{sT2}, v{b}\nv_rsq_f32 v{b}, v{b}")
        A(f"s_mov_b32 exec_lo, 0x10001\ns_mov_b32 exec_hi, 0x10001\nbuffer_store_dwordx2 {v(a,2)}, v{base+20}, {s(WS_,4)}, 0 offen{COH}\ns_mov_b64 exec, -1")
        A.label(self.l_ns)

    def init_flags(self):
        A = self.A
        l = self.lab("nf")
        A(f"s_xor_b32 s{sT0}, s{sW}, 3\ns_or_b32 s{sT0}, s2, s{sT0}\ns_cmp_lg_u32 s{sT0}, 0\ns_cbranch_scc1 {l}")
        A(f"v_lshlrev_b32 v2, 8, v0\nv_add_u32 v2, {FLAG_BASE}, v2\nv_mov_b32 v3, 0")
        A(f"buffer_store_dword v3, v2, {s(WS_,4)}, 0 offen{COH}\ns_waitcnt vmcnt(0)")
        A(f"v_mov_b32 v2, 1\ns_mov_b64 exec, 1\nbuffer_store_dword v2, v3, {s(DBG_,4)}, 0 offen{COH}\ns_mov_b64 exec, -1")
        A.label(l)

    def publish(self, role, younger=0):
        l = self.lab("pb")
        a = lines(f"v_mov_b32 v4, {MISC + CTR_OFF}\nv_mov_b32 v5, 1\ns_waitcnt vmcnt({younger})\ns_mov_b64 exec, 1\nds_add_rtn_u32 v7, v4, v5\ns_mov_b64 exec, -1")
        a += lines(f"s_lshl_b32 s{sT0}, s{sRB}, 8\ns_add_u32 s{sT0}, s{sT0}, {FLAG_BASE + (4096 if role == 'q' else 0)}\nv_mov_b32 v4, s{sT0}")
        b = lines(f"v_readfirstlane_b32 s{sT0}, v7\ns_cmp_lg_u32 s{sT0}, 3\ns_cbranch_scc1 {l}\ns_mov_b64 exec, 1\nbuffer_atomic_add v5, v4, {s(WS_,4)}, 0 offen sc1\ns_mov_b64 exec, -1\n{l}:")
        return a, b

    def publish_now(self, role):
        if self.c.split:
            return
        a, b = self.publish(role)
        self.A.extend(a + ["s_waitcnt lgkmcnt(0)"] + b)

    def mfma_loop(self, role, mfmas, frags, fixups, niter):
        A = self.A
        nm = len(mfmas)
        bpos = nm // 2 - 1
        first, last = {}, {}
        for i, (_, fs) in enumerate(mfmas):
            for f in fs:
                first.setdefault(f, i); last[f] = i
        order = sorted(frags, key=lambda f: first[f])
        lastuse = {}
        for f in order:
            lastuse[frags[f][1]] = f
        seq = [(it, f) for it in range(5) for f in order]
        occupant, ready, part = {}, {}, {}
        for it, f in seq:
            key = frags[f][0]
            e = (it - 1) * nm + bpos
            if key in occupant:
                pit, pf = occupant[key]
                e = max(e, pit * nm + last[pf])
            ready[(it, f)] = e
            occupant[key] = (it, f)
        if role == "q":
            step = lines(f"s_add_u32 s{sH}, s{sH}, 1\ns_cmp_eq_u32 s{sH}, 3\ns_cselect_b32 s{sH}, 0, s{sH}\ns_cselect_b32 s{sT0}, s{sB}, s{sA}")
        else:
            step = lines(f"s_cmp_eq_u32 s{sH}, 0\ns_cselect_b32 s{sH}, 3, s{sH}\ns_cselect_b32 s{sT0}, s{sB}, s{sA}\ns_sub_u32 s{sH}, s{sH}, 1")
        bodies, origin, pend, tags = [], [], list(seq), {}
        T = Asm(); C = Counter(T, "lgkmcnt", 14)
        upd = []
        for it in range(-1, 4):
            T.lines = []
            org = []
            steps = list(step) if it >= 0 else []
            for i in range(nm):
                g = it * nm + i
                if it >= 0:
                    assert all((it, f) not in pend for f in mfmas[i][1]), "operand read not issued before use"
                    C.wait(max(tags[(it, f)] for f in mfmas[i][1]))
                    T(mfmas[i][0])
                n0 = len(T.lines)
                if it >= 0:
                    for f, pre, tx in fixups:
                        for h in range(2):
                            at = first[f] - pre - 2 + h
                            if at % nm == i:
                                C.wait(tags[(it if at >= 0 else it + 1, f)]); T.extend(tx[2 * h: 2 * h + 2])
                    if i == nm - 3:
                        T(f"s_sub_u32 s{sCNT}, s{sCNT}, 1")
                    if i == bpos:
                        xs = [(it, f) for f in frags if f[0] == "X"]
                        assert all(x not in pend for x in xs)
                        C.wait(max(tags[x] for x in xs))
                        T("s_waitcnt vmcnt(0)\ns_barrier")
                if bpos + 3 <= i < nm - 3 and steps and len(T.lines) - n0 < 2 and all(u[0] > it for u in upd) and (it, order[-1]) not in pend:
                    T(steps.pop(0))
                nready = sum(1 for x in pend[:6] if ready[x] <= g)
                budget = (2 if nready > 1 or upd else 1) - (len(T.lines) - n0)
                while budget > 0:
                    if upd and (upd[0][0] <= it or not steps):
                        ui, ut = upd.pop(0)
                        assert it < 0 or (len(steps) == 0 if ui > it else len(steps) == len(step)), "address update uses the wrong slot step"
                        T(ut); budget -= 1
                        continue
                    if not (pend and ready[pend[0]] <= g):
                        break
                    x = pend[0]
                    k = part.get(x, 0)
                    tags[x] = C.issue(frags[x[1]][2][k])
                    org.append((x[0], T.lines[-1]))
                    part[x] = k + 1
                    budget -= 1
                    if k + 1 == len(frags[x[1]][2]):
                        pend.pop(0)
                        ar = frags[x[1]][1]
                        if lastuse[ar] == x[1]:
                            upd.append((x[0], f"v_add_u32 v{ar}, s{sT0}, v{ar}"))
                            org.append(upd[-1])
            assert it < 0 or not steps
            if it == -1:
                C.done = C.n
            bodies.append(list(T.lines)); origin.append(org)
        assert bodies[2] == bodies[3] and not upd, "loop body is not periodic"
        A.extend(step)
        A.extend([l for o, l in origin[2] if o == 2])
        A("s_waitcnt lgkmcnt(0)")
        for f, pre, tx in fixups:
            for h in range(2):
                if first[f] - pre - 2 + h < 0:
                    A.extend(tx[2 * h: 2 * h + 2])
        loop = self.lab("ml")
        A(f"s_mov_b32 s{sCNT}, {niter - 1}")
        A.label(loop)
        body = bodies[2]
        for key, pat in (("nomfma", "v_mfma"), ("notr", "ds_read_b64_tr"), ("nox", "ds_read_b128"), ("nobar", "s_barrier"), ("nowait", "s_waitcnt"), ("nocnd", "v_cndmask"), ("noupd", "v_add_u32")):
            if key in self.c.abl:
                body = [l for l in body if not l.startswith(pat)]
        A.extend(body)
        A(f"s_cbranch_scc0 {loop}")

    @staticmethod
    def fold_t(a, cs, mr, scale=True):
        o = [f"v_pk_fma_f32 {v(a+h,2)}, {v(cs+h,2)}, {v(mr,2)}, {v(a+h,2)} op_sel_hi:[1,0,1] neg_lo:[0,1,0] neg_hi:[0,1,0]" for h in (0, 2)]
        if scale:
            o += [f"v_pk_mul_f32 {v(a+h,2)}, {v(a+h,2)}, {v(mr,2)} op_sel:[0,1] op_sel_hi:[1,1]" for h in (0, 2)]
        return o

    @staticmethod
    def fold_v(a, csreg, mean4, rstd4):
        p, sel = csreg & ~1, csreg & 1
        o = [f"v_pk_fma_f32 {v(a+h,2)}, {v(mean4+h,2)}, {v(p,2)}, {v(a+h,2)} op_sel:[0,{sel},0] op_sel_hi:[1,{sel},1] neg_lo:[0,1,0] neg_hi:[0,1,0]" for h in (0, 2)]
        return o + [f"v_pk_mul_f32 {v(a+h,2)}, {v(a+h,2)}, {v(rstd4+h,2)}" for h in (0, 2)]

    @staticmethod
    def pack(d, a):
        o = [f"v_cvt_pk_bf16_f32 v{d}, v{a}, v{a+1}", f"v_cvt_pk_bf16_f32 v{d+1}, v{a+2}, v{a+3}"]
        return o[::-1] if d == a + 2 else o

    def compute_h(self):
        A, c = self.A, self.c
        vWa, vX0, vX1 = 8, 14, 15
        XF, WF, ACC, ACS, ONE, RS = 24, 56, 80, 176, 188, 192
        self.srds_compute()
        self.row_stats_load("h", RS)
        self.warm_compute()
        A(f"s_lshr_b32 s{sT3}, s{sW}, 1\ns_mul_i32 s{sT3}, s{sT3}, 6")
        A("v_bfe_u32 v2, v0, 2, 3\nv_lshrrev_b32 v3, 5, v0\nv_lshl_add_u32 v3, v3, 4, v2\nv_mul_u32_u24 v3, 384, v3")
        A("v_and_b32 v4, 3, v0\nv_lshl_add_u32 v3, v4, 3, v3\nv_lshrrev_b32 v2, 1, v2")
        for t in range(6):
            A(f"s_add_u32 s{sT2}, s{sT3}, {t}\nv_xor_b32 v4, s{sT2}, v2\nv_lshl_add_u32 v{vWa+t}, v4, 5, v3")
        A(f"s_and_b32 s{sT0}, s{sW}, 1\ns_lshl_b32 s{sT0}, s{sT0}, 13\ns_add_u32 s{sT0}, s{sT0}, {2*H_WH}")
        self.xfrag_addr(vX0, vX1, sT0, 2)
        for i in range(108):
            A(f"v_mov_b32 v{ACC+i}, 0")
        for i in range(4):
            A(f"v_mov_b32 v{ONE+i}, 0x3f803f80")
        A(f"v_lshrrev_b32 v2, 4, v0\ns_lshr_b32 s{sT2}, s{sW}, 1\ns_mul_i32 s{sT1}, s{sT2}, 384\ns_add_u32 s{sT1}, s{sT1}, {MISC + CS_OFF}\nv_lshl_add_u32 v16, v2, 4, s{sT1}")
        A(f"v_and_b32 v2, 15, v0\ns_and_b32 s{sT0}, s{sW}, 1\ns_lshl_b32 s{sT1}, s{sT0}, 8\ns_add_u32 s{sT1}, s{sT1}, {MISC}\nv_lshl_add_u32 v17, v2, 2, s{sT1}")
        A(f"v_lshlrev_b32 v18, 4, v0\nv_add_u32 v19, 4096, v18")
        A(f"s_lshl1_add_u32 s{sT0}, s{sRB}, s{sT0}\ns_mul_i32 s{sT0}, s{sT0}, {H_BLK}")
        A(f"s_mul_i32 s{sT1}, s{sJ}, 6\ns_mul_i32 s{sT2}, s{sT2}, 3\ns_add_u32 s{sT1}, s{sT1}, s{sT2}")
        for pr, d in enumerate([sC, sD, sE]):
            A(f"s_add_u32 s{sT2}, s{sT1}, {pr}\ns_lshr_b32 s{sT3}, s{sT2}, 1\ns_lshl_b32 s{sT3}, s{sT3}, 13\ns_and_b32 s{sT2}, s{sT2}, 1\ns_lshl_b32 s{sT2}, s{sT2}, 10")
            A(f"s_add_u32 s{d}, s{sT0}, s{sT3}\ns_add_u32 s{d}, s{d}, s{sT2}")
        A(f"v_mov_b32 v2, {MISC + CTR_OFF}\nv_mov_b32 v3, 0\nds_write_b32 v2, v3")
        self.row_stats_finish(RS)
        A(f"s_mov_b32 s{sA}, {-H_SLOT}\ns_mov_b32 s{sB}, {2*H_SLOT}\ns_mov_b32 s{sH}, 0")
        A("s_waitcnt lgkmcnt(0)\ns_barrier")
        self.stamp(1)
        l1, le = self.lab("hm"), self.lab("he")
        A(f"s_bitcmp1_b32 s{sW}, 0\ns_cbranch_scc1 {l1}")
        for wm in range(2):
            if wm:
                A.label(l1)
            mf, fr = [], {}
            for st in range(2):
                xa = vX1 if st else vX0
                for i in range(4):
                    fr[("X", st, i)] = (("X", st, i), xa, [f"ds_read_b128 {v(XF+16*st+4*i,4)}, v{xa} offset:{2048*i}"])
                for t in range(6):
                    fr[("W", st, t)] = (("W", t), vWa + t, [f"ds_read_b64_tr_b16 {v(WF+4*t+2*hf,2)}, v{vWa+t} offset:{H_WH*(1-st)+8*384*hf}" for hf in range(2)])
                    for i in range(4):
                        a = v(ACC + 4 * (6 * i + t), 4)
                        mf.append((f"{MF} {a}, {v(WF+4*t,4)}, {v(XF+16*st+4*i,4)}, {a}", [("W", st, t), ("X", st, i)]))
                    if (t & 1) == wm:
                        a = v(ACS + 4 * (t >> 1), 4)
                        mf.append((f"{MF} {a}, {v(WF+4*t,4)}, {v(ONE,4)}, {a}", [("W", st, t)]))
            self.mfma_loop("h", mf, fr, [], 10)
            A("s_mov_b32 exec_lo, 0x10001\ns_mov_b32 exec_hi, 0x10001")
            for k in range(3):
                A(f"ds_write_b128 v16, {v(ACS+4*k,4)} offset:{64*(2*k+wm)}")
            A("s_mov_b64 exec, -1")
            if wm == 0:
                A(f"s_branch {le}")
        A.label(le)
        self.stamp(2)
        MR, CS = 216, 32
        for i in range(4):
            A(f"ds_read2_b32 {v(MR+2*i,2)}, v17 offset0:{16*i} offset1:{16*i+144}")
        A("s_waitcnt lgkmcnt(0)\ns_barrier")
        C = Counter(A, "lgkmcnt", 14)
        tc = [C.issue(f"ds_read_b128 {v(CS+4*t,4)}, v16 offset:{64*t}") for t in range(6)]
        st_mod = "" if c.split else COH
        for pr in range(3):
            C.wait(tc[2 * pr + 1])
            for i in range(4):
                o = 56 + 4 * ((4 * pr + i) % 6)
                for tt in range(2):
                    t = 2 * pr + tt
                    a = ACC + 4 * (6 * i + t)
                    A.extend(self.fold_t(a, CS + 4 * t, MR + 2 * i) + self.pack(o + 2 * tt, a))
                for r in range(4):
                    A(f"v_pk_max_i16 v{o+r}, v{o+r}, 0")
                A(f"buffer_store_dwordx4 {v(o,4)}, v{19 if i >= 2 else 18}, {s(WS_,4)}, s{[sC,sD,sE][pr]} offen offset:{2048*(i&1)}{st_mod}")
        self.stamp(3)
        self.publish_now("h")
        self.stamp(4)

    def compute_q(self):
        A, c = self.A, self.c
        vW, vX0, vX1, vH0, vH1 = 1, 2, 3, 4, 5
        BC, BP, AC, AP, ONE, vT = 8, 12, 20, 22, 28, 29
        XF, WF, AQ, AK, AV, AH = 36, 60, 120, 160, 200, 240
        RS = 60
        so = [8, 9, 12, 13, 14]
        self.srds_compute()
        self.row_stats_load("q", RS)
        self.warm_compute()
        self.init_flags()
        A(f"v_lshrrev_b32 v6, 4, v0\nv_and_b32 v7, 15, v0\nv_cmp_le_u32 {s(mG1,2)}, 1, v6\nv_cmp_le_u32 {s(mG2,2)}, 2, v6\nv_cmp_le_u32 {s(mG3,2)}, 3, v6\nv_cmp_eq_u32 {s(mU0,2)}, 0, v7")
        A(f"s_or_b32 s{sT3}, s{sRB}, s{sW}\ns_cmp_eq_u32 s{sT3}, 0\ns_cselect_b64 {s(sC,2)}, 0, -1")
        A(f"v_mov_b32 v40, 0xf149f2ca\nv_mov_b32 v41, 0\nv_mov_b32 v42, 0xffff\nv_mov_b32 v43, 0xffff0000")
        for k in range(6):
            A(f"v_mov_b32 v{AC+k}, 0")
        for r in range(4):
            A(f"v_lshl_add_u32 v44, v6, 2, {r}\nv_sub_u32 v45, v7, v44\nv_and_b32 v46, 0x80000001, v45\nv_cmp_eq_u32 vcc, 0, v46")
            A(f"v_cndmask_b32 v{BC+r}, v40, v41, vcc\nv_cndmask_b32 v47, v41, v{42+(r&1)}, vcc\nv_or_b32 v{AC+(r>>1)}, v{AC+(r>>1)}, v47")
            A(f"v_cmp_eq_u32 vcc, 0x80000000, v46")
            A(f"v_cndmask_b32 v{BP+4+r}, v40, v41, vcc\nv_cndmask_b32 v47, v41, v{42+(r&1)}, vcc\nv_or_b32 v{AP+2+(r>>1)}, v{AP+2+(r>>1)}, v47")
            A(f"s_and_b64 vcc, vcc, {s(sC,2)}")
            A(f"v_cndmask_b32 v{BP+r}, v40, v41, vcc\nv_cndmask_b32 v47, v41, v{42+(r&1)}, vcc\nv_or_b32 v{AP+(r>>1)}, v{AP+(r>>1)}, v47")
        A(f"v_mov_b32 v{ONE}, 0x3f803f80")
        A(f"s_lshl_b32 s{sT0}, s{sW}, 7\ns_add_u32 s{sT0}, s{sT0}, {MISC + 64}\ns_mov_b32 s{sT1}, {MISC}\ns_mov_b32 s{sT2}, {MISC + CS_OFF}")
        A(f"v_lshl_add_u32 v{vT}, v7, 2, s{sT0}\nv_lshl_add_u32 v{vT+1}, v7, 2, s{sT1}\nv_lshl_add_u32 v{vT+2}, v6, 4, s{sT0}\nv_lshl_add_u32 v{vT+3}, v6, 4, s{sT1}")
        A(f"v_lshl_add_u32 v{vT+4}, v6, 4, s{sT2}\nv_lshl_add_u32 v{vT+5}, v7, 2, s{sT2}")
        A(f"s_mul_i32 s{sT0}, s{sW}, 5120\nv_lshl_add_u32 v26, v0, 4, s{sT0}\nv_lshl_add_u32 v35, v0, 3, s{sT0}\nv_lshlrev_b32 v27, 3, v0")
        A(f"s_lshr_b32 s{sT0}, s{sW}, 1\ns_lshl1_add_u32 s{sT0}, s{sRB}, s{sT0}\ns_mul_i32 s{sT0}, s{sT0}, {O_BLK}\ns_and_b32 s{sT1}, s{sW}, 1\ns_lshl_b32 s{sT1}, s{sT1}, 12")
        A(f"s_add_u32 s{sT0}, s{sT0}, s{sT1}\ns_add_u32 s{sT0}, s{sT0}, {O_BASE}\ns_mul_i32 s{sT1}, s{sJ}, 5")
        for t in range(5):
            A(f"s_add_u32 s{sT2}, s{sT1}, {t}\ns_lshr_b32 s{sT3}, s{sT2}, 2\ns_lshl_b32 s{sT3}, s{sT3}, 13\ns_and_b32 s{sT2}, s{sT2}, 3\ns_lshl_b32 s{sT2}, s{sT2}, 9")
            A(f"s_add_u32 s{so[t]}, s{sT0}, s{sT3}\ns_add_u32 s{so[t]}, s{so[t]}, s{sT2}")
        A(f"v_bfe_u32 v6, v0, 2, 3\nv_lshrrev_b32 v7, 5, v0\nv_lshl_add_u32 v6, v7, 4, v6\nv_mul_u32_u24 v6, 480, v6\nv_and_b32 v7, 3, v0\nv_lshl_add_u32 v{vW}, v7, 3, v6")
        A(f"s_lshl_b32 s{sT0}, s{sW}, 12\ns_add_u32 s{sT0}, s{sT0}, {2*Q_WH + 2048}")
        self.xfrag_addr(vX0, vX1, sT0, 6)
        A(f"s_mov_b32 s{sT0}, {2*Q_WH}")
        self.xfrag_addr(vH0, vH1, sT0, 6)
        for i in range(AQ, 256):
            A(f"v_mov_b32 v{i}, 0")
        A(f"v_mov_b32 v6, {MISC + CTR_OFF}\nv_mov_b32 v7, 0\nds_write_b32 v6, v7")
        self.row_stats_finish(RS)
        A(f"s_mov_b32 s{sA}, {Q_SLOT}\ns_mov_b32 s{sB}, {-2*Q_SLOT}\ns_mov_b32 s{sH}, 0")
        A("s_waitcnt lgkmcnt(0)\ns_barrier")
        self.stamp(1)
        lw = [self.lab("qw") for _ in range(4)]
        le1 = self.lab("e1")
        A(f"s_cmp_eq_u32 s{sW}, 1\ns_cbranch_scc1 {lw[1]}\ns_cmp_eq_u32 s{sW}, 2\ns_cbranch_scc1 {lw[2]}\ns_cmp_eq_u32 s{sW}, 3\ns_cbranch_scc1 {lw[3]}")
        accq = lambda t, p: (AQ + 20 * p + 4 * t) if t < 5 else (AK + 20 * p + 4 * (t - 5)) if t < 10 else (AV + 8 * (t - 10) + 4 * p)
        for w in range(4):
            A.label(lw[w])
            mf, fr, fix = [], {}, []
            for st in range(2):
                for i in range(3):
                    xa = [vH0, vH1][st] if i == 2 else [vX0, vX1][st]
                    fr[("X", st, i)] = (("X", st, i), xa, [f"ds_read_b128 {v(XF+12*st+4*i,4)}, v{xa} offset:{2048*i if i < 2 else 0}"])
                hx = XF + 12 * st + 8
                fix.append((("X", st, 2), 2, [f"v_cndmask_b32 v{hx+r}, v{hx+r}, v{ONE}, {s(mU0,2)}" for r in range(4)]))
                for t in range(15):
                    fr[("W", st, t)] = (("W", t), vW, [f"ds_read_b64_tr_b16 {v(WF+4*t+2*hf,2)}, v{vW} offset:{Q_WH*(1-st)+8*480*hf+32*t}" for hf in range(2)])
                    for i in [0, 1] + ([2] if t % 4 == w else []):
                        a = v(accq(t, i) if i < 2 else AH + 4 * (t // 4), 4)
                        wf, xf = v(WF + 4 * t, 4), v(XF + 12 * st + 4 * i, 4)
                        ops = f"{wf}, {xf}" if t < 10 else f"{xf}, {wf}"
                        mf.append((f"{MF} {a}, {ops}, {a}", [("W", st, t), ("X", st, i)]))
            self.mfma_loop("q", mf, fr, fix, 10)
            A(f"s_mov_b64 exec, {s(mU0,2)}")
            for t in range(w, 10, 4):
                A(f"ds_write_b128 v{vT+4}, {v(AH+4*(t//4),4)} offset:{64*t}")
            A("s_mov_b64 exec, 0xffff")
            for t in range(w, 15, 4):
                if t >= 10:
                    A(f"ds_write_b32 v{vT+5}, v{AH+4*(t//4)} offset:{64*t}")
            A("s_mov_b64 exec, -1\ns_waitcnt lgkmcnt(0)")
            if w < 3:
                A(f"s_branch {le1}")
        A.label(le1)
        self.stamp(2); self.estamp(1)
        MR, VM, CSK, CSV, CSQ = 36, 42, 66, 86, 92
        A(f"ds_read2_b32 {v(MR,2)}, v{vT} offset0:0 offset1:144\nds_read2_b32 {v(MR+2,2)}, v{vT} offset0:16 offset1:160\nds_read2_b32 {v(MR+4,2)}, v{vT+1} offset0:0 offset1:144")
        for i in range(3):
            ad, off = (vT + 2, 64 * i) if i < 2 else (vT + 3, 0)
            A(f"ds_read_b128 {v(VM+8*i,4)}, v{ad} offset:{off}\nds_read_b128 {v(VM+8*i+4,4)}, v{ad} offset:{off + ST_RSTD}")
        A("v_lshlrev_b32 v7, 4, v0\ns_barrier")
        self.estamp(2)
        C = Counter(A, "lgkmcnt", 14)
        C.n = 9
        t_ck = [C.issue(f"ds_read_b128 {v(CSK+4*t,4)}, v{vT+4} offset:{64*(5+t)}") for t in range(5)]
        t_cv = [C.issue(f"ds_read_b32 v{CSV+t}, v{vT+5} offset:{64*(10+t)}") for t in range(5)]
        KC = lambda p: AK + 10 * p
        KP = AK + 20
        foldk = lambda p, t: self.fold_t(AK + 20 * p + 4 * t, CSK + 4 * t, MR + 2 * p) + self.pack(KC(p) + 2 * t, AK + 20 * p + 4 * t)
        def foldv(p, t):
            a = AV + 8 * t + 4 * p
            return self.fold_v(a, CSV + t, VM + 8 * p, VM + 8 * p + 4) + self.pack(AV + 8 * t + 4 + 2 * p, a)
        for t in range(5):
            C.wait(t_ck[t])
            A.extend(foldk(0, t))
        t_cq = [C.issue(f"ds_read_b128 {v(CSQ+4*t,4)}, v{vT+4} offset:{64*t}") for t in range(5)]
        wr = {}
        wr["k"] = [f"ds_write_b128 v26, {v(KC(1),4)} offset:5120", f"ds_write_b128 v26, {v(KC(1)+4,4)} offset:6144", f"ds_write_b64 v35, {v(KC(1)+8,2)} offset:7168"]
        lh = [self.lab("hw") for _ in range(5)]
        for t in range(5):
            A.extend(foldk(1, t))
        A(f"s_waitcnt lgkmcnt(0)\ns_cmp_eq_u32 s{sW}, 1\ns_cbranch_scc1 {lh[1]}\ns_cmp_eq_u32 s{sW}, 2\ns_cbranch_scc1 {lh[2]}\ns_cmp_eq_u32 s{sW}, 3\ns_cbranch_scc1 {lh[3]}")
        for w in range(4):
            A.label(lh[w])
            blocks = []
            for t in range(w, 15, 4):
                a = AH + 4 * (t // 4)
                if 5 <= t < 10:
                    k = t - 5
                    blocks.append(self.fold_t(a, CSK + 4 * k, MR + 4) + self.pack(a, a) +
                                  [f"ds_write_b64 v7, {v(a,2)} offset:{K*(k>>1)+8*(k&1)}" if k < 4 else f"ds_write_b64 v27, {v(a,2)} offset:2048"])
                elif t >= 10:
                    k = t - 10
                    blocks.append(self.fold_v(a, CSV + k, VM + 16, VM + 20) + self.pack(a, a) + [f"ds_write_b64 v27, {v(a,2)} offset:{2560+512*k}"])
            for t in range(5):
                blocks.append(foldv(1, t) + ([f"ds_write_b64 v35, {v(AV+8*t+6,2)} offset:{5120+2560+512*t}"] if w < 3 else []))
            seq = sum(blocks, [])
            A.extend(weave(seq, wr["k"] if w < 3 else [], 14, 1))
            if w < 3:
                A(f"s_branch {lh[4]}")
        A.label(lh[4])
        for t in range(5):
            A.extend(foldv(0, t))
        A(f"s_mov_b32 s{sT0}, 0x3ea52b5c\nv_mul_f32 v{MR+1}, s{sT0}, v{MR+1}\nv_mul_f32 v{MR+3}, s{sT0}, v{MR+3}")
        QH = lambda p, h: 42 + 16 * p + 4 * h
        masks = [None, mG1, mG2, mG3]
        def foldq(p):
            o = []
            for t in range(5):
                a = AQ + 20 * p + 4 * t
                d = QH(p, 0) if t == 0 else (QH(p, 3) + 2 if t == 4 else a)
                o += self.fold_t(a, CSQ + 4 * t, MR + 2 * p, scale=False) + self.pack(d, a)
                if 1 <= t <= 3:
                    for r in range(2):
                        o += [f"v_cndmask_b32 v{QH(p,t)+r}, 0, v{a+r}, {s(masks[t],2)}", f"v_cndmask_b32 v{QH(p,t-1)+2+r}, v{a+r}, 0, {s(masks[t],2)}"]
            return o
        A.extend(foldq(1))
        self.estamp(3)
        A("s_waitcnt lgkmcnt(0)\ns_barrier")
        self.estamp(4)
        A(f"ds_read_b128 {v(KP,4)}, v26\nds_read_b128 {v(KP+4,4)}, v26 offset:1024\nds_read_b64 {v(KP+8,2)}, v35 offset:2048")
        for t in range(5):
            A(f"ds_read_b64 {v(AV+8*t+2,2)}, v35 offset:{2560+512*t}")
        SP = lambda p, h: (140 + 8 * h if h < 2 else 240 + 8 * (h - 2)) if p else 74 + 8 * h
        MX, MRS, ONE4 = 106, 114, 116
        def qk(p):
            prev = KC(0) if p else KP
            return [f"{MF} {v(SP(p,h)+4,4)}, {v(KC(p)+2*h,4)}, {v(QH(p,h),4)}, {v(BC,4)}" for h in range(4)] + \
                   [f"{MF} {v(SP(p,h),4)}, {v(prev+2*h,4)}, {v(QH(p,h),4)}, {v(BP+4*p,4)}" for h in range(4)]
        def rowmax(p):
            o, m = [], MX + 4 * p
            for h in range(4):
                b = SP(p, h)
                o += [f"v_max_f32 v{b+4+r}, v{b+r}, v{b+4+r}" for r in range(4)]
                o += [f"v_max3_f32 v{m+h}, v{b+4}, v{b+5}, v{b+6}", f"v_max_f32 v{m+h}, v{m+h}, v{b+7}"]
            o += lines(f"v_permlane32_swap_b32 v{m}, v{m+1}\nv_permlane32_swap_b32 v{m+2}, v{m+3}\nv_max_f32 v{m}, v{m}, v{m+1}\nv_max_f32 v{m+2}, v{m+2}, v{m+3}")
            o += lines(f"v_permlane16_swap_b32 v{m}, v{m+2}\nv_max_f32 v{m}, v{m}, v{m+2}\nv_mul_f32 v{m}, v{m}, v{MR+2*p+1}\nv_mov_b32 v{m+2}, v{m}\nv_permlane16_swap_b32 v{m}, v{m+2}")
            o += lines(f"v_mov_b32 v{m+1}, v{m}\nv_mov_b32 v{m+3}, v{m+2}\nv_permlane32_swap_b32 v{m}, v{m+1}\nv_permlane32_swap_b32 v{m+2}, v{m+3}")
            return o
        def probs(p):
            o = []
            for h in range(4):
                b, m = SP(p, h), MX + 4 * p + h
                o += [f"v_pk_fma_f32 {v(b+4+r,2)}, {v(b+4+r,2)}, {v(MR+2*p,2)}, {v(m & ~1,2)} op_sel:[0,1,{m&1}] op_sel_hi:[1,1,{m&1}] neg_lo:[0,0,1] neg_hi:[0,0,1]" for r in (0, 2)]
                o += [f"v_exp_f32 v{b+4+r}, v{b+4+r}" for r in range(4)]
            for h in range(4):
                b = SP(p, h)
                o += self.pack(b + 4, b + 4)
                o += lines(f"v_and_b32 v{b}, v{AP+2*p}, v{b+4}\nv_and_b32 v{b+1}, v{AP+2*p+1}, v{b+5}\nv_and_b32 v{b+2}, v{AC}, v{b+4}\nv_and_b32 v{b+3}, v{AC+1}, v{b+5}")
            return o
        OT = {}
        pool = {1: list(range(42, 74, 4)), 0: list(range(160, 192, 4))}
        def pv(p):
            o = [f"{MF} {v(SP(p,h)+4,4)}, {v(ONE4,4)}, {v(SP(p,h),4)}, 0" for h in range(4)]
            for t in range(5):
                for h in ([t - 1] if t >= 1 else []) + ([t] if t <= 3 else []):
                    OT[(p, t, h)] = pool[p].pop(0)
                    o.append(f"{MF} {v(OT[(p,t,h)],4)}, {v(AV+8*t+2+2*p,4)}, {v(SP(p,h),4)}, 0")
            return o
        st_mod = "" if c.split else COH
        def final(p):
            m0 = MX + 4 * p
            o = [f"v_rcp_f32 v{m0+h}, v{SP(p,h)+4}" for h in range(4)]
            for t in range(5):
                if 1 <= t <= 3:
                    a, b2 = OT[(p, t, t - 1)], OT[(p, t, t)]
                    o += [f"v_cndmask_b32 v{a+r}, v{a+r}, v{b2+r}, {s(masks[t],2)}" for r in range(4)]
                    o.append(f"v_cndmask_b32 v{b2}, v{m0+t-1}, v{m0+t}, {s(masks[t],2)}")
                    m = b2
                else:
                    a, m = OT[(p, t, min(t, 3))], m0 + min(t, 3)
                o += [f"v_pk_mul_f32 {v(a+r,2)}, {v(a+r,2)}, {v(m & ~1,2)} op_sel:[0,{m&1}] op_sel_hi:[1,{m&1}]" for r in (0, 2)]
                o += self.pack(a, a)
                o.append(f"buffer_store_dwordx2 {v(a,2)}, v27, {s(WS_,4)}, s{so[t]} offen offset:{2048*p}{st_mod}")
            return o
        A.extend(weave(foldq(0), qk(1), 3, 1))
        A("s_waitcnt lgkmcnt(0)")
        A.extend(weave([f"v_mov_b32 v{ONE4+r}, v{ONE}" for r in range(4)] + rowmax(1), qk(0), 3, 1))
        self.estamp(5)
        A.extend(probs(1))
        A.extend(weave(rowmax(0) + probs(0), pv(1), 3, 2))
        self.estamp(6)
        A.extend(weave(final(1), pv(0), 3, 2))
        A.extend(final(0))
        self.stamp(3); self.estamp(7)
        if not (c.phase2 and c.pubq):
            self.publish_now("q")
        self.stamp(4)

    @staticmethod
    def p2geom(role):
        if role == "q":
            return dict(N=64, nW=2, w=[x * K for x in (64, 72, 80, 88, 112, 120, 128, 136)], wbase=[64 * K, 112 * K],
                        a=[x * K for x in (144, 96, 104, 24, 32, 40, 48, 56)], abase=[24 * K, 96 * K])
        return dict(N=96, nW=3, w=[x * K for x in (144, 132, 120, 108, 96, 84, 72, 60)], wbase=[60 * K, 108 * K],
                    a=[x * K for x in (52, 44, 36, 28, 20, 12, 4)], abase=[4 * K, 160 * K])

    RW = 8
    P2W, P2A, P2F, P2L, STG = 48, 51, 52, 56, 64
    sPW, sPA, sPM, sPN, sPB = 4, 5, 6, 7, 8

    def p2_colbytes(self, N):
        if N == 64:
            self.A(f"s_lshl_b32 s{sCOL}, s{sCOL}, 7\ns_add_u32 s{sCOL}, s{sCOL}, 768")
        else:
            self.A(f"s_mul_i32 s{sCOL}, s{sCOL}, 192")

    def p2_loader_setup(self, role):
        A, g = self.A, self.p2geom(role)
        self.wnext = 0
        if not self.c.phase2:
            return
        self.p2_colbytes(g["N"])
        if role == "q":
            A(f"v_lshrrev_b32 v2, 3, v0\nv_and_b32 v3, 6, v2\nv_and_b32 v4, 7, v0\nv_xor_b32 v3, v3, v4\nv_mul_u32_u24 v2, 1280, v2\nv_lshl_add_u32 v2, v3, 4, v2")
            A(f"s_mul_i32 s{sT0}, s{sW}, {16*1280}\ns_add_u32 s{sT0}, s{sT0}, s{sCOL}\nv_add_u32 v{self.P2W}, s{sT0}, v2\nv_add_u32 v{self.P2W+1}, {8*1280-K}, v{self.P2W}")
        else:
            for i in range(3):
                A(f"s_mul_i32 s{sT0}, s{sW}, 192\ns_add_u32 s{sT0}, s{sT0}, {64*i}\nv_add_u32 v2, s{sT0}, v0")
                A("v_mul_u32_u24 v3, 5462, v2\nv_lshrrev_b32 v3, 16, v3\nv_mul_u32_u24 v4, 12, v3\nv_sub_u32 v2, v2, v4")
                A("v_lshrrev_b32 v4, 1, v3\nv_and_b32 v4, 2, v4\nv_xor_b32 v2, v2, v4\nv_mul_u32_u24 v3, 1280, v3\nv_lshl_add_u32 v2, v2, 4, v3")
                A(f"s_sub_u32 s{sT0}, s{sCOL}, {K*i}\nv_add_u32 v{self.P2W+i}, s{sT0}, v2")
        A(f"s_lshl_b32 s{self.sPN}, s{sW}, 11\nv_lshl_add_u32 v{self.P2A}, v0, 4, s{self.sPN}")
        A(f"s_lshr_b32 s{sT0}, s{sBLK}, 1\ns_lshl_b32 s{sT0}, s{sT0}, 8\ns_add_u32 s{sT0}, s{sT0}, {FLAG_BASE}\nv_mov_b32 v{self.P2F}, s{sT0}\nv_add_u32 v{self.P2F+1}, 4096, v{self.P2F}")
        A(f"s_mov_b32 s{self.sPW}, s{sROT2}\ns_mov_b32 s{self.sPA}, s{sROT2}\ns_mul_i32 s{self.sPM}, s{sW}, {K*g['nW']}\ns_mul_i32 s{self.sPB}, s{sBLK}, {H_BLK}")
        A(f"v_lshl_add_u32 v2, v0, 4, s{self.sPM}\nv_add_u32 v{self.P2L}, {g['wbase'][0]}, v2\nv_add_u32 v{self.P2L+1}, {g['wbase'][1]}, v2")

    def p2_prep_w(self, cw):
        A = self.A
        if cw == 24:
            A(f"s_mov_b32 s{self.sPW}, s{sROT3}")
        lim = 24 if cw < 24 else 10
        A(f"s_cmp_ge_u32 s{self.sPW}, {lim}\ns_cselect_b32 s{sT2}, {lim}, 0\ns_sub_u32 s{self.sPW}, s{self.sPW}, s{sT2}\ns_mul_i32 s{sT2}, s{self.sPW}, {64*1280}\ns_add_u32 s{self.sPW}, s{self.sPW}, 1")

    def p2_issue_w(self, role, cw, C=None):
        A, g = self.A, self.p2geom(role)
        emit = (C.issue if C else A)
        if self.RW <= cw < self.RW + self.c.stage[role] and not self.c.split:
            for i in range(g["nW"]):
                tag = emit(f"buffer_load_dwordx4 {v(self.STG + 4*(g['nW']*(cw-self.RW)+i),4)}, v{self.P2W+i}, {s(W2_,4)}, s{sT2} offen offset:{K*i}")
            return tag
        A(f"s_add_u32 m0, s{self.sPM}, {g['w'][cw % self.RW]}")
        for i in range(g["nW"]):
            tag = emit(f"buffer_load_dwordx4 v{self.P2W+i}, {s(W2_ if cw < 24 else WO_,4)}, s{sT2} offen offset:{K*i} lds")
        return tag

    def p2_prep_a(self, ca):
        A = self.A
        if ca == 24:
            A(f"s_mov_b32 s{self.sPA}, s{sROT3}\ns_mul_i32 s{self.sPB}, s{sBLK}, {O_BLK}\ns_add_u32 s{self.sPB}, s{self.sPB}, {O_BASE}")
        lim = 24 if ca < 24 else 10
        A(f"s_cmp_ge_u32 s{self.sPA}, {lim}\ns_cselect_b32 s{sT3}, {lim}, 0\ns_sub_u32 s{self.sPA}, s{self.sPA}, s{sT3}\ns_lshl_b32 s{sT3}, s{self.sPA}, 13\ns_add_u32 s{sT3}, s{sT3}, s{self.sPB}\ns_add_u32 s{self.sPA}, s{self.sPA}, 1")

    def p2_issue_a(self, role, ca, C):
        A, g = self.A, self.p2geom(role)
        A(f"s_add_u32 m0, s{self.sPN}, {g['a'][ca % len(g['a'])]}")
        mod = "" if self.c.split else COH
        for i in range(2):
            tag = C.issue(f"buffer_load_dwordx4 v{self.P2A}, {s(WS_,4)}, s{sT3} offen offset:{K*i}{mod} lds")
        return tag

    def p2_prefetch(self, role, upto):
        k = 0
        while self.wnext < upto:
            self.p2_prep_w(self.wnext)
            self.p2_issue_w(role, self.wnext)
            self.wnext += 1
            k += self.p2geom(role)["nW"]
        return k

    def p2_loader(self, role, pending):
        A, g, c = self.A, self.p2geom(role), self.c
        C = Counter(A, "vmcnt", 62)
        RW, RA, nW = self.RW, len(g["a"]), g["nW"]
        tw, ta = {}, {}
        vR = self.P2F + 2
        SE = RW if c.split else RW + c.stage[role]
        warm = sum((self.warm_row(WO_, 14, 15, r) for r in range(5)), []) if (c.warm and not c.split) else []
        def next_w():
            nonlocal warm
            cw = self.wnext
            self.p2_prep_w(cw); tw[cw] = self.p2_issue_w(role, cw, C)
            self.wnext += 1
            A.extend(warm[:5]); warm = warm[5:]
        def first_a():
            if not c.split:
                C.wait(C.issue(f"buffer_load_dword v{vR}, v{self.P2F}, {s(WS_,4)}, 0 offen{COH}"))
                self.check(vR, self.P2F, WS_, 8)
                self.trace(11)
                self.stamp(3)
            for ca in range(RA):
                self.p2_prep_a(ca); ta[ca] = self.p2_issue_a(role, ca, C)
        C.n = pending
        for cw in range(self.wnext):
            tw[cw] = max(0, pending - nW * (self.wnext - 1 - cw))
        if c.split:
            next_w(); first_a()
            while self.wnext < RW:
                next_w()
        else:
            while self.wnext < RW:
                next_w()
            if role == "q":
                first_a()
            while self.wnext < min(SE, RW + c.nreg0[role]):
                next_w()
            if role == "h":
                first_a()
            A.extend(warm)
        pollt = None
        for ch in range(34):
            ca, cw = ch - 2 + RA, ch - 2 + RW
            do_a, do_w = ch >= 2 and ca < 34, ch >= 2 and cw < 34
            staged = do_w and cw < SE
            if do_a:
                self.p2_prep_a(ca)
            if do_w and not staged:
                self.p2_prep_w(cw)
            C.wait(max(ta[ch], tw[ch], tw[cw] if staged else 0))
            if RW <= ch < SE:
                A(f"s_waitcnt lgkmcnt({nW * sum(1 for e in range(ch - 4, ch) if e + RW - 2 < SE)})")
            A("s_barrier")
            self.trace(12 + ch)
            if ca == 22 and not c.split:
                pollt = C.issue(f"buffer_load_dword v{vR}, v{self.P2F+1}, {s(WS_,4)}, 0 offen{COH}")
            if ca == 24 and not c.split:
                self.stamp(4)
                C.wait(pollt)
                self.check(vR, self.P2F + 1, WS_, 8)
                self.stamp(5)
            if do_a:
                ta[ca] = self.p2_issue_a(role, ca, C)
            if staged:
                wb = 1 if g["w"][cw % RW] >= g["wbase"][1] else 0
                for i in range(nW):
                    A(f"ds_write_b128 v{self.P2L+wb}, {v(self.STG + 4*(nW*(cw-RW)+i),4)} offset:{g['w'][cw % RW] - g['wbase'][wb] + K*i}")
            elif do_w:
                tw[cw] = self.p2_issue_w(role, cw, C)
            if self.wnext < SE:
                next_w()
        self.stamp(6)

    def p2_compute(self, role):
        A, g, c = self.A, self.p2geom(role), self.c
        N = g["N"]; NT = N // 32; RB = 2 * N
        vWa, vB, vO, vRow = 8, 160, 162, 6
        ACC, FB, FW, XR = 16, 40, 72, 120
        self.p2_colbytes(N)
        A(f"s_and_b32 s{sT0}, s{sW}, 1\ns_lshl1_add_u32 s{sT0}, s{sBLK}, s{sT0}\ns_mul_i32 s{sT0}, s{sT0}, {32*1280}\ns_add_u32 s{sT0}, s{sT0}, s{sCOL}")
        A(f"s_lshr_b32 s{sT1}, s{sW}, 1\ns_mul_i32 s{sT1}, s{sT1}, {32*NT}\ns_add_u32 s{sF}, s{sT0}, s{sT1}\ns_add_u32 s{sE}, s{sF}, {16*1280}")
        A(f"v_and_b32 v2, 15, v0\nv_mul_u32_u24 v{vRow}, 1280, v2\nv_lshrrev_b32 v3, 4, v0\nv_lshl_add_u32 v2, v3, 3, v{vRow}")
        for p in range(2):
            for i in range(NT):
                A(f"buffer_load_dwordx2 {v(XR+2*(NT*p+i),2)}, v2, {s(X_,4)}, s{sE if p else sF} offen offset:{32*i}")
        A(f"v_bfe_u32 v2, v0, 2, 2\nv_lshl_add_u32 v2, v3, 2, v2\nv_mul_u32_u24 v4, {RB}, v2\nv_and_b32 v5, 3, v0\nv_lshl_add_u32 v4, v5, 3, v4")
        A("v_bfe_u32 v2, v2, 1, 2" if N == 64 else "v_and_b32 v2, 1, v3")
        A(f"s_lshr_b32 s{sT0}, s{sW}, 1\ns_mul_i32 s{sT0}, s{sT0}, {NT}")
        for i in range(NT):
            A(f"s_add_u32 s{sT1}, s{sT0}, {i}\nv_xor_b32 v3, s{sT1}, v2\nv_lshl_add_u32 v3, v3, 5, v4\nv_add_u32 v{vWa+i}, {g['wbase'][0]}, v3\nv_add_u32 v{vWa+3+i}, {g['wbase'][1]}, v3")
        A(f"s_and_b32 s{sT0}, s{sW}, 1\ns_lshl_b32 s{sT0}, s{sT0}, 12\ns_add_u32 s{sT0}, s{sT0}, {g['abase'][0]}\nv_lshl_add_u32 v{vB}, v0, 4, s{sT0}\nv_lshl_add_u32 v{vO}, v0, 3, s{sT0}")
        if g["abase"][1] < LDS_BYTES:
            A(f"v_add_u32 v{vB+1}, {g['abase'][1]-g['abase'][0]}, v{vB}\nv_add_u32 v{vO+1}, {g['abase'][1]-g['abase'][0]}, v{vO}")
        for r in list(range(ACC, ACC + 8 * NT)) + list(range(FB + 16, FB + 32)) + list(range(FW + 8 * NT, FW + 16 * NT)):
            A(f"v_mov_b32 v{r}, 0")

        def mfmas(st):
            out = []
            for ks in range(2):
                for i in range(NT):
                    for p in range(2):
                        a = v(ACC + 4 * (NT * p + i), 4)
                        out.append(f"{MF} {a}, {v(FW+8*NT*st+4*(NT*ks+i),4)}, {v(FB+16*st+8*ks+4*p,4)}, {a}")
            return out

        def chunk(ch, extra=(), head=()):
            st, opart = ch & 1, ch >= 24
            wb = 1 if g["w"][ch % self.RW] >= g["wbase"][1] else 0
            wo = g["w"][ch % self.RW] - g["wbase"][wb]
            aa = g["a"][ch % len(g["a"])]
            ab = 1 if aa >= g["abase"][1] else 0
            ao = aa - g["abase"][ab]
            A("s_barrier\ns_waitcnt lgkmcnt(0)")
            A.extend(head)
            rd = []
            for ks in range(2):
                for p in range(2):
                    d = FB + 16 * st + 8 * ks + 4 * p
                    if opart:
                        rd += [f"ds_read_b64 {v(d+2*hf,2)}, v{vO+ab} offset:{ao+2048*p+512*(2*ks+hf)}" for hf in range(2)]
                    else:
                        rd.append(f"ds_read_b128 {v(d,4)}, v{vB+ab} offset:{ao+2048*p+K*ks}")
                for i in range(NT):
                    d = FW + 8 * NT * st + 4 * (NT * ks + i)
                    rd += [f"ds_read_b64_tr_b16 {v(d+2*hf,2)}, v{vWa+3*wb+i} offset:{wo+(32*ks+16*hf)*RB}" for hf in range(2)]
            rd += list(extra)
            for m in mfmas(1 - st):
                A(m); A.extend(rd[:2]); rd = rd[2:]
            A.extend(rd)

        heads = {}
        if role == "q" and c.pubq and not c.split:
            heads[c.pubq], heads[c.pubq + 1] = self.publish("q", 2 * NT)
        for ch in range(24):
            chunk(ch, head=heads.get(ch, ()))
        self.stamp(5)
        XU = XR + 16
        unpack = ["s_waitcnt vmcnt(0)"]
        for k in range(2 * NT):
            x = XR + 2 * k
            unpack += lines(f"v_lshlrev_b32 v{XU+4*k}, 16, v{x}\nv_and_b32 v{XU+4*k+1}, 0xffff0000, v{x}\nv_lshlrev_b32 v{XU+4*k+2}, 16, v{x+1}\nv_and_b32 v{XU+4*k+3}, 0xffff0000, v{x+1}")
        unpack += lines(f"v_lshrrev_b32 v3, 4, v0\nv_and_b32 v4, 1, v3\nv_lshrrev_b32 v3, 1, v3\nv_lshl_add_u32 v3, v3, 4, v{vRow}\nv_lshl_add_u32 v2, v4, 5, v3\nv_mul_u32_u24 v4, {16*1280}, v4\nv_add_u32 v3, v3, v4")
        for ch in range(24, 34):
            n = -(-len(unpack) // (34 - ch)) if ch >= 26 else 0
            chunk(ch, unpack[:n]); unpack = unpack[n:]
        A("s_waitcnt lgkmcnt(0)")
        A.extend(mfmas(1))
        self.stamp(6)
        O = FB
        jobs = [(NT * p, NT * p + 1, 2, sE if p else sF, 0) for p in range(2)]
        if NT == 3:
            jobs.append((2, 5, 3, sF, 64))
        for n, (k0, k1, va, so, off) in enumerate(jobs):
            d = O + 4 * n
            for dd, k in ((d, k0), (d + 2, k1)):
                for h in (0, 2):
                    A(f"v_pk_add_f32 {v(ACC+4*k+h,2)}, {v(ACC+4*k+h,2)}, {v(XU+4*k+h,2)}")
                A.extend(self.pack(dd, ACC + 4 * k))
            A(f"v_permlane16_swap_b32 v{d}, v{d+2}\nv_permlane16_swap_b32 v{d+1}, v{d+3}")
            A(f"buffer_store_dwordx4 {v(d,4)}, v{va}, {s(OUT_,4)}, s{so} offen offset:{off}{c.out_mod}")

    def kernel(self, name, tag, do1, do2):
        A = self.A
        self.entry(name, tag)
        for role in ("q", "h"):
            if role == "h":
                A.label(f"L_HH_{tag}")
            pending = 0
            if do1:
                pending = self.helper1(role)
            else:
                A("s_waitcnt lgkmcnt(0)")
                self.srds_helper2()
                self.p2_loader_setup(role)
            if do2:
                self.p2_loader(role, pending)
            self.stamp_out(7, 1)
            A("s_endpgm")
        for role in ("q", "h"):
            A.label(f"L_{role.upper()}C_{tag}")
            if do1:
                (self.compute_q if role == "q" else self.compute_h)()
            else:
                self.srds_compute()
            if do2:
                self.p2_compute(role)
            self.stamp(7)
            self.stamp_out(8, 0)
            A("s_endpgm")
        A.label(f"L_end_{tag}")
        A("s_endpgm")

    def build(self):
        A, c = self.A, self.c
        A(open(os.path.join(os.path.dirname(os.path.abspath(__file__)), "header.txt")).read().rstrip())
        if c.split:
            A(f"; @launch kernel=phase1_kernel grid=(256,1,1) block=(512,1,1) lds={LDS_BYTES}")
            A(f"; @launch kernel=phase2_kernel grid=(256,1,1) block=(512,1,1) lds={LDS_BYTES}")
        else:
            A(f"; @launch grid=(256,1,1) block=(512,1,1) lds={LDS_BYTES}")
        A('.amdgcn_target "amdgcn-amd-amdhsa--gfx950"')
        if c.split:
            p2 = c.phase2
            c.phase2 = False
            self.kernel("phase1_kernel", "a", True, False)
            c.phase2 = p2
            self.kernel("phase2_kernel", "b", False, True)
            A(kernel_desc("phase1_kernel", 256, 256)); A(kernel_desc("phase2_kernel", 256, 256))
        else:
            self.kernel(NAME + "_kernel", "a", True, c.phase2)
            A(kernel_desc(NAME + "_kernel", 256, 256))
        return A.text()

def make(**kw):
    return Gen(Cfg(**kw)).build()

if __name__ == "__main__":
    kw = {}
    for a_ in sys.argv[2:]:
        k, val = a_.split("=", 1)
        kw[k] = eval(val)
    open(sys.argv[1], "w").write(make(**kw))
```

```python
import sys, os
from asmlib import *

NAME = "parallel_sum__sliding_local_dilated__dense_activation_relu__prompt"
MF = "v_mfma_f32_16x16x32_bf16"

H_BLK = 24 * 8192
O_BLK = 10 * 8192
H_BASE = 0
O_BASE = 32 * H_BLK
FLAG_BASE = 16 << 20
STAT_BASE = 18 << 20
STAMP_BASE = 20 << 20
WS_BYTES = 32 << 20

X_, W1_, W2_, WO_, WS_, DBG_, FLEX_, OUT_ = 20, 24, 28, 32, 36, 40, 44, 48
sWAVE, sW, sRB, sJ, sBLK, sCOL, sROT, sCNT = 52, 53, 54, 55, 56, 57, 58, 59
sT0, sT1, sT2, sT3 = 60, 61, 62, 63
sA, sB, sC, sD, sE, sF = 64, 65, 66, 67, 68, 69
mG1, mG2, mG3, mU0 = 70, 72, 74, 76
sROT2, sROT3 = 78, 79
sG, sH, sI = 3, 80, 81
sSTAMP = 82

K = 1024
Q_SLOT, H_SLOT = 48 * K, 40 * K
Q_WH, H_WH = 15 * K, 12 * K
MISC = 157 * K
ST_RSTD = 576
CS_OFF = 1152
CTR_OFF = 2304
LDS_BYTES = 163840
SPIN_LIMIT = 20000
COH = " sc0 sc1"

class Cfg:
    def __init__(self, **kw):
        self.split = False
        self.stamps = False
        self.dbgstamps = False
        self.epi = False
        self.trace = False
        self.phase2 = True
        self.rot = True
        self.rot2 = True
        self.pre1 = 3
        self.prio_h = 1
        self.abl = ''
        self.preq = {8: 4, 9: 8}
        self.preh = {8: 5, 9: 8}
        self.nreg0 = {"q": 10, "h": 8}
        self.warm = 0
        self.warm_c = 0
        self.pubq = 3
        self.ld_mod = COH
        self.st_mod = COH
        self.comp = False
        self.out_mod = ''
        self.stage = {'q': 0, 'h': 0}
        self.hold = False
        self.__dict__.update(kw)

def srd(A, d, b, n):
    A(f"s_mov_b32 s{d}, s{b}\ns_mov_b32 s{d+1}, s{b+1}\ns_mov_b32 s{d+2}, {n}\ns_mov_b32 s{d+3}, 0x20000")

def lines(txt):
    return [l for l in txt.split("\n") if l]

def weave(main, extra, every=2, start=0):
    out, extra = [], list(extra)
    for i, l in enumerate(main):
        out.append(l)
        if extra and i + 1 >= start and (i + 1 - start) % every == 0:
            out.append(extra.pop(0))
    return out + extra

class Gen:
    def __init__(self, cfg):
        self.c = cfg
        self.A = Asm()
        self.uid = 0

    def lab(self, p):
        self.uid += 1
        return f"L_{p}_{self.uid}"

    def estamp(self, i):
        if self.c.epi:
            self.stamp(i, True)

    def stamp(self, i, force=False):
        if self.c.epi and not force and i > 0:
            return
        if self.c.stamps:
            op = "s_memtime" if self.c.stamps == "cyc" else "s_memrealtime"
            self.A(f"{op} s[{sSTAMP+2*i}:{sSTAMP+2*i+1}]")

    def trace(self, lane):
        if self.c.trace:
            if isinstance(lane, str):
                self.A(f"s_mov_b32 m0, {lane}")
                lane = "m0"
            self.A(f"s_memrealtime s[98:99]\ns_waitcnt lgkmcnt(0)\nv_writelane_b32 v30, s98, {lane}")

    def stamp_out(self, n, row):
        if not self.c.stamps:
            return
        A = self.A
        if self.c.trace and row == 1:
            l = self.lab("tr")
            A(f"s_cmp_lg_u32 s{sW}, 0\ns_cbranch_scc1 {l}\ns_lshl_b32 s{sT0}, s2, 8\ns_add_u32 s{sT0}, s{sT0}, {STAMP_BASE + (1 << 20)}\nv_lshl_add_u32 v1, v0, 2, s{sT0}")
            A(f"buffer_store_dword v30, v1, {s(WS_,4)}, 0 offen\ns_waitcnt vmcnt(0)")
            A.label(l)
        l = self.lab("st")
        A(f"s_waitcnt lgkmcnt(0)\ns_cmp_lg_u32 s{sW}, 0\ns_cbranch_scc1 {l}")
        if self.c.dbgstamps:
            if row == 0:
                A(f"s_lshr_b32 s{sT1}, s2, 7\ns_mul_i32 s{sT1}, s{sT1}, 28\nv_mov_b32 v1, s{sT1}\nv_mov_b32 v3, 0\ns_mov_b64 exec, 1")
                A(f"s_not_b32 s{sT0}, s{sSTAMP}\nv_mov_b32 v2, s{sT0}\nbuffer_atomic_umax v2, v3, {s(DBG_,4)}, 0 offen offset:4 sc1")
                for i in range(1, 8):
                    A(f"v_mov_b32 v2, s{sSTAMP+2*i}\nbuffer_atomic_umax v2, v1, {s(DBG_,4)}, 0 offen offset:{4+4*i} sc1")
                A("s_waitcnt vmcnt(0)")
            A.label(l)
            return
        A(f"s_lshl_b32 s{sT0}, s2, 7\ns_add_u32 s{sT0}, s{sT0}, {STAMP_BASE + 64*row}\nv_mov_b32 v1, s{sT0}")
        for i in range(n):
            A(f"v_mov_b32 v2, s{sSTAMP+2*i}\nbuffer_store_dword v2, v1, {s(WS_,4)}, 0 offen offset:{4*i}")
        A("s_waitcnt vmcnt(0)")
        A.label(l)

    def entry(self, name, tag):
        A, c = self.A, self.c
        A(kernel_header(name))
        A("s_cmp_ge_u32 s2, 256\ns_cbranch_scc1 L_end_" + tag)
        self.stamp(0)
        A("s_load_dwordx4 s[4:7], s[0:1], 0\ns_load_dwordx2 s[8:9], s[0:1], 16")
        A("s_load_dwordx4 s[12:15], s[0:1], 32\ns_load_dwordx4 s[16:19], s[0:1], 48\ns_load_dwordx2 s[10:11], s[0:1], 64")
        A(f"v_lshrrev_b32 v1, 6, v0\nv_and_b32 v0, 63, v0\nv_readfirstlane_b32 s{sWAVE}, v1")
        A(f"s_bfe_u32 s{sT0}, s2, 0x20001\ns_bfe_u32 s{sT1}, s2, 0x20003\ns_lshl2_add_u32 s{sRB}, s{sT0}, s{sT1}")
        A(f"s_and_b32 s{sT0}, s2, 1\ns_bfe_u32 s{sT2}, s2, 0x20005\ns_lshl2_add_u32 s{sJ}, s{sT0}, s{sT2}")
        A(f"s_and_b32 s{sT3}, s{sT2}, 1\ns_lshl1_add_u32 s{sBLK}, s{sRB}, s{sT3}")
        A(f"s_lshr_b32 s{sT3}, s{sT2}, 1\ns_lshl1_add_u32 s{sCOL}, s{sT0}, s{sT3}")
        A(f"s_lshr_b32 s{sA}, s2, 7")
        if c.rot:
            A(f"s_mul_i32 s{sROT}, s{sT1}, 3\ns_add_u32 s{sROT}, s{sROT}, s{sT2}\ns_lshl2_add_u32 s{sROT}, s{sA}, s{sROT}")
        else:
            A(f"s_mov_b32 s{sROT}, 0")
        if c.rot2:
            A(f"s_and_b32 s{sT0}, s{sBLK}, 7\ns_lshl1_add_u32 s{sT3}, s{sA}, s{sT3}\ns_lshl1_add_u32 s{sROT2}, s{sT3}, s{sT0}\ns_mul_i32 s{sROT2}, s{sROT2}, 3")
            A(f"s_mul_i32 s{sT3}, s{sT3}, 5\ns_lshr_b32 s{sT3}, s{sT3}, 1\ns_add_u32 s{sROT3}, s{sT0}, s{sT3}")
        else:
            A(f"s_mov_b32 s{sROT2}, 0\ns_mov_b32 s{sROT3}, 0")
        A(f"s_and_b32 s{sW}, s{sWAVE}, 3")
        A(f"s_cmp_ge_u32 s{sWAVE}, 4\ns_cbranch_scc1 L_helper_{tag}")
        A(f"s_cmp_eq_u32 s{sA}, 0\ns_cbranch_scc1 L_QC_{tag}\ns_branch L_HC_{tag}")
        A.label(f"L_helper_{tag}")
        if c.prio_h:
            A(f"s_setprio {c.prio_h}")
        A(f"s_cmp_eq_u32 s{sA}, 0\ns_cbranch_scc0 L_HH_{tag}")

    def srds_helper2(self):
        A = self.A
        srd(A, W2_, 14, 1536 * 1280); srd(A, WO_, 8, 640 * 1280); srd(A, WS_, 10, WS_BYTES); srd(A, DBG_, 18, 256)

    def srds_compute(self):
        A = self.A
        A("s_waitcnt lgkmcnt(0)")
        srd(A, X_, 4, 2048 * 1280); srd(A, WS_, 10, WS_BYTES); srd(A, DBG_, 18, 256); srd(A, OUT_, 16, 2048 * 1280)

    def xfrag_addr(self, d0, d1, base_s, t):
        A = self.A
        A(f"v_and_b32 v{t}, 15, v0\nv_lshrrev_b32 v{d1}, 1, v{t}\nv_lshrrev_b32 v{d0}, 4, v0\nv_xor_b32 v{d0}, v{d0}, v{d1}")
        A(f"v_lshlrev_b32 v{d0}, 4, v{d0}\nv_lshl_add_u32 v{d0}, v{t}, 7, v{d0}\nv_add_u32 v{d0}, s{base_s}, v{d0}\nv_xor_b32 v{d1}, 64, v{d0}")

    def check(self, vres, vaddr, srd_, target):
        A = self.A
        l, d = self.lab("sp"), self.lab("sd")
        A(f"v_cmp_gt_u32 vcc, {target}, v{vres}\ns_cbranch_vccz {d}\ns_mov_b32 s{sT1}, {SPIN_LIMIT}")
        A.label(l)
        A(f"buffer_load_dword v{vres}, v{vaddr}, {s(srd_,4)}, 0 offen{COH}\ns_waitcnt vmcnt(0)\nv_cmp_gt_u32 vcc, {target}, v{vres}")
        A(f"s_cbranch_vccz {d}\ns_sub_u32 s{sT1}, s{sT1}, 1\ns_cbranch_scc0 {l}")
        A.label(d)

    def warm_setup(self, s0, s1, rows):
        A = self.A
        A(f"s_lshr_b32 s{sT0}, s2, 3\ns_lshl2_add_u32 s{sT0}, s{sT0}, s{sW}\ns_mul_i32 s{sT0}, s{sT0}, {1280*rows}\ns_and_b32 s{sT1}, s2, 1")
        A(f"s_mul_i32 s{s0}, s{sT1}, 384\ns_add_u32 s{s0}, s{s0}, s{sT0}\ns_lshl_b32 s{s1}, s{sT1}, 8\ns_add_u32 s{s1}, s{s1}, s{sT0}\ns_add_u32 s{s1}, s{s1}, 768")

    @staticmethod
    def warm_row(srd_, s0, s1, row):
        return [f"s_buffer_load_dword s101, {s(srd_,4)}, s{s0} offset:{1280*row+64*i}" for i in range(6)] + \
               [f"s_buffer_load_dword s101, {s(srd_,4)}, s{s1} offset:{1280*row+64*i}" for i in range(4)]

    def helper1(self, role):
        A, c = self.A, self.c
        q = role == "q"
        slot, wh = (Q_SLOT, Q_WH) if q else (H_SLOT, H_WH)
        xoff = 2 * wh
        wstride = 3840 if q else 3072
        vA, vB, vC, vF = 8, 11, 14, 18
        sOWa, sOWb, sOX, sSa, sSb = sA, sB, sC, sD, sE
        sMA, sMX, sF1o, sF1m, sF2o, sF2m = sF, sG, mG1, mG1 + 1, mG1 + 2, mG1 + 3
        sMF1, sMF2, sPa, sPb, sPx = mG1 + 4, mG1 + 5, mG1 + 6, mG1 + 7, sI
        nA, nB = (4, 8) if q else (3, 7)
        per = 4 if q else 3

        A("v_lshrrev_b32 v2, 3, v0\nv_mul_u32_u24 v2, 1280, v2\nv_and_b32 v3, 7, v0\nv_lshrrev_b32 v4, 4, v0\nv_xor_b32 v3, v3, v4\nv_lshl_add_u32 v6, v3, 4, v2\nv_xor_b32 v7, 64, v6")
        A(f"s_lshl_b32 s{sT0}, s{sRB}, 7\ns_lshl_b32 s{sT1}, s{sW}, 5\ns_add_u32 s{sT0}, s{sT0}, s{sT1}")
        if q:
            A(f"s_sub_u32 s{sT0}, s{sT0}, 16")
        A(f"s_mul_i32 s{sPx}, s{sT0}, 1280")
        A(f"s_mul_i32 s{sH}, s{sJ}, {160 if q else 384}\ns_movk_i32 s{sCNT}, 1120\ns_mul_i32 s{sMA}, s{sW}, {per}\ns_lshl_b32 s{sMX}, s{sW}, 12\ns_add_u32 s{sMX}, s{sMX}, {xoff}")

        def xoffs(d, i):
            A(f"s_add_u32 s{sT0}, s{sPx}, {8*1280*i}\nv_add_u32 v{d}, s{sT0}, v{6 + (i & 1)}")

        def woff(d, kb):
            A(f"s_add_u32 s{sT0}, s{sMA}, {kb}\ns_lshl_b32 s{sT0}, s{sT0}, 6\nv_add_u32 v2, s{sT0}, v0")
            if q:
                A("v_mul_u32_u24 v3, 2185, v2\nv_lshrrev_b32 v3, 16, v3\nv_mul_u32_u24 v4, 30, v3\nv_sub_u32 v2, v2, v4")
            else:
                A("v_mul_u32_u24 v3, 2731, v2\nv_lshrrev_b32 v3, 16, v3\nv_mul_u32_u24 v4, 24, v3\nv_sub_u32 v2, v2, v4\nv_and_b32 v4, 6, v3\nv_xor_b32 v2, v2, v4")
            A("v_and_b32 v4, 4, v3\nv_add_u32 v5, v3, v4\nv_bfe_u32 v4, v3, 3, 1\nv_mad_i32_i24 v5, v4, -4, v5")
            A(f"v_mul_u32_u24 v5, {wstride}, v5")
            if q:
                A(f"v_mul_u32_u24 v4, 26, v2\nv_lshrrev_b32 v4, 8, v4\nv_mad_u32_u24 v5, v4, s{sCNT}, v5")
            A(f"v_lshl_add_u32 v5, v2, 4, v5\nv_add_u32 v{d}, s{sH}, v5")

        def advance():
            A(f"s_mov_b32 s{sOWa}, s{sOWb}\ns_add_u32 s{sPa}, s{sSb}, s{sMA}")
            if q:
                A(f"s_add_u32 s{sSb}, s{sSb}, {slot}\ns_cmp_ge_u32 s{sSb}, {3*slot}\ns_cselect_b32 s{sSb}, 0, s{sSb}")
            else:
                A(f"s_sub_u32 s{sSb}, s{sSb}, {slot}\ns_cselect_b32 s{sSb}, {2*slot}, s{sSb}")
            rot()

        def rot():
            A(f"s_cmp_ge_u32 s{sROT}, 10\ns_cselect_b32 s{sT0}, 10, 0\ns_sub_u32 s{sROT}, s{sROT}, s{sT0}")
            A(f"s_mul_i32 s{sOWb}, s{sROT}, {64*wstride}\ns_lshl_b32 s{sOX}, s{sROT}, 7\ns_add_u32 s{sROT}, s{sROT}, 1")
            A(f"s_add_u32 s{sPb}, s{sSb}, s{sMA}\ns_add_u32 s{sPx}, s{sSb}, s{sMX}")
            if q:
                A(f"s_cmp_lt_u32 s{sW}, 3\ns_cselect_b32 s{sF1o}, s{sOWa}, s{sOX}\ns_cselect_b32 s{sF2o}, s{sOWb}, s{sOX}\ns_cselect_b32 s{sF1m}, s{sPa}, s{sPx}\ns_cselect_b32 s{sF2m}, s{sPb}, s{sPx}")
                A(f"s_add_u32 s{sF1m}, s{sF1m}, s{sMF1}\ns_add_u32 s{sF2m}, s{sF2m}, s{sMF2}")

        def dma(vr, srd_, so, m0s, add):
            A(f"s_add_u32 m0, s{m0s}, {add}\nbuffer_load_dwordx4 v{vr}, {s(srd_,4)}, s{so} offen lds")

        opsA = [(vA + i, W1_, sOWa, sPa, i * K) for i in range(3)]
        opF1 = (vF, FLEX_, sF1o, sF1m, 0)
        opF2 = (vF + 1, FLEX_, sF2o, sF2m, 0)
        opsC = [(vC + i, X_, sOX, sPx, i * K) for i in range(4)]
        opsB = [(vB + i, W1_, sOWb, sPb, wh + i * K) for i in range(3)]
        group = opsA + ([opF1] if q else []) + opsC + opsB + ([opF2] if q else [])

        for i in range(4):
            xoffs(vC + i, i)
        if q:
            l1, l2 = self.lab("fx"), self.lab("fd")
            xoffs(vF, 4); xoffs(vF + 1, 5)
        woff(vB, 0)
        self.trace(50)
        A("s_waitcnt lgkmcnt(0)")
        srd(A, X_, 4, 2048 * 1280)
        srd(A, W1_, 6 if q else 12, 640 * wstride)
        if q:
            A(f"s_cmp_lt_u32 s{sW}, 3\ns_cselect_b32 s{FLEX_}, s6, s4\ns_cselect_b32 s{FLEX_+1}, s7, s5\ns_mov_b32 s{FLEX_+2}, {640*3840}\ns_cselect_b32 s{FLEX_+2}, s{FLEX_+2}, s{X_+2}\ns_mov_b32 s{FLEX_+3}, 0x20000")
            A(f"s_movk_i32 s{sMF1}, {3*K}\ns_cselect_b32 s{sMF1}, s{sMF1}, {4*K}\ns_movk_i32 s{sMF2}, {wh + 3*K}\ns_cselect_b32 s{sMF2}, s{sMF2}, {5*K}")
        A(f"s_mov_b32 s{sT3}, s{sMA}\ns_lshl_b32 s{sMA}, s{sMA}, 10\ns_mov_b32 s{sSb}, 0\ns_mov_b32 s{sOWa}, 0\ns_mov_b32 s{sPa}, 0")
        rot()
        A(f"s_mov_b32 s{sSa}, s{sMA}\ns_mov_b32 s{sMA}, s{sT3}")
        self.trace(51)
        for o in opsC:
            dma(*o)
        self.trace(52)
        for i in range(3):
            if i:
                woff(vB + i, i)
            dma(*opsB[i])
            A(f"v_add_u32 v{vA+i}, {32*wstride}, v{vB+i}")
        if q:
            A(f"s_cmp_lt_u32 s{sW}, 3\ns_cbranch_scc0 {l1}")
            woff(vF + 1, 3)
            A(f"v_add_u32 v{vF}, {32*wstride}, v{vF+1}\ns_branch {l2}")
            A.label(l1)
            dma(*opF1)
            A.label(l2)
            dma(*opF2)
        self.trace(53)
        A(f"s_mov_b32 s{sMA}, s{sSa}")
        advance()
        for o in group[: nA + c.pre1]:
            dma(*o)
        self.trace(54)
        self.srds_helper2()
        self.p2_loader_setup(role)
        vZ, vP, vD = 23, 24, 26
        A(f"s_lshl_b32 s{sT0}, s{sRB}, 8\ns_add_u32 s{sT0}, s{sT0}, {FLAG_BASE + 8192}\nv_mov_b32 v20, s{sT0}\nv_mov_b32 v{vZ}, 0")
        A(f"s_lshl_b32 s{sT1}, s{sRB}, 7\ns_lshl_b32 s{sT2}, s{sW}, 5\ns_add_u32 s{sT1}, s{sT1}, s{sT2}\nv_and_b32 v3, 31, v0\nv_add_u32 v21, s{sT1}, v3")
        A(f"s_lshl_b32 s{sT2}, s{sW}, 7\ns_add_u32 s{sT2}, s{sT2}, {MISC + (64 if q else 0)}\nv_lshl_add_u32 v22, v3, 2, s{sT2}")
        if q:
            A(f"s_cmp_eq_u32 s{sRB}, 0\ns_cselect_b32 s{sT2}, 0, 256\ns_sub_u32 s{sT0}, s{sT0}, s{sT2}\nv_mov_b32 v4, s{sT0}")
            A(f"s_lshl_b32 s{sT1}, s{sRB}, 7\ns_sub_u32 s{sT1}, s{sT1}, 16\nv_and_b32 v2, 15, v0\nv_add_u32 v3, s{sT1}, v2")
            A(f"s_mov_b32 s{sT1}, {MISC}\nv_lshl_add_u32 v5, v2, 2, s{sT1}\nv_cmp_le_u32 vcc, 32, v0")
            A("v_cndmask_b32 v20, v20, v4, vcc\nv_cndmask_b32 v21, v21, v3, vcc\nv_cndmask_b32 v22, v22, v5, vcc")
        A(f"v_cmp_gt_i32 vcc, 0, v21\nv_lshlrev_b32 v21, 3, v21\nv_add_u32 v21, {STAT_BASE}, v21\nv_mov_b32 v3, -16\nv_cndmask_b32 v21, v21, v3, vcc")
        self.trace(55)
        warm = c.warm if (c.phase2 and not c.split) else 0
        if warm:
            self.warm_setup(12, 13, 12)
            self.warm_setup(14, 15, 5)
            A.extend(self.warm_row(W2_, 12, 13, 0))
        A(f"s_waitcnt vmcnt({c.pre1})\ns_barrier")
        self.trace(0)
        self.stamp(1)
        for o in group[nA + c.pre1:]:
            dma(*o)
        A(f"s_mov_b32 s{sCNT}, 0")
        loop, li, l8, lb = (self.lab(x) for x in ("hl", "iss", "c8", "bar"))
        pre = (c.preq if q else c.preh) if (c.phase2 and not c.split) else {}
        special = sorted({0, 1, 6, 7} | {k for k in pre if k < 8})
        lx = {k: self.lab("x") for k in special}
        A.label(loop)
        mark0 = len(A.lines)
        for k in lx:
            A(f"s_cmp_eq_u32 s{sCNT}, {k}\ns_cbranch_scc1 {lx[k]}")
        A(f"s_cmp_ge_u32 s{sCNT}, 8\ns_cbranch_scc1 {l8}")
        A.label(li)
        advance()
        for o in group:
            dma(*o)
        if warm:
            A.extend(self.warm_row(W2_, 12, 13, 1))
            A("s_add_u32 s12, s12, 1280\ns_add_u32 s13, s13, 1280")
        A(f"s_waitcnt vmcnt({nB})\ns_barrier\ns_add_u32 s{sCNT}, s{sCNT}, 1")
        self.trace(f"s{sCNT}")
        A(f"s_branch {loop}")
        if "nodma" in c.abl:
            A.lines[mark0:] = [l for l in A.lines[mark0:] if not l.startswith("buffer_load")]
        if "nobar" in c.abl:
            A.lines[mark0:] = [l for l in A.lines[mark0:] if not l.startswith("s_barrier")]
        for k in special:
            A.label(lx[k])
            if k == 0:
                A(f"buffer_load_dword v{vP}, v{vZ}, {s(DBG_,4)}, 0 offen{COH}")
            if k == 1:
                self.check(vP, vZ, DBG_, 1)
                l = self.lab("na")
                A(f"s_cmp_lg_u32 s{sW}, 0\ns_cbranch_scc1 {l}\nv_mov_b32 v2, 1\ns_mov_b64 exec, 1\nbuffer_atomic_add v2, v20, {s(WS_,4)}, 0 offen sc1\ns_mov_b64 exec, -1")
                A.label(l)
            if k == 6:
                A(f"buffer_load_dword v{vP}, v20, {s(WS_,4)}, 0 offen{COH}")
            if k == 7:
                self.check(vP, 20, WS_, 16)
                A(f"buffer_load_dwordx2 {v(vD,2)}, v21, {s(WS_,4)}, 0 offen{COH}")
            self.p2_prefetch(role, pre.get(k, 0))
            A(f"s_branch {li}")
        A.label(l8)
        advance()
        for o in opsA:
            dma(*o)
        if q:
            l = self.lab("nf")
            A(f"s_cmp_lt_u32 s{sW}, 3\ns_cbranch_scc0 {l}")
            dma(*opF1)
            A.label(l)
        A(f"ds_write_b32 v22, v{vD}\nds_write_b32 v22, v{vD+1} offset:{ST_RSTD}")
        k1 = self.p2_prefetch(role, pre.get(8, 0))
        bar = "" if "nobar" in c.abl else "s_barrier"
        A(f"s_waitcnt vmcnt({k1}) lgkmcnt(0)\n{bar}")
        self.trace(9)
        if warm:
            A.extend(self.warm_row(W2_, 12, 13, 1) + self.warm_row(W2_, 12, 13, 3)[5:])
        k2 = self.p2_prefetch(role, pre.get(9, 0))
        A(bar)
        self.trace(10)
        self.stamp(2)
        A("s_barrier")
        if q:
            A("s_barrier")
        return k1 + k2

    def row_stats_load(self, role, base):
        A = self.A
        self.l_ns = self.lab("ns")
        l = self.lab("nl")
        A(f"s_cmp_ge_u32 s{sW}, 2\ns_cbranch_scc1 {l}")
        A(f"s_lshl4_add_u32 s{sT0}, s{sRB}, s{sJ}\ns_add_u32 s{sT0}, s{sT0}, {0 if role == 'q' else 8}\ns_lshl1_add_u32 s{sT0}, s{sT0}, s{sW}\ns_lshl_b32 s{sT0}, s{sT0}, 2")
        A(f"v_lshrrev_b32 v{base+20}, 4, v0\nv_add_u32 v{base+20}, s{sT0}, v{base+20}\nv_mul_u32_u24 v{base+21}, 1280, v{base+20}\nv_and_b32 v{base+22}, 15, v0\nv_lshl_add_u32 v{base+21}, v{base+22}, 4, v{base+21}")
        for i in range(5):
            A(f"buffer_load_dwordx4 {v(base+4*i,4)}, v{base+21}, {s(X_,4)}, 0 offen offset:{256*i}")
        A.label(l)

    def warm_compute(self):
        A, c = self.A, self.c
        if c.warm and c.phase2 and not c.split:
            srd(A, W2_, 14, 1536 * 1280)
            self.warm_setup(34, 35, 12)
            A.extend(self.warm_row(W2_, 34, 35, 10) + self.warm_row(W2_, 34, 35, 11)[:5])

    def row_stats_finish(self, base):
        A = self.A
        a, b = base + 22, base + 23
        A(f"s_cmp_ge_u32 s{sW}, 2\ns_cbranch_scc1 {self.l_ns}")
        A(f"v_mov_b32 v{a}, 0\nv_mov_b32 v{b}, 0\nv_mov_b32 v{base+21}, 0x3f803f80\nv_lshlrev_b32 v{base+20}, 3, v{base+20}\nv_add_u32 v{base+20}, {STAT_BASE}, v{base+20}")
        for i in range(5):
            A(f"s_waitcnt vmcnt({4-i})")
            for r in range(4):
                d = base + 4 * i + r
                A(f"v_dot2c_f32_bf16 v{a}, v{d}, v{base+21}\nv_dot2c_f32_bf16 v{b}, v{d}, v{d}")
        for sh in (8, 4, 2, 1):
            A(f"v_add_f32_dpp v{a}, v{a}, v{a} row_ror:{sh} row_mask:0xf bank_mask:0xf\nv_add_f32_dpp v{b}, v{b}, v{b} row_ror:{sh} row_mask:0xf bank_mask:0xf")
        A(f"s_mov_b32 s{sT1}, 0x3acccccd\ns_mov_b32 s{sT2}, 0x3727c5ac")
        A(f"v_mul_f32 v{a}, s{sT1}, v{a}\nv_mul_f32 v{base}, v{a}, v{a}\nv_fma_f32 v{b}, v{b}, s{sT1}, -v{base}\nv_max_f32 v{b}, 0, v{b}\nv_add_f32 v{b}, s{sT2}, v{b}\nv_rsq_f32 v{b}, v{b}")
        A(f"s_mov_b32 exec_lo, 0x10001\ns_mov_b32 exec_hi, 0x10001\nbuffer_store_dwordx2 {v(a,2)}, v{base+20}, {s(WS_,4)}, 0 offen{COH}\ns_mov_b64 exec, -1")
        A.label(self.l_ns)

    def init_flags(self):
        A = self.A
        l = self.lab("nf")
        A(f"s_xor_b32 s{sT0}, s{sW}, 3\ns_or_b32 s{sT0}, s2, s{sT0}\ns_cmp_lg_u32 s{sT0}, 0\ns_cbranch_scc1 {l}")
        A(f"v_lshlrev_b32 v2, 8, v0\nv_add_u32 v2, {FLAG_BASE}, v2\nv_mov_b32 v3, 0")
        A(f"buffer_store_dword v3, v2, {s(WS_,4)}, 0 offen{COH}\ns_waitcnt vmcnt(0)")
        A(f"v_mov_b32 v2, 1\ns_mov_b64 exec, 1\nbuffer_store_dword v2, v3, {s(DBG_,4)}, 0 offen{COH}\ns_mov_b64 exec, -1")
        A.label(l)

    def publish(self, role, younger=0):
        l = self.lab("pb")
        a = lines(f"v_mov_b32 v4, {MISC + CTR_OFF}\nv_mov_b32 v5, 1\ns_waitcnt vmcnt({younger})\ns_mov_b64 exec, 1\nds_add_rtn_u32 v7, v4, v5\ns_mov_b64 exec, -1")
        a += lines(f"s_lshl_b32 s{sT0}, s{sRB}, 8\ns_add_u32 s{sT0}, s{sT0}, {FLAG_BASE + (4096 if role == 'q' else 0)}\nv_mov_b32 v4, s{sT0}")
        b = lines(f"v_readfirstlane_b32 s{sT0}, v7\ns_cmp_lg_u32 s{sT0}, 3\ns_cbranch_scc1 {l}\ns_mov_b64 exec, 1\nbuffer_atomic_add v5, v4, {s(WS_,4)}, 0 offen sc1\ns_mov_b64 exec, -1\n{l}:")
        return a, b

    def publish_now(self, role):
        if self.c.split:
            return
        a, b = self.publish(role)
        self.A.extend(a + ["s_waitcnt lgkmcnt(0)"] + b)

    def mfma_loop(self, role, mfmas, frags, fixups, niter):
        A = self.A
        nm = len(mfmas)
        bpos = nm // 2 - 1
        first, last = {}, {}
        for i, (_, fs) in enumerate(mfmas):
            for f in fs:
                first.setdefault(f, i); last[f] = i
        order = sorted(frags, key=lambda f: first[f])
        lastuse = {}
        for f in order:
            lastuse[frags[f][1]] = f
        seq = [(it, f) for it in range(5) for f in order]
        occupant, ready, part = {}, {}, {}
        for it, f in seq:
            key = frags[f][0]
            e = (it - 1) * nm + bpos
            if key in occupant:
                pit, pf = occupant[key]
                e = max(e, pit * nm + last[pf])
            ready[(it, f)] = e
            occupant[key] = (it, f)
        if role == "q":
            step = lines(f"s_add_u32 s{sH}, s{sH}, 1\ns_cmp_eq_u32 s{sH}, 3\ns_cselect_b32 s{sH}, 0, s{sH}\ns_cselect_b32 s{sT0}, s{sB}, s{sA}")
        else:
            step = lines(f"s_cmp_eq_u32 s{sH}, 0\ns_cselect_b32 s{sH}, 3, s{sH}\ns_cselect_b32 s{sT0}, s{sB}, s{sA}\ns_sub_u32 s{sH}, s{sH}, 1")
        bodies, origin, pend, tags = [], [], list(seq), {}
        T = Asm(); C = Counter(T, "lgkmcnt", 14)
        upd = []
        for it in range(-1, 4):
            T.lines = []
            org = []
            steps = list(step) if it >= 0 else []
            for i in range(nm):
                g = it * nm + i
                if it >= 0:
                    assert all((it, f) not in pend for f in mfmas[i][1]), "operand read not issued before use"
                    C.wait(max(tags[(it, f)] for f in mfmas[i][1]))
                    T(mfmas[i][0])
                n0 = len(T.lines)
                if it >= 0:
                    for f, pre, tx in fixups:
                        for h in range(2):
                            at = first[f] - pre - 2 + h
                            if at % nm == i:
                                C.wait(tags[(it if at >= 0 else it + 1, f)]); T.extend(tx[2 * h: 2 * h + 2])
                    if i == nm - 3:
                        T(f"s_sub_u32 s{sCNT}, s{sCNT}, 1")
                    if i == bpos:
                        xs = [(it, f) for f in frags if f[0] == "X"]
                        assert all(x not in pend for x in xs)
                        C.wait(max(tags[x] for x in xs))
                        T("s_waitcnt vmcnt(0)\ns_barrier")
                if bpos + 3 <= i < nm - 3 and steps and len(T.lines) - n0 < 2 and all(u[0] > it for u in upd) and (it, order[-1]) not in pend:
                    T(steps.pop(0))
                nready = sum(1 for x in pend[:6] if ready[x] <= g)
                budget = (2 if nready > 1 or upd else 1) - (len(T.lines) - n0)
                while budget > 0:
                    if upd and (upd[0][0] <= it or not steps):
                        ui, ut = upd.pop(0)
                        assert it < 0 or (len(steps) == 0 if ui > it else len(steps) == len(step)), "address update uses the wrong slot step"
                        T(ut); budget -= 1
                        continue
                    if not (pend and ready[pend[0]] <= g):
                        break
                    x = pend[0]
                    k = part.get(x, 0)
                    tags[x] = C.issue(frags[x[1]][2][k])
                    org.append((x[0], T.lines[-1]))
                    part[x] = k + 1
                    budget -= 1
                    if k + 1 == len(frags[x[1]][2]):
                        pend.pop(0)
                        ar = frags[x[1]][1]
                        if lastuse[ar] == x[1]:
                            upd.append((x[0], f"v_add_u32 v{ar}, s{sT0}, v{ar}"))
                            org.append(upd[-1])
            assert it < 0 or not steps
            if it == -1:
                C.done = C.n
            bodies.append(list(T.lines)); origin.append(org)
        assert bodies[2] == bodies[3] and not upd, "loop body is not periodic"
        A.extend(step)
        A.extend([l for o, l in origin[2] if o == 2])
        A("s_waitcnt lgkmcnt(0)")
        for f, pre, tx in fixups:
            for h in range(2):
                if first[f] - pre - 2 + h < 0:
                    A.extend(tx[2 * h: 2 * h + 2])
        loop = self.lab("ml")
        A(f"s_mov_b32 s{sCNT}, {niter - 1}")
        A.label(loop)
        body = bodies[2]
        for key, pat in (("nomfma", "v_mfma"), ("notr", "ds_read_b64_tr"), ("nox", "ds_read_b128"), ("nobar", "s_barrier"), ("nowait", "s_waitcnt"), ("nocnd", "v_cndmask"), ("noupd", "v_add_u32")):
            if key in self.c.abl:
                body = [l for l in body if not l.startswith(pat)]
        A.extend(body)
        A(f"s_cbranch_scc0 {loop}")

    @staticmethod
    def fold_t(a, cs, mr, scale=True):
        o = [f"v_pk_fma_f32 {v(a+h,2)}, {v(cs+h,2)}, {v(mr,2)}, {v(a+h,2)} op_sel_hi:[1,0,1] neg_lo:[0,1,0] neg_hi:[0,1,0]" for h in (0, 2)]
        if scale:
            o += [f"v_pk_mul_f32 {v(a+h,2)}, {v(a+h,2)}, {v(mr,2)} op_sel:[0,1] op_sel_hi:[1,1]" for h in (0, 2)]
        return o

    @staticmethod
    def fold_v(a, csreg, mean4, rstd4):
        p, sel = csreg & ~1, csreg & 1
        o = [f"v_pk_fma_f32 {v(a+h,2)}, {v(mean4+h,2)}, {v(p,2)}, {v(a+h,2)} op_sel:[0,{sel},0] op_sel_hi:[1,{sel},1] neg_lo:[0,1,0] neg_hi:[0,1,0]" for h in (0, 2)]
        return o + [f"v_pk_mul_f32 {v(a+h,2)}, {v(a+h,2)}, {v(rstd4+h,2)}" for h in (0, 2)]

    @staticmethod
    def pack(d, a):
        o = [f"v_cvt_pk_bf16_f32 v{d}, v{a}, v{a+1}", f"v_cvt_pk_bf16_f32 v{d+1}, v{a+2}, v{a+3}"]
        return o[::-1] if d == a + 2 else o

    def compute_h(self):
        A, c = self.A, self.c
        vWa, vX0, vX1 = 8, 14, 15
        XF, WF, ACC, ACS, ONE, RS = 24, 56, 80, 176, 188, 192
        self.srds_compute()
        self.row_stats_load("h", RS)
        self.warm_compute()
        A(f"s_lshr_b32 s{sT3}, s{sW}, 1\ns_mul_i32 s{sT3}, s{sT3}, 6")
        A("v_bfe_u32 v2, v0, 2, 3\nv_lshrrev_b32 v3, 5, v0\nv_lshl_add_u32 v3, v3, 4, v2\nv_mul_u32_u24 v3, 384, v3")
        A("v_and_b32 v4, 3, v0\nv_lshl_add_u32 v3, v4, 3, v3\nv_lshrrev_b32 v2, 1, v2")
        for t in range(6):
            A(f"s_add_u32 s{sT2}, s{sT3}, {t}\nv_xor_b32 v4, s{sT2}, v2\nv_lshl_add_u32 v{vWa+t}, v4, 5, v3")
        A(f"s_and_b32 s{sT0}, s{sW}, 1\ns_lshl_b32 s{sT0}, s{sT0}, 13\ns_add_u32 s{sT0}, s{sT0}, {2*H_WH}")
        self.xfrag_addr(vX0, vX1, sT0, 2)
        for i in range(108):
            A(f"v_mov_b32 v{ACC+i}, 0")
        for i in range(4):
            A(f"v_mov_b32 v{ONE+i}, 0x3f803f80")
        A(f"v_lshrrev_b32 v2, 4, v0\ns_lshr_b32 s{sT2}, s{sW}, 1\ns_mul_i32 s{sT1}, s{sT2}, 384\ns_add_u32 s{sT1}, s{sT1}, {MISC + CS_OFF}\nv_lshl_add_u32 v16, v2, 4, s{sT1}")
        A(f"v_and_b32 v2, 15, v0\ns_and_b32 s{sT0}, s{sW}, 1\ns_lshl_b32 s{sT1}, s{sT0}, 8\ns_add_u32 s{sT1}, s{sT1}, {MISC}\nv_lshl_add_u32 v17, v2, 2, s{sT1}")
        A(f"v_lshlrev_b32 v18, 4, v0\nv_add_u32 v19, 4096, v18")
        A(f"s_lshl1_add_u32 s{sT0}, s{sRB}, s{sT0}\ns_mul_i32 s{sT0}, s{sT0}, {H_BLK}")
        A(f"s_mul_i32 s{sT1}, s{sJ}, 6\ns_mul_i32 s{sT2}, s{sT2}, 3\ns_add_u32 s{sT1}, s{sT1}, s{sT2}")
        for pr, d in enumerate([sC, sD, sE]):
            A(f"s_add_u32 s{sT2}, s{sT1}, {pr}\ns_lshr_b32 s{sT3}, s{sT2}, 1\ns_lshl_b32 s{sT3}, s{sT3}, 13\ns_and_b32 s{sT2}, s{sT2}, 1\ns_lshl_b32 s{sT2}, s{sT2}, 10")
            A(f"s_add_u32 s{d}, s{sT0}, s{sT3}\ns_add_u32 s{d}, s{d}, s{sT2}")
        A(f"v_mov_b32 v2, {MISC + CTR_OFF}\nv_mov_b32 v3, 0\nds_write_b32 v2, v3")
        self.row_stats_finish(RS)
        A(f"s_mov_b32 s{sA}, {-H_SLOT}\ns_mov_b32 s{sB}, {2*H_SLOT}\ns_mov_b32 s{sH}, 0")
        A("s_waitcnt lgkmcnt(0)\ns_barrier")
        self.stamp(1)
        l1, le = self.lab("hm"), self.lab("he")
        A(f"s_bitcmp1_b32 s{sW}, 0\ns_cbranch_scc1 {l1}")
        for wm in range(2):
            if wm:
                A.label(l1)
            mf, fr = [], {}
            for st in range(2):
                xa = vX1 if st else vX0
                for i in range(4):
                    fr[("X", st, i)] = (("X", st, i), xa, [f"ds_read_b128 {v(XF+16*st+4*i,4)}, v{xa} offset:{2048*i}"])
                for t in range(6):
                    fr[("W", st, t)] = (("W", t), vWa + t, [f"ds_read_b64_tr_b16 {v(WF+4*t+2*hf,2)}, v{vWa+t} offset:{H_WH*(1-st)+8*384*hf}" for hf in range(2)])
                    for i in range(4):
                        a = v(ACC + 4 * (6 * i + t), 4)
                        mf.append((f"{MF} {a}, {v(WF+4*t,4)}, {v(XF+16*st+4*i,4)}, {a}", [("W", st, t), ("X", st, i)]))
                    if (t & 1) == wm:
                        a = v(ACS + 4 * (t >> 1), 4)
                        mf.append((f"{MF} {a}, {v(WF+4*t,4)}, {v(ONE,4)}, {a}", [("W", st, t)]))
            self.mfma_loop("h", mf, fr, [], 10)
            A("s_mov_b32 exec_lo, 0x10001\ns_mov_b32 exec_hi, 0x10001")
            for k in range(3):
                A(f"ds_write_b128 v16, {v(ACS+4*k,4)} offset:{64*(2*k+wm)}")
            A("s_mov_b64 exec, -1")
            if wm == 0:
                A(f"s_branch {le}")
        A.label(le)
        self.stamp(2)
        MR, CS = 216, 32
        for i in range(4):
            A(f"ds_read2_b32 {v(MR+2*i,2)}, v17 offset0:{16*i} offset1:{16*i+144}")
        A("s_waitcnt lgkmcnt(0)\ns_barrier")
        C = Counter(A, "lgkmcnt", 14)
        tc = [C.issue(f"ds_read_b128 {v(CS+4*t,4)}, v16 offset:{64*t}") for t in range(6)]
        st_mod = "" if c.split else c.st_mod
        for pr in range(3):
            C.wait(tc[2 * pr + 1])
            for i in range(4):
                o = 56 + 4 * ((4 * pr + i) % 6)
                for tt in range(2):
                    t = 2 * pr + tt
                    a = ACC + 4 * (6 * i + t)
                    A.extend(self.fold_t(a, CS + 4 * t, MR + 2 * i) + self.pack(o + 2 * tt, a))
                for r in range(4):
                    A(f"v_pk_max_i16 v{o+r}, v{o+r}, 0")
                A(f"buffer_store_dwordx4 {v(o,4)}, v{19 if i >= 2 else 18}, {s(WS_,4)}, s{[sC,sD,sE][pr]} offen offset:{2048*(i&1)}{st_mod}")
        self.stamp(3)
        self.publish_now("h")

    def compute_q(self):
        A, c = self.A, self.c
        vW, vX0, vX1, vH0, vH1 = 1, 2, 3, 4, 5
        BC, BP, AC, AP, ONE, vT = 8, 12, 20, 22, 28, 29
        XF, WF, AQ, AK, AV, AH = 36, 60, 120, 160, 200, 240
        RS = 60
        so = [8, 9, 12, 13, 14]
        self.srds_compute()
        self.row_stats_load("q", RS)
        self.warm_compute()
        self.init_flags()
        A(f"v_lshrrev_b32 v6, 4, v0\nv_and_b32 v7, 15, v0\nv_cmp_le_u32 {s(mG1,2)}, 1, v6\nv_cmp_le_u32 {s(mG2,2)}, 2, v6\nv_cmp_le_u32 {s(mG3,2)}, 3, v6\nv_cmp_eq_u32 {s(mU0,2)}, 0, v7")
        A(f"s_or_b32 s{sT3}, s{sRB}, s{sW}\ns_cmp_eq_u32 s{sT3}, 0\ns_cselect_b64 {s(sC,2)}, 0, -1")
        A(f"v_mov_b32 v40, 0xf149f2ca\nv_mov_b32 v41, 0\nv_mov_b32 v42, 0xffff\nv_mov_b32 v43, 0xffff0000")
        for k in range(6):
            A(f"v_mov_b32 v{AC+k}, 0")
        for r in range(4):
            A(f"v_lshl_add_u32 v44, v6, 2, {r}\nv_sub_u32 v45, v7, v44\nv_and_b32 v46, 0x80000001, v45\nv_cmp_eq_u32 vcc, 0, v46")
            A(f"v_cndmask_b32 v{BC+r}, v40, v41, vcc\nv_cndmask_b32 v47, v41, v{42+(r&1)}, vcc\nv_or_b32 v{AC+(r>>1)}, v{AC+(r>>1)}, v47")
            A(f"v_cmp_eq_u32 vcc, 0x80000000, v46")
            A(f"v_cndmask_b32 v{BP+4+r}, v40, v41, vcc\nv_cndmask_b32 v47, v41, v{42+(r&1)}, vcc\nv_or_b32 v{AP+2+(r>>1)}, v{AP+2+(r>>1)}, v47")
            A(f"s_and_b64 vcc, vcc, {s(sC,2)}")
            A(f"v_cndmask_b32 v{BP+r}, v40, v41, vcc\nv_cndmask_b32 v47, v41, v{42+(r&1)}, vcc\nv_or_b32 v{AP+(r>>1)}, v{AP+(r>>1)}, v47")
        A(f"v_mov_b32 v{ONE}, 0x3f803f80")
        A(f"s_lshl_b32 s{sT0}, s{sW}, 7\ns_add_u32 s{sT0}, s{sT0}, {MISC + 64}\ns_mov_b32 s{sT1}, {MISC}\ns_mov_b32 s{sT2}, {MISC + CS_OFF}")
        A(f"v_lshl_add_u32 v{vT}, v7, 2, s{sT0}\nv_lshl_add_u32 v{vT+1}, v7, 2, s{sT1}\nv_lshl_add_u32 v{vT+2}, v6, 4, s{sT0}\nv_lshl_add_u32 v{vT+3}, v6, 4, s{sT1}")
        A(f"v_lshl_add_u32 v{vT+4}, v6, 4, s{sT2}\nv_lshl_add_u32 v{vT+5}, v7, 2, s{sT2}")
        A(f"s_mul_i32 s{sT0}, s{sW}, 5120\nv_lshl_add_u32 v26, v0, 4, s{sT0}\nv_lshl_add_u32 v35, v0, 3, s{sT0}\nv_lshlrev_b32 v27, 3, v0")
        A(f"s_lshr_b32 s{sT0}, s{sW}, 1\ns_lshl1_add_u32 s{sT0}, s{sRB}, s{sT0}\ns_mul_i32 s{sT0}, s{sT0}, {O_BLK}\ns_and_b32 s{sT1}, s{sW}, 1\ns_lshl_b32 s{sT1}, s{sT1}, 12")
        A(f"s_add_u32 s{sT0}, s{sT0}, s{sT1}\ns_add_u32 s{sT0}, s{sT0}, {O_BASE}\ns_mul_i32 s{sT1}, s{sJ}, 5")
        for t in range(5):
            A(f"s_add_u32 s{sT2}, s{sT1}, {t}\ns_lshr_b32 s{sT3}, s{sT2}, 2\ns_lshl_b32 s{sT3}, s{sT3}, 13\ns_and_b32 s{sT2}, s{sT2}, 3\ns_lshl_b32 s{sT2}, s{sT2}, 9")
            A(f"s_add_u32 s{so[t]}, s{sT0}, s{sT3}\ns_add_u32 s{so[t]}, s{so[t]}, s{sT2}")
        A(f"v_bfe_u32 v6, v0, 2, 3\nv_lshrrev_b32 v7, 5, v0\nv_lshl_add_u32 v6, v7, 4, v6\nv_mul_u32_u24 v6, 480, v6\nv_and_b32 v7, 3, v0\nv_lshl_add_u32 v{vW}, v7, 3, v6")
        A(f"s_lshl_b32 s{sT0}, s{sW}, 12\ns_add_u32 s{sT0}, s{sT0}, {2*Q_WH + 2048}")
        self.xfrag_addr(vX0, vX1, sT0, 6)
        A(f"s_mov_b32 s{sT0}, {2*Q_WH}")
        self.xfrag_addr(vH0, vH1, sT0, 6)
        for i in range(AQ, 256):
            A(f"v_mov_b32 v{i}, 0")
        A(f"v_mov_b32 v6, {MISC + CTR_OFF}\nv_mov_b32 v7, 0\nds_write_b32 v6, v7")
        self.row_stats_finish(RS)
        A(f"s_mov_b32 s{sA}, {Q_SLOT}\ns_mov_b32 s{sB}, {-2*Q_SLOT}\ns_mov_b32 s{sH}, 0")
        A("s_waitcnt lgkmcnt(0)\ns_barrier")
        self.stamp(1)
        lw = [self.lab("qw") for _ in range(4)]
        le1 = self.lab("e1")
        A(f"s_cmp_eq_u32 s{sW}, 1\ns_cbranch_scc1 {lw[1]}\ns_cmp_eq_u32 s{sW}, 2\ns_cbranch_scc1 {lw[2]}\ns_cmp_eq_u32 s{sW}, 3\ns_cbranch_scc1 {lw[3]}")
        accq = lambda t, p: (AQ + 20 * p + 4 * t) if t < 5 else (AK + 20 * p + 4 * (t - 5)) if t < 10 else (AV + 8 * (t - 10) + 4 * p)
        for w in range(4):
            A.label(lw[w])
            mf, fr, fix = [], {}, []
            for st in range(2):
                for i in range(3):
                    xa = [vH0, vH1][st] if i == 2 else [vX0, vX1][st]
                    fr[("X", st, i)] = (("X", st, i), xa, [f"ds_read_b128 {v(XF+12*st+4*i,4)}, v{xa} offset:{2048*i if i < 2 else 0}"])
                hx = XF + 12 * st + 8
                fix.append((("X", st, 2), 2, [f"v_cndmask_b32 v{hx+r}, v{hx+r}, v{ONE}, {s(mU0,2)}" for r in range(4)]))
                for t in range(15):
                    fr[("W", st, t)] = (("W", t), vW, [f"ds_read_b64_tr_b16 {v(WF+4*t+2*hf,2)}, v{vW} offset:{Q_WH*(1-st)+8*480*hf+32*t}" for hf in range(2)])
                    for i in [0, 1] + ([2] if t % 4 == w else []):
                        a = v(accq(t, i) if i < 2 else AH + 4 * (t // 4), 4)
                        wf, xf = v(WF + 4 * t, 4), v(XF + 12 * st + 4 * i, 4)
                        ops = f"{wf}, {xf}" if t < 10 else f"{xf}, {wf}"
                        mf.append((f"{MF} {a}, {ops}, {a}", [("W", st, t), ("X", st, i)]))
            self.mfma_loop("q", mf, fr, fix, 10)
            A(f"s_mov_b64 exec, {s(mU0,2)}")
            for t in range(w, 10, 4):
                A(f"ds_write_b128 v{vT+4}, {v(AH+4*(t//4),4)} offset:{64*t}")
            A("s_mov_b64 exec, 0xffff")
            for t in range(w, 15, 4):
                if t >= 10:
                    A(f"ds_write_b32 v{vT+5}, v{AH+4*(t//4)} offset:{64*t}")
            A("s_mov_b64 exec, -1\ns_waitcnt lgkmcnt(0)")
            if w < 3:
                A(f"s_branch {le1}")
        A.label(le1)
        self.stamp(2); self.estamp(1)
        MR, VM, CSK, CSV, CSQ = 36, 42, 66, 86, 92
        A(f"ds_read2_b32 {v(MR,2)}, v{vT} offset0:0 offset1:144\nds_read2_b32 {v(MR+2,2)}, v{vT} offset0:16 offset1:160\nds_read2_b32 {v(MR+4,2)}, v{vT+1} offset0:0 offset1:144")
        for i in range(3):
            ad, off = (vT + 2, 64 * i) if i < 2 else (vT + 3, 0)
            A(f"ds_read_b128 {v(VM+8*i,4)}, v{ad} offset:{off}\nds_read_b128 {v(VM+8*i+4,4)}, v{ad} offset:{off + ST_RSTD}")
        A("v_lshlrev_b32 v7, 4, v0\ns_barrier")
        self.estamp(2)
        C = Counter(A, "lgkmcnt", 14)
        C.n = 9
        t_ck = [C.issue(f"ds_read_b128 {v(CSK+4*t,4)}, v{vT+4} offset:{64*(5+t)}") for t in range(5)]
        t_cv = [C.issue(f"ds_read_b32 v{CSV+t}, v{vT+5} offset:{64*(10+t)}") for t in range(5)]
        KC = lambda p: AK + 10 * p
        KP = AK + 20
        foldk = lambda p, t: self.fold_t(AK + 20 * p + 4 * t, CSK + 4 * t, MR + 2 * p) + self.pack(KC(p) + 2 * t, AK + 20 * p + 4 * t)
        def foldv(p, t):
            a = AV + 8 * t + 4 * p
            return self.fold_v(a, CSV + t, VM + 8 * p, VM + 8 * p + 4) + self.pack(AV + 8 * t + 4 + 2 * p, a)
        for t in range(5):
            C.wait(t_ck[t])
            A.extend(foldk(0, t))
        t_cq = [C.issue(f"ds_read_b128 {v(CSQ+4*t,4)}, v{vT+4} offset:{64*t}") for t in range(5)]
        wr = {}
        wr["k"] = [f"ds_write_b128 v26, {v(KC(1),4)} offset:5120", f"ds_write_b128 v26, {v(KC(1)+4,4)} offset:6144", f"ds_write_b64 v35, {v(KC(1)+8,2)} offset:7168"]
        lh = [self.lab("hw") for _ in range(5)]
        for t in range(5):
            A.extend(foldk(1, t))
        A(f"s_waitcnt lgkmcnt(0)\ns_cmp_eq_u32 s{sW}, 1\ns_cbranch_scc1 {lh[1]}\ns_cmp_eq_u32 s{sW}, 2\ns_cbranch_scc1 {lh[2]}\ns_cmp_eq_u32 s{sW}, 3\ns_cbranch_scc1 {lh[3]}")
        for w in range(4):
            A.label(lh[w])
            blocks = []
            for t in range(w, 15, 4):
                a = AH + 4 * (t // 4)
                if 5 <= t < 10:
                    k = t - 5
                    blocks.append(self.fold_t(a, CSK + 4 * k, MR + 4) + self.pack(a, a) +
                                  [f"ds_write_b64 v7, {v(a,2)} offset:{K*(k>>1)+8*(k&1)}" if k < 4 else f"ds_write_b64 v27, {v(a,2)} offset:2048"])
                elif t >= 10:
                    k = t - 10
                    blocks.append(self.fold_v(a, CSV + k, VM + 16, VM + 20) + self.pack(a, a) + [f"ds_write_b64 v27, {v(a,2)} offset:{2560+512*k}"])
            for t in range(5):
                blocks.append(foldv(1, t) + ([f"ds_write_b64 v35, {v(AV+8*t+6,2)} offset:{5120+2560+512*t}"] if w < 3 else []))
            seq = sum(blocks, [])
            A.extend(weave(seq, wr["k"] if w < 3 else [], 14, 1))
            if w < 3:
                A(f"s_branch {lh[4]}")
        A.label(lh[4])
        for t in range(5):
            A.extend(foldv(0, t))
        A(f"s_mov_b32 s{sT0}, 0x3ea52b5c\nv_mul_f32 v{MR+1}, s{sT0}, v{MR+1}\nv_mul_f32 v{MR+3}, s{sT0}, v{MR+3}")
        QH = lambda p, h: 42 + 16 * p + 4 * h
        masks = [None, mG1, mG2, mG3]
        def foldq(p):
            o = []
            for t in range(5):
                a = AQ + 20 * p + 4 * t
                d = QH(p, 0) if t == 0 else (QH(p, 3) + 2 if t == 4 else a)
                o += self.fold_t(a, CSQ + 4 * t, MR + 2 * p, scale=False) + self.pack(d, a)
                if 1 <= t <= 3:
                    for r in range(2):
                        o += [f"v_cndmask_b32 v{QH(p,t)+r}, 0, v{a+r}, {s(masks[t],2)}", f"v_cndmask_b32 v{QH(p,t-1)+2+r}, v{a+r}, 0, {s(masks[t],2)}"]
            return o
        A.extend(foldq(1))
        self.estamp(3)
        A("s_waitcnt lgkmcnt(0)\ns_barrier")
        self.estamp(4)
        A(f"ds_read_b128 {v(KP,4)}, v26\nds_read_b128 {v(KP+4,4)}, v26 offset:1024\nds_read_b64 {v(KP+8,2)}, v35 offset:2048")
        for t in range(5):
            A(f"ds_read_b64 {v(AV+8*t+2,2)}, v35 offset:{2560+512*t}")
        SP = lambda p, h: (140 + 8 * h if h < 2 else 240 + 8 * (h - 2)) if p else 74 + 8 * h
        MX, MRS, ONE4 = 106, 114, 116
        def qk(p):
            prev = KC(0) if p else KP
            return [f"{MF} {v(SP(p,h)+4,4)}, {v(KC(p)+2*h,4)}, {v(QH(p,h),4)}, {v(BC,4)}" for h in range(4)] + \
                   [f"{MF} {v(SP(p,h),4)}, {v(prev+2*h,4)}, {v(QH(p,h),4)}, {v(BP+4*p,4)}" for h in range(4)]
        def rowmax(p):
            o, m = [], MX + 4 * p
            for h in range(4):
                b = SP(p, h)
                o += [f"v_max_f32 v{b+4+r}, v{b+r}, v{b+4+r}" for r in range(4)]
                o += [f"v_max3_f32 v{m+h}, v{b+4}, v{b+5}, v{b+6}", f"v_max_f32 v{m+h}, v{m+h}, v{b+7}"]
            o += lines(f"v_permlane32_swap_b32 v{m}, v{m+1}\nv_permlane32_swap_b32 v{m+2}, v{m+3}\nv_max_f32 v{m}, v{m}, v{m+1}\nv_max_f32 v{m+2}, v{m+2}, v{m+3}")
            o += lines(f"v_permlane16_swap_b32 v{m}, v{m+2}\nv_max_f32 v{m}, v{m}, v{m+2}\nv_mul_f32 v{m}, v{m}, v{MR+2*p+1}\nv_mov_b32 v{m+2}, v{m}\nv_permlane16_swap_b32 v{m}, v{m+2}")
            o += lines(f"v_mov_b32 v{m+1}, v{m}\nv_mov_b32 v{m+3}, v{m+2}\nv_permlane32_swap_b32 v{m}, v{m+1}\nv_permlane32_swap_b32 v{m+2}, v{m+3}")
            return o
        def probs(p):
            o = []
            for h in range(4):
                b, m = SP(p, h), MX + 4 * p + h
                o += [f"v_pk_fma_f32 {v(b+4+r,2)}, {v(b+4+r,2)}, {v(MR+2*p,2)}, {v(m & ~1,2)} op_sel:[0,1,{m&1}] op_sel_hi:[1,1,{m&1}] neg_lo:[0,0,1] neg_hi:[0,0,1]" for r in (0, 2)]
                o += [f"v_exp_f32 v{b+4+r}, v{b+4+r}" for r in range(4)]
            for h in range(4):
                b = SP(p, h)
                o += self.pack(b + 4, b + 4)
                o += lines(f"v_and_b32 v{b}, v{AP+2*p}, v{b+4}\nv_and_b32 v{b+1}, v{AP+2*p+1}, v{b+5}\nv_and_b32 v{b+2}, v{AC}, v{b+4}\nv_and_b32 v{b+3}, v{AC+1}, v{b+5}")
            return o
        OT = {}
        pool = {1: list(range(42, 74, 4)), 0: list(range(160, 192, 4))}
        def pv(p):
            o = [f"{MF} {v(SP(p,h)+4,4)}, {v(ONE4,4)}, {v(SP(p,h),4)}, 0" for h in range(4)]
            for t in range(5):
                for h in ([t - 1] if t >= 1 else []) + ([t] if t <= 3 else []):
                    OT[(p, t, h)] = pool[p].pop(0)
                    o.append(f"{MF} {v(OT[(p,t,h)],4)}, {v(AV+8*t+2+2*p,4)}, {v(SP(p,h),4)}, 0")
            return o
        st_mod = "" if c.split else c.st_mod
        def final(p):
            m0 = MX + 4 * p
            o = [f"v_rcp_f32 v{m0+h}, v{SP(p,h)+4}" for h in range(4)]
            for t in range(5):
                if 1 <= t <= 3:
                    a, b2 = OT[(p, t, t - 1)], OT[(p, t, t)]
                    o += [f"v_cndmask_b32 v{a+r}, v{a+r}, v{b2+r}, {s(masks[t],2)}" for r in range(4)]
                    o.append(f"v_cndmask_b32 v{b2}, v{m0+t-1}, v{m0+t}, {s(masks[t],2)}")
                    m = b2
                else:
                    a, m = OT[(p, t, min(t, 3))], m0 + min(t, 3)
                o += [f"v_pk_mul_f32 {v(a+r,2)}, {v(a+r,2)}, {v(m & ~1,2)} op_sel:[0,{m&1}] op_sel_hi:[1,{m&1}]" for r in (0, 2)]
                o += self.pack(a, a)
                o.append(f"buffer_store_dwordx2 {v(a,2)}, v27, {s(WS_,4)}, s{so[t]} offen offset:{2048*p}{st_mod}")
            return o
        A.extend(weave(foldq(0), qk(1), 3, 1))
        A("s_waitcnt lgkmcnt(0)")
        A.extend(weave([f"v_mov_b32 v{ONE4+r}, v{ONE}" for r in range(4)] + rowmax(1), qk(0), 3, 1))
        self.estamp(5)
        A.extend(probs(1))
        A.extend(weave(rowmax(0) + probs(0), pv(1), 3, 2))
        self.estamp(6)
        A.extend(weave(final(1), pv(0), 3, 2))
        A.extend(final(0))
        self.stamp(3); self.estamp(7)
        if not (c.phase2 and c.pubq):
            self.publish_now("q")

    @staticmethod
    def p2geom(role):
        if role == "q":
            return dict(N=64, nW=2, w=[x * K for x in (64, 72, 80, 88, 112, 120, 128, 136)], wbase=[64 * K, 112 * K],
                        a=[x * K for x in (144, 96, 104, 24, 32, 40, 48, 56)], abase=[24 * K, 96 * K])
        return dict(N=96, nW=3, w=[x * K for x in (144, 132, 120, 108, 96, 84, 72, 60)], wbase=[60 * K, 108 * K],
                    a=[x * K for x in (52, 44, 36, 28, 20, 12, 4)], abase=[4 * K, 160 * K])

    RW = 8
    P2W, P2A, P2F, P2L, STG = 48, 51, 52, 56, 64
    sPW, sPA, sPM, sPN, sPB = 4, 5, 6, 7, 8

    def p2_colbytes(self, N):
        if N == 64:
            self.A(f"s_lshl_b32 s{sCOL}, s{sCOL}, 7\ns_add_u32 s{sCOL}, s{sCOL}, 768")
        else:
            self.A(f"s_mul_i32 s{sCOL}, s{sCOL}, 192")

    def p2_loader_setup(self, role):
        A, g = self.A, self.p2geom(role)
        self.wnext = 0
        if not self.c.phase2:
            return
        self.p2_colbytes(g["N"])
        if role == "q":
            A(f"v_lshrrev_b32 v2, 3, v0\nv_and_b32 v3, 6, v2\nv_and_b32 v4, 7, v0\nv_xor_b32 v3, v3, v4\nv_mul_u32_u24 v2, 1280, v2\nv_lshl_add_u32 v2, v3, 4, v2")
            A(f"s_mul_i32 s{sT0}, s{sW}, {16*1280}\ns_add_u32 s{sT0}, s{sT0}, s{sCOL}\nv_add_u32 v{self.P2W}, s{sT0}, v2\nv_add_u32 v{self.P2W+1}, {8*1280-K}, v{self.P2W}")
        else:
            for i in range(3):
                A(f"s_mul_i32 s{sT0}, s{sW}, 192\ns_add_u32 s{sT0}, s{sT0}, {64*i}\nv_add_u32 v2, s{sT0}, v0")
                A("v_mul_u32_u24 v3, 5462, v2\nv_lshrrev_b32 v3, 16, v3\nv_mul_u32_u24 v4, 12, v3\nv_sub_u32 v2, v2, v4")
                A("v_lshrrev_b32 v4, 1, v3\nv_and_b32 v4, 2, v4\nv_xor_b32 v2, v2, v4\nv_mul_u32_u24 v3, 1280, v3\nv_lshl_add_u32 v2, v2, 4, v3")
                A(f"s_sub_u32 s{sT0}, s{sCOL}, {K*i}\nv_add_u32 v{self.P2W+i}, s{sT0}, v2")
        A(f"s_lshl_b32 s{self.sPN}, s{sW}, 11\nv_lshl_add_u32 v{self.P2A}, v0, 4, s{self.sPN}")
        A(f"s_lshr_b32 s{sT0}, s{sBLK}, 1\ns_lshl_b32 s{sT0}, s{sT0}, 8\ns_add_u32 s{sT0}, s{sT0}, {FLAG_BASE}\nv_mov_b32 v{self.P2F}, s{sT0}\nv_add_u32 v{self.P2F+1}, 4096, v{self.P2F}")
        A(f"s_mov_b32 s{self.sPW}, s{sROT2}\ns_mov_b32 s{self.sPA}, s{sROT2}\ns_mul_i32 s{self.sPM}, s{sW}, {K*g['nW']}\ns_mul_i32 s{self.sPB}, s{sBLK}, {H_BLK}")
        A(f"v_lshl_add_u32 v2, v0, 4, s{self.sPM}\nv_add_u32 v{self.P2L}, {g['wbase'][0]}, v2\nv_add_u32 v{self.P2L+1}, {g['wbase'][1]}, v2")

    def p2_prep_w(self, cw):
        A = self.A
        if cw == 24:
            A(f"s_mov_b32 s{self.sPW}, s{sROT3}")
        lim = 24 if cw < 24 else 10
        A(f"s_cmp_ge_u32 s{self.sPW}, {lim}\ns_cselect_b32 s{sT2}, {lim}, 0\ns_sub_u32 s{self.sPW}, s{self.sPW}, s{sT2}\ns_mul_i32 s{sT2}, s{self.sPW}, {64*1280}\ns_add_u32 s{self.sPW}, s{self.sPW}, 1")

    def p2_issue_w(self, role, cw, C=None):
        A, g = self.A, self.p2geom(role)
        emit = (C.issue if C else A)
        if self.RW <= cw < self.RW + self.c.stage[role] and not self.c.split:
            for i in range(g["nW"]):
                tag = emit(f"buffer_load_dwordx4 {v(self.STG + 4*(g['nW']*(cw-self.RW)+i),4)}, v{self.P2W+i}, {s(W2_,4)}, s{sT2} offen offset:{K*i}")
            return tag
        A(f"s_add_u32 m0, s{self.sPM}, {g['w'][cw % self.RW]}")
        for i in range(g["nW"]):
            tag = emit(f"buffer_load_dwordx4 v{self.P2W+i}, {s(W2_ if cw < 24 else WO_,4)}, s{sT2} offen offset:{K*i} lds")
        return tag

    def p2_prep_a(self, ca):
        A = self.A
        if ca == 24:
            A(f"s_mov_b32 s{self.sPA}, s{sROT3}\ns_mul_i32 s{self.sPB}, s{sBLK}, {O_BLK}\ns_add_u32 s{self.sPB}, s{self.sPB}, {O_BASE}")
        lim = 24 if ca < 24 else 10
        A(f"s_cmp_ge_u32 s{self.sPA}, {lim}\ns_cselect_b32 s{sT3}, {lim}, 0\ns_sub_u32 s{self.sPA}, s{self.sPA}, s{sT3}\ns_lshl_b32 s{sT3}, s{self.sPA}, 13\ns_add_u32 s{sT3}, s{sT3}, s{self.sPB}\ns_add_u32 s{self.sPA}, s{self.sPA}, 1")

    def p2_issue_a(self, role, ca, C):
        A, g = self.A, self.p2geom(role)
        A(f"s_add_u32 m0, s{self.sPN}, {g['a'][ca % len(g['a'])]}")
        mod = "" if self.c.split else self.c.ld_mod
        for i in range(2):
            tag = C.issue(f"buffer_load_dwordx4 v{self.P2A}, {s(WS_,4)}, s{sT3} offen offset:{K*i}{mod} lds")
        return tag

    def p2_prefetch(self, role, upto):
        k = 0
        while self.wnext < upto:
            self.p2_prep_w(self.wnext)
            self.p2_issue_w(role, self.wnext)
            self.wnext += 1
            k += self.p2geom(role)["nW"]
        return k

    def p2_loader(self, role, pending):
        A, g, c = self.A, self.p2geom(role), self.c
        C = Counter(A, "vmcnt", 62)
        RW, RA, nW = self.RW, len(g["a"]), g["nW"]
        tw, ta = {}, {}
        vR = self.P2F + 2
        SE = RW if c.split else RW + c.stage[role]
        warm = sum((self.warm_row(WO_, 14, 15, r) for r in range(5)), []) if (c.warm and not c.split) else []
        def next_w():
            nonlocal warm
            cw = self.wnext
            self.p2_prep_w(cw); tw[cw] = self.p2_issue_w(role, cw, C)
            self.wnext += 1
            A.extend(warm[:5]); warm = warm[5:]
        def first_a():
            if not c.split:
                C.wait(C.issue(f"buffer_load_dword v{vR}, v{self.P2F}, {s(WS_,4)}, 0 offen{COH}"))
                self.check(vR, self.P2F, WS_, 8)
                self.trace(11)
                self.stamp(3)
            for ca in range(RA):
                self.p2_prep_a(ca); ta[ca] = self.p2_issue_a(role, ca, C)
        C.n = pending
        for cw in range(self.wnext):
            tw[cw] = max(0, pending - nW * (self.wnext - 1 - cw))
        if c.split:
            next_w(); first_a()
            while self.wnext < RW:
                next_w()
        else:
            while self.wnext < RW:
                next_w()
            if role == "q":
                first_a()
            while self.wnext < min(SE, RW + c.nreg0[role]):
                next_w()
            if role == "h":
                first_a()
            A.extend(warm)
        pollt = None
        for ch in range(34):
            ca, cw = ch - 2 + RA, ch - 2 + RW
            do_a, do_w = ch >= 2 and ca < 34, ch >= 2 and cw < 34
            staged = do_w and cw < SE
            if do_a:
                self.p2_prep_a(ca)
            if do_w and not staged:
                self.p2_prep_w(cw)
            C.wait(max(ta[ch], tw[ch], tw[cw] if staged else 0))
            if RW <= ch < SE:
                A(f"s_waitcnt lgkmcnt({nW * sum(1 for e in range(ch - 4, ch) if e + RW - 2 < SE)})")
            A("s_barrier")
            self.trace(12 + ch)
            if ca == 22 and not c.split:
                pollt = C.issue(f"buffer_load_dword v{vR}, v{self.P2F+1}, {s(WS_,4)}, 0 offen{COH}")
            if ca == 24 and not c.split:
                self.stamp(4)
                C.wait(pollt)
                self.check(vR, self.P2F + 1, WS_, 8)
                self.stamp(5)
            wr = []
            if staged:
                wb = 1 if g["w"][cw % RW] >= g["wbase"][1] else 0
                wr = [f"ds_write_b128 v{self.P2L+wb}, {v(self.STG + 4*(nW*(cw-RW)+i),4)} offset:{g['w'][cw % RW] - g['wbase'][wb] + K*i}" for i in range(nW)]
                if "nowr" in c.abl:
                    wr = []
            if wr and c.comp:
                l1, l2 = self.lab("cw"), self.lab("cx")
                A(f"s_bitcmp1_b32 s{sW}, 1\ns_cbranch_scc0 {l1}")
                A.extend(wr)
                A.label(l1)
            if do_a:
                m = len(A.lines)
                ta[ca] = self.p2_issue_a(role, ca, C)
                if "noa" in c.abl:
                    A.lines[m:] = [l.replace("s63 offen", "s63 offen").replace(s(WS_, 4), s(DBG_, 4)) for l in A.lines[m:]]
            if wr and c.comp:
                A(f"s_cbranch_scc1 {l2}".replace("scc1", "scc1"))
                A.lines.insert(len(A.lines) - 1, f"s_bitcmp1_b32 s{sW}, 1")
                A.extend(wr)
                A.label(l2)
            elif wr:
                A.extend(wr)
            if staged:
                pass
            elif do_w:
                tw[cw] = self.p2_issue_w(role, cw, C)
            if self.wnext < SE:
                next_w()
        self.stamp(6)

    def p2_compute(self, role):
        A, g, c = self.A, self.p2geom(role), self.c
        N = g["N"]; NT = N // 32; RB = 2 * N
        vWa, vB, vO, vRow = 8, 160, 162, 6
        ACC, FB, FW, XR = 16, 40, 72, 120
        self.p2_colbytes(N)
        A(f"s_and_b32 s{sT0}, s{sW}, 1\ns_lshl1_add_u32 s{sT0}, s{sBLK}, s{sT0}\ns_mul_i32 s{sT0}, s{sT0}, {32*1280}\ns_add_u32 s{sT0}, s{sT0}, s{sCOL}")
        A(f"s_lshr_b32 s{sT1}, s{sW}, 1\ns_mul_i32 s{sT1}, s{sT1}, {32*NT}\ns_add_u32 s{sF}, s{sT0}, s{sT1}\ns_add_u32 s{sE}, s{sF}, {16*1280}")
        A(f"v_and_b32 v2, 15, v0\nv_mul_u32_u24 v{vRow}, 1280, v2\nv_lshrrev_b32 v3, 4, v0\nv_lshl_add_u32 v2, v3, 3, v{vRow}")
        for p in range(2):
            for i in range(NT):
                A(f"buffer_load_dwordx2 {v(XR+2*(NT*p+i),2)}, v2, {s(X_,4)}, s{sE if p else sF} offen offset:{32*i}")
        A(f"v_bfe_u32 v2, v0, 2, 2\nv_lshl_add_u32 v2, v3, 2, v2\nv_mul_u32_u24 v4, {RB}, v2\nv_and_b32 v5, 3, v0\nv_lshl_add_u32 v4, v5, 3, v4")
        A("v_bfe_u32 v2, v2, 1, 2" if N == 64 else "v_and_b32 v2, 1, v3")
        A(f"s_lshr_b32 s{sT0}, s{sW}, 1\ns_mul_i32 s{sT0}, s{sT0}, {NT}")
        for i in range(NT):
            A(f"s_add_u32 s{sT1}, s{sT0}, {i}\nv_xor_b32 v3, s{sT1}, v2\nv_lshl_add_u32 v3, v3, 5, v4\nv_add_u32 v{vWa+i}, {g['wbase'][0]}, v3\nv_add_u32 v{vWa+3+i}, {g['wbase'][1]}, v3")
        A(f"s_and_b32 s{sT0}, s{sW}, 1\ns_lshl_b32 s{sT0}, s{sT0}, 12\ns_add_u32 s{sT0}, s{sT0}, {g['abase'][0]}\nv_lshl_add_u32 v{vB}, v0, 4, s{sT0}\nv_lshl_add_u32 v{vO}, v0, 3, s{sT0}")
        if g["abase"][1] < LDS_BYTES:
            A(f"v_add_u32 v{vB+1}, {g['abase'][1]-g['abase'][0]}, v{vB}\nv_add_u32 v{vO+1}, {g['abase'][1]-g['abase'][0]}, v{vO}")
        for r in list(range(ACC, ACC + 8 * NT)) + list(range(FB + 16, FB + 32)) + list(range(FW + 8 * NT, FW + 16 * NT)):
            A(f"v_mov_b32 v{r}, 0")

        def mfmas(st):
            out = []
            for ks in range(2):
                for i in range(NT):
                    for p in range(2):
                        a = v(ACC + 4 * (NT * p + i), 4)
                        out.append(f"{MF} {a}, {v(FW+8*NT*st+4*(NT*ks+i),4)}, {v(FB+16*st+8*ks+4*p,4)}, {a}")
            return out

        def chunk(ch, extra=(), head=()):
            st, opart = ch & 1, ch >= 24
            wb = 1 if g["w"][ch % self.RW] >= g["wbase"][1] else 0
            wo = g["w"][ch % self.RW] - g["wbase"][wb]
            aa = g["a"][ch % len(g["a"])]
            ab = 1 if aa >= g["abase"][1] else 0
            ao = aa - g["abase"][ab]
            A("s_barrier\ns_waitcnt lgkmcnt(0)")
            if ch == 0:
                self.stamp(4)
            A.extend(head)
            rd = []
            for ks in range(2):
                for p in range(2):
                    d = FB + 16 * st + 8 * ks + 4 * p
                    if opart:
                        rd += [f"ds_read_b64 {v(d+2*hf,2)}, v{vO+ab} offset:{ao+2048*p+512*(2*ks+hf)}" for hf in range(2)]
                    else:
                        rd.append(f"ds_read_b128 {v(d,4)}, v{vB+ab} offset:{ao+2048*p+K*ks}")
                for i in range(NT):
                    d = FW + 8 * NT * st + 4 * (NT * ks + i)
                    rd += [f"ds_read_b64_tr_b16 {v(d+2*hf,2)}, v{vWa+3*wb+i} offset:{wo+(32*ks+16*hf)*RB}" for hf in range(2)]
            rd += list(extra)
            for m in mfmas(1 - st):
                A(m); A.extend(rd[:2]); rd = rd[2:]
            A.extend(rd)

        heads = {}
        if role == "q" and c.pubq and not c.split:
            heads[c.pubq], heads[c.pubq + 1] = self.publish("q", 2 * NT)
        for ch in range(24):
            chunk(ch, head=heads.get(ch, ()))
        self.stamp(5)
        XU = XR + 16
        unpack = ["s_waitcnt vmcnt(0)"]
        for k in range(2 * NT):
            x = XR + 2 * k
            unpack += lines(f"v_lshlrev_b32 v{XU+4*k}, 16, v{x}\nv_and_b32 v{XU+4*k+1}, 0xffff0000, v{x}\nv_lshlrev_b32 v{XU+4*k+2}, 16, v{x+1}\nv_and_b32 v{XU+4*k+3}, 0xffff0000, v{x+1}")
        unpack += lines(f"v_lshrrev_b32 v3, 4, v0\nv_and_b32 v4, 1, v3\nv_lshrrev_b32 v3, 1, v3\nv_lshl_add_u32 v3, v3, 4, v{vRow}\nv_lshl_add_u32 v2, v4, 5, v3\nv_mul_u32_u24 v4, {16*1280}, v4\nv_add_u32 v3, v3, v4")
        for ch in range(24, 34):
            n = -(-len(unpack) // (34 - ch)) if ch >= 26 else 0
            chunk(ch, unpack[:n]); unpack = unpack[n:]
        A("s_waitcnt lgkmcnt(0)")
        A.extend(mfmas(1))
        self.stamp(6)
        O = FB
        jobs = [(NT * p, NT * p + 1, 2, sE if p else sF, 0) for p in range(2)]
        if NT == 3:
            jobs.append((2, 5, 3, sF, 64))
        for n, (k0, k1, va, so, off) in enumerate(jobs):
            d = O + 4 * n
            for dd, k in ((d, k0), (d + 2, k1)):
                for h in (0, 2):
                    A(f"v_pk_add_f32 {v(ACC+4*k+h,2)}, {v(ACC+4*k+h,2)}, {v(XU+4*k+h,2)}")
                A.extend(self.pack(dd, ACC + 4 * k))
            A(f"v_permlane16_swap_b32 v{d}, v{d+2}\nv_permlane16_swap_b32 v{d+1}, v{d+3}")
            A(f"buffer_store_dwordx4 {v(d,4)}, v{va}, {s(OUT_,4)}, s{so} offen offset:{off}{c.out_mod}")

    def kernel(self, name, tag, do1, do2):
        A = self.A
        self.entry(name, tag)
        for role in ("q", "h"):
            if role == "h":
                A.label(f"L_HH_{tag}")
            pending = 0
            if do1:
                pending = self.helper1(role)
            else:
                A("s_waitcnt lgkmcnt(0)")
                self.srds_helper2()
                self.p2_loader_setup(role)
            if do2:
                self.p2_loader(role, pending)
            self.stamp_out(7, 1)
            A("s_endpgm")
        for role in ("q", "h"):
            A.label(f"L_{role.upper()}C_{tag}")
            if do1:
                (self.compute_q if role == "q" else self.compute_h)()
            else:
                self.srds_compute()
            if do2:
                self.p2_compute(role)
            self.stamp(7)
            self.stamp_out(8, 0)
            A("s_endpgm")
        A.label(f"L_end_{tag}")
        A("s_endpgm")

    def build(self):
        A, c = self.A, self.c
        A(open(os.path.join(os.path.dirname(os.path.abspath(__file__)), "header.txt")).read().rstrip())
        if c.split:
            A(f"; @launch kernel=phase1_kernel grid=(256,1,1) block=(512,1,1) lds={LDS_BYTES}")
            A(f"; @launch kernel=phase2_kernel grid=(256,1,1) block=(512,1,1) lds={LDS_BYTES}")
        else:
            A(f"; @launch grid=(256,1,1) block=(512,1,1) lds={LDS_BYTES}")
        A('.amdgcn_target "amdgcn-amd-amdhsa--gfx950"')
        if c.split:
            p2 = c.phase2
            c.phase2 = False
            self.kernel("phase1_kernel", "a", True, False)
            c.phase2 = p2
            self.kernel("phase2_kernel", "b", False, True)
            A(kernel_desc("phase1_kernel", 256, 256)); A(kernel_desc("phase2_kernel", 256, 256))
        else:
            self.kernel(NAME + "_kernel", "a", True, c.phase2)
            A(kernel_desc(NAME + "_kernel", 256, 256))
        return A.text()

def make(**kw):
    return Gen(Cfg(**kw)).build()

if __name__ == "__main__":
    kw = {}
    for a_ in sys.argv[2:]:
        k, val = a_.split("=", 1)
        kw[k] = eval(val)
    open(sys.argv[1], "w").write(make(**kw))
```

```python
import sys, os
from asmlib import *

NAME = "parallel_sum__sliding_local_dilated__dense_activation_relu__prompt"
MF = "v_mfma_f32_16x16x32_bf16"

H_BLK = 24 * 8192
O_BLK = 10 * 8192
H_BASE = 0
O_BASE = 32 * H_BLK
FLAG_BASE = 16 << 20
STAT_BASE = 18 << 20
CSUM_BASE = 19 << 20
STAMP_BASE = 20 << 20
WS_BYTES = 32 << 20

X_, W1_, W2_, WO_, WS_, DBG_, FLEX_, OUT_ = 20, 24, 28, 32, 36, 40, 44, 48
sWAVE, sW, sRB, sJ, sBLK, sCOL, sROT, sCNT = 52, 53, 54, 55, 56, 57, 58, 59
sT0, sT1, sT2, sT3 = 60, 61, 62, 63
sA, sB, sC, sD, sE, sF = 64, 65, 66, 67, 68, 69
mG1, mG2, mG3, mU0 = 70, 72, 74, 76
sROT2, sROT3 = 78, 79
sG, sH, sI = 3, 80, 81
sSTAMP = 82

K = 1024
Q_SLOT, H_SLOT = 48 * K, 40 * K
Q_WH, H_WH = 15 * K, 12 * K
MISC = 157 * K
ST_RSTD = 576
CS_OFF = 1152
CTR_OFF = 2304
XFL_OFF = 2320
F_STAT, F_CSUM = 8192, 10240
LDS_BYTES = 163840
SPIN_LIMIT = 20000
COH = " sc0 sc1"

class Cfg:
    def __init__(self, **kw):
        self.split = False
        self.stamps = False
        self.dbgstamps = False
        self.epi = False
        self.trace = False
        self.phase2 = True
        self.rot = True
        self.rot2 = True
        self.pre1 = 0
        self.prio_h = 1
        self.abl = ''
        self.preq = {8: 2, 9: 4}
        self.preh = {8: 2, 9: 4}
        self.nreg0 = {"q": 10, "h": 8}
        self.warm = 0
        self.warm_c = 0
        self.pubq = 3
        self.codepf = 6
        self.ld_mod = COH
        self.st_mod = COH
        self.comp = False
        self.out_mod = ''
        self.stage = {'q': 0, 'h': 0}
        self.hold = False
        self.__dict__.update(kw)

def srd(A, d, b, n):
    A(f"s_mov_b32 s{d}, s{b}\ns_mov_b32 s{d+1}, s{b+1}\ns_mov_b32 s{d+2}, {n}\ns_mov_b32 s{d+3}, 0x20000")

def lines(txt):
    return [l for l in txt.split("\n") if l]

def weave(main, extra, every=2, start=0):
    out, extra = [], list(extra)
    for i, l in enumerate(main):
        out.append(l)
        if extra and i + 1 >= start and (i + 1 - start) % every == 0:
            out.append(extra.pop(0))
    return out + extra

class Gen:
    def __init__(self, cfg):
        self.c = cfg
        self.A = Asm()
        self.uid = 0

    def lab(self, p):
        self.uid += 1
        return f"L_{p}_{self.uid}"

    def estamp(self, i):
        if self.c.epi:
            self.stamp(i, True)

    def stamp(self, i, force=False):
        if self.c.epi and not force and i > 0:
            return
        if self.c.stamps:
            op = "s_memtime" if self.c.stamps == "cyc" else "s_memrealtime"
            self.A(f"{op} s[{sSTAMP+2*i}:{sSTAMP+2*i+1}]")

    def trace(self, lane):
        if self.c.trace:
            if isinstance(lane, str):
                self.A(f"s_mov_b32 m0, {lane}")
                lane = "m0"
            self.A(f"s_memrealtime s[98:99]\ns_waitcnt lgkmcnt(0)\nv_writelane_b32 v30, s98, {lane}")

    def stamp_out(self, n, row):
        if not self.c.stamps:
            return
        A = self.A
        if self.c.trace and row == 1:
            l = self.lab("tr")
            A(f"s_cmp_lg_u32 s{sW}, 0\ns_cbranch_scc1 {l}\ns_lshl_b32 s{sT0}, s2, 8\ns_add_u32 s{sT0}, s{sT0}, {STAMP_BASE + (1 << 20)}\nv_lshl_add_u32 v1, v0, 2, s{sT0}")
            A(f"buffer_store_dword v30, v1, {s(WS_,4)}, 0 offen\ns_waitcnt vmcnt(0)")
            A.label(l)
        l = self.lab("st")
        A(f"s_waitcnt lgkmcnt(0)\ns_cmp_lg_u32 s{sW}, 0\ns_cbranch_scc1 {l}")
        if self.c.dbgstamps:
            if row == 0:
                A(f"s_lshr_b32 s{sT1}, s2, 7\ns_mul_i32 s{sT1}, s{sT1}, 28\nv_mov_b32 v1, s{sT1}\nv_mov_b32 v3, 0\ns_mov_b64 exec, 1")
                A(f"s_not_b32 s{sT0}, s{sSTAMP}\nv_mov_b32 v2, s{sT0}\nbuffer_atomic_umax v2, v3, {s(DBG_,4)}, 0 offen offset:4 sc1")
                for i in range(1, 8):
                    A(f"v_mov_b32 v2, s{sSTAMP+2*i}\nbuffer_atomic_umax v2, v1, {s(DBG_,4)}, 0 offen offset:{4+4*i} sc1")
                A("s_waitcnt vmcnt(0)")
            A.label(l)
            return
        A(f"s_lshl_b32 s{sT0}, s2, 7\ns_add_u32 s{sT0}, s{sT0}, {STAMP_BASE + 64*row}\nv_mov_b32 v1, s{sT0}")
        for i in range(n):
            A(f"v_mov_b32 v2, s{sSTAMP+2*i}\nbuffer_store_dword v2, v1, {s(WS_,4)}, 0 offen offset:{4*i}")
        A("s_waitcnt vmcnt(0)")
        A.label(l)

    def entry(self, name, tag):
        A, c = self.A, self.c
        A(kernel_header(name))
        A("s_cmp_ge_u32 s2, 256\ns_cbranch_scc1 L_end_" + tag)
        self.stamp(0)
        A("s_load_dwordx4 s[4:7], s[0:1], 0\ns_load_dwordx2 s[8:9], s[0:1], 16")
        A("s_load_dwordx4 s[12:15], s[0:1], 32\ns_load_dwordx4 s[16:19], s[0:1], 48\ns_load_dwordx2 s[10:11], s[0:1], 64")
        A(f"v_lshrrev_b32 v1, 6, v0\nv_and_b32 v0, 63, v0\nv_readfirstlane_b32 s{sWAVE}, v1")
        A(f"s_bfe_u32 s{sT0}, s2, 0x20001\ns_bfe_u32 s{sT1}, s2, 0x20003\ns_lshl2_add_u32 s{sRB}, s{sT0}, s{sT1}")
        A(f"s_and_b32 s{sT0}, s2, 1\ns_bfe_u32 s{sT2}, s2, 0x20005\ns_lshl2_add_u32 s{sJ}, s{sT0}, s{sT2}")
        A(f"s_and_b32 s{sT3}, s{sT2}, 1\ns_lshl1_add_u32 s{sBLK}, s{sRB}, s{sT3}")
        A(f"s_lshr_b32 s{sT3}, s{sT2}, 1\ns_lshl1_add_u32 s{sCOL}, s{sT0}, s{sT3}")
        A(f"s_lshr_b32 s{sA}, s2, 7")
        if c.rot:
            A(f"s_mul_i32 s{sROT}, s{sRB}, 3\ns_add_u32 s{sROT}, s{sROT}, s{sT2}\ns_lshl2_add_u32 s{sROT}, s{sA}, s{sROT}")
            A(f"s_mul_i32 s{sT1}, s{sROT}, 205\ns_lshr_b32 s{sT1}, s{sT1}, 11\ns_mul_i32 s{sT1}, s{sT1}, 10\ns_sub_u32 s{sROT}, s{sROT}, s{sT1}")
        A(f"s_and_b32 s{sT0}, s{sBLK}, 7\ns_lshl1_add_u32 s{sT3}, s{sA}, s{sT3}\ns_mul_i32 s{sT1}, s{sT0}, 3\ns_lshr_b32 s{sT1}, s{sT1}, 1\ns_mul_i32 s{sROT2}, s{sT3}, 3\ns_add_u32 s{sROT2}, s{sROT2}, s{sT1}")
        A(f"s_mul_i32 s{sT0}, s{sT0}, 5\ns_lshr_b32 s{sT0}, s{sT0}, 3\ns_add_u32 s{sROT3}, s{sT0}, s{sT3}")
        A(f"s_and_b32 s{sW}, s{sWAVE}, 3")
        A(f"s_cmp_ge_u32 s{sWAVE}, 4\ns_cbranch_scc1 L_helper_{tag}")
        A(f"s_cmp_eq_u32 s{sA}, 0\ns_cbranch_scc1 L_QC_{tag}\ns_branch L_HC_{tag}")
        A.label(f"L_helper_{tag}")
        if c.prio_h:
            A(f"s_setprio {c.prio_h}")
        A(f"s_cmp_eq_u32 s{sA}, 0\ns_cbranch_scc0 L_HH_{tag}")

    def srds_helper2(self):
        A = self.A
        srd(A, W2_, 14, 1536 * 1280); srd(A, WO_, 8, 640 * 1280); srd(A, WS_, 10, WS_BYTES); srd(A, DBG_, 18, 256)

    def srds_compute(self):
        A = self.A
        A("s_waitcnt lgkmcnt(0)")
        srd(A, X_, 4, 2048 * 1280); srd(A, WS_, 10, WS_BYTES); srd(A, DBG_, 18, 256); srd(A, OUT_, 16, 2048 * 1280)

    def xfrag_addr(self, d0, d1, base_s, t):
        A = self.A
        A(f"v_and_b32 v{t}, 15, v0\nv_lshrrev_b32 v{d1}, 1, v{t}\nv_lshrrev_b32 v{d0}, 4, v0\nv_xor_b32 v{d0}, v{d0}, v{d1}")
        A(f"v_lshlrev_b32 v{d0}, 4, v{d0}\nv_lshl_add_u32 v{d0}, v{t}, 7, v{d0}\nv_add_u32 v{d0}, s{base_s}, v{d0}\nv_xor_b32 v{d1}, 64, v{d0}")

    def check(self, vres, vaddr, srd_, target, off=0):
        A = self.A
        l, d = self.lab("sp"), self.lab("sd")
        A(f"v_cmp_gt_u32 vcc, {target}, v{vres}\ns_cbranch_vccz {d}\ns_mov_b32 s{sT1}, {SPIN_LIMIT}")
        A.label(l)
        A(f"buffer_load_dword v{vres}, v{vaddr}, {s(srd_,4)}, 0 offen offset:{off}{COH}\ns_waitcnt vmcnt(0)\nv_cmp_gt_u32 vcc, {target}, v{vres}")
        A(f"s_cbranch_vccz {d}\ns_sub_u32 s{sT1}, s{sT1}, 1\ns_cbranch_scc0 {l}")
        A.label(d)

    def warm_setup(self, s0, s1, rows):
        A = self.A
        A(f"s_lshr_b32 s{sT0}, s2, 3\ns_lshl2_add_u32 s{sT0}, s{sT0}, s{sW}\ns_mul_i32 s{sT0}, s{sT0}, {1280*rows}\ns_and_b32 s{sT1}, s2, 1")
        A(f"s_mul_i32 s{s0}, s{sT1}, 384\ns_add_u32 s{s0}, s{s0}, s{sT0}\ns_lshl_b32 s{s1}, s{sT1}, 8\ns_add_u32 s{s1}, s{s1}, s{sT0}\ns_add_u32 s{s1}, s{s1}, 768")

    @staticmethod
    def warm_row(srd_, s0, s1, row):
        return [f"s_buffer_load_dword s101, {s(srd_,4)}, s{s0} offset:{1280*row+64*i}" for i in range(6)] + \
               [f"s_buffer_load_dword s101, {s(srd_,4)}, s{s1} offset:{1280*row+64*i}" for i in range(4)]

    def helper1(self, role):
        A, c = self.A, self.c
        q = role == "q"
        slot, wh = (Q_SLOT, Q_WH) if q else (H_SLOT, H_WH)
        xoff = 2 * wh
        wstride = 3840 if q else 3072
        vA, vB, vC, vF = 8, 11, 14, 18
        sOWa, sOWb, sOX, sSa, sSb = sA, sB, sC, sD, sE
        sMA, sMX, sF1o, sF1m, sF2o, sF2m = sF, sG, mG1, mG1 + 1, mG1 + 2, mG1 + 3
        sMF1, sMF2, sPa, sPb, sPx = mG1 + 4, mG1 + 5, mG1 + 6, mG1 + 7, sI
        nA, nB = (4, 8) if q else (3, 7)
        per = 4 if q else 3

        A("v_lshrrev_b32 v2, 3, v0\nv_mul_u32_u24 v2, 1280, v2\nv_and_b32 v3, 7, v0\nv_lshrrev_b32 v4, 4, v0\nv_xor_b32 v3, v3, v4\nv_lshl_add_u32 v6, v3, 4, v2\nv_xor_b32 v7, 64, v6")
        A(f"s_lshl_b32 s{sT0}, s{sRB}, 7\ns_lshl_b32 s{sT1}, s{sW}, 5\ns_add_u32 s{sT0}, s{sT0}, s{sT1}")
        if q:
            A(f"s_sub_u32 s{sT0}, s{sT0}, 16")
        A(f"s_mul_i32 s{sPx}, s{sT0}, 1280")
        A(f"s_mul_i32 s{sH}, s{sJ}, {160 if q else 384}\ns_movk_i32 s{sCNT}, 1120\ns_mul_i32 s{sMA}, s{sW}, {per}\ns_lshl_b32 s{sMX}, s{sW}, 12\ns_add_u32 s{sMX}, s{sMX}, {xoff}")

        def xoffs(d, i):
            A(f"s_add_u32 s{sT0}, s{sPx}, {8*1280*i}\nv_add_u32 v{d}, s{sT0}, v{6 + (i & 1)}")

        def woff(d, kb):
            A(f"s_add_u32 s{sT0}, s{sMA}, {kb}\ns_lshl_b32 s{sT0}, s{sT0}, 6\nv_add_u32 v2, s{sT0}, v0")
            if q:
                A("v_mul_u32_u24 v3, 2185, v2\nv_lshrrev_b32 v3, 16, v3\nv_mul_u32_u24 v4, 30, v3\nv_sub_u32 v2, v2, v4")
            else:
                A("v_mul_u32_u24 v3, 2731, v2\nv_lshrrev_b32 v3, 16, v3\nv_mul_u32_u24 v4, 24, v3\nv_sub_u32 v2, v2, v4\nv_and_b32 v4, 6, v3\nv_xor_b32 v2, v2, v4")
            A("v_and_b32 v4, 4, v3\nv_add_u32 v5, v3, v4\nv_bfe_u32 v4, v3, 3, 1\nv_mad_i32_i24 v5, v4, -4, v5")
            A(f"v_mul_u32_u24 v5, {wstride}, v5")
            if q:
                A(f"v_mul_u32_u24 v4, 26, v2\nv_lshrrev_b32 v4, 8, v4\nv_mad_u32_u24 v5, v4, s{sCNT}, v5")
            A(f"v_lshl_add_u32 v5, v2, 4, v5\nv_add_u32 v{d}, s{sH}, v5")

        def advance():
            A(f"s_mov_b32 s{sOWa}, s{sOWb}\ns_add_u32 s{sPa}, s{sSb}, s{sMA}")
            if q:
                A(f"s_add_u32 s{sSb}, s{sSb}, {slot}\ns_cmp_ge_u32 s{sSb}, {3*slot}\ns_cselect_b32 s{sSb}, 0, s{sSb}")
            else:
                A(f"s_sub_u32 s{sSb}, s{sSb}, {slot}\ns_cselect_b32 s{sSb}, {2*slot}, s{sSb}")
            rot()

        def rot():
            A(f"s_cmp_ge_u32 s{sROT}, 10\ns_cselect_b32 s{sT0}, 10, 0\ns_sub_u32 s{sROT}, s{sROT}, s{sT0}")
            A(f"s_mul_i32 s{sOWb}, s{sROT}, {64*wstride}\ns_lshl_b32 s{sOX}, s{sROT}, 7\ns_add_u32 s{sROT}, s{sROT}, 1")
            A(f"s_add_u32 s{sPb}, s{sSb}, s{sMA}\ns_add_u32 s{sPx}, s{sSb}, s{sMX}")
            if q:
                A(f"s_cmp_lt_u32 s{sW}, 3\ns_cselect_b32 s{sF1o}, s{sOWa}, s{sOX}\ns_cselect_b32 s{sF2o}, s{sOWb}, s{sOX}\ns_cselect_b32 s{sF1m}, s{sPa}, s{sPx}\ns_cselect_b32 s{sF2m}, s{sPb}, s{sPx}")
                A(f"s_add_u32 s{sF1m}, s{sF1m}, s{sMF1}\ns_add_u32 s{sF2m}, s{sF2m}, s{sMF2}")

        def dma(vr, srd_, so, m0s, add):
            A(f"s_add_u32 m0, s{m0s}, {add}\nbuffer_load_dwordx4 v{vr}, {s(srd_,4)}, s{so} offen lds")

        opsA = [(vA + i, W1_, sOWa, sPa, i * K) for i in range(3)]
        opF1 = (vF, FLEX_, sF1o, sF1m, 0)
        opF2 = (vF + 1, FLEX_, sF2o, sF2m, 0)
        opsC = [(vC + i, X_, sOX, sPx, i * K) for i in range(4)]
        opsB = [(vB + i, W1_, sOWb, sPb, wh + i * K) for i in range(3)]
        group = opsA + ([opF1] if q else []) + opsC + opsB + ([opF2] if q else [])

        for i in range(4):
            xoffs(vC + i, i)
        if q:
            l1, l2 = self.lab("fx"), self.lab("fd")
            xoffs(vF, 4); xoffs(vF + 1, 5)
        woff(vB, 0)
        self.trace(50)
        A("s_waitcnt lgkmcnt(0)")
        srd(A, X_, 4, 2048 * 1280)
        srd(A, W1_, 6 if q else 12, 640 * wstride)
        if q:
            A(f"s_cmp_lt_u32 s{sW}, 3\ns_cselect_b32 s{FLEX_}, s6, s4\ns_cselect_b32 s{FLEX_+1}, s7, s5\ns_mov_b32 s{FLEX_+2}, {640*3840}\ns_cselect_b32 s{FLEX_+2}, s{FLEX_+2}, s{X_+2}\ns_mov_b32 s{FLEX_+3}, 0x20000")
            A(f"s_movk_i32 s{sMF1}, {3*K}\ns_cselect_b32 s{sMF1}, s{sMF1}, {4*K}\ns_movk_i32 s{sMF2}, {wh + 3*K}\ns_cselect_b32 s{sMF2}, s{sMF2}, {5*K}")
        A(f"s_mov_b32 s{sT3}, s{sMA}\ns_lshl_b32 s{sMA}, s{sMA}, 10\ns_mov_b32 s{sSb}, 0\ns_mov_b32 s{sOWa}, 0\ns_mov_b32 s{sPa}, 0")
        A(f"s_mov_b32 s100, s{sROT}")
        rot()
        A(f"s_mov_b32 s{sSa}, s{sMA}\ns_mov_b32 s{sMA}, s{sT3}")
        self.trace(51)
        for o in opsC:
            dma(*o)
        self.trace(52)
        for i in range(3):
            if i:
                woff(vB + i, i)
            dma(*opsB[i])
            A(f"v_add_u32 v{vA+i}, {32*wstride}, v{vB+i}")
        if q:
            A(f"s_cmp_lt_u32 s{sW}, 3\ns_cbranch_scc0 {l1}")
            woff(vF + 1, 3)
            A(f"v_add_u32 v{vF}, {32*wstride}, v{vF+1}\ns_branch {l2}")
            A.label(l1)
            dma(*opF1)
            A.label(l2)
            dma(*opF2)
        self.trace(53)
        A(f"s_mov_b32 s{sMA}, s{sSa}\ns_mov_b32 s{sSa}, s100")
        advance()
        for o in group[: nA + c.pre1]:
            dma(*o)
        self.trace(54)
        self.srds_helper2()
        self.p2_loader_setup(role)
        vZ, vP, vD, vS = 23, 24, 26, 32
        ridx = 0 if q else 8
        A(f"s_lshl_b32 s{sT0}, s{sRB}, 7\ns_add_u32 s{sT0}, s{sT0}, {FLAG_BASE + F_STAT}\nv_mov_b32 v20, s{sT0}\nv_mov_b32 v{vZ}, 0\nv_mov_b32 v25, 16")
        A(f"s_lshl_b32 s{sT1}, s{sRB}, 7\ns_lshl_b32 s{sT2}, s{sW}, 5\ns_add_u32 s{sT1}, s{sT1}, s{sT2}\nv_and_b32 v3, 31, v0\nv_add_u32 v21, s{sT1}, v3")
        A(f"s_lshl_b32 s{sT2}, s{sW}, 7\ns_add_u32 s{sT2}, s{sT2}, {MISC + (64 if q else 0)}\nv_lshl_add_u32 v22, v3, 2, s{sT2}")
        if q:
            A(f"s_cmp_eq_u32 s{sRB}, 0\ns_cselect_b32 s{sT2}, 0, 128\ns_sub_u32 s{sT0}, s{sT0}, s{sT2}\nv_mov_b32 v4, s{sT0}")
            A(f"s_lshl_b32 s{sT1}, s{sRB}, 7\ns_sub_u32 s{sT1}, s{sT1}, 16\nv_and_b32 v2, 15, v0\nv_add_u32 v3, s{sT1}, v2")
            A(f"s_mov_b32 s{sT1}, {MISC}\nv_lshl_add_u32 v5, v2, 2, s{sT1}\nv_cmp_le_u32 vcc, 32, v0")
            A("v_cndmask_b32 v20, v20, v4, vcc\nv_cndmask_b32 v21, v21, v3, vcc\nv_cndmask_b32 v22, v22, v5, vcc")
        A(f"v_cmp_gt_i32 vcc, 0, v21\nv_lshlrev_b32 v21, 3, v21\nv_add_u32 v21, {STAT_BASE}, v21\nv_mov_b32 v3, -16\nv_cndmask_b32 v21, v21, v3, vcc")
        A(f"s_add_u32 s{sT0}, s{sJ}, {ridx}\ns_lshl_b32 s{sT1}, s{sT0}, 7\ns_add_u32 s{sT1}, s{sT1}, {FLAG_BASE + F_CSUM}\nv_mov_b32 v31, s{sT1}\nv_mov_b32 v4, 10\nv_cmp_le_u32 vcc, 48, v0")
        A(f"v_cndmask_b32 v20, v20, v31, vcc\nv_cndmask_b32 v25, v25, v4, vcc")
        A(f"s_mul_i32 s9, s{sT0}, 10240\ns_add_u32 s9, s9, {CSUM_BASE}\ns_lshl_b32 s{sT1}, s{sW}, 8\ns_add_u32 s{sT2}, s9, s{sT1}\nv_lshl_add_u32 v28, v0, 2, s{sT2}")
        A(f"s_add_u32 s{sT1}, s{sT1}, {MISC + CS_OFF}\nv_lshl_add_u32 v29, v0, 2, s{sT1}")
        nt = 4 if q else 3
        A("v_bfe_u32 v2, v0, 2, 3\nv_lshrrev_b32 v3, 5, v0\nv_lshl_add_u32 v3, v3, 4, v2")
        A(f"v_mul_u32_u24 v3, {480 if q else 384}, v3\nv_and_b32 v4, 3, v0\nv_lshl_add_u32 v3, v4, 3, v3\ns_mul_i32 s{sT1}, s{sW}, {nt}")
        if q:
            A(f"s_lshl_b32 s{sT2}, s{sT1}, 5\nv_add_u32 v44, s{sT2}, v3")
        else:
            A("v_lshrrev_b32 v2, 1, v2")
            for t in range(3):
                A(f"s_add_u32 s{sT2}, s{sT1}, {t}\nv_xor_b32 v4, s{sT2}, v2\nv_lshl_add_u32 v{44+t}, v4, 5, v3")
        A(f"s_lshl_b32 s{sT1}, s{sT1}, 6\ns_lshl_b32 s{sT2}, s{sSa}, 10\ns_add_u32 s{sT1}, s{sT1}, s{sT2}\ns_add_u32 s{sT1}, s{sT1}, s9\nv_lshrrev_b32 v2, 4, v0\nv_lshl_add_u32 v47, v2, 4, s{sT1}")
        for r in range(4):
            A(f"v_mov_b32 v{60+r}, 0x3f803f80")
        self.trace(55)
        warm = c.warm if (c.phase2 and not c.split) else 0
        if warm:
            self.warm_setup(12, 13, 12)
            self.warm_setup(14, 15, 5)
            A.extend(self.warm_row(W2_, 12, 13, 0))
        A(f"s_waitcnt vmcnt({c.pre1})\ns_barrier")
        self.trace(0)
        self.stamp(1)
        for o in group[nA + c.pre1:]:
            dma(*o)
        advance()
        A(f"s_mov_b32 s{sCNT}, 0")
        loop, lw_, lb = (self.lab(x) for x in ("hl", "wt", "bar"))
        pre = (c.preq if q else c.preh) if (c.phase2 and not c.split) else {}
        special = [0, 1, 2, 5, 6]
        lx = {k: self.lab("x") for k in special}
        A.label(loop)
        mark0 = len(A.lines)
        for o in group:
            dma(*o)
        advance()
        for k in lx:
            A(f"s_cmp_eq_u32 s{sCNT}, {k}\ns_cbranch_scc1 {lx[k]}")
        A.label(lw_)
        A(f"s_waitcnt vmcnt({nB})")
        A.label(lb)
        A(f"s_add_u32 s{sCNT}, s{sCNT}, 1\ns_cmp_lt_u32 s{sCNT}, 8\ns_barrier")
        self.trace(f"s{sCNT}")
        l8 = self.lab("c8")
        A(f"s_cbranch_scc1 {loop}\ns_branch {l8}")
        if "nodma" in c.abl:
            A.lines[mark0:] = [l for l in A.lines[mark0:] if not l.startswith("buffer_load")]
        if "nobar" in c.abl:
            A.lines[mark0:] = [l for l in A.lines[mark0:] if not l.startswith("s_barrier")]
        for k in special:
            A.label(lx[k])
            n = 0
            if k == 0:
                l = self.lab("np")
                A(f"buffer_load_dword v{vP}, v{vZ}, {s(DBG_,4)}, 0 offen{COH}")
                A(f"s_cmp_ge_u32 s{sRB}, 10\ns_cbranch_scc1 {l}")
                for t in range(nt):
                    for st in range(2):
                        for hf in range(2):
                            ad, off = (44, 32 * t) if q else (44 + t, 0)
                            A(f"ds_read_b64_tr_b16 {v(64+8*t+4*st+2*hf,2)}, v{ad} offset:{off + wh*(1-st) + 8*(480 if q else 384)*hf}")
                A("s_waitcnt lgkmcnt(0)")
                for st in range(2):
                    for t in range(nt):
                        A(f"{MF} {v(96+4*t,4)}, {v(64+8*t+4*st,4)}, v[60:63], {v(96+4*t,4) if st else 0}")
                A("s_mov_b32 exec_lo, 0x10001\ns_mov_b32 exec_hi, 0x10001")
                for t in range(nt):
                    A(f"buffer_store_dwordx4 {v(96+4*t,4)}, v47, {s(WS_,4)}, 0 offen offset:{64*t}{COH}")
                A(f"s_mov_b64 exec, -1\ns_waitcnt vmcnt({nB + 1 + nt})\ns_branch {lb}")
                A.label(l)
                n = 1
            if k == 1:
                A(f"s_waitcnt vmcnt({nA + nB})")
                self.check(vP, vZ, DBG_, 1)
                A(f"s_cmp_lg_u32 s{sW}, 0\ns_cbranch_scc1 {lw_}\nv_mov_b32 v2, 1\ns_mov_b64 exec, 1\nbuffer_atomic_add v2, v20, {s(WS_,4)}, 0 offen sc1\ns_mov_b64 exec, -1")
                n = 1
            if k == 2:
                A(f"s_cmp_ge_u32 s{sRB}, 10\ns_cselect_b32 s{sT0}, 1, s{sW}\ns_cmp_lg_u32 s{sT0}, 0\ns_cbranch_scc1 {lw_}")
                A(f"v_mov_b32 v2, 1\ns_mov_b64 exec, 1\nbuffer_atomic_add v2, v31, {s(WS_,4)}, 0 offen sc1\ns_mov_b64 exec, -1")
                n = 1
            if k == 5:
                A(f"buffer_load_dword v{vP}, v20, {s(WS_,4)}, 0 offen{COH}")
                n = 1
            if k == 6:
                A(f"s_waitcnt vmcnt({nA + nB})")
                self.check(vP, 20, WS_, "v25")
                A(f"buffer_load_dwordx2 {v(vD,2)}, v21, {s(WS_,4)}, 0 offen{COH}")
                for i in range(10):
                    A(f"s_movk_i32 s{sT0}, {K*i}\nbuffer_load_dword v{vS+i}, v28, {s(WS_,4)}, s{sT0} offen{COH}")
                n = 11
            A(f"s_waitcnt vmcnt({nB + n})\ns_branch {lb}")
        A.label(l8)
        for o in opsA:
            dma(*o)
        if q:
            l = self.lab("nf")
            A(f"s_cmp_lt_u32 s{sW}, 3\ns_cbranch_scc0 {l}")
            dma(*opF1)
            A.label(l)
        A(f"ds_write_b32 v22, v{vD}\nds_write_b32 v22, v{vD+1} offset:{ST_RSTD}")
        for i in range(1, 10):
            A(f"v_add_f32 v{vS}, v{vS}, v{vS+i}")
        A(f"ds_write_b32 v29, v{vS}")
        k1 = self.p2_prefetch(role, pre.get(8, 0))
        bar = "" if "nobar" in c.abl else "s_barrier"
        A(f"s_waitcnt vmcnt({k1}) lgkmcnt(0)\n{bar}")
        self.trace(9)
        if warm:
            A.extend(self.warm_row(W2_, 12, 13, 1) + self.warm_row(W2_, 12, 13, 3)[5:])
        k2 = self.p2_prefetch(role, pre.get(9, 0))
        A(bar)
        self.trace(10)
        self.stamp(2)
        return k1 + k2

    def row_stats_load(self, role, base):
        A = self.A
        self.l_ns = self.lab("ns")
        l = self.lab("nl")
        A(f"s_cmp_ge_u32 s{sW}, 2\ns_cbranch_scc1 {l}")
        A(f"s_lshl4_add_u32 s{sT0}, s{sRB}, s{sJ}\ns_add_u32 s{sT0}, s{sT0}, {0 if role == 'q' else 8}\ns_lshl1_add_u32 s{sT0}, s{sT0}, s{sW}\ns_lshl_b32 s{sT0}, s{sT0}, 2")
        A(f"v_lshrrev_b32 v{base+20}, 4, v0\nv_add_u32 v{base+20}, s{sT0}, v{base+20}\nv_mul_u32_u24 v{base+21}, 1280, v{base+20}\nv_and_b32 v{base+22}, 15, v0\nv_lshl_add_u32 v{base+21}, v{base+22}, 4, v{base+21}")
        for i in range(5):
            A(f"buffer_load_dwordx4 {v(base+4*i,4)}, v{base+21}, {s(X_,4)}, 0 offen offset:{256*i}")
        A.label(l)

    def code_prefetch(self, tag):
        A, n = self.A, self.c.codepf
        if not n:
            return
        l = self.lab("pc")
        A(f"s_getpc_b64 s[32:33]")
        A.label(l)
        A(f"s_lshr_b32 s{sT0}, s2, 3\ns_lshl2_add_u32 s{sT0}, s{sT0}, s{sW}\ns_mul_i32 s{sT0}, s{sT0}, {64*n}\ns_min_u32 s{sT0}, s{sT0}, L_end_{tag}-L_helper_{tag}-{64*n}")
        A(f"s_sub_u32 s32, s32, {l}-L_helper_{tag}\ns_subb_u32 s33, s33, 0\ns_add_u32 s32, s32, s{sT0}\ns_addc_u32 s33, s33, 0")
        for i in range(n):
            A(f"s_load_dword s101, s[32:33], {64*i}")

    def warm_compute(self):
        A, c = self.A, self.c
        if c.warm and c.phase2 and not c.split:
            srd(A, W2_, 14, 1536 * 1280)
            self.warm_setup(34, 35, 12)
            A.extend(self.warm_row(W2_, 34, 35, 10) + self.warm_row(W2_, 34, 35, 11)[:5])

    def row_stats_finish(self, base):
        A = self.A
        a, b = base + 22, base + 23
        A(f"s_cmp_ge_u32 s{sW}, 2\ns_cbranch_scc1 {self.l_ns}")
        A(f"v_mov_b32 v{a}, 0\nv_mov_b32 v{b}, 0\nv_mov_b32 v{base+21}, 0x3f803f80\nv_lshlrev_b32 v{base+20}, 3, v{base+20}\nv_add_u32 v{base+20}, {STAT_BASE}, v{base+20}")
        for i in range(5):
            A(f"s_waitcnt vmcnt({4-i})")
            for r in range(4):
                d = base + 4 * i + r
                A(f"v_dot2c_f32_bf16 v{a}, v{d}, v{base+21}\nv_dot2c_f32_bf16 v{b}, v{d}, v{d}")
        for sh in (8, 4, 2, 1):
            A(f"v_add_f32_dpp v{a}, v{a}, v{a} row_ror:{sh} row_mask:0xf bank_mask:0xf\nv_add_f32_dpp v{b}, v{b}, v{b} row_ror:{sh} row_mask:0xf bank_mask:0xf")
        A(f"s_mov_b32 s{sT1}, 0x3acccccd\ns_mov_b32 s{sT2}, 0x3727c5ac")
        A(f"v_mul_f32 v{a}, s{sT1}, v{a}\nv_mul_f32 v{base}, v{a}, v{a}\nv_fma_f32 v{b}, v{b}, s{sT1}, -v{base}\nv_max_f32 v{b}, 0, v{b}\nv_add_f32 v{b}, s{sT2}, v{b}\nv_rsq_f32 v{b}, v{b}")
        A(f"s_mov_b32 exec_lo, 0x10001\ns_mov_b32 exec_hi, 0x10001\nbuffer_store_dwordx2 {v(a,2)}, v{base+20}, {s(WS_,4)}, 0 offen{COH}\ns_mov_b64 exec, -1")
        A.label(self.l_ns)

    def init_flags(self):
        A = self.A
        l = self.lab("nf")
        A(f"s_xor_b32 s{sT0}, s{sW}, 3\ns_or_b32 s{sT0}, s2, s{sT0}\ns_cmp_lg_u32 s{sT0}, 0\ns_cbranch_scc1 {l}")
        A(f"v_lshlrev_b32 v2, 7, v0\nv_add_u32 v2, {FLAG_BASE}, v2\nv_mov_b32 v3, 0\ns_movk_i32 s{sT0}, 0x2000")
        A(f"buffer_store_dword v3, v2, {s(WS_,4)}, 0 offen{COH}\nbuffer_store_dword v3, v2, {s(WS_,4)}, s{sT0} offen{COH}\ns_waitcnt vmcnt(0)")
        A(f"v_mov_b32 v2, 1\ns_mov_b64 exec, 1\nbuffer_store_dword v2, v3, {s(DBG_,4)}, 0 offen{COH}\ns_mov_b64 exec, -1")
        A.label(l)

    def publish(self, role, younger=0):
        l = self.lab("pb")
        a = lines(f"v_mov_b32 v4, {MISC + CTR_OFF}\nv_mov_b32 v5, 1\ns_waitcnt vmcnt({younger})\ns_mov_b64 exec, 1\nds_add_rtn_u32 v7, v4, v5\ns_mov_b64 exec, -1")
        a += lines(f"s_lshr_b32 s{sT0}, s{sJ}, 2\ns_lshl2_add_u32 s{sT0}, s{sRB}, s{sT0}\ns_lshl_b32 s{sT0}, s{sT0}, 7\ns_add_u32 s{sT0}, s{sT0}, {FLAG_BASE + (256 if role == 'q' else 0)}\nv_mov_b32 v4, s{sT0}")
        b = lines(f"v_readfirstlane_b32 s{sT0}, v7\ns_cmp_lg_u32 s{sT0}, 3\ns_cbranch_scc1 {l}\ns_mov_b64 exec, 1\nbuffer_atomic_add v5, v4, {s(WS_,4)}, 0 offen sc1\ns_mov_b64 exec, -1\n{l}:")
        return a, b

    def publish_now(self, role):
        if self.c.split:
            return
        a, b = self.publish(role)
        self.A.extend(a + ["s_waitcnt lgkmcnt(0)"] + b)

    def mfma_loop(self, role, mfmas, frags, fixups, niter):
        A = self.A
        nm = len(mfmas)
        bpos = nm // 2 - 1
        first, last = {}, {}
        for i, (_, fs) in enumerate(mfmas):
            for f in fs:
                first.setdefault(f, i); last[f] = i
        order = sorted(frags, key=lambda f: first[f])
        lastuse = {}
        for f in order:
            lastuse[frags[f][1]] = f
        seq = [(it, f) for it in range(5) for f in order]
        occupant, ready, part = {}, {}, {}
        for it, f in seq:
            key = frags[f][0]
            e = (it - 1) * nm + bpos
            if key in occupant:
                pit, pf = occupant[key]
                e = max(e, pit * nm + last[pf])
            ready[(it, f)] = e
            occupant[key] = (it, f)
        if role == "q":
            step = lines(f"s_add_u32 s{sH}, s{sH}, 1\ns_cmp_eq_u32 s{sH}, 3\ns_cselect_b32 s{sH}, 0, s{sH}\ns_cselect_b32 s{sT0}, s{sB}, s{sA}")
        else:
            step = lines(f"s_cmp_eq_u32 s{sH}, 0\ns_cselect_b32 s{sH}, 3, s{sH}\ns_cselect_b32 s{sT0}, s{sB}, s{sA}\ns_sub_u32 s{sH}, s{sH}, 1")
        bodies, origin, pend, tags = [], [], list(seq), {}
        T = Asm(); C = Counter(T, "lgkmcnt", 14)
        upd = []
        for it in range(-1, 4):
            T.lines = []
            org = []
            steps = list(step) if it >= 0 else []
            for i in range(nm):
                g = it * nm + i
                if it >= 0:
                    assert all((it, f) not in pend for f in mfmas[i][1]), "operand read not issued before use"
                    C.wait(max(tags[(it, f)] for f in mfmas[i][1]))
                    T(mfmas[i][0])
                n0 = len(T.lines)
                if it >= 0:
                    for f, pre, tx in fixups:
                        for h in range(2):
                            at = first[f] - pre - 2 + h
                            if at % nm == i:
                                C.wait(tags[(it if at >= 0 else it + 1, f)]); T.extend(tx[2 * h: 2 * h + 2])
                    if i == nm - 3:
                        T(f"s_sub_u32 s{sCNT}, s{sCNT}, 1")
                    if i == bpos:
                        xs = [(it, f) for f in frags if f[0] == "X"]
                        assert all(x not in pend for x in xs)
                        C.wait(max(tags[x] for x in xs))
                        T("s_waitcnt vmcnt(0)\ns_barrier")
                if bpos + 3 <= i < nm - 3 and steps and len(T.lines) - n0 < 2 and all(u[0] > it for u in upd) and (it, order[-1]) not in pend:
                    T(steps.pop(0))
                nready = sum(1 for x in pend[:6] if ready[x] <= g)
                budget = (2 if nready > 1 or upd else 1) - (len(T.lines) - n0)
                while budget > 0:
                    if upd and (upd[0][0] <= it or not steps):
                        ui, ut = upd.pop(0)
                        assert it < 0 or (len(steps) == 0 if ui > it else len(steps) == len(step)), "address update uses the wrong slot step"
                        T(ut); budget -= 1
                        continue
                    if not (pend and ready[pend[0]] <= g):
                        break
                    x = pend[0]
                    k = part.get(x, 0)
                    tags[x] = C.issue(frags[x[1]][2][k])
                    org.append((x[0], T.lines[-1]))
                    part[x] = k + 1
                    budget -= 1
                    if k + 1 == len(frags[x[1]][2]):
                        pend.pop(0)
                        ar = frags[x[1]][1]
                        if lastuse[ar] == x[1]:
                            upd.append((x[0], f"v_add_u32 v{ar}, s{sT0}, v{ar}"))
                            org.append(upd[-1])
            assert it < 0 or not steps
            if it == -1:
                C.done = C.n
            bodies.append(list(T.lines)); origin.append(org)
        assert bodies[2] == bodies[3] and not upd, "loop body is not periodic"
        A.extend(step)
        A.extend([l for o, l in origin[2] if o == 2])
        A("s_waitcnt lgkmcnt(0)")
        for f, pre, tx in fixups:
            for h in range(2):
                if first[f] - pre - 2 + h < 0:
                    A.extend(tx[2 * h: 2 * h + 2])
        loop = self.lab("ml")
        A(f"s_mov_b32 s{sCNT}, {niter - 1}")
        A.label(loop)
        body = bodies[2]
        for key, pat in (("nomfma", "v_mfma"), ("notr", "ds_read_b64_tr"), ("nox", "ds_read_b128"), ("nobar", "s_barrier"), ("nowait", "s_waitcnt"), ("nocnd", "v_cndmask"), ("noupd", "v_add_u32")):
            if key in self.c.abl:
                body = [l for l in body if not l.startswith(pat)]
        A.extend(body)
        A(f"s_cbranch_scc0 {loop}")

    @staticmethod
    def fold_t(a, cs, mr, scale=True):
        o = [f"v_pk_fma_f32 {v(a+h,2)}, {v(cs+h,2)}, {v(mr,2)}, {v(a+h,2)} op_sel_hi:[1,0,1] neg_lo:[0,1,0] neg_hi:[0,1,0]" for h in (0, 2)]
        if scale:
            o += [f"v_pk_mul_f32 {v(a+h,2)}, {v(a+h,2)}, {v(mr,2)} op_sel:[0,1] op_sel_hi:[1,1]" for h in (0, 2)]
        return o

    @staticmethod
    def fold_v(a, csreg, mean4, rstd4):
        p, sel = csreg & ~1, csreg & 1
        o = [f"v_pk_fma_f32 {v(a+h,2)}, {v(mean4+h,2)}, {v(p,2)}, {v(a+h,2)} op_sel:[0,{sel},0] op_sel_hi:[1,{sel},1] neg_lo:[0,1,0] neg_hi:[0,1,0]" for h in (0, 2)]
        return o + [f"v_pk_mul_f32 {v(a+h,2)}, {v(a+h,2)}, {v(rstd4+h,2)}" for h in (0, 2)]

    @staticmethod
    def pack(d, a):
        o = [f"v_cvt_pk_bf16_f32 v{d}, v{a}, v{a+1}", f"v_cvt_pk_bf16_f32 v{d+1}, v{a+2}, v{a+3}"]
        return o[::-1] if d == a + 2 else o

    def compute_h(self):
        A, c = self.A, self.c
        vWa, vX0, vX1 = 8, 14, 15
        XF, WF, ACC, ACS, ONE, RS = 24, 56, 80, 176, 188, 192
        self.srds_compute()
        self.row_stats_load("h", RS)
        self.code_prefetch(self.tag)
        self.warm_compute()
        A(f"s_lshr_b32 s{sT3}, s{sW}, 1\ns_mul_i32 s{sT3}, s{sT3}, 6")
        A("v_bfe_u32 v2, v0, 2, 3\nv_lshrrev_b32 v3, 5, v0\nv_lshl_add_u32 v3, v3, 4, v2\nv_mul_u32_u24 v3, 384, v3")
        A("v_and_b32 v4, 3, v0\nv_lshl_add_u32 v3, v4, 3, v3\nv_lshrrev_b32 v2, 1, v2")
        for t in range(6):
            A(f"s_add_u32 s{sT2}, s{sT3}, {t}\nv_xor_b32 v4, s{sT2}, v2\nv_lshl_add_u32 v{vWa+t}, v4, 5, v3")
        A(f"s_and_b32 s{sT0}, s{sW}, 1\ns_lshl_b32 s{sT0}, s{sT0}, 13\ns_add_u32 s{sT0}, s{sT0}, {2*H_WH}")
        self.xfrag_addr(vX0, vX1, sT0, 2)
        for i in range(96):
            A(f"v_mov_b32 v{ACC+i}, 0")
        A(f"v_lshrrev_b32 v2, 4, v0\ns_lshr_b32 s{sT2}, s{sW}, 1\ns_mul_i32 s{sT1}, s{sT2}, 384\ns_add_u32 s{sT1}, s{sT1}, {MISC + CS_OFF}\nv_lshl_add_u32 v16, v2, 4, s{sT1}")
        A(f"v_and_b32 v2, 15, v0\ns_and_b32 s{sT0}, s{sW}, 1\ns_lshl_b32 s{sT1}, s{sT0}, 8\ns_add_u32 s{sT1}, s{sT1}, {MISC}\nv_lshl_add_u32 v17, v2, 2, s{sT1}")
        A(f"v_lshlrev_b32 v18, 4, v0\nv_add_u32 v19, 4096, v18")
        A(f"s_lshl1_add_u32 s{sT0}, s{sRB}, s{sT0}\ns_mul_i32 s{sT0}, s{sT0}, {H_BLK}")
        A(f"s_mul_i32 s{sT1}, s{sJ}, 6\ns_mul_i32 s{sT2}, s{sT2}, 3\ns_add_u32 s{sT1}, s{sT1}, s{sT2}")
        for pr, d in enumerate([sC, sD, sE]):
            A(f"s_add_u32 s{sT2}, s{sT1}, {pr}\ns_lshr_b32 s{sT3}, s{sT2}, 1\ns_lshl_b32 s{sT3}, s{sT3}, 13\ns_and_b32 s{sT2}, s{sT2}, 1\ns_lshl_b32 s{sT2}, s{sT2}, 10")
            A(f"s_add_u32 s{d}, s{sT0}, s{sT3}\ns_add_u32 s{d}, s{d}, s{sT2}")
        A(f"v_mov_b32 v2, {MISC + CTR_OFF}\nv_mov_b32 v3, 0\nds_write_b32 v2, v3")
        self.row_stats_finish(RS)
        A(f"s_mov_b32 s{sA}, {-H_SLOT}\ns_mov_b32 s{sB}, {2*H_SLOT}\ns_mov_b32 s{sH}, 0")
        A("s_waitcnt lgkmcnt(0)\ns_barrier")
        self.stamp(1)
        mf, fr = [], {}
        for st in range(2):
            xa = vX1 if st else vX0
            for i in range(4):
                fr[("X", st, i)] = (("X", st, i), xa, [f"ds_read_b128 {v(XF+16*st+4*i,4)}, v{xa} offset:{2048*i}"])
            for t in range(6):
                fr[("W", st, t)] = (("W", t), vWa + t, [f"ds_read_b64_tr_b16 {v(WF+4*t+2*hf,2)}, v{vWa+t} offset:{H_WH*(1-st)+8*384*hf}" for hf in range(2)])
                for i in range(4):
                    a = v(ACC + 4 * (6 * i + t), 4)
                    mf.append((f"{MF} {a}, {v(WF+4*t,4)}, {v(XF+16*st+4*i,4)}, {a}", [("W", st, t), ("X", st, i)]))
        self.mfma_loop("h", mf, fr, [], 10)
        self.stamp(2)
        MR, CS = 216, 176
        for i in range(4):
            A(f"ds_read2_b32 {v(MR+2*i,2)}, v17 offset0:{16*i} offset1:{16*i+144}")
        C = Counter(A, "lgkmcnt", 14)
        tc = [C.issue(f"ds_read_b128 {v(CS+4*t,4)}, v16 offset:{64*t}") for t in range(6)]
        st_mod = "" if c.split else c.st_mod
        for pr in range(3):
            C.wait(tc[2 * pr + 1])
            for i in range(4):
                o = 224 + 4 * ((4 * pr + i) % 6)
                for tt in range(2):
                    t = 2 * pr + tt
                    a = ACC + 4 * (6 * i + t)
                    A.extend(self.fold_t(a, CS + 4 * t, MR + 2 * i) + self.pack(o + 2 * tt, a))
                for r in range(4):
                    A(f"v_pk_max_i16 v{o+r}, v{o+r}, 0")
                A(f"buffer_store_dwordx4 {v(o,4)}, v{19 if i >= 2 else 18}, {s(WS_,4)}, s{[sC,sD,sE][pr]} offen offset:{2048*(i&1)}{st_mod}")
        self.stamp(3)
        self.publish_now("h")

    def compute_q(self):
        A, c = self.A, self.c
        vW, vX0, vX1, vH0, vH1 = 1, 2, 3, 4, 5
        BC, BP, AC, AP, ONE, vT = 8, 12, 20, 22, 28, 29
        XF, WF, AQ, AK, AV, AH = 36, 60, 120, 160, 200, 240
        RS = 60
        so = [8, 9, 12, 13, 14]
        self.srds_compute()
        self.row_stats_load("q", RS)
        self.code_prefetch(self.tag)
        self.warm_compute()
        self.init_flags()
        A(f"v_lshrrev_b32 v6, 4, v0\nv_and_b32 v7, 15, v0\nv_cmp_le_u32 {s(mG1,2)}, 1, v6\nv_cmp_le_u32 {s(mG2,2)}, 2, v6\nv_cmp_le_u32 {s(mG3,2)}, 3, v6")
        A(f"s_or_b32 s{sT3}, s{sRB}, s{sW}\ns_cmp_eq_u32 s{sT3}, 0\ns_cselect_b64 {s(sC,2)}, 0, -1")
        A(f"v_mov_b32 v40, 0xf149f2ca\nv_mov_b32 v41, 0\nv_mov_b32 v42, 0xffff\nv_mov_b32 v43, 0xffff0000")
        for k in range(6):
            A(f"v_mov_b32 v{AC+k}, 0")
        for r in range(4):
            A(f"v_lshl_add_u32 v44, v6, 2, {r}\nv_sub_u32 v45, v7, v44\nv_and_b32 v46, 0x80000001, v45\nv_cmp_eq_u32 vcc, 0, v46")
            A(f"v_cndmask_b32 v{BC+r}, v40, v41, vcc\nv_cndmask_b32 v47, v41, v{42+(r&1)}, vcc\nv_or_b32 v{AC+(r>>1)}, v{AC+(r>>1)}, v47")
            A(f"v_cmp_eq_u32 vcc, 0x80000000, v46")
            A(f"v_cndmask_b32 v{BP+4+r}, v40, v41, vcc\nv_cndmask_b32 v47, v41, v{42+(r&1)}, vcc\nv_or_b32 v{AP+2+(r>>1)}, v{AP+2+(r>>1)}, v47")
            A(f"s_and_b64 vcc, vcc, {s(sC,2)}")
            A(f"v_cndmask_b32 v{BP+r}, v40, v41, vcc\nv_cndmask_b32 v47, v41, v{42+(r&1)}, vcc\nv_or_b32 v{AP+(r>>1)}, v{AP+(r>>1)}, v47")
        A(f"v_mov_b32 v{ONE}, 0x3f803f80")
        A(f"s_lshl_b32 s{sT0}, s{sW}, 7\ns_add_u32 s{sT0}, s{sT0}, {MISC + 64}\ns_mov_b32 s{sT1}, {MISC}\ns_mov_b32 s{sT2}, {MISC + CS_OFF}")
        A(f"v_lshl_add_u32 v{vT}, v7, 2, s{sT0}\nv_lshl_add_u32 v{vT+1}, v7, 2, s{sT1}\nv_lshl_add_u32 v{vT+2}, v6, 4, s{sT0}\nv_lshl_add_u32 v{vT+3}, v6, 4, s{sT1}")
        A(f"v_lshl_add_u32 v{vT+4}, v6, 4, s{sT2}\nv_lshl_add_u32 v{vT+5}, v7, 2, s{sT2}")
        A(f"s_mul_i32 s{sT0}, s{sW}, 5120\ns_add_u32 s{sT0}, s{sT0}, {16*K}\nv_lshl_add_u32 v26, v0, 4, s{sT0}\nv_lshl_add_u32 v35, v0, 3, s{sT0}\nv_lshlrev_b32 v27, 3, v0")
        A(f"s_lshr_b32 s{sT0}, s{sW}, 1\ns_lshl1_add_u32 s{sT0}, s{sRB}, s{sT0}\ns_mul_i32 s{sT0}, s{sT0}, {O_BLK}\ns_and_b32 s{sT1}, s{sW}, 1\ns_lshl_b32 s{sT1}, s{sT1}, 12")
        A(f"s_add_u32 s{sT0}, s{sT0}, s{sT1}\ns_add_u32 s{sT0}, s{sT0}, {O_BASE}\ns_mul_i32 s{sT1}, s{sJ}, 5")
        for t in range(5):
            A(f"s_add_u32 s{sT2}, s{sT1}, {t}\ns_lshr_b32 s{sT3}, s{sT2}, 2\ns_lshl_b32 s{sT3}, s{sT3}, 13\ns_and_b32 s{sT2}, s{sT2}, 3\ns_lshl_b32 s{sT2}, s{sT2}, 9")
            A(f"s_add_u32 s{so[t]}, s{sT0}, s{sT3}\ns_add_u32 s{so[t]}, s{so[t]}, s{sT2}")
        A(f"v_bfe_u32 v6, v0, 2, 3\nv_lshrrev_b32 v7, 5, v0\nv_lshl_add_u32 v6, v7, 4, v6\nv_mul_u32_u24 v6, 480, v6\nv_and_b32 v7, 3, v0\nv_lshl_add_u32 v{vW}, v7, 3, v6")
        A(f"s_lshl_b32 s{sT0}, s{sW}, 12\ns_add_u32 s{sT0}, s{sT0}, {2*Q_WH + 2048}")
        self.xfrag_addr(vX0, vX1, sT0, 6)
        A(f"s_mov_b32 s{sT0}, {2*Q_WH}")
        self.xfrag_addr(vH0, vH1, sT0, 6)
        for i in range(AQ, 256):
            A(f"v_mov_b32 v{i}, 0")
        A(f"v_lshlrev_b32 v6, 2, v0\nv_add_u32 v6, {MISC + CTR_OFF}, v6\nv_mov_b32 v7, 0\nds_write_b32 v6, v7")
        self.row_stats_finish(RS)
        A(f"s_mov_b32 s{sA}, {Q_SLOT}\ns_mov_b32 s{sB}, {-2*Q_SLOT}\ns_mov_b32 s{sH}, 0")
        A("s_waitcnt lgkmcnt(0)\ns_barrier")
        self.stamp(1)
        lw = [self.lab("qw") for _ in range(4)]
        le1 = self.lab("e1")
        A(f"s_cmp_eq_u32 s{sW}, 1\ns_cbranch_scc1 {lw[1]}\ns_cmp_eq_u32 s{sW}, 2\ns_cbranch_scc1 {lw[2]}\ns_cmp_eq_u32 s{sW}, 3\ns_cbranch_scc1 {lw[3]}")
        accq = lambda t, p: (AQ + 20 * p + 4 * t) if t < 5 else (AK + 20 * p + 4 * (t - 5)) if t < 10 else (AV + 8 * (t - 10) + 4 * p)
        halo = [[t for t in range(5, 15) if (t - 5) % 4 == w] for w in range(4)]
        for w in range(4):
            A.label(lw[w])
            mf, fr, fix = [], {}, []
            for st in range(2):
                for i in range(3):
                    xa = [vH0, vH1][st] if i == 2 else [vX0, vX1][st]
                    fr[("X", st, i)] = (("X", st, i), xa, [f"ds_read_b128 {v(XF+12*st+4*i,4)}, v{xa} offset:{2048*i if i < 2 else 0}"])
                for t in range(15):
                    fr[("W", st, t)] = (("W", t), vW, [f"ds_read_b64_tr_b16 {v(WF+4*t+2*hf,2)}, v{vW} offset:{Q_WH*(1-st)+8*480*hf+32*t}" for hf in range(2)])
                    for i in [0, 1] + ([2] if t in halo[w] else []):
                        a = v(accq(t, i) if i < 2 else AH + 4 * halo[w].index(t), 4)
                        wf, xf = v(WF + 4 * t, 4), v(XF + 12 * st + 4 * i, 4)
                        ops = f"{wf}, {xf}" if t < 10 else f"{xf}, {wf}"
                        mf.append((f"{MF} {a}, {ops}, {a}", [("W", st, t), ("X", st, i)]))
            self.mfma_loop("q", mf, fr, fix, 10)
            if w < 3:
                A(f"s_branch {le1}")
        A.label(le1)
        self.stamp(2); self.estamp(1)
        MR, VM, CSK, CSV, CSQ = 36, 42, 66, 86, 92
        XB = 16 * K
        A("s_waitcnt lgkmcnt(0)")
        A(f"ds_read2_b32 {v(MR,2)}, v{vT} offset0:0 offset1:144\nds_read2_b32 {v(MR+2,2)}, v{vT} offset0:16 offset1:160\nds_read2_b32 {v(MR+4,2)}, v{vT+1} offset0:0 offset1:144")
        for i in range(3):
            ad, off = (vT + 2, 64 * i) if i < 2 else (vT + 3, 0)
            A(f"ds_read_b128 {v(VM+8*i,4)}, v{ad} offset:{off}\nds_read_b128 {v(VM+8*i+4,4)}, v{ad} offset:{off + ST_RSTD}")
        A(f"v_lshlrev_b32 v7, 3, v0\nv_add_u32 v6, {XB}, v7\nv_add_u32 v7, v6, v7")
        self.estamp(2)
        C = Counter(A, "lgkmcnt", 14)
        C.n = 9
        t_ck = [C.issue(f"ds_read_b128 {v(CSK+4*t,4)}, v{vT+4} offset:{64*(5+t)}") for t in range(5)]
        t_cv = [C.issue(f"ds_read_b32 v{CSV+t}, v{vT+5} offset:{64*(10+t)}") for t in range(5)]
        KC = lambda p: AK + 10 * p
        KP = AK + 20
        foldk = lambda p, t: self.fold_t(AK + 20 * p + 4 * t, CSK + 4 * t, MR + 2 * p) + self.pack(KC(p) + 2 * t, AK + 20 * p + 4 * t)
        def foldv(p, t):
            a = AV + 8 * t + 4 * p
            return self.fold_v(a, CSV + t, VM + 8 * p, VM + 8 * p + 4) + self.pack(AV + 8 * t + 4 + 2 * p, a)
        for t in range(5):
            C.wait(t_ck[t])
            A.extend(foldk(0, t))
        t_cq = [C.issue(f"ds_read_b128 {v(CSQ+4*t,4)}, v{vT+4} offset:{64*t}") for t in range(5)]
        wr = {}
        wr["k"] = [f"ds_write_b128 v26, {v(KC(1),4)} offset:5120", f"ds_write_b128 v26, {v(KC(1)+4,4)} offset:6144", f"ds_write_b64 v35, {v(KC(1)+8,2)} offset:7168"]
        lh = [self.lab("hw") for _ in range(5)]
        for t in range(5):
            A.extend(foldk(1, t))
        A(f"s_waitcnt lgkmcnt(0)\ns_cmp_eq_u32 s{sW}, 1\ns_cbranch_scc1 {lh[1]}\ns_cmp_eq_u32 s{sW}, 2\ns_cbranch_scc1 {lh[2]}\ns_cmp_eq_u32 s{sW}, 3\ns_cbranch_scc1 {lh[3]}")
        for w in range(4):
            A.label(lh[w])
            blocks = []
            for t in halo[w]:
                a = AH + 4 * halo[w].index(t)
                if 5 <= t < 10:
                    k = t - 5
                    blocks.append(self.fold_t(a, CSK + 4 * k, MR + 4) + self.pack(a, a) +
                                  [f"ds_write_b64 v7, {v(a,2)} offset:{K*(k>>1)+8*(k&1)}" if k < 4 else f"ds_write_b64 v6, {v(a,2)} offset:2048"])
                elif t >= 10:
                    k = t - 10
                    blocks.append(self.fold_v(a, CSV + k, VM + 16, VM + 20) + self.pack(a, a) + [f"ds_write_b64 v6, {v(a,2)} offset:{2560+512*k}"])
            for t in range(5):
                blocks.append(foldv(1, t) + ([f"ds_write_b64 v35, {v(AV+8*t+6,2)} offset:{5120+2560+512*t}"] if w < 3 else []))
            seq = sum(blocks, [])
            A.extend(weave(seq, wr["k"] if w < 3 else [], 14, 1))
            if w < 3:
                A(f"s_branch {lh[4]}")
        A.label(lh[4])
        for t in range(5):
            A.extend(foldv(0, t))
        A(f"s_mov_b32 s{sT0}, 0x3ea52b5c\nv_mul_f32 v{MR+1}, s{sT0}, v{MR+1}\nv_mul_f32 v{MR+3}, s{sT0}, v{MR+3}")
        QH = lambda p, h: 42 + 16 * p + 4 * h
        masks = [None, mG1, mG2, mG3]
        def foldq(p):
            o = []
            for t in range(5):
                a = AQ + 20 * p + 4 * t
                d = QH(p, 0) if t == 0 else (QH(p, 3) + 2 if t == 4 else a)
                o += self.fold_t(a, CSQ + 4 * t, MR + 2 * p, scale=False) + self.pack(d, a)
                if 1 <= t <= 3:
                    for r in range(2):
                        o += [f"v_cndmask_b32 v{QH(p,t)+r}, 0, v{a+r}, {s(masks[t],2)}", f"v_cndmask_b32 v{QH(p,t-1)+2+r}, v{a+r}, 0, {s(masks[t],2)}"]
            return o
        A(f"v_mov_b32 v1, {MISC + XFL_OFF}\nv_mov_b32 v2, 1\nv_mov_b32 v3, 4\ns_lshl_b32 s{sT0}, s{sW}, 2\nv_add_u32 v4, s{sT0}, v1")
        A(f"s_waitcnt lgkmcnt(0)\ns_mov_b64 exec, 1\nds_add_u32 v1, v2\nds_write_b32 v4, v3 offset:4\ns_mov_b64 exec, -1")
        A.extend(foldq(1))
        self.estamp(3)
        A("ds_read_b32 v5, v4")
        SP = lambda p, h: (140 + 8 * h if h < 2 else 240 + 8 * (h - 2)) if p else 74 + 8 * h
        MX, MRS, ONE4 = 106, 114, 116
        def qk(p):
            prev = KC(0) if p else KP
            return [f"{MF} {v(SP(p,h)+4,4)}, {v(KC(p)+2*h,4)}, {v(QH(p,h),4)}, {v(BC,4)}" for h in range(4)] + \
                   [f"{MF} {v(SP(p,h),4)}, {v(prev+2*h,4)}, {v(QH(p,h),4)}, {v(BP+4*p,4)}" for h in range(4)]
        def rowmax(p):
            o, m = [], MX + 4 * p
            for h in range(4):
                b = SP(p, h)
                o += [f"v_max_f32 v{b+4+r}, v{b+r}, v{b+4+r}" for r in range(4)]
                o += [f"v_max3_f32 v{m+h}, v{b+4}, v{b+5}, v{b+6}", f"v_max_f32 v{m+h}, v{m+h}, v{b+7}"]
            o += lines(f"v_permlane32_swap_b32 v{m}, v{m+1}\nv_permlane32_swap_b32 v{m+2}, v{m+3}\nv_max_f32 v{m}, v{m}, v{m+1}\nv_max_f32 v{m+2}, v{m+2}, v{m+3}")
            o += lines(f"v_permlane16_swap_b32 v{m}, v{m+2}\nv_max_f32 v{m}, v{m}, v{m+2}\nv_mul_f32 v{m}, v{m}, v{MR+2*p+1}\nv_mov_b32 v{m+2}, v{m}\nv_permlane16_swap_b32 v{m}, v{m+2}")
            o += lines(f"v_mov_b32 v{m+1}, v{m}\nv_mov_b32 v{m+3}, v{m+2}\nv_permlane32_swap_b32 v{m}, v{m+1}\nv_permlane32_swap_b32 v{m+2}, v{m+3}")
            return o
        def probs(p):
            o = []
            for h in range(4):
                b, m = SP(p, h), MX + 4 * p + h
                o += [f"v_pk_fma_f32 {v(b+4+r,2)}, {v(b+4+r,2)}, {v(MR+2*p,2)}, {v(m & ~1,2)} op_sel:[0,1,{m&1}] op_sel_hi:[1,1,{m&1}] neg_lo:[0,0,1] neg_hi:[0,0,1]" for r in (0, 2)]
                o += [f"v_exp_f32 v{b+4+r}, v{b+4+r}" for r in range(4)]
            for h in range(4):
                b = SP(p, h)
                o += self.pack(b + 4, b + 4)
                o += lines(f"v_and_b32 v{b}, v{AP+2*p}, v{b+4}\nv_and_b32 v{b+1}, v{AP+2*p+1}, v{b+5}\nv_and_b32 v{b+2}, v{AC}, v{b+4}\nv_and_b32 v{b+3}, v{AC+1}, v{b+5}")
            return o
        OT = {}
        pool = {1: list(range(42, 74, 4)), 0: list(range(160, 192, 4))}
        def pv(p):
            o = [f"{MF} {v(SP(p,h)+4,4)}, {v(ONE4,4)}, {v(SP(p,h),4)}, 0" for h in range(4)]
            for t in range(5):
                for h in ([t - 1] if t >= 1 else []) + ([t] if t <= 3 else []):
                    OT[(p, t, h)] = pool[p].pop(0)
                    o.append(f"{MF} {v(OT[(p,t,h)],4)}, {v(AV+8*t+2+2*p,4)}, {v(SP(p,h),4)}, 0")
            return o
        st_mod = "" if c.split else c.st_mod
        def final(p):
            m0 = MX + 4 * p
            o = [f"v_rcp_f32 v{m0+h}, v{SP(p,h)+4}" for h in range(4)]
            for t in range(5):
                if 1 <= t <= 3:
                    a, b2 = OT[(p, t, t - 1)], OT[(p, t, t)]
                    o += [f"v_cndmask_b32 v{a+r}, v{a+r}, v{b2+r}, {s(masks[t],2)}" for r in range(4)]
                    o.append(f"v_cndmask_b32 v{b2}, v{m0+t-1}, v{m0+t}, {s(masks[t],2)}")
                    m = b2
                else:
                    a, m = OT[(p, t, min(t, 3))], m0 + min(t, 3)
                o += [f"v_pk_mul_f32 {v(a+r,2)}, {v(a+r,2)}, {v(m & ~1,2)} op_sel:[0,{m&1}] op_sel_hi:[1,{m&1}]" for r in (0, 2)]
                o += self.pack(a, a)
                o.append(f"buffer_store_dwordx2 {v(a,2)}, v27, {s(WS_,4)}, s{so[t]} offen offset:{2048*p}{st_mod}")
            return o
        A.extend(weave(foldq(0), qk(1), 3, 1))
        lx, ly = self.lab("xs"), self.lab("xd")
        A(f"s_waitcnt lgkmcnt(0)\nv_cmp_gt_u32 vcc, 4, v5\ns_cbranch_vccz {ly}\ns_mov_b32 s{sT1}, {SPIN_LIMIT}")
        A.label(lx)
        A(f"ds_read_b32 v5, v4\ns_waitcnt lgkmcnt(0)\nv_cmp_gt_u32 vcc, 4, v5\ns_cbranch_vccz {ly}\ns_sub_u32 s{sT1}, s{sT1}, 1\ns_cbranch_scc0 {lx}")
        A.label(ly)
        self.estamp(4)
        A(f"ds_read_b128 {v(KP,4)}, v26\nds_read_b128 {v(KP+4,4)}, v26 offset:1024\nds_read_b64 {v(KP+8,2)}, v35 offset:2048")
        for t in range(5):
            A(f"ds_read_b64 {v(AV+8*t+2,2)}, v35 offset:{2560+512*t}")
        A.extend([f"v_mov_b32 v{ONE4+r}, v{ONE}" for r in range(4)] + rowmax(1))
        self.estamp(5)
        A("s_waitcnt lgkmcnt(0)")
        A.extend(weave(probs(1), qk(0), 3, 1))
        A.extend(weave(rowmax(0) + probs(0), pv(1), 3, 2))
        self.estamp(6)
        A.extend(weave(final(1), pv(0), 3, 2))
        A.extend(final(0))
        self.stamp(3); self.estamp(7)
        if not (c.phase2 and c.pubq):
            self.publish_now("q")

    @staticmethod
    def p2geom(role):
        if role == "q":
            return dict(N=64, nW=2, w=[x * K for x in (64, 72, 80, 88, 112, 120, 128, 136)], wbase=[64 * K, 112 * K],
                        a=[x * K for x in (144, 48, 56, 96, 104, 40)], abase=[40 * K, 96 * K])
        return dict(N=96, nW=3, w=[x * K for x in (144, 132, 120, 108, 96, 84, 72, 60)], wbase=[60 * K, 108 * K],
                    a=[x * K for x in (52, 44, 36, 28, 20, 12)], abase=[12 * K, 160 * K])

    RW = 8
    P2W, P2A, P2F, P2L, STG = 48, 51, 52, 56, 64
    sPW, sPA, sPM, sPN, sPB, sBW, sOWN, sOTH = 4, 5, 6, 7, 8, 11, 16, 17
    SEG = {0: (12, 1), 12: (12, 0), 24: (5, 1), 29: (5, 0)}

    def p2_colbytes(self, N):
        if N == 64:
            self.A(f"s_lshl_b32 s{sCOL}, s{sCOL}, 7\ns_add_u32 s{sCOL}, s{sCOL}, 768")
        else:
            self.A(f"s_mul_i32 s{sCOL}, s{sCOL}, 192")

    def p2_loader_setup(self, role):
        A, g = self.A, self.p2geom(role)
        self.wnext = 0
        if not self.c.phase2:
            return
        self.p2_colbytes(g["N"])
        if role == "q":
            A(f"v_lshrrev_b32 v2, 3, v0\nv_and_b32 v3, 6, v2\nv_and_b32 v4, 7, v0\nv_xor_b32 v3, v3, v4\nv_mul_u32_u24 v2, 1280, v2\nv_lshl_add_u32 v2, v3, 4, v2")
            A(f"s_mul_i32 s{sT0}, s{sW}, {16*1280}\ns_add_u32 s{sT0}, s{sT0}, s{sCOL}\nv_add_u32 v{self.P2W}, s{sT0}, v2\nv_add_u32 v{self.P2W+1}, {8*1280-K}, v{self.P2W}")
        else:
            for i in range(3):
                A(f"s_mul_i32 s{sT0}, s{sW}, 192\ns_add_u32 s{sT0}, s{sT0}, {64*i}\nv_add_u32 v2, s{sT0}, v0")
                A("v_mul_u32_u24 v3, 5462, v2\nv_lshrrev_b32 v3, 16, v3\nv_mul_u32_u24 v4, 12, v3\nv_sub_u32 v2, v2, v4")
                A("v_lshrrev_b32 v4, 1, v3\nv_and_b32 v4, 2, v4\nv_xor_b32 v2, v2, v4\nv_mul_u32_u24 v3, 1280, v3\nv_lshl_add_u32 v2, v2, 4, v3")
                A(f"s_sub_u32 s{sT0}, s{sCOL}, {K*i}\nv_add_u32 v{self.P2W+i}, s{sT0}, v2")
        A(f"s_lshl_b32 s{self.sPN}, s{sW}, 11\nv_lshl_add_u32 v{self.P2A}, v0, 4, s{self.sPN}")
        A(f"s_lshr_b32 s{self.sOWN}, s{sJ}, 2\ns_xor_b32 s{self.sOTH}, s{self.sOWN}, 1\ns_lshl_b32 s{sT0}, s{sRB}, 9\ns_add_u32 s{sT0}, s{sT0}, {FLAG_BASE}")
        A(f"s_lshl_b32 s{sT1}, s{self.sOTH}, 7\ns_add_u32 s{sT1}, s{sT1}, s{sT0}\nv_mov_b32 v{self.P2F}, s{sT1}\nv_xor_b32 v{self.P2F+1}, 128, v{self.P2F}")
        A(f"s_mul_i32 s{self.sPM}, s{sW}, {K*g['nW']}")
        A(f"v_lshl_add_u32 v2, v0, 4, s{self.sPM}\nv_add_u32 v{self.P2L}, {g['wbase'][0]}, v2\nv_add_u32 v{self.P2L+1}, {g['wbase'][1]}, v2")

    def p2_prep_w(self, cw):
        A = self.A
        lim = 12 if cw < 24 else 5
        if cw in self.SEG:
            A(f"s_mov_b32 s{self.sPW}, s{sROT2 if cw < 24 else sROT3}\ns_mul_i32 s{self.sBW}, s{self.sOTH if self.SEG[cw][1] else self.sOWN}, {lim}")
        A(f"s_cmp_ge_u32 s{self.sPW}, {lim}\ns_cselect_b32 s{sT2}, {lim}, 0\ns_sub_u32 s{self.sPW}, s{self.sPW}, s{sT2}\ns_add_u32 s{sT2}, s{self.sPW}, s{self.sBW}\ns_mul_i32 s{sT2}, s{sT2}, {64*1280}\ns_add_u32 s{self.sPW}, s{self.sPW}, 1")

    def p2_issue_w(self, role, cw, C=None):
        A, g = self.A, self.p2geom(role)
        emit = (C.issue if C else A)
        if self.RW <= cw < self.RW + self.c.stage[role] and not self.c.split:
            for i in range(g["nW"]):
                tag = emit(f"buffer_load_dwordx4 {v(self.STG + 4*(g['nW']*(cw-self.RW)+i),4)}, v{self.P2W+i}, {s(W2_,4)}, s{sT2} offen offset:{K*i}")
            return tag
        A(f"s_add_u32 m0, s{self.sPM}, {g['w'][cw % self.RW]}")
        for i in range(g["nW"]):
            tag = emit(f"buffer_load_dwordx4 v{self.P2W+i}, {s(W2_ if cw < 24 else WO_,4)}, s{sT2} offen offset:{K*i} lds")
        return tag

    def p2_prep_a(self, ca):
        A = self.A
        lim = 12 if ca < 24 else 5
        if ca in self.SEG:
            A(f"s_mov_b32 s{self.sPA}, s{sROT2 if ca < 24 else sROT3}\ns_mul_i32 s{self.sPB}, s{sBLK}, {H_BLK if ca < 24 else O_BLK}\ns_mul_i32 s{sT3}, s{self.sOTH if self.SEG[ca][1] else self.sOWN}, {8192*lim}")
            A(f"s_add_u32 s{self.sPB}, s{self.sPB}, s{sT3}\ns_add_u32 s{self.sPB}, s{self.sPB}, {H_BASE if ca < 24 else O_BASE}")
        A(f"s_cmp_ge_u32 s{self.sPA}, {lim}\ns_cselect_b32 s{sT3}, {lim}, 0\ns_sub_u32 s{self.sPA}, s{self.sPA}, s{sT3}\ns_lshl_b32 s{sT3}, s{self.sPA}, 13\ns_add_u32 s{sT3}, s{sT3}, s{self.sPB}\ns_add_u32 s{self.sPA}, s{self.sPA}, 1")

    def p2_issue_a(self, role, ca, C, set_m0=True):
        A, g = self.A, self.p2geom(role)
        if set_m0:
            A(f"s_add_u32 m0, s{self.sPN}, {g['a'][ca % len(g['a'])]}")
        mod = "" if self.c.split else self.c.ld_mod
        for i in range(2):
            tag = C.issue(f"buffer_load_dwordx4 v{self.P2A}, {s(WS_,4)}, s{sT3} offen offset:{K*i}{mod} lds")
        return tag

    def p2_prefetch(self, role, upto):
        k = 0
        while self.wnext < upto:
            self.p2_prep_w(self.wnext)
            self.p2_issue_w(role, self.wnext)
            self.wnext += 1
            k += self.p2geom(role)["nW"]
        return k

    def p2_loader(self, role, pending):
        A, g, c = self.A, self.p2geom(role), self.c
        C = Counter(A, "vmcnt", 62)
        RW, RA, nW = self.RW, len(g["a"]), g["nW"]
        tw, ta = {}, {}
        vR = self.P2F + 2
        SE = RW if c.split else RW + c.stage[role]
        warm = sum((self.warm_row(WO_, 14, 15, r) for r in range(5)), []) if (c.warm and not c.split) else []
        def next_w():
            nonlocal warm
            cw = self.wnext
            self.p2_prep_w(cw); tw[cw] = self.p2_issue_w(role, cw, C)
            self.wnext += 1
            A.extend(warm[:5]); warm = warm[5:]
        def first_a():
            if not c.split:
                C.wait(C.issue(f"buffer_load_dword v{vR}, v{self.P2F}, {s(WS_,4)}, 0 offen{COH}"))
                self.check(vR, self.P2F, WS_, 4)
                self.trace(11)
                self.stamp(3)
            for ca in range(RA):
                self.p2_prep_a(ca); ta[ca] = self.p2_issue_a(role, ca, C)
        C.n = pending
        for cw in range(self.wnext):
            tw[cw] = max(0, pending - nW * (self.wnext - 1 - cw))
        if c.split:
            next_w(); first_a()
            while self.wnext < RW:
                next_w()
        else:
            while self.wnext < RW:
                next_w()
            if role == "q":
                first_a()
            while self.wnext < min(SE, RW + c.nreg0[role]):
                next_w()
            if role == "h":
                first_a()
            A.extend(warm)
        pollt = None
        for ch in range(34):
            ca, cw = ch - 2 + RA, ch - 2 + RW
            do_a, do_w = ch >= 2 and ca < 34, ch >= 2 and cw < 34
            staged = do_w and cw < SE
            if do_a:
                self.p2_prep_a(ca)
            if do_w and not staged:
                self.p2_prep_w(cw)
            if do_a:
                A(f"s_add_u32 m0, s{self.sPN}, {g['a'][ca % RA]}")
            C.wait(max(ta[ch], tw[ch], tw[cw] if staged else 0))
            if RW <= ch < SE:
                A(f"s_waitcnt lgkmcnt({nW * sum(1 for e in range(ch - 4, ch) if e + RW - 2 < SE)})")
            A("s_barrier")
            self.trace(12 + ch)
            if ca in (12, 24, 29) and not c.split:
                if ca == 24:
                    self.stamp(4)
                C.wait(pollt)
                self.check(vR, self.P2F + 1 - self.SEG[ca][1], WS_, 4, 256 * (ca >= 24))
                if ca == 24:
                    self.stamp(5)
            if ca + 2 in (12, 24, 29) and not c.split:
                pollt = C.issue(f"buffer_load_dword v{vR}, v{self.P2F + 1 - self.SEG[ca+2][1]}, {s(WS_,4)}, 0 offen offset:{256 * (ca + 2 >= 24)}{COH}")
            wr = []
            if staged:
                wb = 1 if g["w"][cw % RW] >= g["wbase"][1] else 0
                wr = [f"ds_write_b128 v{self.P2L+wb}, {v(self.STG + 4*(nW*(cw-RW)+i),4)} offset:{g['w'][cw % RW] - g['wbase'][wb] + K*i}" for i in range(nW)]
                if "nowr" in c.abl:
                    wr = []
            if wr and c.comp:
                l1, l2 = self.lab("cw"), self.lab("cx")
                A(f"s_bitcmp1_b32 s{sW}, 1\ns_cbranch_scc0 {l1}")
                A.extend(wr)
                A.label(l1)
            if do_a:
                m = len(A.lines)
                ta[ca] = self.p2_issue_a(role, ca, C, c.trace)
                if "noa" in c.abl:
                    A.lines[m:] = [l.replace("s63 offen", "s63 offen").replace(s(WS_, 4), s(DBG_, 4)) for l in A.lines[m:]]
            if wr and c.comp:
                A(f"s_cbranch_scc1 {l2}".replace("scc1", "scc1"))
                A.lines.insert(len(A.lines) - 1, f"s_bitcmp1_b32 s{sW}, 1")
                A.extend(wr)
                A.label(l2)
            elif wr:
                A.extend(wr)
            if staged:
                pass
            elif do_w:
                tw[cw] = self.p2_issue_w(role, cw, C)
            if self.wnext < SE:
                next_w()
        self.stamp(6)

    def p2_compute(self, role):
        A, g, c = self.A, self.p2geom(role), self.c
        N = g["N"]; NT = N // 32; RB = 2 * N
        vWa, vB, vO, vRow = 8, 160, 162, 6
        ACC, FB, FW, XR = 16, 40, 72, 120
        self.p2_colbytes(N)
        A(f"s_and_b32 s{sT0}, s{sW}, 1\ns_lshl1_add_u32 s{sT0}, s{sBLK}, s{sT0}\ns_mul_i32 s{sT0}, s{sT0}, {32*1280}\ns_add_u32 s{sT0}, s{sT0}, s{sCOL}")
        A(f"s_lshr_b32 s{sT1}, s{sW}, 1\ns_mul_i32 s{sT1}, s{sT1}, {32*NT}\ns_add_u32 s{sF}, s{sT0}, s{sT1}\ns_add_u32 s{sE}, s{sF}, {16*1280}")
        A(f"v_and_b32 v2, 15, v0\nv_mul_u32_u24 v{vRow}, 1280, v2\nv_lshrrev_b32 v3, 4, v0\nv_lshl_add_u32 v2, v3, 3, v{vRow}")
        for p in range(2):
            for i in range(NT):
                A(f"buffer_load_dwordx2 {v(XR+2*(NT*p+i),2)}, v2, {s(X_,4)}, s{sE if p else sF} offen offset:{32*i}")
        A(f"v_bfe_u32 v2, v0, 2, 2\nv_lshl_add_u32 v2, v3, 2, v2\nv_mul_u32_u24 v4, {RB}, v2\nv_and_b32 v5, 3, v0\nv_lshl_add_u32 v4, v5, 3, v4")
        A("v_bfe_u32 v2, v2, 1, 2" if N == 64 else "v_and_b32 v2, 1, v3")
        A(f"s_lshr_b32 s{sT0}, s{sW}, 1\ns_mul_i32 s{sT0}, s{sT0}, {NT}")
        for i in range(NT):
            A(f"s_add_u32 s{sT1}, s{sT0}, {i}\nv_xor_b32 v3, s{sT1}, v2\nv_lshl_add_u32 v3, v3, 5, v4\nv_add_u32 v{vWa+i}, {g['wbase'][0]}, v3\nv_add_u32 v{vWa+3+i}, {g['wbase'][1]}, v3")
        A(f"s_and_b32 s{sT0}, s{sW}, 1\ns_lshl_b32 s{sT0}, s{sT0}, 12\ns_add_u32 s{sT0}, s{sT0}, {g['abase'][0]}\nv_lshl_add_u32 v{vB}, v0, 4, s{sT0}\nv_lshl_add_u32 v{vO}, v0, 3, s{sT0}")
        if g["abase"][1] < LDS_BYTES:
            A(f"v_add_u32 v{vB+1}, {g['abase'][1]-g['abase'][0]}, v{vB}\nv_add_u32 v{vO+1}, {g['abase'][1]-g['abase'][0]}, v{vO}")
        for r in list(range(ACC, ACC + 8 * NT)) + list(range(FB + 16, FB + 32)) + list(range(FW + 8 * NT, FW + 16 * NT)):
            A(f"v_mov_b32 v{r}, 0")

        def mfmas(st):
            out = []
            for ks in range(2):
                for i in range(NT):
                    for p in range(2):
                        a = v(ACC + 4 * (NT * p + i), 4)
                        out.append(f"{MF} {a}, {v(FW+8*NT*st+4*(NT*ks+i),4)}, {v(FB+16*st+8*ks+4*p,4)}, {a}")
            return out

        def chunk(ch, extra=(), head=()):
            st, opart = ch & 1, ch >= 24
            wb = 1 if g["w"][ch % self.RW] >= g["wbase"][1] else 0
            wo = g["w"][ch % self.RW] - g["wbase"][wb]
            aa = g["a"][ch % len(g["a"])]
            ab = 1 if aa >= g["abase"][1] else 0
            ao = aa - g["abase"][ab]
            A("s_barrier\ns_waitcnt lgkmcnt(0)")
            if ch == 0:
                self.stamp(4)
            A.extend(head)
            rd = []
            for ks in range(2):
                for p in range(2):
                    d = FB + 16 * st + 8 * ks + 4 * p
                    if opart:
                        rd += [f"ds_read_b64 {v(d+2*hf,2)}, v{vO+ab} offset:{ao+2048*p+512*(2*ks+hf)}" for hf in range(2)]
                    else:
                        rd.append(f"ds_read_b128 {v(d,4)}, v{vB+ab} offset:{ao+2048*p+K*ks}")
                for i in range(NT):
                    d = FW + 8 * NT * st + 4 * (NT * ks + i)
                    rd += [f"ds_read_b64_tr_b16 {v(d+2*hf,2)}, v{vWa+3*wb+i} offset:{wo+(32*ks+16*hf)*RB}" for hf in range(2)]
            rd += list(extra)
            for m in mfmas(1 - st):
                A(m); A.extend(rd[:2]); rd = rd[2:]
            A.extend(rd)

        heads = {}
        if role == "q" and c.pubq and not c.split:
            heads[c.pubq], heads[c.pubq + 1] = self.publish("q", 2 * NT)
        for ch in range(24):
            chunk(ch, head=heads.get(ch, ()))
        self.stamp(5)
        XU = XR + 16
        unpack = ["s_waitcnt vmcnt(0)"]
        for k in range(2 * NT):
            x = XR + 2 * k
            unpack += lines(f"v_lshlrev_b32 v{XU+4*k}, 16, v{x}\nv_and_b32 v{XU+4*k+1}, 0xffff0000, v{x}\nv_lshlrev_b32 v{XU+4*k+2}, 16, v{x+1}\nv_and_b32 v{XU+4*k+3}, 0xffff0000, v{x+1}")
        unpack += lines(f"v_lshrrev_b32 v3, 4, v0\nv_and_b32 v4, 1, v3\nv_lshrrev_b32 v3, 1, v3\nv_lshl_add_u32 v3, v3, 4, v{vRow}\nv_lshl_add_u32 v2, v4, 5, v3\nv_mul_u32_u24 v4, {16*1280}, v4\nv_add_u32 v3, v3, v4")
        for ch in range(24, 34):
            n = -(-len(unpack) // (34 - ch)) if ch >= 26 else 0
            chunk(ch, unpack[:n]); unpack = unpack[n:]
        A("s_waitcnt lgkmcnt(0)")
        A.extend(mfmas(1))
        self.stamp(6)
        O = FB
        jobs = [(NT * p, NT * p + 1, 2, sE if p else sF, 0) for p in range(2)]
        if NT == 3:
            jobs.append((2, 5, 3, sF, 64))
        for n, (k0, k1, va, so, off) in enumerate(jobs):
            d = O + 4 * n
            for dd, k in ((d, k0), (d + 2, k1)):
                for h in (0, 2):
                    A(f"v_pk_add_f32 {v(ACC+4*k+h,2)}, {v(ACC+4*k+h,2)}, {v(XU+4*k+h,2)}")
                A.extend(self.pack(dd, ACC + 4 * k))
            A(f"v_permlane16_swap_b32 v{d}, v{d+2}\nv_permlane16_swap_b32 v{d+1}, v{d+3}")
            A(f"buffer_store_dwordx4 {v(d,4)}, v{va}, {s(OUT_,4)}, s{so} offen offset:{off}{c.out_mod}")

    def kernel(self, name, tag, do1, do2):
        A = self.A
        self.tag = tag
        self.entry(name, tag)
        for role in ("q", "h"):
            if role == "h":
                A.label(f"L_HH_{tag}")
            pending = 0
            if do1:
                pending = self.helper1(role)
            else:
                A("s_waitcnt lgkmcnt(0)")
                self.srds_helper2()
                self.p2_loader_setup(role)
            if do2:
                self.p2_loader(role, pending)
            self.stamp_out(7, 1)
            A("s_endpgm")
        for role in ("q", "h"):
            A.label(f"L_{role.upper()}C_{tag}")
            if do1:
                (self.compute_q if role == "q" else self.compute_h)()
            else:
                self.srds_compute()
            if do2:
                self.p2_compute(role)
            self.stamp(7)
            self.stamp_out(8, 0)
            A("s_endpgm")
        A.label(f"L_end_{tag}")
        A("s_endpgm")

    def build(self):
        A, c = self.A, self.c
        A(open(os.path.join(os.path.dirname(os.path.abspath(__file__)), "header.txt")).read().rstrip())
        if c.split:
            A(f"; @launch kernel=phase1_kernel grid=(256,1,1) block=(512,1,1) lds={LDS_BYTES}")
            A(f"; @launch kernel=phase2_kernel grid=(256,1,1) block=(512,1,1) lds={LDS_BYTES}")
        else:
            A(f"; @launch grid=(256,1,1) block=(512,1,1) lds={LDS_BYTES}")
        A('.amdgcn_target "amdgcn-amd-amdhsa--gfx950"')
        if c.split:
            p2 = c.phase2
            c.phase2 = False
            self.kernel("phase1_kernel", "a", True, False)
            c.phase2 = p2
            self.kernel("phase2_kernel", "b", False, True)
            A(kernel_desc("phase1_kernel", 256, 256)); A(kernel_desc("phase2_kernel", 256, 256))
        else:
            self.kernel(NAME + "_kernel", "a", True, c.phase2)
            A(kernel_desc(NAME + "_kernel", 256, 256))
        return A.text()

def make(**kw):
    return Gen(Cfg(**kw)).build()

if __name__ == "__main__":
    kw = {}
    for a_ in sys.argv[2:]:
        k, val = a_.split("=", 1)
        kw[k] = eval(val)
    open(sys.argv[1], "w").write(make(**kw))
```

```python
import re

def v(i, n=1):
    return f"v{i}" if n == 1 else f"v[{i}:{i+n-1}]"
def s(i, n=1):
    return f"s{i}" if n == 1 else f"s[{i}:{i+n-1}]"

_REG = re.compile(r"^-?\|?(v|s|a)(?:(\d+)|\[(\d+):(\d+)\])\|?$")

def regs_of(tok):
    tok = tok.strip()
    if tok in ("vcc",):
        return {("s", 106), ("s", 107)}
    if tok == "m0":
        return {("s", 124)}
    if tok == "exec_lo":
        return {("s", 126)}
    if tok == "exec_hi":
        return {("s", 127)}
    if tok == "exec":
        return {("s", 126), ("s", 127)}
    m = _REG.match(tok)
    if not m:
        return set()
    k = m.group(1)
    if m.group(2) is not None:
        return {(k, int(m.group(2)))}
    return {(k, i) for i in range(int(m.group(3)), int(m.group(4)) + 1)}

TRANS = ("v_exp_f32", "v_log_f32", "v_rcp_f32", "v_rsq_f32", "v_sqrt_f32", "v_sin_f32", "v_cos_f32")

class Ins:
    def __init__(self, text):
        self.text = text
        t = text.split(";")[0].strip()
        parts = t.split(None, 1)
        self.mn = mn = parts[0]
        rest = parts[1] if len(parts) > 1 else ""
        ops = [o.strip() for o in rest.split(",")] if rest else []
        mods = ""
        if ops:
            last = ops[-1].split(None, 1)
        m = re.search(r"\s(op_sel|op_sel_hi|neg_lo|neg_hi|offset|offset0|offset1|offen|lds|sc0|sc1|nt|clamp|row_|quad_perm|bitop3)", " " + rest)
        if m:
            mods = (" " + rest)[m.start():]
            rest = (" " + rest)[: m.start()]
        ops = [o.strip() for o in rest.split(",")] if rest.strip() else []
        self.ops, self.mods = ops, mods
        R = [regs_of(o) for o in ops]
        self.w, self.r = set(), set()
        self.kind = "other"
        self.srcc = set()
        U = lambda l: set().union(*l) if l else set()
        if mn.startswith("v_mfma"):
            self.kind = "mfma"; self.w = R[0]; self.r = U(R[1:]); self.srcc = R[3]; self.ab = R[1] | R[2]
            self.passes = 8 if "32x32" in mn else 4
        elif mn.startswith("ds_read") or "_rtn" in mn or mn.startswith("ds_bpermute") or mn.startswith("ds_swizzle"):
            self.kind = "ds"; self.w = R[0]; self.r = U(R[1:])
        elif mn.startswith("ds_"):
            self.kind = "ds"; self.r = U(R)
        elif mn.startswith("buffer_load") or mn.startswith("global_load"):
            self.kind = "vmem"
            if " lds" in mods or "_lds_" in mn:
                self.r = U(R) | {("s", 124)}; self.dma = True
            else:
                self.w = R[0]; self.r = U(R[1:])
        elif mn.startswith("buffer_store") or mn.startswith("buffer_atomic") or mn.startswith("global_store") or mn.startswith("global_atomic"):
            self.kind = "vmem"; self.r = U(R)
            self.wide = R[0] if ("x4" in mn or "x3" in mn) and mn.startswith("buffer") else set()
            if "atomic" in mn and " sc0" in mods:
                self.w = R[0]
        elif mn.startswith("buffer_"):
            self.kind = "vmem"
        elif mn.startswith("v_cmp"):
            self.kind = "valu"; self.w = R[0]; self.r = U(R[1:])
        elif mn.startswith("v_readfirstlane") or mn.startswith("v_readlane"):
            self.kind = "valu"; self.w = R[0]; self.r = U(R[1:]); self.rdlane = True
        elif mn.startswith("v_writelane"):
            self.kind = "valu"; self.w = R[0]; self.r = U(R)
        elif mn.startswith("v_permlane") or mn.startswith("v_swap"):
            self.kind = "valu"; self.w = U(R); self.r = U(R); self.perm = mn.startswith("v_permlane")
        elif mn.startswith("v_add_co") or mn.startswith("v_sub_co") or mn.startswith("v_addc_co"):
            self.kind = "valu"; self.w = R[0] | R[1]; self.r = U(R[2:])
        elif mn.startswith("v_"):
            self.kind = "valu"; self.w = R[0]; self.r = U(R[1:])
            if mn.startswith("v_fmac") or mn.startswith("v_dot2c"):
                self.r |= R[0]
        elif mn.startswith("s_"):
            self.kind = "salu"
            if "vcc" in mn:
                self.r = regs_of("vcc"); self.vccz = True
            elif mn.startswith(("s_cmp", "s_cbranch", "s_branch", "s_waitcnt", "s_barrier", "s_nop", "s_endpgm", "s_sleep", "s_setprio", "s_bitcmp")):
                self.r = U(R)
            else:
                self.w = R[0] if R else set(); self.r = U(R[1:])
                if "saveexec" in mn:
                    self.w |= regs_of("exec")
        self.states = int(ops[0], 0) + 1 if mn == "s_nop" else 1
        self.trans = mn.replace("_e32", "").replace("_e64", "") in TRANS
        self.dot = mn.startswith("v_dot")
        self.dpp = "row_" in mods or "quad_perm" in mods or "wave_" in text

EXTRA = {}

def need(p, c):
    n = need0(p, c)
    if n:
        n += EXTRA.get((p.kind, c.kind), 0)
    if p.trans and c.kind == 'valu' and n:
        n += EXTRA.get('trans', 0)
    if getattr(c, 'perm', False) and n:
        n += EXTRA.get('perm', 0)
    if getattr(p, 'perm', False) and (p.w & (c.r | c.w)):
        n = max(n, EXTRA.get('afterperm', 0))
    if p.kind == 'mfma' and c.kind in ('valu', 'ds') and (p.ab & c.w):
        n = max(n, EXTRA.get('abwar', 0))
    if p.kind == 'vmem' and p.mn.startswith('buffer_store') and (p.r & c.w):
        n = max(n, EXTRA.get('stwar', 0))
    if p.kind == 'ds' and p.mn.startswith('ds_write') and (p.r & c.w):
        n = max(n, EXTRA.get('dswar', 0))
    return n

def need0(p, c):
    n = 0
    vs = lambda x: {r for r in x if r[0] in "va"}
    ss = lambda x: {r for r in x if r[0] == "s"}
    if p.kind == "valu":
        pw = vs(p.w)
        if c.kind == "mfma" and pw & c.r and not p.dot: n = max(n, 2)
        if p.dot and (pw & (c.r | c.w)):
            if not (c.dot and c.mn == p.mn and not (pw & (regs_of(c.ops[1]) | regs_of(c.ops[2])))): n = max(n, 3)
        if getattr(c, "perm", False) and pw & c.r: n = max(n, 2)
        if c.dpp and pw & c.r: n = max(n, 2)
        if getattr(c, "rdlane", False) and pw & c.r: n = max(n, 1)
        if p.trans and c.kind == "valu" and pw & c.r: n = max(n, 1)
        sw = ss(p.w)
        if sw:
            if c.kind == "vmem" and sw & c.r: n = max(n, 5)
            if c.kind == "valu" and sw & c.r: n = max(n, 4 if getattr(c, "rdlane", False) else 2)
            if c.kind == "salu" and sw & c.r: n = max(n, 5 if getattr(c, "vccz", False) else 1)
    if p.kind == "mfma":
        d = p.w
        big = {4: 8, 8: 12}[p.passes]
        if c.kind == "mfma":
            if d & c.ab: n = max(n, big)
            if d & c.srcc and c.srcc != d: n = max(n, big - 2)
            if d & c.w and c.srcc != d: n = max(n, big - 2)
        elif c.kind in ("valu", "ds", "vmem") and d & (c.r | c.w): n = max(n, big)
        if c.kind == "valu" and p.srcc & c.w: n = max(n, {4: 3, 8: 7}[p.passes])
    if p.kind == "vmem" and getattr(p, "wide", None) and p.wide & c.w: n = max(n, 2)
    if p.kind == "salu" and ("s", 124) in p.w and getattr(c, "dma", False): n = max(n, 1)
    return n

def pad_hazards(lines):
    out, hist = [], []
    for l in lines:
        t = l.strip()
        if not t or t.startswith(";") or t.startswith(".") or t.endswith(":"):
            out.append(l); continue
        c = Ins(t)
        dist, req = 0, 0
        for p in reversed(hist):
            req = max(req, need(p, c) - dist)
            dist += p.states
            if dist >= 40: break
        while req > 0:
            k = min(req, 16)
            nop = f"s_nop {k-1}"
            out.append(nop); hist.append(Ins(nop)); req -= k
        out.append(l); hist.append(c)
        if c.mn in ("s_branch", "s_endpgm"):
            hist = []
    return out

class Asm:
    def __init__(self):
        self.lines = []
    def __call__(self, txt=""):
        for l in txt.split("\n"):
            self.lines.append(l)
    def label(self, name):
        self.lines.append(name + ":")
    def extend(self, ls):
        self.lines.extend(ls)
    def text(self, pad=True):
        out = []
        for l in (pad_hazards(self.lines) if pad else self.lines):
            t = l.strip()
            if not t:
                continue
            if t.endswith(":") or t.startswith(".") or t.startswith(";"):
                out.append(t)
            else:
                out.append("    " + t)
        return "\n".join(out) + "\n"

class Counter:
    def __init__(self, A, name, cap):
        self.A, self.name, self.cap = A, name, cap
        self.n = 0
        self.done = 0
    def issue(self, text):
        self.A(text); self.n += 1
        return self.n
    def wait(self, tag):
        if tag is None or tag <= self.done:
            return
        k = min(self.n - tag, self.cap)
        self.A(f"s_waitcnt {self.name}({k})")
        self.done = self.n - k
    def wait_all(self):
        self.wait(self.n)

def kernel_header(name):
    return f""".text
.globl {name}
.p2align 8
.type {name},@function
{name}:
"""

def kernel_desc(name, nvgpr, accum, nsgpr=102):
    return f""".section .rodata,"a"
.p2align 6
.amdhsa_kernel {name}
  .amdhsa_next_free_vgpr {nvgpr}
  .amdhsa_next_free_sgpr {nsgpr}
  .amdhsa_accum_offset {accum}
  .amdhsa_group_segment_fixed_size 0
  .amdhsa_kernarg_size 72
  .amdhsa_user_sgpr_count 2
  .amdhsa_user_sgpr_kernarg_segment_ptr 1
  .amdhsa_system_sgpr_workgroup_id_x 1
.end_amdhsa_kernel
"""
```

```python
import sys, os
from asmlib import *

NAME = "parallel_sum__sliding_local_dilated__dense_activation_relu__prompt"
MF = "v_mfma_f32_16x16x32_bf16"

H_BLK = 24 * 8192
O_BLK = 10 * 8192
H_BASE = 0
O_BASE = 32 * H_BLK
FLAG_BASE = 16 << 20
STAT_BASE = 18 << 20
CSUM_BASE = 19 << 20
STAMP_BASE = 20 << 20
WS_BYTES = 32 << 20

X_, W1_, W2_, WO_, WS_, DBG_, FLEX_, OUT_ = 20, 24, 28, 32, 36, 40, 44, 48
sWAVE, sW, sRB, sJ, sBLK, sCOL, sROT, sCNT = 52, 53, 54, 55, 56, 57, 58, 59
sT0, sT1, sT2, sT3 = 60, 61, 62, 63
sA, sB, sC, sD, sE, sF = 64, 65, 66, 67, 68, 69
mG1, mG2, mG3, mU0 = 70, 72, 74, 76
sROT2, sROT3 = 78, 79
sG, sH, sI = 3, 80, 81
sSTAMP = 82

K = 1024
Q_SLOT, H_SLOT = 48 * K, 40 * K
Q_WH, H_WH = 15 * K, 12 * K
MISC = 157 * K
ST_RSTD = 576
CS_OFF = 1152
CTR_OFF = 2304
XFL_OFF = 2320
PRG_OFF = 2368
F_STAT, F_CSUM = 8192, 10240
LDS_BYTES = 163840
SPIN_LIMIT = 20000
COH = " sc0 sc1"

class Cfg:
    def __init__(self, **kw):
        self.split = False
        self.stamps = False
        self.dbgstamps = False
        self.epi = False
        self.trace = False
        self.phase2 = True
        self.rot = True
        self.rot2 = True
        self.pre1 = {'q': 8, 'h': 7}
        self.pre0 = 2
        self.prio_h = 1
        self.abl = ''
        self.preq = {8: 2, 9: 4}
        self.preh = {8: 2, 9: 4}
        self.nreg0 = {"q": 10, "h": 8}
        self.warm = 0
        self.warm_c = 0
        self.pubq = 8
        self.selfq = False
        self.wide = 'h'
        self.prio_self = 1
        self.na0 = {'q': 6, 'h': 3}
        self.touch = 'q'
        self.cstat = 6
        self.touch_h = 2
        self.gapw = 6
        self.nres = 4
        self.npoll = 1
        self.rotf = (7, 0, 0, 1)
        self.swap = False
        self.codepf = 6
        self.ld_mod = COH
        self.st_mod = COH
        self.comp = False
        self.out_mod = ''
        self.stage = {'q': 0, 'h': 0}
        self.hold = False
        self.__dict__.update(kw)

def srd(A, d, b, n):
    A(f"s_mov_b32 s{d}, s{b}\ns_mov_b32 s{d+1}, s{b+1}\ns_mov_b32 s{d+2}, {n}\ns_mov_b32 s{d+3}, 0x20000")

def lines(txt):
    return [l for l in txt.split("\n") if l]

def weave(main, extra, every=2, start=0):
    out, extra = [], list(extra)
    for i, l in enumerate(main):
        out.append(l)
        if extra and i + 1 >= start and (i + 1 - start) % every == 0:
            out.append(extra.pop(0))
    return out + extra

class Gen:
    def __init__(self, cfg):
        self.c = cfg
        self.A = Asm()
        self.uid = 0

    def lab(self, p):
        self.uid += 1
        return f"L_{p}_{self.uid}"

    def estamp(self, i):
        if self.c.epi:
            self.stamp(i, True)

    def stamp(self, i, force=False):
        if self.c.epi and not force and i > 0:
            return
        if self.c.stamps:
            op = "s_memtime" if self.c.stamps == "cyc" else "s_memrealtime"
            self.A(f"{op} s[{sSTAMP+2*i}:{sSTAMP+2*i+1}]")

    def trace(self, lane):
        if self.c.trace:
            if isinstance(lane, str):
                self.A(f"s_mov_b32 m0, {lane}")
                lane = "m0"
            op = "s_memtime" if self.c.stamps == "cyc" else "s_memrealtime"
            self.A(f"{op} s[98:99]\ns_waitcnt lgkmcnt(0)\nv_writelane_b32 v30, s98, {lane}")

    def stamp_out(self, n, row):
        if not self.c.stamps:
            return
        A = self.A
        if self.c.trace and row == 1:
            l = self.lab("tr")
            A(f"s_cmp_lg_u32 s{sW}, 0\ns_cbranch_scc1 {l}\ns_lshl_b32 s{sT0}, s2, 8\ns_add_u32 s{sT0}, s{sT0}, {STAMP_BASE + (1 << 20)}\nv_lshl_add_u32 v1, v0, 2, s{sT0}")
            A(f"buffer_store_dword v30, v1, {s(WS_,4)}, 0 offen\ns_waitcnt vmcnt(0)")
            A.label(l)
        l = self.lab("st")
        A(f"s_waitcnt lgkmcnt(0)\ns_cmp_lg_u32 s{sW}, 0\ns_cbranch_scc1 {l}")
        if self.c.dbgstamps:
            if row == 0:
                A(f"s_lshr_b32 s{sT1}, s2, 7\ns_mul_i32 s{sT1}, s{sT1}, 28\nv_mov_b32 v1, s{sT1}\nv_mov_b32 v3, 0\ns_mov_b64 exec, 1")
                A(f"s_not_b32 s{sT0}, s{sSTAMP}\nv_mov_b32 v2, s{sT0}\nbuffer_atomic_umax v2, v3, {s(DBG_,4)}, 0 offen offset:4 sc1")
                for i in range(1, 8):
                    A(f"v_mov_b32 v2, s{sSTAMP+2*i}\nbuffer_atomic_umax v2, v1, {s(DBG_,4)}, 0 offen offset:{4+4*i} sc1")
                A("s_waitcnt vmcnt(0)")
            A.label(l)
            return
        A(f"s_lshl_b32 s{sT0}, s2, 7\ns_add_u32 s{sT0}, s{sT0}, {STAMP_BASE + 64*row}\nv_mov_b32 v1, s{sT0}")
        for i in range(n):
            A(f"v_mov_b32 v2, s{sSTAMP+2*i}\nbuffer_store_dword v2, v1, {s(WS_,4)}, 0 offen offset:{4*i}")
        A("s_waitcnt vmcnt(0)")
        A.label(l)

    def entry(self, name, tag):
        A, c = self.A, self.c
        A(kernel_header(name))
        A("s_cmp_ge_u32 s2, 256\ns_cbranch_scc1 L_end_" + tag)
        self.stamp(0)
        A("s_load_dwordx4 s[4:7], s[0:1], 0\ns_load_dwordx2 s[8:9], s[0:1], 16")
        A("s_load_dwordx4 s[12:15], s[0:1], 32\ns_load_dwordx4 s[16:19], s[0:1], 48\ns_load_dwordx2 s[10:11], s[0:1], 64")
        A(f"v_lshrrev_b32 v1, 6, v0\nv_and_b32 v0, 63, v0\nv_readfirstlane_b32 s{sWAVE}, v1")
        A(f"s_bfe_u32 s{sT0}, s2, 0x20001\ns_bfe_u32 s{sT1}, s2, 0x20003\ns_lshl2_add_u32 s{sRB}, s{sT0}, s{sT1}")
        A(f"s_and_b32 s{sT0}, s2, 1\ns_bfe_u32 s{sT2}, s2, 0x20005\ns_lshl2_add_u32 s{sJ}, s{sT0}, s{sT2}")
        A(f"s_and_b32 s{sT3}, s{sT2}, 1\ns_lshl1_add_u32 s{sBLK}, s{sRB}, s{sT3}")
        A(f"s_lshr_b32 s{sT3}, s{sT2}, 1\ns_lshl1_add_u32 s{sCOL}, s{sT0}, s{sT3}")
        A(f"s_lshr_b32 s{sA}, s2, 7")
        if c.rot:
            ra, rb_, rc, rd = c.rotf
            A(f"s_mul_i32 s{sROT}, s{sRB}, {ra}")
            if rb_:
                A(f"s_mul_i32 s{sT1}, s{sT2}, {rb_}\ns_add_u32 s{sROT}, s{sROT}, s{sT1}")
            if rc:
                A(f"s_and_b32 s{sT1}, s{sT2}, 1\ns_mul_i32 s{sT1}, s{sT1}, {rc}\ns_add_u32 s{sROT}, s{sROT}, s{sT1}")
            if rd:
                A(f"s_mul_i32 s{sT1}, s{sA}, {rd}\ns_add_u32 s{sROT}, s{sROT}, s{sT1}")
            A(f"s_mul_i32 s{sT1}, s{sROT}, 205\ns_lshr_b32 s{sT1}, s{sT1}, 11\ns_mul_i32 s{sT1}, s{sT1}, 10\ns_sub_u32 s{sROT}, s{sROT}, s{sT1}")
        A(f"s_and_b32 s{sT0}, s{sBLK}, 7\ns_lshl1_add_u32 s{sT3}, s{sA}, s{sT3}\ns_mul_i32 s{sT1}, s{sT0}, 3\ns_lshr_b32 s{sT1}, s{sT1}, 1\ns_mul_i32 s{sROT2}, s{sT3}, 3\ns_add_u32 s{sROT2}, s{sROT2}, s{sT1}")
        A(f"s_mul_i32 s{sT0}, s{sT0}, 5\ns_lshr_b32 s{sT0}, s{sT0}, 3\ns_add_u32 s{sROT3}, s{sT0}, s{sT3}")
        A(f"s_and_b32 s{sW}, s{sWAVE}, 3")
        A(f"s_cmp_ge_u32 s{sWAVE}, 4\ns_cbranch_scc{0 if c.swap else 1} L_helper_{tag}")
        A(f"s_cmp_eq_u32 s{sA}, 0\ns_cbranch_scc1 L_QC_{tag}\ns_branch L_HC_{tag}")
        A.label(f"L_helper_{tag}")
        if c.prio_h:
            A(f"s_setprio {c.prio_h}")
        A(f"s_cmp_eq_u32 s{sA}, 0\ns_cbranch_scc0 L_HH_{tag}")

    def srds_helper2(self):
        A = self.A
        srd(A, W2_, 14, 1536 * 1280); srd(A, WO_, 8, 640 * 1280); srd(A, WS_, 10, WS_BYTES); srd(A, DBG_, 18, 256)

    def srds_compute(self):
        A = self.A
        A("s_waitcnt lgkmcnt(0)")
        srd(A, X_, 4, 2048 * 1280); srd(A, WS_, 10, WS_BYTES); srd(A, DBG_, 18, 256); srd(A, OUT_, 16, 2048 * 1280)

    def xfrag_addr(self, d0, d1, base_s, t):
        A = self.A
        A(f"v_and_b32 v{t}, 15, v0\nv_lshrrev_b32 v{d1}, 1, v{t}\nv_lshrrev_b32 v{d0}, 4, v0\nv_xor_b32 v{d0}, v{d0}, v{d1}")
        A(f"v_lshlrev_b32 v{d0}, 4, v{d0}\nv_lshl_add_u32 v{d0}, v{t}, 7, v{d0}\nv_add_u32 v{d0}, s{base_s}, v{d0}\nv_xor_b32 v{d1}, 64, v{d0}")

    def check(self, vres, vaddr, srd_, target, off=0, depth=1):
        A = self.A
        l, d = self.lab("sp"), self.lab("sd")
        A(f"v_cmp_gt_u32 vcc, {target}, v{vres}\ns_cbranch_vccz {d}\ns_mov_b32 s{sT1}, {SPIN_LIMIT}")
        if depth > 1:
            ld = lambda r: f"buffer_load_dword v{r}, v{vaddr}, {s(srd_,4)}, 0 offen offset:{off}{COH}"
            regs = [vres] + list(range(2, 1 + depth))
            e = self.lab("se")
            for r in regs[1:]:
                A(ld(r) + "\ns_nop 15\ns_nop 15")
            A.label(l)
            for i, r in enumerate(regs):
                A(ld(r) + f"\ns_waitcnt vmcnt({depth-1})\nv_cmp_gt_u32 vcc, {target}, v{regs[(i + 1) % depth]}\ns_cbranch_vccz {e}")
            A(f"s_sub_u32 s{sT1}, s{sT1}, 1\ns_cbranch_scc0 {l}")
            A.label(e)
            A.label(d)
            return depth - 1
        A.label(l)
        A(f"buffer_load_dword v{vres}, v{vaddr}, {s(srd_,4)}, 0 offen offset:{off}{COH}\ns_waitcnt vmcnt(0)\nv_cmp_gt_u32 vcc, {target}, v{vres}")
        A(f"s_cbranch_vccz {d}\ns_sub_u32 s{sT1}, s{sT1}, 1\ns_cbranch_scc0 {l}")
        A.label(d)

    def helper1(self, role):
        A, c = self.A, self.c
        q = role == "q"
        slot, wh = (Q_SLOT, Q_WH) if q else (H_SLOT, H_WH)
        xoff = 2 * wh
        wstride = 3840 if q else 3072
        vA, vB, vC, vF = 8, 11, 14, 18
        sOWa, sOWb, sOX, sSa, sSb = sA, sB, sC, sD, sE
        sMA, sMX, sF1o, sF1m, sF2o, sF2m = sF, sG, mG1, mG1 + 1, mG1 + 2, mG1 + 3
        sMF1, sMF2, sPa, sPb, sPx = mG1 + 4, mG1 + 5, mG1 + 6, mG1 + 7, sI
        nA, nB = (4, 8) if q else (3, 7)
        per = 4 if q else 3

        A("v_lshrrev_b32 v2, 3, v0\nv_mul_u32_u24 v2, 1280, v2\nv_and_b32 v3, 7, v0\nv_lshrrev_b32 v4, 4, v0\nv_xor_b32 v3, v3, v4\nv_lshl_add_u32 v6, v3, 4, v2\nv_xor_b32 v7, 64, v6")
        A(f"s_lshl_b32 s{sT0}, s{sRB}, 7\ns_lshl_b32 s{sT1}, s{sW}, 5\ns_add_u32 s{sT0}, s{sT0}, s{sT1}")
        if q:
            A(f"s_sub_u32 s{sT0}, s{sT0}, 16")
        A(f"s_mul_i32 s{sPx}, s{sT0}, 1280")
        A(f"s_mul_i32 s{sH}, s{sJ}, {160 if q else 384}\ns_movk_i32 s{sCNT}, 1120\ns_mul_i32 s{sMA}, s{sW}, {per}\ns_lshl_b32 s{sMX}, s{sW}, 12\ns_add_u32 s{sMX}, s{sMX}, {xoff}")

        def xoffs(d, i):
            A(f"s_add_u32 s{sT0}, s{sPx}, {8*1280*i}\nv_add_u32 v{d}, s{sT0}, v{6 + (i & 1)}")

        def woff(d, kb):
            A(f"s_add_u32 s{sT0}, s{sMA}, {kb}\ns_lshl_b32 s{sT0}, s{sT0}, 6\nv_add_u32 v2, s{sT0}, v0")
            if q:
                A("v_mul_u32_u24 v3, 2185, v2\nv_lshrrev_b32 v3, 16, v3\nv_mul_u32_u24 v4, 30, v3\nv_sub_u32 v2, v2, v4")
            else:
                A("v_mul_u32_u24 v3, 2731, v2\nv_lshrrev_b32 v3, 16, v3\nv_mul_u32_u24 v4, 24, v3\nv_sub_u32 v2, v2, v4\nv_and_b32 v4, 6, v3\nv_xor_b32 v2, v2, v4")
            A("v_and_b32 v4, 4, v3\nv_add_u32 v5, v3, v4\nv_bfe_u32 v4, v3, 3, 1\nv_mad_i32_i24 v5, v4, -4, v5")
            A(f"v_mul_u32_u24 v5, {wstride}, v5")
            if q:
                A(f"v_mul_u32_u24 v4, 26, v2\nv_lshrrev_b32 v4, 8, v4\nv_mad_u32_u24 v5, v4, s{sCNT}, v5")
            A(f"v_lshl_add_u32 v5, v2, 4, v5\nv_add_u32 v{d}, s{sH}, v5")

        def advance():
            A(f"s_mov_b32 s{sOWa}, s{sOWb}\ns_add_u32 s{sPa}, s{sSb}, s{sMA}")
            if q:
                A(f"s_add_u32 s{sSb}, s{sSb}, {slot}\ns_cmp_ge_u32 s{sSb}, {3*slot}\ns_cselect_b32 s{sSb}, 0, s{sSb}")
            else:
                A(f"s_sub_u32 s{sSb}, s{sSb}, {slot}\ns_cselect_b32 s{sSb}, {2*slot}, s{sSb}")
            rot()

        def rot():
            A(f"s_cmp_ge_u32 s{sROT}, 10\ns_cselect_b32 s{sT0}, 10, 0\ns_sub_u32 s{sROT}, s{sROT}, s{sT0}")
            A(f"s_mul_i32 s{sOWb}, s{sROT}, {64*wstride}\ns_lshl_b32 s{sOX}, s{sROT}, 7\ns_add_u32 s{sROT}, s{sROT}, 1")
            A(f"s_add_u32 s{sPb}, s{sSb}, s{sMA}\ns_add_u32 s{sPx}, s{sSb}, s{sMX}")
            if q:
                A(f"s_cmp_lt_u32 s{sW}, 3\ns_cselect_b32 s{sF1o}, s{sOWa}, s{sOX}\ns_cselect_b32 s{sF2o}, s{sOWb}, s{sOX}\ns_cselect_b32 s{sF1m}, s{sPa}, s{sPx}\ns_cselect_b32 s{sF2m}, s{sPb}, s{sPx}")
                A(f"s_add_u32 s{sF1m}, s{sF1m}, s{sMF1}\ns_add_u32 s{sF2m}, s{sF2m}, s{sMF2}")

        def dma(vr, srd_, so, m0s, add):
            A(f"s_add_u32 m0, s{m0s}, {add}\nbuffer_load_dwordx4 v{vr}, {s(srd_,4)}, s{so} offen lds")

        opsA = [(vA + i, W1_, sOWa, sPa, i * K) for i in range(3)]
        opF1 = (vF, FLEX_, sF1o, sF1m, 0)
        opF2 = (vF + 1, FLEX_, sF2o, sF2m, 0)
        opsC = [(vC + i, X_, sOX, sPx, i * K) for i in range(4)]
        opsB = [(vB + i, W1_, sOWb, sPb, wh + i * K) for i in range(3)]
        group = opsA + ([opF1] if q else []) + opsC + ([opF2] if q else []) + opsB

        def woven_group():
            sN1, sN2 = 12, 13
            after_a = [[f"s_mov_b32 s{sOWa}, s{sOWb}"], [f"s_add_u32 s{sPa}, s{sSb}, s{sMA}"]]
            if q:
                after_a.append(lines(f"s_add_u32 s{sSb}, s{sSb}, {slot}\ns_cmp_ge_u32 s{sSb}, {3*slot}\ns_cselect_b32 s{sSb}, 0, s{sSb}"))
            else:
                after_a.append(lines(f"s_sub_u32 s{sSb}, s{sSb}, {slot}\ns_cselect_b32 s{sSb}, {2*slot}, s{sSb}"))
            after_a.append(lines(f"s_cmp_ge_u32 s{sROT}, 10\ns_cselect_b32 s{sT0}, 10, 0\ns_sub_u32 s{sROT}, s{sROT}, s{sT0}\ns_mul_i32 s{sN1}, s{sROT}, {64*wstride}\ns_add_u32 s{sN2}, s{sSb}, s{sMA}"))
            after_c = [lines(f"s_lshl_b32 s{sOX}, s{sROT}, 7\ns_add_u32 s{sROT}, s{sROT}, 1\ns_add_u32 s{sPx}, s{sSb}, s{sMX}")]
            if q:
                after_c.append(lines(f"s_cmp_lt_u32 s{sW}, 3\ns_cselect_b32 s{sF1o}, s{sOWa}, s{sOX}\ns_cselect_b32 s{sF2o}, s{sN1}, s{sOX}\ns_cselect_b32 s{sF1m}, s{sPa}, s{sPx}\ns_cselect_b32 s{sF2m}, s{sN2}, s{sPx}"))
                after_c.append(lines(f"s_add_u32 s{sF1m}, s{sF1m}, s{sMF1}\ns_add_u32 s{sF2m}, s{sF2m}, s{sMF2}"))
            fill, out = [], []
            for n, (vr, srd_, so, m0s, add) in enumerate(group):
                if n == nA:
                    fill = after_a
                if n == len(group) - 3:
                    assert not fill
                    fill = after_c
                out.append([f"s_add_u32 m0, s{m0s}, {add}"] + (fill.pop(0) if fill else []) + [f"buffer_load_dwordx4 v{vr}, {s(srd_,4)}, s{so} offen lds"])
            assert not fill
            out[-1] += [f"s_mov_b32 s{sOWb}, s{sN1}", f"s_mov_b32 s{sPb}, s{sN2}"]
            return out
        E = woven_group()
        J = c.pre1[role]
        head, rest = sum(E[: nA + J], []), sum(E[nA + J:], [])

        for i in range(4):
            xoffs(vC + i, i)
        if q:
            l1, l2 = self.lab("fx"), self.lab("fd")
            xoffs(vF, 4); xoffs(vF + 1, 5)
        woff(vB, 0)
        self.trace(50)
        A("s_waitcnt lgkmcnt(0)")
        srd(A, X_, 4, 2048 * 1280)
        srd(A, W1_, 6 if q else 12, 640 * wstride)
        if q:
            A(f"s_cmp_lt_u32 s{sW}, 3\ns_cselect_b32 s{FLEX_}, s6, s4\ns_cselect_b32 s{FLEX_+1}, s7, s5\ns_mov_b32 s{FLEX_+2}, {640*3840}\ns_cselect_b32 s{FLEX_+2}, s{FLEX_+2}, s{X_+2}\ns_mov_b32 s{FLEX_+3}, 0x20000")
            A(f"s_movk_i32 s{sMF1}, {3*K}\ns_cselect_b32 s{sMF1}, s{sMF1}, {4*K}\ns_movk_i32 s{sMF2}, {wh + 3*K}\ns_cselect_b32 s{sMF2}, s{sMF2}, {5*K}")
        A(f"s_mov_b32 s{sT3}, s{sMA}\ns_lshl_b32 s{sMA}, s{sMA}, 10\ns_mov_b32 s{sSb}, 0\ns_mov_b32 s{sOWa}, 0\ns_mov_b32 s{sPa}, 0")
        A(f"s_mov_b32 s100, s{sROT}")
        rot()
        A(f"s_mov_b32 s{sSa}, s{sMA}\ns_mov_b32 s{sMA}, s{sT3}")
        self.trace(51)
        for o in opsC:
            dma(*o)
        self.trace(52)
        for i in range(3):
            if i:
                woff(vB + i, i)
            dma(*opsB[i])
            A(f"v_add_u32 v{vA+i}, {32*wstride}, v{vB+i}")
        if q:
            A(f"s_cmp_lt_u32 s{sW}, 3\ns_cbranch_scc0 {l1}")
            woff(vF + 1, 3)
            A(f"v_add_u32 v{vF}, {32*wstride}, v{vF+1}\ns_branch {l2}")
            A.label(l1)
            dma(*opF1)
            A.label(l2)
            dma(*opF2)
        self.trace(53)
        A(f"s_mov_b32 s{sMA}, s{sSa}\ns_mov_b32 s{sSa}, s100")
        advance()
        J0 = min(J, c.pre0)
        A.extend(sum(E[: nA + J0], []))
        self.trace(54)
        self.srds_helper2()
        self.p2_loader_setup(role)
        vZ, vP, vD, vS = 23, 24, 26, 32
        ridx = 0 if q else 8
        A(f"s_lshl_b32 s{sT0}, s{sRB}, 7\ns_add_u32 s{sT0}, s{sT0}, {FLAG_BASE + F_STAT}\nv_mov_b32 v20, s{sT0}\nv_mov_b32 v{vZ}, 0\nv_mov_b32 v25, 16")
        A(f"s_lshl_b32 s{sT1}, s{sRB}, 7\ns_lshl_b32 s{sT2}, s{sW}, 5\ns_add_u32 s{sT1}, s{sT1}, s{sT2}\nv_and_b32 v3, 31, v0\nv_add_u32 v21, s{sT1}, v3")
        A(f"s_lshl_b32 s{sT2}, s{sW}, 7\ns_add_u32 s{sT2}, s{sT2}, {MISC + (64 if q else 0)}\nv_lshl_add_u32 v22, v3, 2, s{sT2}")
        if q:
            A(f"s_cmp_eq_u32 s{sRB}, 0\ns_cselect_b32 s{sT2}, 0, 128\ns_sub_u32 s{sT0}, s{sT0}, s{sT2}\nv_mov_b32 v4, s{sT0}")
            A(f"s_lshl_b32 s{sT1}, s{sRB}, 7\ns_sub_u32 s{sT1}, s{sT1}, 16\nv_and_b32 v2, 15, v0\nv_add_u32 v3, s{sT1}, v2")
            A(f"s_mov_b32 s{sT1}, {MISC}\nv_lshl_add_u32 v5, v2, 2, s{sT1}\nv_cmp_le_u32 vcc, 32, v0")
            A("v_cndmask_b32 v20, v20, v4, vcc\nv_cndmask_b32 v21, v21, v3, vcc\nv_cndmask_b32 v22, v22, v5, vcc")
        A(f"v_cmp_gt_i32 vcc, 0, v21\nv_lshlrev_b32 v21, 3, v21\nv_add_u32 v21, {STAT_BASE}, v21\nv_mov_b32 v3, -16\nv_cndmask_b32 v21, v21, v3, vcc")
        A(f"s_add_u32 s{sT0}, s{sJ}, {ridx}\ns_lshl_b32 s{sT1}, s{sT0}, 7\ns_add_u32 s{sT1}, s{sT1}, {FLAG_BASE + F_CSUM}\nv_mov_b32 v31, s{sT1}\nv_mov_b32 v4, 10\nv_cmp_le_u32 vcc, 48, v0")
        A(f"v_cndmask_b32 v20, v20, v31, vcc\nv_cndmask_b32 v25, v25, v4, vcc")
        A(f"s_mul_i32 s9, s{sT0}, 10240\ns_add_u32 s9, s9, {CSUM_BASE}\ns_lshl_b32 s{sT1}, s{sW}, 8\ns_add_u32 s{sT2}, s9, s{sT1}\nv_lshl_add_u32 v28, v0, 2, s{sT2}")
        A(f"s_add_u32 s{sT1}, s{sT1}, {MISC + CS_OFF}\nv_lshl_add_u32 v29, v0, 2, s{sT1}")
        nt = 4 if q else 3
        A("v_bfe_u32 v2, v0, 2, 3\nv_lshrrev_b32 v3, 5, v0\nv_lshl_add_u32 v3, v3, 4, v2")
        A(f"v_mul_u32_u24 v3, {480 if q else 384}, v3\nv_and_b32 v4, 3, v0\nv_lshl_add_u32 v3, v4, 3, v3\ns_mul_i32 s{sT1}, s{sW}, {nt}")
        if q:
            A(f"s_lshl_b32 s{sT2}, s{sT1}, 5\nv_add_u32 v44, s{sT2}, v3")
        else:
            A("v_lshrrev_b32 v2, 1, v2")
            for t in range(3):
                A(f"s_add_u32 s{sT2}, s{sT1}, {t}\nv_xor_b32 v4, s{sT2}, v2\nv_lshl_add_u32 v{44+t}, v4, 5, v3")
        A(f"s_lshl_b32 s{sT1}, s{sT1}, 6\ns_lshl_b32 s{sT2}, s{sSa}, 10\ns_add_u32 s{sT1}, s{sT1}, s{sT2}\ns_add_u32 s{sT1}, s{sT1}, s9\nv_lshrrev_b32 v2, 4, v0\nv_lshl_add_u32 v47, v2, 4, s{sT1}")
        for r in range(4):
            A(f"v_mov_b32 v{60+r}, 0x3f803f80")
        self.trace(55)
        A(f"s_waitcnt vmcnt({J0})\ns_barrier")
        self.trace(0)
        self.stamp(1)
        A.extend(sum(E[nA + J0: nA + J], []))
        A(f"s_mov_b32 s{sCNT}, 0")
        loop, lw_, lb = (self.lab(x) for x in ("hl", "wt", "bar"))
        pre = (c.preq if q else c.preh) if (c.phase2 and not c.split) else {}
        special = [0, 1, 2, c.cstat, c.cstat + 1]
        lx = {k: self.lab("x") for k in special}
        A.label(loop)
        mark0 = len(A.lines)
        A.extend(rest + head)
        ld = self.lab("dsp")
        A(f"s_bitcmp1_b32 {sum(1 << k for k in special)}, s{sCNT}\ns_cbranch_scc1 {ld}")
        A.label(lw_)
        A(f"s_waitcnt vmcnt({J})")
        A.label(lb)
        A(f"s_add_u32 s{sCNT}, s{sCNT}, 1\ns_cmp_lt_u32 s{sCNT}, 8\ns_barrier")
        self.trace(f"s{sCNT}")
        l8 = self.lab("c8")
        A(f"s_cbranch_scc1 {loop}\ns_branch {l8}")
        if "nodma" in c.abl:
            A.lines[mark0:] = [l for l in A.lines[mark0:] if not l.startswith("buffer_load")]
        if "nobar" in c.abl:
            A.lines[mark0:] = [l for l in A.lines[mark0:] if not l.startswith("s_barrier")]
        A.label(ld)
        for k in special[1:]:
            A(f"s_cmp_eq_u32 s{sCNT}, {k}\ns_cbranch_scc1 {lx[k]}")
        for k in special:
            A.label(lx[k])
            n = 0
            if k == 0:
                l = self.lab("np")
                A(f"buffer_load_dword v{vP}, v{vZ}, {s(DBG_,4)}, 0 offen{COH}")
                A(f"s_cmp_ge_u32 s{sRB}, 10\ns_cbranch_scc1 {l}")
                for t in range(nt):
                    for st in range(2):
                        for hf in range(2):
                            ad, off = (44, 32 * t) if q else (44 + t, 0)
                            A(f"ds_read_b64_tr_b16 {v(64+8*t+4*st+2*hf,2)}, v{ad} offset:{off + wh*(1-st) + 8*(480 if q else 384)*hf}")
                A("s_waitcnt lgkmcnt(0)")
                for st in range(2):
                    for t in range(nt):
                        A(f"{MF} {v(96+4*t,4)}, {v(64+8*t+4*st,4)}, v[60:63], {v(96+4*t,4) if st else 0}")
                A("s_mov_b32 exec_lo, 0x10001\ns_mov_b32 exec_hi, 0x10001")
                for t in range(nt):
                    A(f"buffer_store_dwordx4 {v(96+4*t,4)}, v47, {s(WS_,4)}, 0 offen offset:{64*t}{COH}")
                A(f"s_mov_b64 exec, -1\ns_waitcnt vmcnt({J + 1 + nt})\ns_branch {lb}")
                A.label(l)
                n = 1
            if k == 1:
                A(f"s_waitcnt vmcnt({nA + nB})")
                self.check(vP, vZ, DBG_, 1)
                A(f"s_cmp_lg_u32 s{sW}, 0\ns_cbranch_scc1 {lw_}\nv_mov_b32 v2, 1\ns_mov_b64 exec, 1\nbuffer_atomic_add v2, v20, {s(WS_,4)}, 0 offen sc1\ns_mov_b64 exec, -1")
                n = 1
            if k == 2:
                A(f"s_cmp_ge_u32 s{sRB}, 10\ns_cselect_b32 s{sT0}, 1, s{sW}\ns_cmp_lg_u32 s{sT0}, 0\ns_cbranch_scc1 {lw_}")
                A(f"v_mov_b32 v2, 1\ns_mov_b64 exec, 1\nbuffer_atomic_add v2, v31, {s(WS_,4)}, 0 offen sc1\ns_mov_b64 exec, -1")
                n = 1
            if k == c.cstat:
                A(f"buffer_load_dword v{vP}, v20, {s(WS_,4)}, 0 offen{COH}")
                n = 1
            if k == c.cstat + 1:
                A(f"s_waitcnt vmcnt({nA + nB})")
                self.check(vP, 20, WS_, "v25")
                A(f"buffer_load_dwordx2 {v(vD,2)}, v21, {s(WS_,4)}, 0 offen{COH}")
                for i in range(10):
                    A(f"s_movk_i32 s{sT0}, {K*i}\nbuffer_load_dword v{vS+i}, v28, {s(WS_,4)}, s{sT0} offen{COH}")
                n = 11
            A(f"s_waitcnt vmcnt({J + n})\ns_branch {lb}")
        A.label(l8)
        A.extend(rest + sum(E[:3], []))
        if q:
            l = self.lab("nf")
            A(f"s_cmp_lt_u32 s{sW}, 3\ns_cbranch_scc0 {l}")
            A.extend(E[3])
            A.label(l)
        def stats_to_lds():
            A(f"ds_write_b32 v22, v{vD}\nds_write_b32 v22, v{vD+1} offset:{ST_RSTD}")
            for i in range(1, 10):
                A(f"v_add_f32 v{vS}, v{vS}, v{vS+i}")
            A(f"ds_write_b32 v29, v{vS}")
        bar = "" if "nobar" in c.abl else "s_barrier"
        k1 = self.p2_prefetch(role, pre.get(8, 0))
        A(f"s_waitcnt vmcnt({k1})\n{bar}")
        self.trace(9)
        stats_to_lds()
        k2 = self.p2_prefetch(role, pre.get(9, 0))
        A(f"s_waitcnt lgkmcnt(0)\n{bar}")
        self.trace(10)
        self.stamp(2)
        return k1 + k2

    def row_stats_load(self, role, base):
        A = self.A
        self.l_ns = self.lab("ns")
        l = self.lab("nl")
        A(f"s_cmp_ge_u32 s{sW}, 2\ns_cbranch_scc1 {l}")
        A(f"s_lshl4_add_u32 s{sT0}, s{sRB}, s{sJ}\ns_add_u32 s{sT0}, s{sT0}, {0 if role == 'q' else 8}\ns_lshl1_add_u32 s{sT0}, s{sT0}, s{sW}\ns_lshl_b32 s{sT0}, s{sT0}, 2")
        A(f"v_lshrrev_b32 v{base+20}, 4, v0\nv_add_u32 v{base+20}, s{sT0}, v{base+20}\nv_mul_u32_u24 v{base+21}, 1280, v{base+20}\nv_and_b32 v{base+22}, 15, v0\nv_lshl_add_u32 v{base+21}, v{base+22}, 4, v{base+21}")
        for i in range(5):
            A(f"buffer_load_dwordx4 {v(base+4*i,4)}, v{base+21}, {s(X_,4)}, 0 offen offset:{256*i}")
        A.label(l)

    def code_prefetch(self, tag):
        A, n = self.A, self.c.codepf
        if not n:
            return
        l = self.lab("pc")
        A(f"s_getpc_b64 s[32:33]")
        A.label(l)
        A(f"s_lshr_b32 s{sT0}, s2, 3\ns_lshl2_add_u32 s{sT0}, s{sT0}, s{sW}\ns_mul_i32 s{sT0}, s{sT0}, {64*n}\ns_min_u32 s{sT0}, s{sT0}, L_end_{tag}-L_helper_{tag}-{64*n}")
        A(f"s_sub_u32 s32, s32, {l}-L_helper_{tag}\ns_subb_u32 s33, s33, 0\ns_add_u32 s32, s32, s{sT0}\ns_addc_u32 s33, s33, 0")
        for i in range(n):
            A(f"s_load_dword s101, s[32:33], {64*i}")

    def row_stats_finish(self, base):
        A = self.A
        a, b = base + 22, base + 23
        A(f"s_cmp_ge_u32 s{sW}, 2\ns_cbranch_scc1 {self.l_ns}")
        A(f"v_mov_b32 v{a}, 0\nv_mov_b32 v{b}, 0\nv_mov_b32 v{base+21}, 0x3f803f80\nv_lshlrev_b32 v{base+20}, 3, v{base+20}\nv_add_u32 v{base+20}, {STAT_BASE}, v{base+20}")
        for i in range(5):
            A(f"s_waitcnt vmcnt({4-i})")
            for r in range(4):
                d = base + 4 * i + r
                A(f"v_dot2c_f32_bf16 v{a}, v{d}, v{base+21}\nv_dot2c_f32_bf16 v{b}, v{d}, v{d}")
        for sh in (8, 4, 2, 1):
            A(f"v_add_f32_dpp v{a}, v{a}, v{a} row_ror:{sh} row_mask:0xf bank_mask:0xf\nv_add_f32_dpp v{b}, v{b}, v{b} row_ror:{sh} row_mask:0xf bank_mask:0xf")
        A(f"s_mov_b32 s{sT1}, 0x3acccccd\ns_mov_b32 s{sT2}, 0x3727c5ac")
        A(f"v_mul_f32 v{a}, s{sT1}, v{a}\nv_mul_f32 v{base}, v{a}, v{a}\nv_fma_f32 v{b}, v{b}, s{sT1}, -v{base}\nv_max_f32 v{b}, 0, v{b}\nv_add_f32 v{b}, s{sT2}, v{b}\nv_rsq_f32 v{b}, v{b}")
        A(f"s_mov_b32 exec_lo, 0x10001\ns_mov_b32 exec_hi, 0x10001\nbuffer_store_dwordx2 {v(a,2)}, v{base+20}, {s(WS_,4)}, 0 offen{COH}\ns_mov_b64 exec, -1")
        A.label(self.l_ns)

    def init_flags(self):
        A = self.A
        l = self.lab("nf")
        A(f"s_xor_b32 s{sT0}, s{sW}, 3\ns_or_b32 s{sT0}, s2, s{sT0}\ns_cmp_lg_u32 s{sT0}, 0\ns_cbranch_scc1 {l}")
        A(f"v_lshlrev_b32 v2, 7, v0\nv_add_u32 v2, {FLAG_BASE}, v2\nv_mov_b32 v3, 0\ns_movk_i32 s{sT0}, 0x2000")
        A(f"buffer_store_dword v3, v2, {s(WS_,4)}, 0 offen{COH}\nbuffer_store_dword v3, v2, {s(WS_,4)}, s{sT0} offen{COH}\ns_waitcnt vmcnt(0)")
        A(f"v_mov_b32 v2, 1\ns_mov_b64 exec, 1\nbuffer_store_dword v2, v3, {s(DBG_,4)}, 0 offen{COH}\ns_mov_b64 exec, -1")
        A.label(l)

    def publish(self, role, younger=0):
        l = self.lab("pb")
        a = lines(f"v_mov_b32 v4, {MISC + CTR_OFF}\nv_mov_b32 v5, 1\ns_waitcnt vmcnt({younger})\ns_mov_b64 exec, 1\nds_add_rtn_u32 v7, v4, v5\ns_mov_b64 exec, -1")
        a += lines(f"s_lshr_b32 s{sT0}, s{sJ}, 2\ns_lshl2_add_u32 s{sT0}, s{sRB}, s{sT0}\ns_lshl_b32 s{sT0}, s{sT0}, 7\ns_add_u32 s{sT0}, s{sT0}, {FLAG_BASE + (256 if role == 'q' else 0)}\nv_mov_b32 v4, s{sT0}")
        b = lines(f"v_readfirstlane_b32 s{sT0}, v7\ns_cmp_lg_u32 s{sT0}, 3\ns_cbranch_scc1 {l}\ns_mov_b64 exec, 1\nbuffer_atomic_add v5, v4, {s(WS_,4)}, 0 offen sc1\ns_mov_b64 exec, -1\n{l}:")
        return a, b

    def publish_now(self, role):
        if self.c.split:
            return
        a, b = self.publish(role)
        self.A.extend(a + ["s_waitcnt lgkmcnt(0)"] + b)

    def mfma_loop(self, role, mfmas, frags, fixups, niter, tail):
        A = self.A
        nm = len(mfmas)
        bpos = nm // 2 - 1
        first, last = {}, {}
        for i, (_, fs) in enumerate(mfmas):
            for f in fs:
                first.setdefault(f, i); last[f] = i
        order = sorted(frags, key=lambda f: first[f])
        lastuse = {}
        for f in order:
            lastuse[frags[f][1]] = f
        seq = [(it, f) for it in range(5) for f in order]
        tail = [(max([bpos] + [last[f] for f in fs]), t) for fs, t in tail]
        occupant, ready, part = {}, {}, {}
        for it, f in seq:
            key = frags[f][0]
            e = (it - 1) * nm + bpos
            if key in occupant:
                pit, pf = occupant[key]
                e = max(e, pit * nm + last[pf])
            ready[(it, f)] = e
            occupant[key] = (it, f)
        if role == "q":
            step = lines(f"s_add_u32 s{sH}, s{sH}, 1\ns_cmp_eq_u32 s{sH}, 3\ns_cselect_b32 s{sH}, 0, s{sH}\ns_cselect_b32 s{sT0}, s{sB}, s{sA}")
        else:
            step = lines(f"s_cmp_eq_u32 s{sH}, 0\ns_cselect_b32 s{sH}, 3, s{sH}\ns_cselect_b32 s{sT0}, s{sB}, s{sA}\ns_sub_u32 s{sH}, s{sH}, 1")
        bodies, origin, pend, tags = [], [], list(seq), {}
        T = Asm(); C = Counter(T, "lgkmcnt", 14)
        upd = []
        for it in range(-1, 5):
            T.lines = []
            org = []
            steps = list(step) if 0 <= it < 4 else []
            for i in range(nm):
                g = it * nm + i
                if it >= 0:
                    assert all((it, f) not in pend for f in mfmas[i][1]), "operand read not issued before use"
                    C.wait(max(tags[(it, f)] for f in mfmas[i][1]))
                    T(mfmas[i][0])
                n0 = len(T.lines)
                if it >= 0:
                    for f, pre, tx in fixups:
                        for h in range(2):
                            at = first[f] - pre - 2 + h
                            if at % nm == i:
                                C.wait(tags[(it if at >= 0 else it + 1, f)]); T.extend(tx[2 * h: 2 * h + 2])
                    if i == bpos - 2:
                        T(f"s_sub_u32 s{sCNT}, s{sCNT}, 1")
                    if i == bpos:
                        xs = [(it, f) for f in frags if f[0] == "X"]
                        assert all(x not in pend for x in xs)
                        C.wait(max(tags[x] for x in xs))
                        T("s_waitcnt vmcnt(0)\ns_barrier\ns_cbranch_scc1 @tail")
                if bpos + 3 <= i and steps and len(T.lines) - n0 < 2 and all(u[0] > it for u in upd) and (it, order[-1]) not in pend:
                    T(steps.pop(0))
                nready = sum(1 for x in pend[:6] if ready[x] <= g)
                budget = (2 if nready > 1 or upd or (it == 4 and i > bpos) else 1) - (len(T.lines) - n0)
                while budget > 0:
                    if it == 4 and i > bpos:
                        upd = []
                        if not pend:
                            if tail and tail[0][0] <= i:
                                C.issue(tail.pop(0)[1]); budget -= 1
                                continue
                            break
                    if upd and (upd[0][0] <= it or not steps):
                        ui, ut = upd.pop(0)
                        assert it < 0 or it == 4 or (len(steps) == 0 if ui > it else len(steps) == len(step)), "address update uses the wrong slot step"
                        T(ut); budget -= 1
                        continue
                    if not (pend and ready[pend[0]] <= g):
                        break
                    x = pend[0]
                    k = part.get(x, 0)
                    tags[x] = C.issue(frags[x[1]][2][k])
                    org.append((x[0], T.lines[-1]))
                    part[x] = k + 1
                    budget -= 1
                    if k + 1 == len(frags[x[1]][2]):
                        pend.pop(0)
                        ar = frags[x[1]][1]
                        if lastuse[ar] == x[1]:
                            upd.append((x[0], f"v_add_u32 v{ar}, s{sT0}, v{ar}"))
                            org.append(upd[-1])
            assert it < 0 or not steps
            if it == -1:
                C.done = C.n
            bodies.append(list(T.lines)); origin.append(org)
        assert bodies[2] == bodies[3] == bodies[4], "loop body is not periodic"
        k = bodies[2].index("s_barrier") + 2
        assert bodies[5][:k] == bodies[2][:k], "first half of the last iteration differs from the loop body"
        last_half = bodies[5][bodies[5].index("s_barrier") + 2:] + [t for _, t in tail]
        A.extend(step)
        A.extend([l for o, l in origin[2] if o == 2])
        A("s_waitcnt lgkmcnt(0)")
        for f, pre, tx in fixups:
            for h in range(2):
                if first[f] - pre - 2 + h < 0:
                    A.extend(tx[2 * h: 2 * h + 2])
        loop = self.lab("ml")
        A(f"s_mov_b32 s{sCNT}, {niter - 1}")
        A.label(loop)
        lt = self.lab("tl")
        body = [l.replace("@tail", lt) for l in bodies[2]]
        for key, pat in (("nomfma", "v_mfma"), ("notr", "ds_read_b64_tr"), ("nox", "ds_read_b128"), ("nobar", "s_barrier"), ("nowait", "s_waitcnt"), ("noupd", "v_add_u32")):
            if key in self.c.abl:
                body = [l for l in body if not l.startswith(pat)]
        A.extend(body)
        A(f"s_branch {loop}")
        A.label(lt)
        A.extend(last_half)

    @staticmethod
    def fold_t(a, cs, mr, scale=True):
        o = [f"v_pk_fma_f32 {v(a+h,2)}, {v(cs+h,2)}, {v(mr,2)}, {v(a+h,2)} op_sel_hi:[1,0,1] neg_lo:[0,1,0] neg_hi:[0,1,0]" for h in (0, 2)]
        if scale:
            o += [f"v_pk_mul_f32 {v(a+h,2)}, {v(a+h,2)}, {v(mr,2)} op_sel:[0,1] op_sel_hi:[1,1]" for h in (0, 2)]
        return o

    @staticmethod
    def fold_v(a, csreg, mean4, rstd4):
        p, sel = csreg & ~1, csreg & 1
        o = [f"v_pk_fma_f32 {v(a+h,2)}, {v(mean4+h,2)}, {v(p,2)}, {v(a+h,2)} op_sel:[0,{sel},0] op_sel_hi:[1,{sel},1] neg_lo:[0,1,0] neg_hi:[0,1,0]" for h in (0, 2)]
        return o + [f"v_pk_mul_f32 {v(a+h,2)}, {v(a+h,2)}, {v(rstd4+h,2)}" for h in (0, 2)]

    @staticmethod
    def pack(d, a):
        o = [f"v_cvt_pk_bf16_f32 v{d}, v{a}, v{a+1}", f"v_cvt_pk_bf16_f32 v{d+1}, v{a+2}, v{a+3}"]
        return o[::-1] if d == a + 2 else o

    def compute_h(self):
        A, c = self.A, self.c
        vWa, vX0, vX1 = 8, 14, 15
        XF, WF, ACC, ACS, ONE, RS = 24, 56, 80, 176, 188, 192
        self.srds_compute()
        self.row_stats_load("h", RS)
        self.code_prefetch(self.tag)
        A(f"s_lshr_b32 s{sT3}, s{sW}, 1\ns_mul_i32 s{sT3}, s{sT3}, 6")
        A("v_bfe_u32 v2, v0, 2, 3\nv_lshrrev_b32 v3, 5, v0\nv_lshl_add_u32 v3, v3, 4, v2\nv_mul_u32_u24 v3, 384, v3")
        A("v_and_b32 v4, 3, v0\nv_lshl_add_u32 v3, v4, 3, v3\nv_lshrrev_b32 v2, 1, v2")
        for t in range(6):
            A(f"s_add_u32 s{sT2}, s{sT3}, {t}\nv_xor_b32 v4, s{sT2}, v2\nv_lshl_add_u32 v{vWa+t}, v4, 5, v3")
        A(f"s_and_b32 s{sT0}, s{sW}, 1\ns_lshl_b32 s{sT0}, s{sT0}, 13\ns_add_u32 s{sT0}, s{sT0}, {2*H_WH}")
        self.xfrag_addr(vX0, vX1, sT0, 2)
        for i in range(96):
            A(f"v_mov_b32 v{ACC+i}, 0")
        A(f"v_lshrrev_b32 v2, 4, v0\ns_lshr_b32 s{sT2}, s{sW}, 1\ns_mul_i32 s{sT1}, s{sT2}, 384\ns_add_u32 s{sT1}, s{sT1}, {MISC + CS_OFF}\nv_lshl_add_u32 v16, v2, 4, s{sT1}")
        A(f"v_and_b32 v2, 15, v0\ns_and_b32 s{sT0}, s{sW}, 1\ns_lshl_b32 s{sT1}, s{sT0}, 8\ns_add_u32 s{sT1}, s{sT1}, {MISC}\nv_lshl_add_u32 v17, v2, 2, s{sT1}")
        A(f"v_lshlrev_b32 v18, 4, v0\nv_add_u32 v19, 4096, v18")
        A(f"s_lshl1_add_u32 s{sT0}, s{sRB}, s{sT0}\ns_mul_i32 s{sT0}, s{sT0}, {H_BLK}")
        A(f"s_mul_i32 s{sT1}, s{sJ}, 6\ns_mul_i32 s{sT2}, s{sT2}, 3\ns_add_u32 s{sT1}, s{sT1}, s{sT2}")
        for pr, d in enumerate([sC, sD, sE]):
            A(f"s_add_u32 s{sT2}, s{sT1}, {pr}\ns_lshr_b32 s{sT3}, s{sT2}, 1\ns_lshl_b32 s{sT3}, s{sT3}, 13\ns_and_b32 s{sT2}, s{sT2}, 1\ns_lshl_b32 s{sT2}, s{sT2}, 10")
            A(f"s_add_u32 s{d}, s{sT0}, s{sT3}\ns_add_u32 s{d}, s{d}, s{sT2}")
        A(f"v_mov_b32 v2, {MISC + CTR_OFF}\nv_mov_b32 v3, 0\nds_write_b32 v2, v3")
        self.row_stats_finish(RS)
        A(f"s_mov_b32 s{sA}, {-H_SLOT}\ns_mov_b32 s{sB}, {2*H_SLOT}\ns_mov_b32 s{sH}, 0")
        A("s_waitcnt lgkmcnt(0)\ns_barrier")
        self.stamp(1)
        mf, fr = [], {}
        for st in range(2):
            xa = vX1 if st else vX0
            for i in range(4):
                fr[("X", st, i)] = (("X", st, i), xa, [f"ds_read_b128 {v(XF+16*st+4*i,4)}, v{xa} offset:{2048*i}"])
            for t in range(6):
                fr[("W", st, t)] = (("W", t), vWa + t, [f"ds_read_b64_tr_b16 {v(WF+4*t+2*hf,2)}, v{vWa+t} offset:{H_WH*(1-st)+8*384*hf}" for hf in range(2)])
                for i in range(4):
                    a = v(ACC + 4 * (6 * i + t), 4)
                    mf.append((f"{MF} {a}, {v(WF+4*t,4)}, {v(XF+16*st+4*i,4)}, {a}", [("W", st, t), ("X", st, i)]))
        MR, CS = 216, 176
        tail = [([], f"ds_read2_b32 {v(MR+2*i,2)}, v17 offset0:{16*i} offset1:{16*i+144}") for i in range(4)]
        tail += [([], f"ds_read_b128 {v(CS+4*t,4)}, v16 offset:{64*t}") for t in range(6)]
        self.mfma_loop("h", mf, fr, [], 10, tail)
        self.stamp(2)
        A("s_waitcnt lgkmcnt(0)")
        st_mod = "" if c.split else c.st_mod
        for pr in range(3):
            for i in range(4):
                o = 224 + 4 * ((4 * pr + i) % 6)
                for tt in range(2):
                    t = 2 * pr + tt
                    a = ACC + 4 * (6 * i + t)
                    A.extend(self.fold_t(a, CS + 4 * t, MR + 2 * i) + self.pack(o + 2 * tt, a))
                for r in range(4):
                    A(f"v_pk_max_i16 v{o+r}, v{o+r}, 0")
                A(f"buffer_store_dwordx4 {v(o,4)}, v{19 if i >= 2 else 18}, {s(WS_,4)}, s{[sC,sD,sE][pr]} offen offset:{2048*(i&1)}{st_mod}")
        self.stamp(3)
        if self.resident("h"):
            self.p2_waddr("h")
            A("s_barrier")
            for ch in range(c.nres):
                A.extend(self.p2_wreads("h", ch, self.RES + self.p2geom("h")["N"] // 4 * ch))
        self.publish_now("h")
        if self.resident("h"):
            A("s_barrier")

    def compute_q(self):
        A, c = self.A, self.c
        vW, vX0, vX1, vH0, vH1 = 1, 2, 3, 4, 5
        BC, BP, AC, AP, ONE, vT = 8, 12, 20, 22, 28, 29
        XF, WF, AQ, AK, AV, AH = 36, 60, 120, 160, 200, 240
        RS = 60
        so = [8, 9, 12, 13, 14]
        self.srds_compute()
        self.row_stats_load("q", RS)
        self.code_prefetch(self.tag)
        self.init_flags()
        A(f"v_lshrrev_b32 v6, 4, v0\nv_and_b32 v7, 15, v0\nv_cmp_le_u32 {s(mG1,2)}, 1, v6\nv_cmp_le_u32 {s(mG2,2)}, 2, v6\nv_cmp_le_u32 {s(mG3,2)}, 3, v6")
        A(f"s_or_b32 s{sT3}, s{sRB}, s{sW}\ns_cmp_eq_u32 s{sT3}, 0\ns_cselect_b64 {s(sC,2)}, 0, -1")
        A(f"v_mov_b32 v40, 0xf149f2ca\nv_mov_b32 v41, 0\nv_mov_b32 v42, 0xffff\nv_mov_b32 v43, 0xffff0000")
        for k in range(6):
            A(f"v_mov_b32 v{AC+k}, 0")
        for r in range(4):
            A(f"v_lshl_add_u32 v44, v6, 2, {r}\nv_sub_u32 v45, v7, v44\nv_and_b32 v46, 0x80000001, v45\nv_cmp_eq_u32 vcc, 0, v46")
            A(f"v_cndmask_b32 v{BC+r}, v40, v41, vcc\nv_cndmask_b32 v47, v41, v{42+(r&1)}, vcc\nv_or_b32 v{AC+(r>>1)}, v{AC+(r>>1)}, v47")
            A(f"v_cmp_eq_u32 vcc, 0x80000000, v46")
            A(f"v_cndmask_b32 v{BP+4+r}, v40, v41, vcc\nv_cndmask_b32 v47, v41, v{42+(r&1)}, vcc\nv_or_b32 v{AP+2+(r>>1)}, v{AP+2+(r>>1)}, v47")
            A(f"s_and_b64 vcc, vcc, {s(sC,2)}")
            A(f"v_cndmask_b32 v{BP+r}, v40, v41, vcc\nv_cndmask_b32 v47, v41, v{42+(r&1)}, vcc\nv_or_b32 v{AP+(r>>1)}, v{AP+(r>>1)}, v47")
        A(f"v_mov_b32 v{ONE}, 0x3f803f80")
        A(f"s_lshl_b32 s{sT0}, s{sW}, 7\ns_add_u32 s{sT0}, s{sT0}, {MISC + 64}\ns_mov_b32 s{sT1}, {MISC}\ns_mov_b32 s{sT2}, {MISC + CS_OFF}")
        A(f"v_lshl_add_u32 v{vT}, v7, 2, s{sT0}\nv_lshl_add_u32 v{vT+1}, v7, 2, s{sT1}\nv_lshl_add_u32 v{vT+2}, v6, 4, s{sT0}\nv_lshl_add_u32 v{vT+3}, v6, 4, s{sT1}")
        A(f"v_lshl_add_u32 v{vT+4}, v6, 4, s{sT2}\nv_lshl_add_u32 v{vT+5}, v7, 2, s{sT2}")
        A(f"s_mul_i32 s{sT0}, s{sW}, 5120\ns_add_u32 s{sT0}, s{sT0}, {16*K}\nv_lshl_add_u32 v26, v0, 4, s{sT0}\nv_lshl_add_u32 v35, v0, 3, s{sT0}\nv_lshlrev_b32 v27, 3, v0")
        A(f"s_lshr_b32 s{sT0}, s{sW}, 1\ns_lshl1_add_u32 s{sT0}, s{sRB}, s{sT0}\ns_mul_i32 s{sT0}, s{sT0}, {O_BLK}\ns_and_b32 s{sT1}, s{sW}, 1\ns_lshl_b32 s{sT1}, s{sT1}, 12")
        A(f"s_add_u32 s{sT0}, s{sT0}, s{sT1}\ns_add_u32 s{sT0}, s{sT0}, {O_BASE}\ns_mul_i32 s{sT1}, s{sJ}, 5")
        for t in range(5):
            A(f"s_add_u32 s{sT2}, s{sT1}, {t}\ns_lshr_b32 s{sT3}, s{sT2}, 2\ns_lshl_b32 s{sT3}, s{sT3}, 13\ns_and_b32 s{sT2}, s{sT2}, 3\ns_lshl_b32 s{sT2}, s{sT2}, 9")
            A(f"s_add_u32 s{so[t]}, s{sT0}, s{sT3}\ns_add_u32 s{so[t]}, s{so[t]}, s{sT2}")
        A(f"v_bfe_u32 v6, v0, 2, 3\nv_lshrrev_b32 v7, 5, v0\nv_lshl_add_u32 v6, v7, 4, v6\nv_mul_u32_u24 v6, 480, v6\nv_and_b32 v7, 3, v0\nv_lshl_add_u32 v{vW}, v7, 3, v6")
        A(f"s_lshl_b32 s{sT0}, s{sW}, 12\ns_add_u32 s{sT0}, s{sT0}, {2*Q_WH + 2048}")
        self.xfrag_addr(vX0, vX1, sT0, 6)
        A(f"s_mov_b32 s{sT0}, {2*Q_WH}")
        self.xfrag_addr(vH0, vH1, sT0, 6)
        for i in range(AQ, 256):
            A(f"v_mov_b32 v{i}, 0")
        A(f"v_lshlrev_b32 v6, 2, v0\nv_add_u32 v6, {MISC + CTR_OFF}, v6\nv_mov_b32 v7, 0\nds_write_b32 v6, v7")
        self.row_stats_finish(RS)
        A(f"s_mov_b32 s{sA}, {Q_SLOT}\ns_mov_b32 s{sB}, {-2*Q_SLOT}\ns_mov_b32 s{sH}, 0")
        A("s_waitcnt lgkmcnt(0)\ns_barrier")
        self.stamp(1)
        lw = [self.lab("qw") for _ in range(4)]
        le1 = self.lab("e1")
        A(f"s_cmp_eq_u32 s{sW}, 1\ns_cbranch_scc1 {lw[1]}\ns_cmp_eq_u32 s{sW}, 2\ns_cbranch_scc1 {lw[2]}\ns_cmp_eq_u32 s{sW}, 3\ns_cbranch_scc1 {lw[3]}")
        accq = lambda t, p: (AQ + 20 * p + 4 * t) if t < 5 else (AK + 20 * p + 4 * (t - 5)) if t < 10 else (AV + 8 * (t - 10) + 4 * p)
        halo = [[t for t in range(5, 15) if (t - 5) % 4 == w] for w in range(4)]
        MR, CSV, CSK, CSQ = 36, 42, 60, 80
        VMM, VMR = (100, 104, 48), (108, 112, 52)
        XB = 16 * K
        tail = [([], f"ds_read2_b32 {v(MR,2)}, v{vT} offset0:0 offset1:144"), ([], f"ds_read2_b32 {v(MR+2,2)}, v{vT} offset0:16 offset1:160"),
                ([], f"ds_read2_b32 {v(MR+4,2)}, v{vT+1} offset0:0 offset1:144")]
        tail += [([], f"ds_read_b32 v{CSV+t}, v{vT+5} offset:{64*(10+t)}") for t in range(5)]
        tail += [([("W", 1, t)], f"ds_read_b128 {v(CSK+4*t,4)}, v{vT+4} offset:{64*(5+t)}") for t in range(5)]
        tail += [([("W", 1, 5 + t)], f"ds_read_b128 {v(CSQ+4*t,4)}, v{vT+4} offset:{64*t}") for t in range(5)]
        for i in range(3):
            ad, off = (vT + 2, 64 * i) if i < 2 else (vT + 3, 0)
            for reg, o2 in ((VMM[i], 0), (VMR[i], ST_RSTD)):
                tail.append(([("W", 1, (reg - WF) // 4 if reg >= WF else 14)], f"ds_read_b128 {v(reg,4)}, v{ad} offset:{off + o2}"))
        tail[18:] = sorted(tail[18:], key=lambda x: x[0][0][2])
        for w in range(4):
            A.label(lw[w])
            mf, fr, fix = [], {}, []
            for st in range(2):
                for i in range(3):
                    xa = [vH0, vH1][st] if i == 2 else [vX0, vX1][st]
                    fr[("X", st, i)] = (("X", st, i), xa, [f"ds_read_b128 {v(XF+12*st+4*i,4)}, v{xa} offset:{2048*i if i < 2 else 0}"])
                for t in range(15):
                    fr[("W", st, t)] = (("W", t), vW, [f"ds_read_b64_tr_b16 {v(WF+4*t+2*hf,2)}, v{vW} offset:{Q_WH*(1-st)+8*480*hf+32*t}" for hf in range(2)])
                    for i in [0, 1] + ([2] if t in halo[w] else []):
                        a = v(accq(t, i) if i < 2 else AH + 4 * halo[w].index(t), 4)
                        wf, xf = v(WF + 4 * t, 4), v(XF + 12 * st + 4 * i, 4)
                        ops = f"{wf}, {xf}" if t < 10 else f"{xf}, {wf}"
                        mf.append((f"{MF} {a}, {ops}, {a}", [("W", st, t), ("X", st, i)]))
            self.mfma_loop("q", mf, fr, fix, 10, tail)
            if w < 3:
                A(f"s_branch {le1}")
        A.label(le1)
        self.stamp(2); self.estamp(1)
        A(f"v_lshlrev_b32 v7, 3, v0\nv_add_u32 v6, {XB}, v7\nv_add_u32 v7, v6, v7\ns_waitcnt lgkmcnt(6)")
        self.estamp(2)
        KC = lambda p: AK + 10 * p
        KP = AK + 20
        foldk = lambda p, t: self.fold_t(AK + 20 * p + 4 * t, CSK + 4 * t, MR + 2 * p) + self.pack(KC(p) + 2 * t, AK + 20 * p + 4 * t)
        def foldv(p, t):
            a = AV + 8 * t + 4 * p
            return self.fold_v(a, CSV + t, VMM[p], VMR[p]) + self.pack(AV + 8 * t + 4 + 2 * p, a)
        for t in range(5):
            A.extend(foldk(0, t))
        wr = {}
        wr["k"] = [f"ds_write_b128 v26, {v(KC(1),4)} offset:5120", f"ds_write_b128 v26, {v(KC(1)+4,4)} offset:6144", f"ds_write_b64 v35, {v(KC(1)+8,2)} offset:7168"]
        lh = [self.lab("hw") for _ in range(5)]
        for t in range(5):
            A.extend(foldk(1, t))
        A(f"s_waitcnt lgkmcnt(0)\ns_cmp_eq_u32 s{sW}, 1\ns_cbranch_scc1 {lh[1]}\ns_cmp_eq_u32 s{sW}, 2\ns_cbranch_scc1 {lh[2]}\ns_cmp_eq_u32 s{sW}, 3\ns_cbranch_scc1 {lh[3]}")
        for w in range(4):
            A.label(lh[w])
            blocks = []
            for t in halo[w]:
                a = AH + 4 * halo[w].index(t)
                if 5 <= t < 10:
                    k = t - 5
                    blocks.append(self.fold_t(a, CSK + 4 * k, MR + 4) + self.pack(a, a) +
                                  [f"ds_write_b64 v7, {v(a,2)} offset:{K*(k>>1)+8*(k&1)}" if k < 4 else f"ds_write_b64 v6, {v(a,2)} offset:2048"])
                elif t >= 10:
                    k = t - 10
                    blocks.append(self.fold_v(a, CSV + k, VMM[2], VMR[2]) + self.pack(a, a) + [f"ds_write_b64 v6, {v(a,2)} offset:{2560+512*k}"])
            for t in range(5):
                blocks.append(foldv(1, t) + ([f"ds_write_b64 v35, {v(AV+8*t+6,2)} offset:{5120+2560+512*t}"] if w < 3 else []))
            seq = sum(blocks, [])
            A.extend(weave(seq, wr["k"] if w < 3 else [], 14, 1))
            if w < 3:
                A(f"s_branch {lh[4]}")
        A.label(lh[4])
        for t in range(5):
            A.extend(foldv(0, t))
        A(f"s_mov_b32 s{sT0}, 0x3ea52b5c\nv_mul_f32 v{MR+1}, s{sT0}, v{MR+1}\nv_mul_f32 v{MR+3}, s{sT0}, v{MR+3}")
        QH = lambda p, h: 42 + 16 * p + 4 * h
        masks = [None, mG1, mG2, mG3]
        def foldq(p):
            o = []
            for t in range(5):
                a = AQ + 20 * p + 4 * t
                d = QH(p, 0) if t == 0 else (QH(p, 3) + 2 if t == 4 else a)
                o += self.fold_t(a, CSQ + 4 * t, MR + 2 * p, scale=False) + self.pack(d, a)
                if 1 <= t <= 3:
                    for r in range(2):
                        o += [f"v_cndmask_b32 v{QH(p,t)+r}, 0, v{a+r}, {s(masks[t],2)}", f"v_cndmask_b32 v{QH(p,t-1)+2+r}, v{a+r}, 0, {s(masks[t],2)}"]
            return o
        A(f"v_mov_b32 v1, {MISC + XFL_OFF}\nv_mov_b32 v2, 1\nv_mov_b32 v3, 4\ns_lshl_b32 s{sT0}, s{sW}, 2\nv_add_u32 v4, s{sT0}, v1")
        A(f"s_waitcnt lgkmcnt(0)\ns_mov_b64 exec, 1\nds_add_u32 v1, v2\nds_write_b32 v4, v3 offset:4\ns_mov_b64 exec, -1")
        A.extend(foldq(1))
        self.estamp(3)
        A("ds_read_b32 v5, v4")
        SP = lambda p, h: (140 + 8 * h if h < 2 else 240 + 8 * (h - 2)) if p else 74 + 8 * h
        MX, MRS, ONE4 = 106, 114, 116
        def qk(p):
            prev = KC(0) if p else KP
            return [f"{MF} {v(SP(p,h)+4,4)}, {v(KC(p)+2*h,4)}, {v(QH(p,h),4)}, {v(BC,4)}" for h in range(4)] + \
                   [f"{MF} {v(SP(p,h),4)}, {v(prev+2*h,4)}, {v(QH(p,h),4)}, {v(BP+4*p,4)}" for h in range(4)]
        def rowmax(p):
            o, m = [], MX + 4 * p
            for h in range(4):
                b = SP(p, h)
                o += [f"v_max_f32 v{b+4+r}, v{b+r}, v{b+4+r}" for r in range(4)]
                o += [f"v_max3_f32 v{m+h}, v{b+4}, v{b+5}, v{b+6}", f"v_max_f32 v{m+h}, v{m+h}, v{b+7}"]
            o += lines(f"v_permlane32_swap_b32 v{m}, v{m+1}\nv_permlane32_swap_b32 v{m+2}, v{m+3}\nv_max_f32 v{m}, v{m}, v{m+1}\nv_max_f32 v{m+2}, v{m+2}, v{m+3}")
            o += lines(f"v_permlane16_swap_b32 v{m}, v{m+2}\nv_max_f32 v{m}, v{m}, v{m+2}\nv_mul_f32 v{m}, v{m}, v{MR+2*p+1}\nv_mov_b32 v{m+2}, v{m}\nv_permlane16_swap_b32 v{m}, v{m+2}")
            o += lines(f"v_mov_b32 v{m+1}, v{m}\nv_mov_b32 v{m+3}, v{m+2}\nv_permlane32_swap_b32 v{m}, v{m+1}\nv_permlane32_swap_b32 v{m+2}, v{m+3}")
            return o
        def probs(p):
            o = []
            for h in range(4):
                b, m = SP(p, h), MX + 4 * p + h
                o += [f"v_pk_fma_f32 {v(b+4+r,2)}, {v(b+4+r,2)}, {v(MR+2*p,2)}, {v(m & ~1,2)} op_sel:[0,1,{m&1}] op_sel_hi:[1,1,{m&1}] neg_lo:[0,0,1] neg_hi:[0,0,1]" for r in (0, 2)]
                o += [f"v_exp_f32 v{b+4+r}, v{b+4+r}" for r in range(4)]
            for h in range(4):
                b = SP(p, h)
                o += self.pack(b + 4, b + 4)
                o += lines(f"v_and_b32 v{b}, v{AP+2*p}, v{b+4}\nv_and_b32 v{b+1}, v{AP+2*p+1}, v{b+5}\nv_and_b32 v{b+2}, v{AC}, v{b+4}\nv_and_b32 v{b+3}, v{AC+1}, v{b+5}")
            return o
        OT = {}
        pool = {1: list(range(42, 74, 4)), 0: list(range(160, 192, 4))}
        def pv(p):
            o = [f"{MF} {v(SP(p,h)+4,4)}, {v(ONE4,4)}, {v(SP(p,h),4)}, 0" for h in range(4)]
            for t in range(5):
                for h in ([t - 1] if t >= 1 else []) + ([t] if t <= 3 else []):
                    OT[(p, t, h)] = pool[p].pop(0)
                    o.append(f"{MF} {v(OT[(p,t,h)],4)}, {v(AV+8*t+2+2*p,4)}, {v(SP(p,h),4)}, 0")
            return o
        st_mod = "" if c.split else c.st_mod
        def final(p):
            m0 = MX + 4 * p
            o = [f"v_rcp_f32 v{m0+h}, v{SP(p,h)+4}" for h in range(4)]
            for t in range(5):
                if 1 <= t <= 3:
                    a, b2 = OT[(p, t, t - 1)], OT[(p, t, t)]
                    o += [f"v_cndmask_b32 v{a+r}, v{a+r}, v{b2+r}, {s(masks[t],2)}" for r in range(4)]
                    o.append(f"v_cndmask_b32 v{b2}, v{m0+t-1}, v{m0+t}, {s(masks[t],2)}")
                    m = b2
                else:
                    a, m = OT[(p, t, min(t, 3))], m0 + min(t, 3)
                o += [f"v_pk_mul_f32 {v(a+r,2)}, {v(a+r,2)}, {v(m & ~1,2)} op_sel:[0,{m&1}] op_sel_hi:[1,{m&1}]" for r in (0, 2)]
                o += self.pack(a, a)
                o.append(f"buffer_store_dwordx2 {v(a,2)}, v27, {s(WS_,4)}, s{so[t]} offen offset:{2048*p}{st_mod}")
            return o
        A.extend(weave(foldq(0), qk(1), 3, 1))
        lx, ly = self.lab("xs"), self.lab("xd")
        A(f"s_waitcnt lgkmcnt(0)\nv_cmp_gt_u32 vcc, 4, v5\ns_cbranch_vccz {ly}\ns_mov_b32 s{sT1}, {SPIN_LIMIT}")
        A.label(lx)
        A(f"ds_read_b32 v5, v4\ns_waitcnt lgkmcnt(0)\nv_cmp_gt_u32 vcc, 4, v5\ns_cbranch_vccz {ly}\ns_sub_u32 s{sT1}, s{sT1}, 1\ns_cbranch_scc0 {lx}")
        A.label(ly)
        self.estamp(4)
        A(f"ds_read_b128 {v(KP,4)}, v26\nds_read_b128 {v(KP+4,4)}, v26 offset:1024\nds_read_b64 {v(KP+8,2)}, v35 offset:2048")
        for t in range(5):
            A(f"ds_read_b64 {v(AV+8*t+2,2)}, v35 offset:{2560+512*t}")
        A.extend([f"v_mov_b32 v{ONE4+r}, v{ONE}" for r in range(4)] + rowmax(1))
        self.estamp(5)
        A("s_waitcnt lgkmcnt(0)")
        A.extend(weave(probs(1), qk(0), 3, 1))
        A.extend(weave(rowmax(0) + probs(0), pv(1), 3, 2))
        self.estamp(6)
        A.extend(weave(final(1), pv(0), 3, 2))
        A.extend(final(0))
        self.stamp(3); self.estamp(7)
        if not (c.phase2 and c.pubq) or self.selfrun("q"):
            self.publish_now("q")

    def p2geom(self, role):
        wide = self.c.wide == role
        kb = lambda *x: [i * K for i in x]
        if role == "q" and not wide:
            return dict(N=64, nW=2, w=kb(64, 72, 80, 88, 112, 120, 128, 136), wbase=kb(64, 112), a=kb(144, 48, 56, 96, 104, 40), abase=kb(40, 96))
        if role == "q":
            return dict(N=96, nW=3, w=kb(144, 84, 132, 120, 108, 96), wbase=kb(84, 120), a=kb(76, 68, 60, 52, 44, 36), abase=kb(36, 160))
        if wide:
            return dict(N=96, nW=3, w=kb(144, 132, 120, 108, 96, 84, 72, 60), wbase=kb(60, 108), a=kb(52, 44, 36, 28, 20, 12), abase=kb(12, 160))
        return dict(N=64, nW=2, w=kb(144, 136, 128, 120, 112, 104, 96, 88, 80, 72), wbase=kb(72, 112), a=kb(64, 56, 48, 40, 32, 24, 16), abase=kb(16, 160))

    P2W, P2A, P2F, P2L, STG = 48, 51, 52, 56, 64
    sPW, sPA, sPM, sPN, sPB, sBW, sOWN, sOTH = 4, 5, 6, 7, 8, 11, 16, 17
    SEG = {0: (12, 1), 12: (12, 0), 24: (5, 1), 29: (5, 0)}

    RES = 160
    s1280 = 999

    def resident(self, role):
        c = self.c
        return c.nres if (role == "h" and c.phase2 and not c.split) else 0

    def p2_waddr(self, role):
        A, g = self.A, self.p2geom(role)
        N = g["N"]; NT = N // 32; vWa = 8
        A(f"v_lshrrev_b32 v3, 4, v0\nv_bfe_u32 v2, v0, 2, 2\nv_lshl_add_u32 v2, v3, 2, v2\nv_mul_u32_u24 v4, {2*N}, v2\nv_and_b32 v5, 3, v0\nv_lshl_add_u32 v4, v5, 3, v4")
        A("v_bfe_u32 v2, v2, 1, 2" if N == 64 else "v_and_b32 v2, 1, v3")
        A(f"s_lshr_b32 s{sT0}, s{sW}, 1\ns_mul_i32 s{sT0}, s{sT0}, {NT}")
        for i in range(NT):
            A(f"s_add_u32 s{sT1}, s{sT0}, {i}\nv_xor_b32 v3, s{sT1}, v2\nv_lshl_add_u32 v3, v3, 5, v4\nv_add_u32 v{vWa+i}, {g['wbase'][0]}, v3\nv_add_u32 v{vWa+3+i}, {g['wbase'][1]}, v3")

    def p2_wreads(self, role, ch, base, ks_list=(0, 1)):
        g = self.p2geom(role)
        N = g["N"]; NT = N // 32
        wb = 1 if g["w"][ch % len(g['w'])] >= g["wbase"][1] else 0
        wo = g["w"][ch % len(g['w'])] - g["wbase"][wb]
        return [f"ds_read_b64_tr_b16 {v(base+4*(NT*ks+i)+2*hf,2)}, v{8+3*wb+i} offset:{wo+(32*ks+16*hf)*2*N}"
                for ks in ks_list for i in range(NT) for hf in range(2)]

    def p2_colbytes(self, N):
        if N == 64:
            self.A(f"s_lshl_b32 s{sCOL}, s{sCOL}, 7\ns_add_u32 s{sCOL}, s{sCOL}, 768")
        else:
            self.A(f"s_mul_i32 s{sCOL}, s{sCOL}, 192")

    def p2_loader_setup(self, role):
        A, g = self.A, self.p2geom(role)
        self.wnext = 0
        if not self.c.phase2:
            return
        self.p2_colbytes(g["N"])
        if g["N"] == 64:
            A(f"v_lshrrev_b32 v2, 3, v0\nv_and_b32 v3, 6, v2\nv_and_b32 v4, 7, v0\nv_xor_b32 v3, v3, v4\nv_mul_u32_u24 v2, 1280, v2\nv_lshl_add_u32 v2, v3, 4, v2")
            A(f"s_mul_i32 s{sT0}, s{sW}, {16*1280}\ns_add_u32 s{sT0}, s{sT0}, s{sCOL}\nv_add_u32 v{self.P2W}, s{sT0}, v2\nv_add_u32 v{self.P2W+1}, {8*1280-K}, v{self.P2W}")
        else:
            for i in range(3):
                A(f"s_mul_i32 s{sT0}, s{sW}, 192\ns_add_u32 s{sT0}, s{sT0}, {64*i}\nv_add_u32 v2, s{sT0}, v0")
                A("v_mul_u32_u24 v3, 5462, v2\nv_lshrrev_b32 v3, 16, v3\nv_mul_u32_u24 v4, 12, v3\nv_sub_u32 v2, v2, v4")
                A("v_lshrrev_b32 v4, 1, v3\nv_and_b32 v4, 2, v4\nv_xor_b32 v2, v2, v4\nv_mul_u32_u24 v3, 1280, v3\nv_lshl_add_u32 v2, v2, 4, v3")
                A(f"s_sub_u32 s{sT0}, s{sCOL}, {K*i}\nv_add_u32 v{self.P2W+i}, s{sT0}, v2")
        A(f"s_lshl_b32 s{self.sPN}, s{sW}, 11\nv_lshl_add_u32 v{self.P2A}, v0, 4, s{self.sPN}")
        if self.selfrun(role):
            srd(A, OUT_, 16, 2048 * 1280)
        A(f"s_lshr_b32 s{self.sOWN}, s{sJ}, 2\ns_xor_b32 s{self.sOTH}, s{self.sOWN}, 1\ns_lshl_b32 s{sT0}, s{sRB}, 9\ns_add_u32 s{sT0}, s{sT0}, {FLAG_BASE}")
        A(f"s_lshl_b32 s{sT1}, s{self.sOTH}, 7\ns_add_u32 s{sT1}, s{sT1}, s{sT0}\nv_mov_b32 v{self.P2F}, s{sT1}\nv_xor_b32 v{self.P2F+1}, 128, v{self.P2F}")
        A(f"s_mul_i32 s{self.sPM}, s{sW}, {K*g['nW']}")
        if self.c.touch and not self.c.split:
            A(f"s_bfe_u32 s{sT0}, s2, 0x40003\ns_lshl2_add_u32 s{sT0}, s{sT0}, s{sW}\nv_mul_u32_u24 v2, 52, v0\nv_lshrrev_b32 v2, 8, v2\nv_mul_u32_u24 v3, 5, v2\nv_sub_u32 v3, v0, v3")
            A(f"s_lshl_b32 s{sT1}, s{self.sOWN}, 7\ns_sub_u32 s{sT1}, 384, s{sT1}\nv_mov_b32 v4, s{sT1}\nv_cmp_le_u32 vcc, 3, v3\nv_cndmask_b32 v4, 0, v4, vcc\nv_lshl_add_u32 v3, v3, 7, v4")
            A(f"v_min_u32 v4, 11, v2\nv_min_u32 v2, 9, v2\nv_mad_u32_u24 v4, v4, s{self.s1280}, v3\nv_mad_u32_u24 v2, v2, s{self.s1280}, v3".replace(f"s{self.s1280}", f"s{sT3}").replace("v_min_u32 v4, 11", f"s_movk_i32 s{sT3}, 1280\nv_min_u32 v4, 11"))
            A(f"s_mul_i32 s{sT1}, s{self.sOWN}, {768*1280 + 384}\ns_mul_i32 s{sT2}, s{sT0}, {12*1280}\ns_add_u32 s{sT1}, s{sT1}, s{sT2}\nv_add_u32 v42, s{sT1}, v4")
            A(f"s_mul_i32 s{sT1}, s{self.sOWN}, 384\ns_mul_i32 s{sT2}, s{sT0}, {10*1280}\ns_add_u32 s{sT1}, s{sT1}, s{sT2}\nv_add_u32 v43, s{sT1}, v2")

    def p2_prep_w(self, cw):
        lim, d = (12 if cw < 24 else 5), (sT2, 12)[cw & 1]
        o = []
        if cw in self.SEG:
            o += lines(f"s_mov_b32 s{self.sPW}, s{sROT2 if cw < 24 else sROT3}\ns_mul_i32 s{self.sBW}, s{self.sOTH if self.SEG[cw][1] else self.sOWN}, {lim}")
        return o + lines(f"s_cmp_ge_u32 s{self.sPW}, {lim}\ns_cselect_b32 s{d}, {lim}, 0\ns_sub_u32 s{self.sPW}, s{self.sPW}, s{d}\ns_add_u32 s{d}, s{self.sPW}, s{self.sBW}\ns_mul_i32 s{d}, s{d}, {64*1280}\ns_add_u32 s{self.sPW}, s{self.sPW}, 1")

    def p2_issue_w(self, role, cw, C=None, fill=()):
        A, g = self.A, self.p2geom(role)
        emit = (C.issue if C else A)
        A(f"s_add_u32 m0, s{self.sPM}, {g['w'][cw % len(g['w'])]}")
        for i in range(g["nW"]):
            tag = emit(f"buffer_load_dwordx4 v{self.P2W+i}, {s(W2_ if cw < 24 else WO_,4)}, s{(sT2, 12)[cw & 1]} offen offset:{K*i} lds")
            if i == 0:
                A.extend(fill)
        return tag

    def p2_prep_a(self, ca):
        lim, d = (12 if ca < 24 else 5), (sT3, 13)[ca & 1]
        o = []
        if ca in self.SEG:
            o += lines(f"s_mov_b32 s{self.sPA}, s{sROT2 if ca < 24 else sROT3}\ns_mul_i32 s{self.sPB}, s{sBLK}, {H_BLK if ca < 24 else O_BLK}\ns_mul_i32 s{d}, s{self.sOTH if self.SEG[ca][1] else self.sOWN}, {8192*lim}")
            o += lines(f"s_add_u32 s{self.sPB}, s{self.sPB}, s{d}\ns_add_u32 s{self.sPB}, s{self.sPB}, {H_BASE if ca < 24 else O_BASE}")
        return o + lines(f"s_cmp_ge_u32 s{self.sPA}, {lim}\ns_cselect_b32 s{d}, {lim}, 0\ns_sub_u32 s{self.sPA}, s{self.sPA}, s{d}\ns_lshl_b32 s{d}, s{self.sPA}, 13\ns_add_u32 s{d}, s{d}, s{self.sPB}\ns_add_u32 s{self.sPA}, s{self.sPA}, 1")

    def p2_issue_a(self, role, ca, C, set_m0=True, fill=()):
        A, g = self.A, self.p2geom(role)
        if set_m0:
            A(f"s_add_u32 m0, s{self.sPN}, {g['a'][ca % len(g['a'])]}")
        mod = "" if self.c.split else self.c.ld_mod
        for i in range(2):
            tag = C.issue(f"buffer_load_dwordx4 v{self.P2A}, {s(WS_,4)}, s{(sT3, 13)[ca & 1]} offen offset:{K*i}{mod} lds")
            if i == 0:
                A.extend(fill)
        return tag

    def p2_prefetch(self, role, upto):
        k = 0
        while self.wnext < upto:
            self.A.extend(self.p2_prep_w(self.wnext))
            self.p2_issue_w(role, self.wnext)
            self.wnext += 1
            k += self.p2geom(role)["nW"]
        return k

    def p2_loader(self, role, pending):
        A, g, c = self.A, self.p2geom(role), self.c
        C = Counter(A, "vmcnt", 62)
        RW, RA, nW, NR = len(g["w"]), len(g["a"]), g["nW"], self.resident(role)
        tw, ta, later = {}, {}, []
        vR = self.P2F + 2
        def next_w():
            A.extend(self.p2_prep_w(self.wnext))
            tw[self.wnext] = self.p2_issue_w(role, self.wnext, C)
            self.wnext += 1
        def one_a(ca):
            A.extend(self.p2_prep_a(ca)); ta[ca] = self.p2_issue_a(role, ca, C)
        def poll(seg):
            return C.issue(f"buffer_load_dword v{vR}, v{self.P2F + 1 - self.SEG[seg][1]}, {s(WS_,4)}, 0 offen offset:{256 * (seg >= 24)}{COH}")
        def confirm(seg, tag):
            C.wait(tag)
            self.check(vR, self.P2F + 1 - self.SEG[seg][1], WS_, 4, 256 * (seg >= 24))
        C.n = pending
        for cw in range(self.wnext):
            tw[cw] = max(0, pending - nW * (self.wnext - 1 - cw))
        if c.split:
            next_w()
            for ca in range(RA):
                one_a(ca)
            while self.wnext < RW:
                next_w()
        else:
            if NR:
                assert self.wnext >= NR
                C.wait(tw[NR - 1])
                A("s_barrier\ns_barrier")
            stop = min(RW + NR, self.wnext + c.gapw) if role == "h" else RW
            while self.wnext < stop - 2:
                next_w()
            pollt = poll(0)
            while self.wnext < stop:
                next_w()
            confirm(0, pollt)
            self.trace(11)
            self.stamp(3)
            for ca in range(c.na0[role]):
                one_a(ca)
            later = [lambda ca=ca: one_a(ca) for ca in range(c.na0[role], RA)] + [next_w] * (RW + NR - self.wnext)
            if role == "q" and c.touch:
                C.issue(f"buffer_load_dword v58, v42, {s(W2_,4)}, 0 offen")
                if c.touch == "q":
                    C.issue(f"buffer_load_dword v59, v43, {s(WO_,4)}, 0 offen")
        want_a = lambda ch: ch >= 2 and ch - 2 + RA < 34
        want_w = lambda ch: ch >= 2 + NR and ch - 2 + RW < 34
        state = dict(pollt=None)

        def epoch(ch, set_m0):
            ca, cw = ch - 2 + RA, ch - 2 + RW
            for _ in range(-(-len(later) // (2 - ch)) if later else 0):
                later.pop(0)()
            if ca in (12, 24, 29) and not c.split:
                if ca == 24:
                    self.stamp(4)
                confirm(ca, state["pollt"])
                if ca == 24:
                    self.stamp(5)
            if ca + 2 in (12, 24, 29) and not c.split:
                state["pollt"] = poll(ca + 2)
            pa = self.p2_prep_a(ca + 1) if want_a(ch + 1) else []
            pw = self.p2_prep_w(cw + 1) if want_w(ch + 1) else []
            if want_a(ch):
                ta[ca] = self.p2_issue_a(role, ca, C, set_m0, pa); pa = []
            if want_w(ch):
                tw[cw] = self.p2_issue_w(role, cw, C, pw); pw = []
            A.extend(pa + pw)

        if self.selfrun(role):
            self.p2_compute(role, (C, ta, tw, epoch))
            return
        for ch in range(34):
            if want_a(ch):
                A(f"s_add_u32 m0, s{self.sPN}, {g['a'][(ch - 2 + RA) % RA]}")
            C.wait(max(ta[ch], tw[ch]))
            A("s_barrier")
            self.trace(12 + ch)
            epoch(ch, c.trace)
        self.stamp(6)

    def selfrun(self, role):
        c = self.c
        return role == "q" and c.selfq and c.phase2 and not c.split

    def p2_compute(self, role, own=None):
        A, g, c = self.A, self.p2geom(role), self.c
        N = g["N"]; NT = N // 32; RB = 2 * N
        vB, vO, vRow = (14, 10), (15, 13), 6
        NR = self.resident(role)
        ACC, FB, FW, XR = (64, 88, 120, 168) if own else (16, 40, 72, 120)
        if not own:
            self.p2_colbytes(N)
        A(f"s_and_b32 s{sT0}, s{sW}, 1\ns_lshl1_add_u32 s{sT0}, s{sBLK}, s{sT0}\ns_mul_i32 s{sT0}, s{sT0}, {32*1280}\ns_add_u32 s{sT0}, s{sT0}, s{sCOL}")
        A(f"s_lshr_b32 s{sT1}, s{sW}, 1\ns_mul_i32 s{sT1}, s{sT1}, {32*NT}\ns_add_u32 s{sF}, s{sT0}, s{sT1}\ns_add_u32 s{sE}, s{sF}, {16*1280}")
        A(f"v_and_b32 v2, 15, v0\nv_mul_u32_u24 v{vRow}, 1280, v2\nv_lshrrev_b32 v3, 4, v0\nv_lshl_add_u32 v2, v3, 3, v{vRow}")
        for p in range(2):
            for i in range(NT):
                tx = (own[0].issue if own else A)(f"buffer_load_dwordx2 {v(XR+2*(NT*p+i),2)}, v2, {s(X_,4)}, s{sE if p else sF} offen offset:{32*i}")
        if not NR:
            self.p2_waddr(role)
        A(f"s_and_b32 s{sT0}, s{sW}, 1\ns_lshl_b32 s{sT0}, s{sT0}, 12\ns_add_u32 s{sT0}, s{sT0}, {g['abase'][0]}\nv_lshl_add_u32 v{vB[0]}, v0, 4, s{sT0}\nv_lshl_add_u32 v{vO[0]}, v0, 3, s{sT0}")
        if g["abase"][1] < LDS_BYTES:
            A(f"v_add_u32 v{vB[1]}, {g['abase'][1]-g['abase'][0]}, v{vB[0]}\nv_add_u32 v{vO[1]}, {g['abase'][1]-g['abase'][0]}, v{vO[0]}")

        def mfmas(ch):
            out = []
            if ch < 0:
                return out
            st = ch & 1
            fw = self.RES + 8 * NT * ch if ch < NR else FW + 8 * NT * st
            for ks in range(2):
                for i in range(NT):
                    for p in range(2):
                        a = v(ACC + 4 * (NT * p + i), 4)
                        out.append(f"{MF} {a}, {v(fw+4*(NT*ks+i),4)}, {v(FB+16*st+8*ks+4*p,4)}, {a if ch or ks else 0}")
            return out

        def chunk(ch, extra=(), head=()):
            st, opart = ch & 1, ch >= 24
            aa = g["a"][ch % len(g["a"])]
            ab = 1 if aa >= g["abase"][1] else 0
            ao = aa - g["abase"][ab]
            ld = []
            if own:
                C, ta, tw, epoch = own
                l, d = self.lab("ps"), self.lab("pd")
                A(f"s_waitcnt lgkmcnt(0)\nv_cmp_gt_u32 vcc, {ch + 1}, v{vPG+2}\nv_add_u32 v{vPG+3}, 1, v{vPG+3}\ns_mov_b32 s{sT1}, {SPIN_LIMIT}\ns_cbranch_vccz {d}")
                A.label(l)
                A(f"ds_read_b32 v{vPG+2}, v{vPG+1}\ns_waitcnt lgkmcnt(0)\nv_cmp_gt_u32 vcc, {ch + 1}, v{vPG+2}\ns_cbranch_vccz {d}\ns_sub_u32 s{sT1}, s{sT1}, 1\ns_cbranch_scc0 {l}")
                A.label(d)
                self.trace(12 + ch)
                if ch < 33:
                    C.wait(max(ta[ch + 1], tw[ch + 1]))
                    A(f"ds_write_b32 v{vPG}, v{vPG+3}")
                m = len(A.lines)
                epoch(ch, True)
                ld = A.lines[m:]; del A.lines[m:]
            else:
                A("s_barrier\ns_waitcnt lgkmcnt(0)")
            if ch == 0:
                self.stamp(4 if not own else 6)
            A.extend(head)
            rd = []
            for ks in range(2):
                for p in range(2):
                    d = FB + 16 * st + 8 * ks + 4 * p
                    if opart:
                        rd += [f"ds_read_b64 {v(d+2*hf,2)}, v{vO[ab]} offset:{ao+2048*p+512*(2*ks+hf)}" for hf in range(2)]
                    else:
                        rd.append(f"ds_read_b128 {v(d,4)}, v{vB[ab]} offset:{ao+2048*p+K*ks}")
                if ch >= NR:
                    rd += self.p2_wreads(role, ch, FW + 8 * NT * st, (ks,))
            rd += list(extra)
            ms = mfmas(ch - 1)
            if own and 'selfskipm' in c.abl:
                ms = ['s_nop 0'] * len(ms)
            if own and 'selfskipr' in c.abl:
                rd = list(extra)
            if own:
                nrd = len(rd) - len(extra)
                if ch < 33:
                    rd.insert(nrd, f"ds_read_b32 v{vPG+2}, v{vPG+1}")
                rd += ld
            per = max(2, -(-len(rd) // max(1, len(ms))))
            solid = any(x.endswith(":") for x in rd)
            for i, m in enumerate(ms):
                A(m)
                k = min(per, len(rd) - len(ld)) if solid else per
                A.extend(rd[:k]); rd = rd[k:]
            A.extend(rd)

        vPG = 16
        if own:
            A(f"s_lshl_b32 s{sT0}, s{sW}, 2\ns_add_u32 s{sT0}, s{sT0}, {MISC + PRG_OFF}\nv_mov_b32 v{vPG}, s{sT0}\nv_and_b32 v{vPG+1}, 3, v0\nv_lshlrev_b32 v{vPG+1}, 2, v{vPG+1}\nv_add_u32 v{vPG+1}, {MISC + PRG_OFF}, v{vPG+1}")
            A(f"v_mov_b32 v{vPG+3}, 1")
            own[0].wait(max(own[1][0], own[2][0]))
            A(f"ds_write_b32 v{vPG}, v{vPG+3}\nds_read_b32 v{vPG+2}, v{vPG+1}")
        heads = {}
        if role == "q" and c.pubq and not c.split and not own:
            heads[c.pubq], heads[c.pubq + 1] = self.publish("q", 2 * NT)
        for ch in range(24):
            chunk(ch, head=heads.get(ch, ()))
        if not own:
            self.stamp(5)
        XU = XR + 16
        unpack = [] if own else ["s_waitcnt vmcnt(0)"]
        for k in range(2 * NT):
            x = XR + 2 * k
            unpack += lines(f"v_lshlrev_b32 v{XU+4*k}, 16, v{x}\nv_and_b32 v{XU+4*k+1}, 0xffff0000, v{x}\nv_lshlrev_b32 v{XU+4*k+2}, 16, v{x+1}\nv_and_b32 v{XU+4*k+3}, 0xffff0000, v{x+1}")
        unpack += lines(f"v_lshrrev_b32 v3, 4, v0\nv_and_b32 v4, 1, v3\nv_lshrrev_b32 v3, 1, v3\nv_lshl_add_u32 v3, v3, 4, v{vRow}\nv_lshl_add_u32 v2, v4, 5, v3\nv_mul_u32_u24 v4, {16*1280}, v4\nv_add_u32 v3, v3, v4")
        for ch in range(24, 34):
            n = -(-len(unpack) // (34 - ch)) if ch >= 26 else 0
            chunk(ch, unpack[:n]); unpack = unpack[n:]
        A("s_waitcnt lgkmcnt(0)")
        A.extend(mfmas(33))
        if not own:
            self.stamp(6)
        O = FB
        jobs = [(NT * p, NT * p + 1, 2, sE if p else sF, 0) for p in range(2)]
        if NT == 3:
            jobs.append((2, 5, 3, sF, 64))
        for n, (k0, k1, va, so, off) in enumerate(jobs):
            d = O + 4 * n
            for dd, k in ((d, k0), (d + 2, k1)):
                for h in (0, 2):
                    A(f"v_pk_add_f32 {v(ACC+4*k+h,2)}, {v(ACC+4*k+h,2)}, {v(XU+4*k+h,2)}")
                A.extend(self.pack(dd, ACC + 4 * k))
            A(f"v_permlane16_swap_b32 v{d}, v{d+2}\nv_permlane16_swap_b32 v{d+1}, v{d+3}")
            A(f"buffer_store_dwordx4 {v(d,4)}, v{va}, {s(OUT_,4)}, s{so} offen offset:{off}{c.out_mod}")

    def kernel(self, name, tag, do1, do2):
        A = self.A
        self.tag = tag
        self.entry(name, tag)
        for role in ("q", "h"):
            if role == "h":
                A.label(f"L_HH_{tag}")
            pending = 0
            if do1:
                pending = self.helper1(role)
            else:
                A("s_waitcnt lgkmcnt(0)")
                self.srds_helper2()
                self.p2_loader_setup(role)
            if do2:
                self.p2_loader(role, pending)
            self.stamp(7)
            self.stamp_out(8, 1)
            A("s_endpgm")
        for role in ("q", "h"):
            A.label(f"L_{role.upper()}C_{tag}")
            if do1:
                (self.compute_q if role == "q" else self.compute_h)()
            else:
                self.srds_compute()
            if do2 and not self.selfrun(role):
                self.p2_compute(role)
            self.stamp(7)
            self.stamp_out(8, 0)
            A("s_endpgm")
        A.label(f"L_end_{tag}")
        A("s_endpgm")

    def build(self):
        A, c = self.A, self.c
        A(open(os.path.join(os.path.dirname(os.path.abspath(__file__)), "header.txt")).read().rstrip())
        if c.split:
            A(f"; @launch kernel=phase1_kernel grid=(256,1,1) block=(512,1,1) lds={LDS_BYTES}")
            A(f"; @launch kernel=phase2_kernel grid=(256,1,1) block=(512,1,1) lds={LDS_BYTES}")
        else:
            A(f"; @launch grid=(256,1,1) block=(512,1,1) lds={LDS_BYTES}")
        A('.amdgcn_target "amdgcn-amd-amdhsa--gfx950"')
        if c.split:
            p2 = c.phase2
            c.phase2 = False
            self.kernel("phase1_kernel", "a", True, False)
            c.phase2 = p2
            self.kernel("phase2_kernel", "b", False, True)
            A(kernel_desc("phase1_kernel", 256, 256)); A(kernel_desc("phase2_kernel", 256, 256))
        else:
            self.kernel(NAME + "_kernel", "a", True, c.phase2)
            A(kernel_desc(NAME + "_kernel", 256, 256))
        return A.text()

def make(**kw):
    import asmlib
    asmlib.EXTRA.clear(); asmlib.EXTRA.update(kw.pop('extra', {}))
    return Gen(Cfg(**kw)).build()

if __name__ == "__main__":
    kw = {}
    for a_ in sys.argv[2:]:
        k, val = a_.split("=", 1)
        kw[k] = eval(val)
    open(sys.argv[1], "w").write(make(**kw))
```

```python
import sys, os
from asmlib import *

NAME = "parallel_sum__sliding_local_dilated__dense_activation_relu__prompt"
MF = "v_mfma_f32_16x16x32_bf16"

H_BLK = 24 * 8192
O_BLK = 10 * 8192
H_BASE = 0
O_BASE = 32 * H_BLK
FLAG_BASE = 16 << 20
STAT_BASE = 18 << 20
CSUM_BASE = 19 << 20
STAMP_BASE = 20 << 20
WS_BYTES = 32 << 20

X_, W1_, W2_, WO_, WS_, DBG_, FLEX_, OUT_ = 20, 24, 28, 32, 36, 40, 44, 48
sWAVE, sW, sRB, sJ, sBLK, sCOL, sROT, sCNT = 52, 53, 54, 55, 56, 57, 58, 59
sT0, sT1, sT2, sT3 = 60, 61, 62, 63
sA, sB, sC, sD, sE, sF = 64, 65, 66, 67, 68, 69
mG1, mG2, mG3, mU0 = 70, 72, 74, 76
sROT2, sROT3 = 78, 79
sG, sH, sI = 3, 80, 81
sSTAMP = 82

K = 1024
Q_SLOT, H_SLOT = 48 * K, 40 * K
Q_WH, H_WH = 15 * K, 12 * K
MISC = 157 * K
ST_RSTD = 576
CS_OFF = 1152
CTR_OFF = 2304
XFL_OFF = 2320
PRG_OFF = 2368
F_STAT, F_CSUM = 8192, 10240
LDS_BYTES = 163840
SPIN_LIMIT = 20000
COH = " sc0 sc1"

class Cfg:
    def __init__(self, **kw):
        self.split = False
        self.stamps = False
        self.dbgstamps = False
        self.epi = False
        self.trace = False
        self.phase2 = True
        self.rot = True
        self.rot2 = True
        self.pre1 = {'q': 8, 'h': 7}
        self.pre0 = 2
        self.prio_h = 1
        self.abl = ''
        self.preq = {8: 2, 9: 4}
        self.preh = {8: 2, 9: 4}
        self.nreg0 = {"q": 10, "h": 8}
        self.warm = 0
        self.warm_c = 0
        self.pubq = 8
        self.selfq = False
        self.wide = 'h'
        self.prio_self = 1
        self.na0 = {'q': 6, 'h': 3}
        self.touch = 'q'
        self.cstat = 6
        self.touch_h = 2
        self.gapw = 6
        self.nres = 4
        self.npoll = 1
        self.rotf = (7, 0, 0, 1)
        self.swap = False
        self.codepf = 7
        self.align = 5
        self.thr = {'q': 4, 'h': 4}
        self.aoff = {'q': 3, 'h': 3}
        self.age = {'q': 10, 'h': 10}
        self.e64 = False
        self.xat = {'q': 0, 'h': 2}
        self.spread = True
        self.ld_mod = COH
        self.st_mod = COH
        self.comp = False
        self.out_mod = ''
        self.stage = {'q': 0, 'h': 0}
        self.hold = False
        self.__dict__.update(kw)

def srd(A, d, b, n):
    A(f"s_mov_b32 s{d}, s{b}\ns_mov_b32 s{d+1}, s{b+1}\ns_mov_b32 s{d+2}, {n}\ns_mov_b32 s{d+3}, 0x20000")

def lines(txt):
    return [l for l in txt.split("\n") if l]

def weave(main, extra, every=2, start=0):
    out, extra = [], list(extra)
    for i, l in enumerate(main):
        out.append(l)
        if extra and i + 1 >= start and (i + 1 - start) % every == 0:
            out.append(extra.pop(0))
    return out + extra

class Gen:
    def __init__(self, cfg):
        self.c = cfg
        self.A = Asm()
        self.uid = 0

    def lab(self, p):
        self.uid += 1
        return f"L_{p}_{self.uid}"

    def estamp(self, i):
        if self.c.epi:
            self.stamp(i, True)

    def stamp(self, i, force=False):
        if self.c.epi and not force and i > 0:
            return
        if self.c.stamps:
            op = "s_memtime" if self.c.stamps == "cyc" else "s_memrealtime"
            self.A(f"{op} s[{sSTAMP+2*i}:{sSTAMP+2*i+1}]")

    def trace(self, lane):
        if self.c.trace:
            if isinstance(lane, str):
                self.A(f"s_mov_b32 m0, {lane}")
                lane = "m0"
            op = "s_memtime" if self.c.stamps == "cyc" else "s_memrealtime"
            self.A(f"{op} s[98:99]\ns_waitcnt lgkmcnt(0)\nv_writelane_b32 v30, s98, {lane}")

    def stamp_out(self, n, row):
        if not self.c.stamps:
            return
        A = self.A
        if self.c.trace and row == 1:
            l = self.lab("tr")
            A(f"s_cmp_lg_u32 s{sW}, 0\ns_cbranch_scc1 {l}\ns_lshl_b32 s{sT0}, s2, 8\ns_add_u32 s{sT0}, s{sT0}, {STAMP_BASE + (1 << 20)}\nv_lshl_add_u32 v1, v0, 2, s{sT0}")
            A(f"buffer_store_dword v30, v1, {s(WS_,4)}, 0 offen\ns_waitcnt vmcnt(0)")
            A.label(l)
        l = self.lab("st")
        A(f"s_waitcnt lgkmcnt(0)\ns_cmp_lg_u32 s{sW}, 0\ns_cbranch_scc1 {l}")
        if self.c.dbgstamps:
            if row == 0:
                A(f"s_lshr_b32 s{sT1}, s2, 7\ns_mul_i32 s{sT1}, s{sT1}, 28\nv_mov_b32 v1, s{sT1}\nv_mov_b32 v3, 0\ns_mov_b64 exec, 1")
                A(f"s_not_b32 s{sT0}, s{sSTAMP}\nv_mov_b32 v2, s{sT0}\nbuffer_atomic_umax v2, v3, {s(DBG_,4)}, 0 offen offset:4 sc1")
                for i in range(1, 8):
                    A(f"v_mov_b32 v2, s{sSTAMP+2*i}\nbuffer_atomic_umax v2, v1, {s(DBG_,4)}, 0 offen offset:{4+4*i} sc1")
                A("s_waitcnt vmcnt(0)")
            A.label(l)
            return
        A(f"s_lshl_b32 s{sT0}, s2, 7\ns_add_u32 s{sT0}, s{sT0}, {STAMP_BASE + 64*row}\nv_mov_b32 v1, s{sT0}")
        for i in range(n):
            A(f"v_mov_b32 v2, s{sSTAMP+2*i}\nbuffer_store_dword v2, v1, {s(WS_,4)}, 0 offen offset:{4*i}")
        A("s_waitcnt vmcnt(0)")
        A.label(l)

    def entry(self, name, tag):
        A, c = self.A, self.c
        A(kernel_header(name))
        A("s_cmp_ge_u32 s2, 256\ns_cbranch_scc1 L_end_" + tag)
        self.stamp(0)
        A("s_load_dwordx4 s[4:7], s[0:1], 0\ns_load_dwordx2 s[8:9], s[0:1], 16")
        A("s_load_dwordx4 s[12:15], s[0:1], 32\ns_load_dwordx4 s[16:19], s[0:1], 48\ns_load_dwordx2 s[10:11], s[0:1], 64")
        A(f"v_lshrrev_b32 v1, 6, v0\nv_and_b32 v0, 63, v0\nv_readfirstlane_b32 s{sWAVE}, v1")
        A(f"s_bfe_u32 s{sT0}, s2, 0x20001\ns_bfe_u32 s{sT1}, s2, 0x20003\ns_lshl2_add_u32 s{sRB}, s{sT0}, s{sT1}")
        A(f"s_and_b32 s{sT0}, s2, 1\ns_bfe_u32 s{sT2}, s2, 0x20005\ns_lshl2_add_u32 s{sJ}, s{sT0}, s{sT2}")
        A(f"s_and_b32 s{sT3}, s{sT2}, 1\ns_lshl1_add_u32 s{sBLK}, s{sRB}, s{sT3}")
        A(f"s_lshr_b32 s{sT3}, s{sT2}, 1\ns_lshl1_add_u32 s{sCOL}, s{sT0}, s{sT3}")
        A(f"s_lshr_b32 s{sA}, s2, 7")
        if c.rot:
            ra, rb_, rc, rd = c.rotf
            A(f"s_mul_i32 s{sROT}, s{sRB}, {ra}")
            if rb_:
                A(f"s_mul_i32 s{sT1}, s{sT2}, {rb_}\ns_add_u32 s{sROT}, s{sROT}, s{sT1}")
            if rc:
                A(f"s_and_b32 s{sT1}, s{sT2}, 1\ns_mul_i32 s{sT1}, s{sT1}, {rc}\ns_add_u32 s{sROT}, s{sROT}, s{sT1}")
            if rd:
                A(f"s_mul_i32 s{sT1}, s{sA}, {rd}\ns_add_u32 s{sROT}, s{sROT}, s{sT1}")
            A(f"s_mul_i32 s{sT1}, s{sROT}, 205\ns_lshr_b32 s{sT1}, s{sT1}, 11\ns_mul_i32 s{sT1}, s{sT1}, 10\ns_sub_u32 s{sROT}, s{sROT}, s{sT1}")
        A(f"s_and_b32 s{sT0}, s{sBLK}, 7\ns_lshl1_add_u32 s{sT3}, s{sA}, s{sT3}\ns_mul_i32 s{sT1}, s{sT0}, 3\ns_lshr_b32 s{sT1}, s{sT1}, 1\ns_mul_i32 s{sROT2}, s{sT3}, 3\ns_add_u32 s{sROT2}, s{sROT2}, s{sT1}")
        A(f"s_mul_i32 s{sT0}, s{sT0}, 5\ns_lshr_b32 s{sT0}, s{sT0}, 3\ns_add_u32 s{sROT3}, s{sT0}, s{sT3}")
        A(f"s_and_b32 s{sW}, s{sWAVE}, 3")
        A(f"s_cmp_ge_u32 s{sWAVE}, 4\ns_cbranch_scc{0 if c.swap else 1} L_helper_{tag}")
        A(f"s_cmp_eq_u32 s{sA}, 0\ns_cbranch_scc1 L_QC_{tag}\ns_branch L_HC_{tag}")
        A.label(f"L_helper_{tag}")
        if c.prio_h:
            A(f"s_setprio {c.prio_h}")
        A(f"s_cmp_eq_u32 s{sA}, 0\ns_cbranch_scc0 L_HH_{tag}")

    def srds_helper2(self):
        A = self.A
        srd(A, W2_, 14, 1536 * 1280); srd(A, WO_, 8, 640 * 1280); srd(A, WS_, 10, WS_BYTES); srd(A, DBG_, 18, 256)

    def srds_compute(self):
        A = self.A
        A("s_waitcnt lgkmcnt(0)")
        srd(A, X_, 4, 2048 * 1280); srd(A, WS_, 10, WS_BYTES); srd(A, DBG_, 18, 256); srd(A, OUT_, 16, 2048 * 1280)

    def xfrag_addr(self, d0, d1, base_s, t):
        A = self.A
        A(f"v_and_b32 v{t}, 15, v0\nv_lshrrev_b32 v{d1}, 1, v{t}\nv_lshrrev_b32 v{d0}, 4, v0\nv_xor_b32 v{d0}, v{d0}, v{d1}")
        A(f"v_lshlrev_b32 v{d0}, 4, v{d0}\nv_lshl_add_u32 v{d0}, v{t}, 7, v{d0}\nv_add_u32 v{d0}, s{base_s}, v{d0}\nv_xor_b32 v{d1}, 64, v{d0}")

    def check(self, vres, vaddr, srd_, target, off=0, depth=1):
        A = self.A
        l, d = self.lab("sp"), self.lab("sd")
        A(f"v_cmp_gt_u32 vcc, {target}, v{vres}\ns_cbranch_vccz {d}\ns_mov_b32 s{sT1}, {SPIN_LIMIT}")
        if depth > 1:
            ld = lambda r: f"buffer_load_dword v{r}, v{vaddr}, {s(srd_,4)}, 0 offen offset:{off}{COH}"
            regs = [vres] + list(range(2, 1 + depth))
            e = self.lab("se")
            for r in regs[1:]:
                A(ld(r) + "\ns_nop 15\ns_nop 15")
            A.label(l)
            for i, r in enumerate(regs):
                A(ld(r) + f"\ns_waitcnt vmcnt({depth-1})\nv_cmp_gt_u32 vcc, {target}, v{regs[(i + 1) % depth]}\ns_cbranch_vccz {e}")
            A(f"s_sub_u32 s{sT1}, s{sT1}, 1\ns_cbranch_scc0 {l}")
            A.label(e)
            A.label(d)
            return depth - 1
        A.label(l)
        A(f"buffer_load_dword v{vres}, v{vaddr}, {s(srd_,4)}, 0 offen offset:{off}{COH}\ns_waitcnt vmcnt(0)\nv_cmp_gt_u32 vcc, {target}, v{vres}")
        A(f"s_cbranch_vccz {d}\ns_sub_u32 s{sT1}, s{sT1}, 1\ns_cbranch_scc0 {l}")
        A.label(d)

    def helper1(self, role):
        A, c = self.A, self.c
        q = role == "q"
        slot, wh = (Q_SLOT, Q_WH) if q else (H_SLOT, H_WH)
        xoff = 2 * wh
        wstride = 3840 if q else 3072
        vA, vB, vC, vF = 8, 11, 14, 18
        sOWa, sOWb, sOX, sSa, sSb = sA, sB, sC, sD, sE
        sMA, sMX, sF1o, sF1m, sF2o, sF2m = sF, sG, mG1, mG1 + 1, mG1 + 2, mG1 + 3
        sMF1, sMF2, sPa, sPb, sPx = mG1 + 4, mG1 + 5, mG1 + 6, mG1 + 7, sI
        nA, nB = (4, 8) if q else (3, 7)
        per = 4 if q else 3

        A("v_lshrrev_b32 v2, 3, v0\nv_mul_u32_u24 v2, 1280, v2\nv_and_b32 v3, 7, v0\nv_lshrrev_b32 v4, 4, v0\nv_xor_b32 v3, v3, v4\nv_lshl_add_u32 v6, v3, 4, v2\nv_xor_b32 v7, 64, v6")
        A(f"s_lshl_b32 s{sT0}, s{sRB}, 7\ns_lshl_b32 s{sT1}, s{sW}, 5\ns_add_u32 s{sT0}, s{sT0}, s{sT1}")
        if q:
            A(f"s_sub_u32 s{sT0}, s{sT0}, 16")
        A(f"s_mul_i32 s{sPx}, s{sT0}, 1280")
        A(f"s_mul_i32 s{sH}, s{sJ}, {160 if q else 384}\ns_movk_i32 s{sCNT}, 1120\ns_mul_i32 s{sMA}, s{sW}, {per}\ns_lshl_b32 s{sMX}, s{sW}, 12\ns_add_u32 s{sMX}, s{sMX}, {xoff}")

        def xoffs(d, i):
            A(f"s_add_u32 s{sT0}, s{sPx}, {8*1280*i}\nv_add_u32 v{d}, s{sT0}, v{6 + (i & 1)}")

        def woff(d, kb):
            A(f"s_add_u32 s{sT0}, s{sMA}, {kb}\ns_lshl_b32 s{sT0}, s{sT0}, 6\nv_add_u32 v2, s{sT0}, v0")
            if q:
                A("v_mul_u32_u24 v3, 2185, v2\nv_lshrrev_b32 v3, 16, v3\nv_mul_u32_u24 v4, 30, v3\nv_sub_u32 v2, v2, v4")
            else:
                A("v_mul_u32_u24 v3, 2731, v2\nv_lshrrev_b32 v3, 16, v3\nv_mul_u32_u24 v4, 24, v3\nv_sub_u32 v2, v2, v4\nv_and_b32 v4, 6, v3\nv_xor_b32 v2, v2, v4")
            A("v_and_b32 v4, 4, v3\nv_add_u32 v5, v3, v4\nv_bfe_u32 v4, v3, 3, 1\nv_mad_i32_i24 v5, v4, -4, v5")
            A(f"v_mul_u32_u24 v5, {wstride}, v5")
            if q:
                A(f"v_mul_u32_u24 v4, 26, v2\nv_lshrrev_b32 v4, 8, v4\nv_mad_u32_u24 v5, v4, s{sCNT}, v5")
            A(f"v_lshl_add_u32 v5, v2, 4, v5\nv_add_u32 v{d}, s{sH}, v5")

        def advance():
            A(f"s_mov_b32 s{sOWa}, s{sOWb}\ns_add_u32 s{sPa}, s{sSb}, s{sMA}")
            if q:
                A(f"s_add_u32 s{sSb}, s{sSb}, {slot}\ns_cmp_ge_u32 s{sSb}, {3*slot}\ns_cselect_b32 s{sSb}, 0, s{sSb}")
            else:
                A(f"s_sub_u32 s{sSb}, s{sSb}, {slot}\ns_cselect_b32 s{sSb}, {2*slot}, s{sSb}")
            rot()

        def rot():
            A(f"s_cmp_ge_u32 s{sROT}, 10\ns_cselect_b32 s{sT0}, 10, 0\ns_sub_u32 s{sROT}, s{sROT}, s{sT0}")
            A(f"s_mul_i32 s{sOWb}, s{sROT}, {64*wstride}\ns_lshl_b32 s{sOX}, s{sROT}, 7\ns_add_u32 s{sROT}, s{sROT}, 1")
            A(f"s_add_u32 s{sPb}, s{sSb}, s{sMA}\ns_add_u32 s{sPx}, s{sSb}, s{sMX}")
            if q:
                A(f"s_cmp_lt_u32 s{sW}, 3\ns_cselect_b32 s{sF1o}, s{sOWa}, s{sOX}\ns_cselect_b32 s{sF2o}, s{sOWb}, s{sOX}\ns_cselect_b32 s{sF1m}, s{sPa}, s{sPx}\ns_cselect_b32 s{sF2m}, s{sPb}, s{sPx}")
                A(f"s_add_u32 s{sF1m}, s{sF1m}, s{sMF1}\ns_add_u32 s{sF2m}, s{sF2m}, s{sMF2}")

        def dma(vr, srd_, so, m0s, add):
            A(f"s_add_u32 m0, s{m0s}, {add}\nbuffer_load_dwordx4 v{vr}, {s(srd_,4)}, s{so} offen lds")

        opsA = [(vA + i, W1_, sOWa, sPa, i * K) for i in range(3)]
        opF1 = (vF, FLEX_, sF1o, sF1m, 0)
        opF2 = (vF + 1, FLEX_, sF2o, sF2m, 0)
        opsC = [(vC + i, X_, sOX, sPx, i * K) for i in range(4)]
        opsB = [(vB + i, W1_, sOWb, sPb, wh + i * K) for i in range(3)]
        group = opsA + ([opF1] if q else []) + opsC + ([opF2] if q else []) + opsB

        def woven_group():
            sN1, sN2 = 12, 13
            after_a = [[f"s_mov_b32 s{sOWa}, s{sOWb}"], [f"s_add_u32 s{sPa}, s{sSb}, s{sMA}"]]
            if q:
                after_a.append(lines(f"s_add_u32 s{sSb}, s{sSb}, {slot}\ns_cmp_ge_u32 s{sSb}, {3*slot}\ns_cselect_b32 s{sSb}, 0, s{sSb}"))
            else:
                after_a.append(lines(f"s_sub_u32 s{sSb}, s{sSb}, {slot}\ns_cselect_b32 s{sSb}, {2*slot}, s{sSb}"))
            after_a.append(lines(f"s_cmp_ge_u32 s{sROT}, 10\ns_cselect_b32 s{sT0}, 10, 0\ns_sub_u32 s{sROT}, s{sROT}, s{sT0}\ns_mul_i32 s{sN1}, s{sROT}, {64*wstride}\ns_add_u32 s{sN2}, s{sSb}, s{sMA}"))
            after_c = [lines(f"s_lshl_b32 s{sOX}, s{sROT}, 7\ns_add_u32 s{sROT}, s{sROT}, 1\ns_add_u32 s{sPx}, s{sSb}, s{sMX}")]
            if q:
                after_c.append(lines(f"s_cmp_lt_u32 s{sW}, 3\ns_cselect_b32 s{sF1o}, s{sOWa}, s{sOX}\ns_cselect_b32 s{sF2o}, s{sN1}, s{sOX}\ns_cselect_b32 s{sF1m}, s{sPa}, s{sPx}\ns_cselect_b32 s{sF2m}, s{sN2}, s{sPx}"))
                after_c.append(lines(f"s_add_u32 s{sF1m}, s{sF1m}, s{sMF1}\ns_add_u32 s{sF2m}, s{sF2m}, s{sMF2}"))
            fill, out = [], []
            for n, (vr, srd_, so, m0s, add) in enumerate(group):
                if n == nA:
                    fill = after_a
                if n == len(group) - 3:
                    assert not fill
                    fill = after_c
                out.append([f"s_add_u32 m0, s{m0s}, {add}"] + (fill.pop(0) if fill else []) + [f"buffer_load_dwordx4 v{vr}, {s(srd_,4)}, s{so} offen lds"])
            assert not fill
            out[-1] += [f"s_mov_b32 s{sOWb}, s{sN1}", f"s_mov_b32 s{sPb}, s{sN2}"]
            return out
        E = woven_group()
        J = c.pre1[role]
        head, rest = sum(E[: nA + J], []), sum(E[nA + J:], [])

        for i in range(4):
            xoffs(vC + i, i)
        if q:
            l1, l2 = self.lab("fx"), self.lab("fd")
            xoffs(vF, 4); xoffs(vF + 1, 5)
        woff(vB, 0)
        self.trace(50)
        A("s_waitcnt lgkmcnt(0)")
        srd(A, X_, 4, 2048 * 1280)
        srd(A, W1_, 6 if q else 12, 640 * wstride)
        if q:
            A(f"s_cmp_lt_u32 s{sW}, 3\ns_cselect_b32 s{FLEX_}, s6, s4\ns_cselect_b32 s{FLEX_+1}, s7, s5\ns_mov_b32 s{FLEX_+2}, {640*3840}\ns_cselect_b32 s{FLEX_+2}, s{FLEX_+2}, s{X_+2}\ns_mov_b32 s{FLEX_+3}, 0x20000")
            A(f"s_movk_i32 s{sMF1}, {3*K}\ns_cselect_b32 s{sMF1}, s{sMF1}, {4*K}\ns_movk_i32 s{sMF2}, {wh + 3*K}\ns_cselect_b32 s{sMF2}, s{sMF2}, {5*K}")
        A(f"s_mov_b32 s{sT3}, s{sMA}\ns_lshl_b32 s{sMA}, s{sMA}, 10\ns_mov_b32 s{sSb}, 0\ns_mov_b32 s{sOWa}, 0\ns_mov_b32 s{sPa}, 0")
        A(f"s_mov_b32 s100, s{sROT}")
        rot()
        A(f"s_mov_b32 s{sSa}, s{sMA}\ns_mov_b32 s{sMA}, s{sT3}")
        self.trace(51)
        for o in opsC:
            dma(*o)
        self.trace(52)
        for i in range(3):
            if i:
                woff(vB + i, i)
            dma(*opsB[i])
            A(f"v_add_u32 v{vA+i}, {32*wstride}, v{vB+i}")
        if q:
            A(f"s_cmp_lt_u32 s{sW}, 3\ns_cbranch_scc0 {l1}")
            woff(vF + 1, 3)
            A(f"v_add_u32 v{vF}, {32*wstride}, v{vF+1}\ns_branch {l2}")
            A.label(l1)
            dma(*opF1)
            A.label(l2)
            dma(*opF2)
        self.trace(53)
        A(f"s_mov_b32 s{sMA}, s{sSa}\ns_mov_b32 s{sSa}, s100")
        advance()
        J0 = min(J, c.pre0)
        A.extend(sum(E[: nA + J0], []))
        self.trace(54)
        self.srds_helper2()
        self.p2_loader_setup(role)
        vZ, vP, vD, vS = 23, 24, 26, 32
        ridx = 0 if q else 8
        A(f"s_lshl_b32 s{sT0}, s{sRB}, 7\ns_add_u32 s{sT0}, s{sT0}, {FLAG_BASE + F_STAT}\nv_mov_b32 v20, s{sT0}\nv_mov_b32 v{vZ}, 0\nv_mov_b32 v25, 16")
        A(f"s_lshl_b32 s{sT1}, s{sRB}, 7\ns_lshl_b32 s{sT2}, s{sW}, 5\ns_add_u32 s{sT1}, s{sT1}, s{sT2}\nv_and_b32 v3, 31, v0\nv_add_u32 v21, s{sT1}, v3")
        A(f"s_lshl_b32 s{sT2}, s{sW}, 7\ns_add_u32 s{sT2}, s{sT2}, {MISC + (64 if q else 0)}\nv_lshl_add_u32 v22, v3, 2, s{sT2}")
        if q:
            A(f"s_cmp_eq_u32 s{sRB}, 0\ns_cselect_b32 s{sT2}, 0, 128\ns_sub_u32 s{sT0}, s{sT0}, s{sT2}\nv_mov_b32 v4, s{sT0}")
            A(f"s_lshl_b32 s{sT1}, s{sRB}, 7\ns_sub_u32 s{sT1}, s{sT1}, 16\nv_and_b32 v2, 15, v0\nv_add_u32 v3, s{sT1}, v2")
            A(f"s_mov_b32 s{sT1}, {MISC}\nv_lshl_add_u32 v5, v2, 2, s{sT1}\nv_cmp_le_u32 vcc, 32, v0")
            A("v_cndmask_b32 v20, v20, v4, vcc\nv_cndmask_b32 v21, v21, v3, vcc\nv_cndmask_b32 v22, v22, v5, vcc")
        A(f"v_cmp_gt_i32 vcc, 0, v21\nv_lshlrev_b32 v21, 3, v21\nv_add_u32 v21, {STAT_BASE}, v21\nv_mov_b32 v3, -16\nv_cndmask_b32 v21, v21, v3, vcc")
        A(f"s_add_u32 s{sT0}, s{sJ}, {ridx}\ns_lshl_b32 s{sT1}, s{sT0}, 7\ns_add_u32 s{sT1}, s{sT1}, {FLAG_BASE + F_CSUM}\nv_mov_b32 v31, s{sT1}\nv_mov_b32 v4, 10\nv_cmp_le_u32 vcc, 48, v0")
        A(f"v_cndmask_b32 v20, v20, v31, vcc\nv_cndmask_b32 v25, v25, v4, vcc")
        A(f"s_mul_i32 s9, s{sT0}, 10240\ns_add_u32 s9, s9, {CSUM_BASE}\ns_lshl_b32 s{sT1}, s{sW}, 8\ns_add_u32 s{sT2}, s9, s{sT1}\nv_lshl_add_u32 v28, v0, 2, s{sT2}")
        A(f"s_add_u32 s{sT1}, s{sT1}, {MISC + CS_OFF}\nv_lshl_add_u32 v29, v0, 2, s{sT1}")
        nt = 4 if q else 3
        A("v_bfe_u32 v2, v0, 2, 3\nv_lshrrev_b32 v3, 5, v0\nv_lshl_add_u32 v3, v3, 4, v2")
        A(f"v_mul_u32_u24 v3, {480 if q else 384}, v3\nv_and_b32 v4, 3, v0\nv_lshl_add_u32 v3, v4, 3, v3\ns_mul_i32 s{sT1}, s{sW}, {nt}")
        if q:
            A(f"s_lshl_b32 s{sT2}, s{sT1}, 5\nv_add_u32 v44, s{sT2}, v3")
        else:
            A("v_lshrrev_b32 v2, 1, v2")
            for t in range(3):
                A(f"s_add_u32 s{sT2}, s{sT1}, {t}\nv_xor_b32 v4, s{sT2}, v2\nv_lshl_add_u32 v{44+t}, v4, 5, v3")
        A(f"s_lshl_b32 s{sT1}, s{sT1}, 6\ns_lshl_b32 s{sT2}, s{sSa}, 10\ns_add_u32 s{sT1}, s{sT1}, s{sT2}\ns_add_u32 s{sT1}, s{sT1}, s9\nv_lshrrev_b32 v2, 4, v0\nv_lshl_add_u32 v47, v2, 4, s{sT1}")
        for r in range(4):
            A(f"v_mov_b32 v{60+r}, 0x3f803f80")
        self.trace(55)
        A(f"s_waitcnt vmcnt({J0})\ns_barrier")
        self.trace(0)
        self.stamp(1)
        A.extend(sum(E[nA + J0: nA + J], []))
        A(f"s_mov_b32 s{sCNT}, 0")
        loop, lw_, lb = (self.lab(x) for x in ("hl", "wt", "bar"))
        pre = (c.preq if q else c.preh) if (c.phase2 and not c.split) else {}
        special = [0, 1, 2, c.cstat, c.cstat + 1]
        lx = {k: self.lab("x") for k in special}
        A.label(loop)
        mark0 = len(A.lines)
        A.extend(rest + head)
        ld = self.lab("dsp")
        A(f"s_bitcmp1_b32 {sum(1 << k for k in special)}, s{sCNT}\ns_cbranch_scc1 {ld}")
        A.label(lw_)
        A(f"s_waitcnt vmcnt({J})")
        A.label(lb)
        A(f"s_add_u32 s{sCNT}, s{sCNT}, 1\ns_cmp_lt_u32 s{sCNT}, 8\ns_barrier")
        self.trace(f"s{sCNT}")
        l8 = self.lab("c8")
        A(f"s_cbranch_scc1 {loop}\ns_branch {l8}")
        if "nodma" in c.abl:
            A.lines[mark0:] = [l for l in A.lines[mark0:] if not l.startswith("buffer_load")]
        if "nobar" in c.abl:
            A.lines[mark0:] = [l for l in A.lines[mark0:] if not l.startswith("s_barrier")]
        A.label(ld)
        for k in special[1:]:
            A(f"s_cmp_eq_u32 s{sCNT}, {k}\ns_cbranch_scc1 {lx[k]}")
        for k in special:
            A.label(lx[k])
            n = 0
            if k == 0:
                l = self.lab("np")
                A(f"buffer_load_dword v{vP}, v{vZ}, {s(DBG_,4)}, 0 offen{COH}")
                A(f"s_cmp_ge_u32 s{sRB}, 10\ns_cbranch_scc1 {l}")
                for t in range(nt):
                    for st in range(2):
                        for hf in range(2):
                            ad, off = (44, 32 * t) if q else (44 + t, 0)
                            A(f"ds_read_b64_tr_b16 {v(64+8*t+4*st+2*hf,2)}, v{ad} offset:{off + wh*(1-st) + 8*(480 if q else 384)*hf}")
                A("s_waitcnt lgkmcnt(0)")
                for st in range(2):
                    for t in range(nt):
                        A(f"{MF} {v(96+4*t,4)}, {v(64+8*t+4*st,4)}, v[60:63], {v(96+4*t,4) if st else 0}")
                A("s_mov_b32 exec_lo, 0x10001\ns_mov_b32 exec_hi, 0x10001")
                for t in range(nt):
                    A(f"buffer_store_dwordx4 {v(96+4*t,4)}, v47, {s(WS_,4)}, 0 offen offset:{64*t}{COH}")
                A(f"s_mov_b64 exec, -1\ns_waitcnt vmcnt({J + 1 + nt})\ns_branch {lb}")
                A.label(l)
                n = 1
            if k == 1:
                A(f"s_waitcnt vmcnt({nA + nB})")
                self.check(vP, vZ, DBG_, 1)
                A(f"s_cmp_lg_u32 s{sW}, 0\ns_cbranch_scc1 {lw_}\nv_mov_b32 v2, 1\ns_mov_b64 exec, 1\nbuffer_atomic_add v2, v20, {s(WS_,4)}, 0 offen sc1\ns_mov_b64 exec, -1")
                n = 1
            if k == 2:
                A(f"s_cmp_ge_u32 s{sRB}, 10\ns_cselect_b32 s{sT0}, 1, s{sW}\ns_cmp_lg_u32 s{sT0}, 0\ns_cbranch_scc1 {lw_}")
                A(f"v_mov_b32 v2, 1\ns_mov_b64 exec, 1\nbuffer_atomic_add v2, v31, {s(WS_,4)}, 0 offen sc1\ns_mov_b64 exec, -1")
                n = 1
            if k == c.cstat:
                A(f"buffer_load_dword v{vP}, v20, {s(WS_,4)}, 0 offen{COH}")
                n = 1
            if k == c.cstat + 1:
                A(f"s_waitcnt vmcnt({nA + nB})")
                self.check(vP, 20, WS_, "v25")
                A(f"buffer_load_dwordx2 {v(vD,2)}, v21, {s(WS_,4)}, 0 offen{COH}")
                for i in range(10):
                    A(f"s_movk_i32 s{sT0}, {K*i}\nbuffer_load_dword v{vS+i}, v28, {s(WS_,4)}, s{sT0} offen{COH}")
                n = 11
            A(f"s_waitcnt vmcnt({J + n})\ns_branch {lb}")
        A.label(l8)
        A.extend(rest + sum(E[:3], []))
        if q:
            l = self.lab("nf")
            A(f"s_cmp_lt_u32 s{sW}, 3\ns_cbranch_scc0 {l}")
            A.extend(E[3])
            A.label(l)
        def stats_to_lds():
            A(f"ds_write_b32 v22, v{vD}\nds_write_b32 v22, v{vD+1} offset:{ST_RSTD}")
            for i in range(1, 10):
                A(f"v_add_f32 v{vS}, v{vS}, v{vS+i}")
            A(f"ds_write_b32 v29, v{vS}")
        bar = "" if "nobar" in c.abl else "s_barrier"
        k1 = self.p2_prefetch(role, pre.get(8, 0))
        A(f"s_waitcnt vmcnt({k1})\n{bar}")
        self.trace(9)
        stats_to_lds()
        k2 = self.p2_prefetch(role, pre.get(9, 0))
        A(f"s_waitcnt lgkmcnt(0)\n{bar}")
        self.trace(10)
        self.stamp(2)
        return k1 + k2

    def row_stats_load(self, role, base):
        A = self.A
        self.l_ns = self.lab("ns")
        l = self.lab("nl")
        A(f"s_cmp_ge_u32 s{sW}, 2\ns_cbranch_scc1 {l}")
        A(f"s_lshl4_add_u32 s{sT0}, s{sRB}, s{sJ}\ns_add_u32 s{sT0}, s{sT0}, {0 if role == 'q' else 8}\ns_lshl1_add_u32 s{sT0}, s{sT0}, s{sW}\ns_lshl_b32 s{sT0}, s{sT0}, 2")
        A(f"v_lshrrev_b32 v{base+20}, 4, v0\nv_add_u32 v{base+20}, s{sT0}, v{base+20}\nv_mul_u32_u24 v{base+21}, 1280, v{base+20}\nv_and_b32 v{base+22}, 15, v0\nv_lshl_add_u32 v{base+21}, v{base+22}, 4, v{base+21}")
        for i in range(5):
            A(f"buffer_load_dwordx4 {v(base+4*i,4)}, v{base+21}, {s(X_,4)}, 0 offen offset:{256*i}")
        A.label(l)

    def code_prefetch(self, tag):
        A, n = self.A, self.c.codepf
        if not n:
            return
        l = self.lab("pc")
        A(f"s_getpc_b64 s[32:33]")
        A.label(l)
        A(f"s_lshr_b32 s{sT0}, s2, 3\ns_lshl2_add_u32 s{sT0}, s{sT0}, s{sW}\ns_mul_i32 s{sT0}, s{sT0}, {64*n}\ns_min_u32 s{sT0}, s{sT0}, L_end_{tag}-L_helper_{tag}-{64*n}")
        A(f"s_sub_u32 s32, s32, {l}-L_helper_{tag}\ns_subb_u32 s33, s33, 0\ns_add_u32 s32, s32, s{sT0}\ns_addc_u32 s33, s33, 0")
        for i in range(n):
            A(f"s_load_dword s101, s[32:33], {64*i}")

    def row_stats_finish(self, base):
        A = self.A
        a, b = base + 22, base + 23
        A(f"s_cmp_ge_u32 s{sW}, 2\ns_cbranch_scc1 {self.l_ns}")
        A(f"v_mov_b32 v{a}, 0\nv_mov_b32 v{b}, 0\nv_mov_b32 v{base+21}, 0x3f803f80\nv_lshlrev_b32 v{base+20}, 3, v{base+20}\nv_add_u32 v{base+20}, {STAT_BASE}, v{base+20}")
        for i in range(5):
            A(f"s_waitcnt vmcnt({4-i})")
            for r in range(4):
                d = base + 4 * i + r
                A(f"v_dot2c_f32_bf16 v{a}, v{d}, v{base+21}\nv_dot2c_f32_bf16 v{b}, v{d}, v{d}")
        for sh in (8, 4, 2, 1):
            A(f"v_add_f32_dpp v{a}, v{a}, v{a} row_ror:{sh} row_mask:0xf bank_mask:0xf\nv_add_f32_dpp v{b}, v{b}, v{b} row_ror:{sh} row_mask:0xf bank_mask:0xf")
        A(f"s_mov_b32 s{sT1}, 0x3acccccd\ns_mov_b32 s{sT2}, 0x3727c5ac")
        A(f"v_mul_f32 v{a}, s{sT1}, v{a}\nv_mul_f32 v{base}, v{a}, v{a}\nv_fma_f32 v{b}, v{b}, s{sT1}, -v{base}\nv_max_f32 v{b}, 0, v{b}\nv_add_f32 v{b}, s{sT2}, v{b}\nv_rsq_f32 v{b}, v{b}")
        A(f"s_mov_b32 exec_lo, 0x10001\ns_mov_b32 exec_hi, 0x10001\nbuffer_store_dwordx2 {v(a,2)}, v{base+20}, {s(WS_,4)}, 0 offen{COH}\ns_mov_b64 exec, -1")
        A.label(self.l_ns)

    def init_flags(self):
        A = self.A
        l = self.lab("nf")
        A(f"s_xor_b32 s{sT0}, s{sW}, 3\ns_or_b32 s{sT0}, s2, s{sT0}\ns_cmp_lg_u32 s{sT0}, 0\ns_cbranch_scc1 {l}")
        A(f"v_lshlrev_b32 v2, 7, v0\nv_add_u32 v2, {FLAG_BASE}, v2\nv_mov_b32 v3, 0\ns_movk_i32 s{sT0}, 0x2000")
        A(f"buffer_store_dword v3, v2, {s(WS_,4)}, 0 offen{COH}\nbuffer_store_dword v3, v2, {s(WS_,4)}, s{sT0} offen{COH}\ns_waitcnt vmcnt(0)")
        A(f"v_mov_b32 v2, 1\ns_mov_b64 exec, 1\nbuffer_store_dword v2, v3, {s(DBG_,4)}, 0 offen{COH}\ns_mov_b64 exec, -1")
        A.label(l)

    def publish(self, role, younger=0):
        l = self.lab("pb")
        a = lines(f"v_mov_b32 v4, {MISC + CTR_OFF}\nv_mov_b32 v5, 1\ns_waitcnt vmcnt({younger})\ns_mov_b64 exec, 1\nds_add_rtn_u32 v1, v4, v5\ns_mov_b64 exec, -1")
        a += lines(f"s_lshr_b32 s{sT0}, s{sJ}, 2\ns_lshl2_add_u32 s{sT0}, s{sRB}, s{sT0}\ns_lshl_b32 s{sT0}, s{sT0}, 7\ns_add_u32 s{sT0}, s{sT0}, {FLAG_BASE + (256 if role == 'q' else 0)}\nv_mov_b32 v4, s{sT0}")
        b = lines(f"v_readfirstlane_b32 s{sT0}, v1\ns_cmp_lg_u32 s{sT0}, 3\ns_cbranch_scc1 {l}\ns_mov_b64 exec, 1\nbuffer_atomic_add v5, v4, {s(WS_,4)}, 0 offen sc1\ns_mov_b64 exec, -1\n{l}:")
        return a, b

    def publish_now(self, role):
        if self.c.split:
            return
        a, b = self.publish(role)
        self.A.extend(a + ["s_waitcnt lgkmcnt(0)"] + b)

    def mfma_loop(self, role, mfmas, frags, fixups, niter, tail):
        A = self.A
        nm = len(mfmas)
        bpos = nm // 2 - 1
        first, last = {}, {}
        for i, (_, fs) in enumerate(mfmas):
            for f in fs:
                first.setdefault(f, i); last[f] = i
        order = sorted(frags, key=lambda f: first[f])
        lastuse = {}
        for f in order:
            lastuse[frags[f][1]] = f
        seq = [(it, f) for it in range(5) for f in order]
        tail = [(max([bpos] + [last[f] for f in fs]), t) for fs, t in tail]
        occupant, ready, part = {}, {}, {}
        for it, f in seq:
            key = frags[f][0]
            e = (it - 1) * nm + bpos
            if key in occupant:
                pit, pf = occupant[key]
                e = max(e, pit * nm + last[pf])
            ready[(it, f)] = e
            occupant[key] = (it, f)
        if role == "q":
            step = lines(f"s_add_u32 s{sH}, s{sH}, 1\ns_cmp_eq_u32 s{sH}, 3\ns_cselect_b32 s{sH}, 0, s{sH}\ns_cselect_b32 s{sT0}, s{sB}, s{sA}")
        else:
            step = lines(f"s_cmp_eq_u32 s{sH}, 0\ns_cselect_b32 s{sH}, 3, s{sH}\ns_cselect_b32 s{sT0}, s{sB}, s{sA}\ns_sub_u32 s{sH}, s{sH}, 1")
        bodies, origin, pend, tags = [], [], list(seq), {}
        T = Asm(); C = Counter(T, "lgkmcnt", 14)
        upd, issued_at = [], {}
        def wide_wait(tag, g):
            if tag > C.done:
                C.wait(max([tag] + [t for t, at in issued_at.items() if at <= g - self.c.age[role]]))
        for it in range(-1, 5):
            T.lines = []
            org = []
            steps = list(step) if 0 <= it < 4 else []
            for i in range(nm):
                g = it * nm + i
                if it >= 0:
                    assert all((it, f) not in pend for f in mfmas[i][1]), "operand read not issued before use"
                    wide_wait(max(tags[(it, f)] for f in mfmas[i][1]), g)
                    T(mfmas[i][0])
                n0 = len(T.lines)
                if it >= 0:
                    for f, pre, tx in fixups:
                        for h in range(2):
                            at = first[f] - pre - 2 + h
                            if at % nm == i:
                                C.wait(tags[(it if at >= 0 else it + 1, f)]); T.extend(tx[2 * h: 2 * h + 2])
                    if i == bpos - 2:
                        T(f"s_sub_u32 s{sCNT}, s{sCNT}, 1")
                    if i == bpos:
                        xs = [(it, f) for f in frags if f[0] == "X"]
                        assert all(x not in pend for x in xs)
                        m = len(T.lines)
                        wide_wait(max(tags[x] for x in xs), g)
                        T.lines[m:] = ["s_waitcnt vmcnt(0) " + (T.lines[m].split()[1] if len(T.lines) > m else "")]
                        T("s_barrier\ns_cbranch_scc1 @tail")
                if bpos + 3 <= i and steps and len(T.lines) - n0 < 2 and all(u[0] > it for u in upd) and (it, order[-1]) not in pend:
                    T(steps.pop(0))
                nready = len(upd)
                for x in pend[:6]:
                    if ready[x] > g:
                        break
                    nready += len(frags[x[1]][2]) - part.get(x, 0)
                budget = (2 if nready >= self.c.thr[role] or (it == 4 and i > bpos) else 1) - (len(T.lines) - n0)
                while budget > 0:
                    if it == 4 and i > bpos:
                        upd = []
                        if not pend:
                            if tail and tail[0][0] <= i:
                                C.issue(tail.pop(0)[1]); budget -= 1
                                continue
                            break
                    if upd and (upd[0][0] <= it or not steps):
                        ui, ut = upd.pop(0)
                        assert it < 0 or it == 4 or (len(steps) == 0 if ui > it else len(steps) == len(step)), "address update uses the wrong slot step"
                        T(ut); budget -= 1
                        continue
                    if not (pend and ready[pend[0]] <= g):
                        break
                    x = pend[0]
                    k = part.get(x, 0)
                    tags[x] = C.issue(frags[x[1]][2][k])
                    issued_at[tags[x]] = g
                    org.append((x[0], T.lines[-1]))
                    part[x] = k + 1
                    budget -= 1
                    if k + 1 == len(frags[x[1]][2]):
                        pend.pop(0)
                        ar = frags[x[1]][1]
                        if lastuse[ar] == x[1]:
                            upd.append((x[0], f"v_add_u32 v{ar}, s{sT0}, v{ar}"))
                            org.append(upd[-1])
            assert it < 0 or not steps
            if it == -1:
                C.done = C.n
            bodies.append(list(T.lines)); origin.append(org)
        assert bodies[2] == bodies[3] == bodies[4], "loop body is not periodic"
        k = bodies[2].index("s_barrier") + 2
        assert bodies[5][:k] == bodies[2][:k], "first half of the last iteration differs from the loop body"
        last_half = bodies[5][bodies[5].index("s_barrier") + 2:] + [t for _, t in tail]
        A.extend(step)
        A.extend([l for o, l in origin[2] if o == 2])
        A("s_waitcnt lgkmcnt(0)")
        for f, pre, tx in fixups:
            for h in range(2):
                if first[f] - pre - 2 + h < 0:
                    A.extend(tx[2 * h: 2 * h + 2])
        loop = self.lab("ml")
        A(f"s_mov_b32 s{sCNT}, {niter - 1}")
        if self.c.align:
            A(f"s_branch {loop}\n.p2align {self.c.align}")
            A.extend(["s_nop 0"] * self.c.aoff[role])
        A.label(loop)
        lt = self.lab("tl")
        body = [l.replace("@tail", lt) for l in bodies[2]]
        for key, pat in (("nomfma", "v_mfma"), ("notr", "ds_read_b64_tr"), ("nox", "ds_read_b128"), ("nobar", "s_barrier"), ("nowait", "s_waitcnt"), ("noupd", "v_add_u32")):
            if key in self.c.abl:
                body = [l for l in body if not l.startswith(pat)]
        if self.c.e64:
            body = self.even_bytes(body)
        A.extend(body)
        A(f"s_branch {loop}")
        A.label(lt)
        A.extend(last_half)

    @staticmethod
    def even_bytes(body):
        out, run = [], []
        short = lambda l: l.startswith(("s_waitcnt", "s_barrier", "s_cbranch", "v_add_u32 ", "s_cmp", "s_cselect", "s_add_u32", "s_sub_u32"))
        for l in body + ["v_mfma"]:
            if l.startswith("v_mfma"):
                if sum(short(x) for x in run) % 2:
                    k = [i for i, x in enumerate(run) if x.startswith("v_add_u32 ")]
                    if k:
                        run[k[0]] = run[k[0]].replace("v_add_u32 ", "v_add_u32_e64 ")
                    else:
                        run.append("s_nop 0")
                out += run + [l]; run = []
            else:
                run.append(l)
        return out[:-1]

    @staticmethod
    def fold_t(a, cs, mr, scale=True):
        o = [f"v_pk_fma_f32 {v(a+h,2)}, {v(cs+h,2)}, {v(mr,2)}, {v(a+h,2)} op_sel_hi:[1,0,1] neg_lo:[0,1,0] neg_hi:[0,1,0]" for h in (0, 2)]
        if scale:
            o += [f"v_pk_mul_f32 {v(a+h,2)}, {v(a+h,2)}, {v(mr,2)} op_sel:[0,1] op_sel_hi:[1,1]" for h in (0, 2)]
        return o

    @staticmethod
    def fold_v(a, csreg, mean4, rstd4):
        p, sel = csreg & ~1, csreg & 1
        o = [f"v_pk_fma_f32 {v(a+h,2)}, {v(mean4+h,2)}, {v(p,2)}, {v(a+h,2)} op_sel:[0,{sel},0] op_sel_hi:[1,{sel},1] neg_lo:[0,1,0] neg_hi:[0,1,0]" for h in (0, 2)]
        return o + [f"v_pk_mul_f32 {v(a+h,2)}, {v(a+h,2)}, {v(rstd4+h,2)}" for h in (0, 2)]

    @staticmethod
    def pack(d, a):
        o = [f"v_cvt_pk_bf16_f32 v{d}, v{a}, v{a+1}", f"v_cvt_pk_bf16_f32 v{d+1}, v{a+2}, v{a+3}"]
        return o[::-1] if d == a + 2 else o

    def compute_h(self):
        A, c = self.A, self.c
        vWa, vX0, vX1 = 8, 14, 15
        XF, WF, ACC, ACS, ONE, RS = 24, 56, 80, 176, 188, 192
        self.srds_compute()
        self.row_stats_load("h", RS)
        self.code_prefetch(self.tag)
        A(f"s_lshr_b32 s{sT3}, s{sW}, 1\ns_mul_i32 s{sT3}, s{sT3}, 6")
        A("v_bfe_u32 v2, v0, 2, 3\nv_lshrrev_b32 v3, 5, v0\nv_lshl_add_u32 v3, v3, 4, v2\nv_mul_u32_u24 v3, 384, v3")
        A("v_and_b32 v4, 3, v0\nv_lshl_add_u32 v3, v4, 3, v3\nv_lshrrev_b32 v2, 1, v2")
        for t in range(4):
            A(f"s_add_u32 s{sT2}, s{sT3}, {t}\nv_xor_b32 v4, s{sT2}, v2\nv_lshl_add_u32 v{vWa+t}, v4, 5, v3")
        A(f"s_and_b32 s{sT0}, s{sW}, 1\ns_lshl_b32 s{sT0}, s{sT0}, 13\ns_add_u32 s{sT0}, s{sT0}, {2*H_WH}")
        self.xfrag_addr(vX0, vX1, sT0, 2)
        for i in range(96):
            A(f"v_mov_b32 v{ACC+i}, 0")
        A(f"v_lshrrev_b32 v2, 4, v0\ns_lshr_b32 s{sT2}, s{sW}, 1\ns_mul_i32 s{sT1}, s{sT2}, 384\ns_add_u32 s{sT1}, s{sT1}, {MISC + CS_OFF}\nv_lshl_add_u32 v16, v2, 4, s{sT1}")
        A(f"v_and_b32 v2, 15, v0\ns_and_b32 s{sT0}, s{sW}, 1\ns_lshl_b32 s{sT1}, s{sT0}, 8\ns_add_u32 s{sT1}, s{sT1}, {MISC}\nv_lshl_add_u32 v17, v2, 2, s{sT1}")
        A(f"v_lshlrev_b32 v18, 4, v0\nv_add_u32 v19, 4096, v18")
        A(f"s_lshl1_add_u32 s{sT0}, s{sRB}, s{sT0}\ns_mul_i32 s{sT0}, s{sT0}, {H_BLK}")
        A(f"s_mul_i32 s{sT1}, s{sJ}, 6\ns_mul_i32 s{sT2}, s{sT2}, 3\ns_add_u32 s{sT1}, s{sT1}, s{sT2}")
        for pr, d in enumerate([sC, sD, sE]):
            A(f"s_add_u32 s{sT2}, s{sT1}, {pr}\ns_lshr_b32 s{sT3}, s{sT2}, 1\ns_lshl_b32 s{sT3}, s{sT3}, 13\ns_and_b32 s{sT2}, s{sT2}, 1\ns_lshl_b32 s{sT2}, s{sT2}, 10")
            A(f"s_add_u32 s{d}, s{sT0}, s{sT3}\ns_add_u32 s{d}, s{d}, s{sT2}")
        A(f"v_mov_b32 v2, {MISC + CTR_OFF}\nv_mov_b32 v3, 0\nds_write_b32 v2, v3")
        self.row_stats_finish(RS)
        A(f"s_mov_b32 s{sA}, {-H_SLOT}\ns_mov_b32 s{sB}, {2*H_SLOT}\ns_mov_b32 s{sH}, 0")
        A("s_waitcnt lgkmcnt(0)\ns_barrier")
        self.stamp(1)
        mf, fr = [], {}
        for st in range(2):
            xa = vX1 if st else vX0
            for i in range(4):
                fr[("X", st, i)] = (("X", st, i), xa, [f"ds_read_b128 {v(XF+16*st+4*i,4)}, v{xa} offset:{2048*i}"])
            for t in range(6):
                fr[("W", st, t)] = (("W", t), vWa + t % 4, [f"ds_read_b64_tr_b16 {v(WF+4*t+2*hf,2)}, v{vWa+t%4} offset:{H_WH*(1-st)+8*384*hf+128*(t//4)}" for hf in range(2)])
                for i in range(4):
                    a = v(ACC + 4 * (6 * i + t), 4)
                    mf.append((f"{MF} {a}, {v(WF+4*t,4)}, {v(XF+16*st+4*i,4)}, {a}", [("W", st, t), ("X", st, i)]))
        MR, CS = 216, 176
        tail = [([], f"ds_read2_b32 {v(MR+2*i,2)}, v17 offset0:{16*i} offset1:{16*i+144}") for i in range(4)]
        tail += [([], f"ds_read_b128 {v(CS+4*t,4)}, v16 offset:{64*t}") for t in range(6)]
        self.mfma_loop("h", mf, fr, [], 10, tail)
        self.stamp(2)
        A("s_waitcnt lgkmcnt(0)")
        st_mod = "" if c.split else c.st_mod
        for pr in range(3):
            for i in range(4):
                o = 224 + 4 * ((4 * pr + i) % 6)
                for tt in range(2):
                    t = 2 * pr + tt
                    a = ACC + 4 * (6 * i + t)
                    A.extend(self.fold_t(a, CS + 4 * t, MR + 2 * i) + self.pack(o + 2 * tt, a))
                for r in range(4):
                    A(f"v_pk_max_i16 v{o+r}, v{o+r}, 0")
                A(f"buffer_store_dwordx4 {v(o,4)}, v{19 if i >= 2 else 18}, {s(WS_,4)}, s{[sC,sD,sE][pr]} offen offset:{2048*(i&1)}{st_mod}")
        self.stamp(3)
        if self.resident("h"):
            self.p2_waddr("h")
            A("s_barrier")
            for ch in range(c.nres):
                A.extend(self.p2_wreads("h", ch, self.RES + self.p2geom("h")["N"] // 4 * ch))
        self.publish_now("h")
        if self.resident("h"):
            A("s_barrier")

    def compute_q(self):
        A, c = self.A, self.c
        vW, vX0, vX1, vH0, vH1 = 1, 2, 3, 4, 5
        BC, BP, AC, AP, ONE, vT = 8, 12, 20, 22, 28, 29
        XF, WF, AQ, AK, AV, AH = 36, 60, 120, 160, 200, 240
        RS = 60
        so = [8, 9, 12, 13, 14]
        self.srds_compute()
        self.row_stats_load("q", RS)
        self.code_prefetch(self.tag)
        self.init_flags()
        A(f"v_lshrrev_b32 v6, 4, v0\nv_and_b32 v7, 15, v0\nv_cmp_le_u32 {s(mG1,2)}, 1, v6\nv_cmp_le_u32 {s(mG2,2)}, 2, v6\nv_cmp_le_u32 {s(mG3,2)}, 3, v6")
        A(f"s_or_b32 s{sT3}, s{sRB}, s{sW}\ns_cmp_eq_u32 s{sT3}, 0\ns_cselect_b64 {s(sC,2)}, 0, -1")
        A(f"v_mov_b32 v40, 0xf149f2ca\nv_mov_b32 v41, 0\nv_mov_b32 v42, 0xffff\nv_mov_b32 v43, 0xffff0000")
        for k in range(6):
            A(f"v_mov_b32 v{AC+k}, 0")
        for r in range(4):
            A(f"v_lshl_add_u32 v44, v6, 2, {r}\nv_sub_u32 v45, v7, v44\nv_and_b32 v46, 0x80000001, v45\nv_cmp_eq_u32 vcc, 0, v46")
            A(f"v_cndmask_b32 v{BC+r}, v40, v41, vcc\nv_cndmask_b32 v47, v41, v{42+(r&1)}, vcc\nv_or_b32 v{AC+(r>>1)}, v{AC+(r>>1)}, v47")
            A(f"v_cmp_eq_u32 vcc, 0x80000000, v46")
            A(f"v_cndmask_b32 v{BP+4+r}, v40, v41, vcc\nv_cndmask_b32 v47, v41, v{42+(r&1)}, vcc\nv_or_b32 v{AP+2+(r>>1)}, v{AP+2+(r>>1)}, v47")
            A(f"s_and_b64 vcc, vcc, {s(sC,2)}")
            A(f"v_cndmask_b32 v{BP+r}, v40, v41, vcc\nv_cndmask_b32 v47, v41, v{42+(r&1)}, vcc\nv_or_b32 v{AP+(r>>1)}, v{AP+(r>>1)}, v47")
        A(f"v_mov_b32 v{ONE}, 0x3f803f80")
        A(f"s_lshl_b32 s{sT0}, s{sW}, 7\ns_add_u32 s{sT0}, s{sT0}, {MISC + 64}\ns_mov_b32 s{sT1}, {MISC}\ns_mov_b32 s{sT2}, {MISC + CS_OFF}")
        A(f"v_lshl_add_u32 v{vT}, v7, 2, s{sT0}\nv_lshl_add_u32 v{vT+1}, v7, 2, s{sT1}\nv_lshl_add_u32 v{vT+2}, v6, 4, s{sT0}\nv_lshl_add_u32 v{vT+3}, v6, 4, s{sT1}")
        A(f"v_lshl_add_u32 v{vT+4}, v6, 4, s{sT2}\nv_lshl_add_u32 v{vT+5}, v7, 2, s{sT2}")
        A(f"s_mul_i32 s{sT0}, s{sW}, 5120\ns_add_u32 s{sT0}, s{sT0}, {15*K}\nv_lshl_add_u32 v26, v0, 4, s{sT0}\nv_lshl_add_u32 v35, v0, 3, s{sT0}\nv_lshlrev_b32 v27, 3, v0")
        A(f"s_lshr_b32 s{sT0}, s{sW}, 1\ns_lshl1_add_u32 s{sT0}, s{sRB}, s{sT0}\ns_mul_i32 s{sT0}, s{sT0}, {O_BLK}\ns_and_b32 s{sT1}, s{sW}, 1\ns_lshl_b32 s{sT1}, s{sT1}, 12")
        A(f"s_add_u32 s{sT0}, s{sT0}, s{sT1}\ns_add_u32 s{sT0}, s{sT0}, {O_BASE}\ns_mul_i32 s{sT1}, s{sJ}, 5")
        for t in range(5):
            A(f"s_add_u32 s{sT2}, s{sT1}, {t}\ns_lshr_b32 s{sT3}, s{sT2}, 2\ns_lshl_b32 s{sT3}, s{sT3}, 13\ns_and_b32 s{sT2}, s{sT2}, 3\ns_lshl_b32 s{sT2}, s{sT2}, 9")
            A(f"s_add_u32 s{so[t]}, s{sT0}, s{sT3}\ns_add_u32 s{so[t]}, s{so[t]}, s{sT2}")
        A(f"v_bfe_u32 v6, v0, 2, 3\nv_lshrrev_b32 v7, 5, v0\nv_lshl_add_u32 v6, v7, 4, v6\nv_mul_u32_u24 v6, 480, v6\nv_and_b32 v7, 3, v0\nv_lshl_add_u32 v{vW}, v7, 3, v6")
        A(f"s_lshl_b32 s{sT0}, s{sW}, 12\ns_add_u32 s{sT0}, s{sT0}, {2*Q_WH + 2048}")
        self.xfrag_addr(vX0, vX1, sT0, 6)
        A(f"s_mov_b32 s{sT0}, {2*Q_WH}")
        self.xfrag_addr(vH0, vH1, sT0, 6)
        for i in range(AQ, 256):
            A(f"v_mov_b32 v{i}, 0")
        A(f"v_lshlrev_b32 v6, 2, v0\nv_add_u32 v6, {MISC + CTR_OFF}, v6\nv_mov_b32 v7, 0\nds_write_b32 v6, v7")
        self.row_stats_finish(RS)
        A(f"s_mov_b32 s{sA}, {Q_SLOT}\ns_mov_b32 s{sB}, {-2*Q_SLOT}\ns_mov_b32 s{sH}, 0")
        A("s_waitcnt lgkmcnt(0)\ns_barrier")
        self.stamp(1)
        lw = [self.lab("qw") for _ in range(4)]
        le1 = self.lab("e1")
        A(f"s_cmp_eq_u32 s{sW}, 1\ns_cbranch_scc1 {lw[1]}\ns_cmp_eq_u32 s{sW}, 2\ns_cbranch_scc1 {lw[2]}\ns_cmp_eq_u32 s{sW}, 3\ns_cbranch_scc1 {lw[3]}")
        accq = lambda t, p: (AQ + 20 * p + 4 * t) if t < 5 else (AK + 20 * p + 4 * (t - 5)) if t < 10 else (AV + 8 * (t - 10) + 4 * p)
        halo = [[t for t in range(5, 15) if (t - 5) % 4 == w] for w in range(4)]
        MR, CSV, CSK, CSQ = 36, 42, 60, 80
        VMM, VMR = (100, 104, 48), (108, 112, 52)
        XB = 15 * K
        tail = [([], f"ds_read2_b32 {v(MR,2)}, v{vT} offset0:0 offset1:144"), ([], f"ds_read2_b32 {v(MR+2,2)}, v{vT} offset0:16 offset1:160"),
                ([], f"ds_read2_b32 {v(MR+4,2)}, v{vT+1} offset0:0 offset1:144")]
        tail += [([], f"ds_read_b32 v{CSV+t}, v{vT+5} offset:{64*(10+t)}") for t in range(5)]
        tail += [([("W", 1, t)], f"ds_read_b128 {v(CSK+4*t,4)}, v{vT+4} offset:{64*(5+t)}") for t in range(5)]
        tail += [([("W", 1, 5 + t)], f"ds_read_b128 {v(CSQ+4*t,4)}, v{vT+4} offset:{64*t}") for t in range(5)]
        for i in range(3):
            ad, off = (vT + 2, 64 * i) if i < 2 else (vT + 3, 0)
            for reg, o2 in ((VMM[i], 0), (VMR[i], ST_RSTD)):
                tail.append(([("W", 1, (reg - WF) // 4 if reg >= WF else 14)], f"ds_read_b128 {v(reg,4)}, v{ad} offset:{off + o2}"))
        tail[18:] = sorted(tail[18:], key=lambda x: x[0][0][2])
        for w in range(4):
            A.label(lw[w])
            mf, fr, fix = [], {}, []
            for st in range(2):
                for i in range(3):
                    xa = [vH0, vH1][st] if i == 2 else [vX0, vX1][st]
                    fr[("X", st, i)] = (("X", st, i), xa, [f"ds_read_b128 {v(XF+12*st+4*i,4)}, v{xa} offset:{2048*i if i < 2 else 0}"])
                for t in range(15):
                    fr[("W", st, t)] = (("W", t), vW, [f"ds_read_b64_tr_b16 {v(WF+4*t+2*hf,2)}, v{vW} offset:{Q_WH*(1-st)+8*480*hf+32*t}" for hf in range(2)])
                    for i in [0, 1] + ([2] if t in halo[w] else []):
                        a = v(accq(t, i) if i < 2 else AH + 4 * halo[w].index(t), 4)
                        wf, xf = v(WF + 4 * t, 4), v(XF + 12 * st + 4 * i, 4)
                        ops = f"{wf}, {xf}" if t < 10 else f"{xf}, {wf}"
                        mf.append((f"{MF} {a}, {ops}, {a}", [("W", st, t), ("X", st, i)]))
            self.mfma_loop("q", mf, fr, fix, 10, tail)
            if w < 3:
                A(f"s_branch {le1}")
        A.label(le1)
        self.stamp(2); self.estamp(1)
        A(f"v_lshlrev_b32 v7, 3, v0\nv_add_u32 v6, {XB}, v7\nv_add_u32 v7, v6, v7\ns_waitcnt lgkmcnt(6)")
        self.estamp(2)
        KC = lambda p: AK + 10 * p
        KP = AK + 20
        foldk = lambda p, t: self.fold_t(AK + 20 * p + 4 * t, CSK + 4 * t, MR + 2 * p) + self.pack(KC(p) + 2 * t, AK + 20 * p + 4 * t)
        def foldv(p, t):
            a = AV + 8 * t + 4 * p
            return self.fold_v(a, CSV + t, VMM[p], VMR[p]) + self.pack(AV + 8 * t + 4 + 2 * p, a)
        for t in range(5):
            A.extend(foldk(0, t))
        wr = {}
        wr["k"] = [f"ds_write_b128 v26, {v(KC(1),4)} offset:5120", f"ds_write_b128 v26, {v(KC(1)+4,4)} offset:6144", f"ds_write_b64 v35, {v(KC(1)+8,2)} offset:7168"]
        lh = [self.lab("hw") for _ in range(5)]
        for t in range(5):
            A.extend(foldk(1, t))
        A(f"s_waitcnt lgkmcnt(0)\ns_cmp_eq_u32 s{sW}, 1\ns_cbranch_scc1 {lh[1]}\ns_cmp_eq_u32 s{sW}, 2\ns_cbranch_scc1 {lh[2]}\ns_cmp_eq_u32 s{sW}, 3\ns_cbranch_scc1 {lh[3]}")
        for w in range(4):
            A.label(lh[w])
            blocks = []
            for t in halo[w]:
                a = AH + 4 * halo[w].index(t)
                if 5 <= t < 10:
                    k = t - 5
                    blocks.append(self.fold_t(a, CSK + 4 * k, MR + 4) + self.pack(a, a) +
                                  [f"ds_write_b64 v7, {v(a,2)} offset:{K*(k>>1)+8*(k&1)}" if k < 4 else f"ds_write_b64 v6, {v(a,2)} offset:2048"])
                elif t >= 10:
                    k = t - 10
                    blocks.append(self.fold_v(a, CSV + k, VMM[2], VMR[2]) + self.pack(a, a) + [f"ds_write_b64 v6, {v(a,2)} offset:{2560+512*k}"])
            for t in range(5):
                blocks.append(foldv(1, t) + ([f"ds_write_b64 v35, {v(AV+8*t+6,2)} offset:{5120+2560+512*t}"] if w < 3 else []))
            seq = sum(blocks, [])
            if c.spread:
                wv = [l for l in seq if l.startswith("ds_write")][: len(halo[w])]
                seq = [l for l in seq if not l.startswith("ds_write")]
                n0 = 6 * len(halo[w])
                A.extend(weave(seq[:n0], wr["k"][:1] if w < 3 else [], 6, 1))
                A.extend(weave(seq[n0:], (wr["k"][1:] if w < 3 else []) + wv, 6, 1))
            else:
                A.extend(weave(seq, wr["k"] if w < 3 else [], 14, 1))
            if w < 3:
                A(f"s_branch {lh[4]}")
        A.label(lh[4])
        fv0 = sum((foldv(0, t) for t in range(5)), [])
        if c.spread:
            fv0 = weave(fv0, [f"ds_write_b64 v35, {v(AV+8*t+6,2)} offset:{5120+2560+512*t}" for t in range(5)], 6, 1)
        A.extend(fv0)
        A(f"s_mov_b32 s{sT0}, 0x3ea52b5c\nv_mul_f32 v{MR+1}, s{sT0}, v{MR+1}\nv_mul_f32 v{MR+3}, s{sT0}, v{MR+3}")
        QH = lambda p, h: 42 + 16 * p + 4 * h
        masks = [None, mG1, mG2, mG3]
        def foldq(p):
            o = []
            for t in range(5):
                a = AQ + 20 * p + 4 * t
                d = QH(p, 0) if t == 0 else (QH(p, 3) + 2 if t == 4 else a)
                o += self.fold_t(a, CSQ + 4 * t, MR + 2 * p, scale=False) + self.pack(d, a)
                if 1 <= t <= 3:
                    for r in range(2):
                        o += [f"v_cndmask_b32 v{QH(p,t)+r}, 0, v{a+r}, {s(masks[t],2)}", f"v_cndmask_b32 v{QH(p,t-1)+2+r}, v{a+r}, 0, {s(masks[t],2)}"]
            return o
        A(f"v_mov_b32 v1, {MISC + XFL_OFF}\nv_mov_b32 v2, 1\nv_mov_b32 v3, 4\ns_lshl_b32 s{sT0}, s{sW}, 2\nv_add_u32 v4, s{sT0}, v1")
        fq = foldq(1)
        k = len(fq) // 2 if c.spread else 0
        A.extend(fq[:k])
        A(f"s_waitcnt lgkmcnt(0)\ns_mov_b64 exec, 1\nds_add_u32 v1, v2\nds_write_b32 v4, v3 offset:4\ns_mov_b64 exec, -1")
        A.extend(fq[k:])
        self.estamp(3)
        A("ds_read_b32 v5, v4")
        SP = lambda p, h: (140 + 8 * h if h < 2 else 240 + 8 * (h - 2)) if p else 74 + 8 * h
        MX, MRS, ONE4 = 106, 114, 116
        def qk(p):
            prev = KC(0) if p else KP
            return [f"{MF} {v(SP(p,h)+4,4)}, {v(KC(p)+2*h,4)}, {v(QH(p,h),4)}, {v(BC,4)}" for h in range(4)] + \
                   [f"{MF} {v(SP(p,h),4)}, {v(prev+2*h,4)}, {v(QH(p,h),4)}, {v(BP+4*p,4)}" for h in range(4)]
        def rowmax(p):
            o, m = [], MX + 4 * p
            for h in range(4):
                b = SP(p, h)
                o += [f"v_max_f32 v{b+4+r}, v{b+r}, v{b+4+r}" for r in range(4)]
                o += [f"v_max3_f32 v{m+h}, v{b+4}, v{b+5}, v{b+6}", f"v_max_f32 v{m+h}, v{m+h}, v{b+7}"]
            o += lines(f"v_permlane32_swap_b32 v{m}, v{m+1}\nv_permlane32_swap_b32 v{m+2}, v{m+3}\nv_max_f32 v{m}, v{m}, v{m+1}\nv_max_f32 v{m+2}, v{m+2}, v{m+3}")
            o += lines(f"v_permlane16_swap_b32 v{m}, v{m+2}\nv_max_f32 v{m}, v{m}, v{m+2}\nv_mul_f32 v{m}, v{m}, v{MR+2*p+1}\nv_mov_b32 v{m+2}, v{m}\nv_permlane16_swap_b32 v{m}, v{m+2}")
            o += lines(f"v_mov_b32 v{m+1}, v{m}\nv_mov_b32 v{m+3}, v{m+2}\nv_permlane32_swap_b32 v{m}, v{m+1}\nv_permlane32_swap_b32 v{m+2}, v{m+3}")
            return o
        def probs(p):
            o = []
            for h in range(4):
                b, m = SP(p, h), MX + 4 * p + h
                o += [f"v_pk_fma_f32 {v(b+4+r,2)}, {v(b+4+r,2)}, {v(MR+2*p,2)}, {v(m & ~1,2)} op_sel:[0,1,{m&1}] op_sel_hi:[1,1,{m&1}] neg_lo:[0,0,1] neg_hi:[0,0,1]" for r in (0, 2)]
                o += [f"v_exp_f32 v{b+4+r}, v{b+4+r}" for r in range(4)]
            for h in range(4):
                b = SP(p, h)
                o += self.pack(b + 4, b + 4)
                o += lines(f"v_and_b32 v{b}, v{AP+2*p}, v{b+4}\nv_and_b32 v{b+1}, v{AP+2*p+1}, v{b+5}\nv_and_b32 v{b+2}, v{AC}, v{b+4}\nv_and_b32 v{b+3}, v{AC+1}, v{b+5}")
            return o
        OT = {}
        pool = {1: list(range(42, 74, 4)), 0: list(range(160, 192, 4))}
        def pv(p):
            o = [f"{MF} {v(SP(p,h)+4,4)}, {v(ONE4,4)}, {v(SP(p,h),4)}, 0" for h in range(4)]
            for t in range(5):
                for h in ([t - 1] if t >= 1 else []) + ([t] if t <= 3 else []):
                    OT[(p, t, h)] = pool[p].pop(0)
                    o.append(f"{MF} {v(OT[(p,t,h)],4)}, {v(AV+8*t+2+2*p,4)}, {v(SP(p,h),4)}, 0")
            return o
        st_mod = "" if c.split else c.st_mod
        def final(p):
            m0 = MX + 4 * p
            o = [f"v_rcp_f32 v{m0+h}, v{SP(p,h)+4}" for h in range(4)]
            for t in range(5):
                if 1 <= t <= 3:
                    a, b2 = OT[(p, t, t - 1)], OT[(p, t, t)]
                    o += [f"v_cndmask_b32 v{a+r}, v{a+r}, v{b2+r}, {s(masks[t],2)}" for r in range(4)]
                    o.append(f"v_cndmask_b32 v{b2}, v{m0+t-1}, v{m0+t}, {s(masks[t],2)}")
                    m = b2
                else:
                    a, m = OT[(p, t, min(t, 3))], m0 + min(t, 3)
                o += [f"v_pk_mul_f32 {v(a+r,2)}, {v(a+r,2)}, {v(m & ~1,2)} op_sel:[0,{m&1}] op_sel_hi:[1,{m&1}]" for r in (0, 2)]
                o += self.pack(a, a)
                o.append(f"buffer_store_dwordx2 {v(a,2)}, v27, {s(WS_,4)}, s{so[t]} offen offset:{2048*p}{st_mod}")
            return o
        A.extend(weave(foldq(0), qk(1), 3, 1))
        lx, ly = self.lab("xs"), self.lab("xd")
        A(f"s_waitcnt lgkmcnt(0)\nv_cmp_gt_u32 vcc, 4, v5\ns_cbranch_vccz {ly}\ns_mov_b32 s{sT1}, {SPIN_LIMIT}")
        A.label(lx)
        A(f"ds_read_b32 v5, v4\ns_waitcnt lgkmcnt(0)\nv_cmp_gt_u32 vcc, 4, v5\ns_cbranch_vccz {ly}\ns_sub_u32 s{sT1}, s{sT1}, 1\ns_cbranch_scc0 {lx}")
        A.label(ly)
        self.estamp(4)
        A(f"ds_read_b128 {v(KP,4)}, v26\nds_read_b128 {v(KP+4,4)}, v26 offset:1024\nds_read_b64 {v(KP+8,2)}, v35 offset:2048")
        for t in range(5):
            A(f"ds_read_b64 {v(AV+8*t+2,2)}, v35 offset:{2560+512*t}")
        A.extend([f"v_mov_b32 v{ONE4+r}, v{ONE}" for r in range(4)] + rowmax(1))
        self.estamp(5)
        A("s_waitcnt lgkmcnt(0)")
        A.extend(weave(probs(1), qk(0), 3, 1))
        A.extend(weave(rowmax(0) + probs(0), pv(1), 3, 2))
        self.estamp(6)
        A.extend(weave(final(1), pv(0), 3, 2))
        A.extend(final(0))
        self.stamp(3); self.estamp(7)
        if not (c.phase2 and c.pubq) or self.selfrun("q"):
            self.publish_now("q")

    def p2geom(self, role):
        wide = self.c.wide == role
        kb = lambda *x: [i * K for i in x]
        if role == "q" and not wide:
            return dict(N=64, nW=2, w=kb(64, 72, 80, 88, 112, 120, 128, 136), wbase=kb(64, 112), a=kb(144, 48, 56, 96, 104, 40), abase=kb(40, 96))
        if role == "q":
            return dict(N=96, nW=3, w=kb(144, 84, 132, 120, 108, 96), wbase=kb(84, 120), a=kb(76, 68, 60, 52, 44, 36), abase=kb(36, 160))
        if wide:
            return dict(N=96, nW=3, w=kb(144, 132, 120, 108, 96, 84, 72, 60), wbase=kb(60, 108), a=kb(52, 44, 36, 28, 20, 12), abase=kb(12, 160))
        return dict(N=64, nW=2, w=kb(144, 136, 128, 120, 112, 104, 96, 88, 80, 72), wbase=kb(72, 112), a=kb(64, 56, 48, 40, 32, 24, 16), abase=kb(16, 160))

    P2W, P2A, P2F, P2L, STG = 48, 51, 52, 56, 64
    sPW, sPA, sPM, sPN, sPB, sBW, sOWN, sOTH = 4, 5, 6, 7, 8, 11, 16, 17
    SEG = {0: (12, 1), 12: (12, 0), 24: (5, 1), 29: (5, 0)}

    RES = 160
    s1280 = 999

    def resident(self, role):
        c = self.c
        return c.nres if (role == "h" and c.phase2 and not c.split) else 0

    def p2_waddr(self, role):
        A, g = self.A, self.p2geom(role)
        N = g["N"]; NT = N // 32; vWa = 8
        A(f"v_lshrrev_b32 v3, 4, v0\nv_bfe_u32 v2, v0, 2, 2\nv_lshl_add_u32 v2, v3, 2, v2\nv_mul_u32_u24 v4, {2*N}, v2\nv_and_b32 v5, 3, v0\nv_lshl_add_u32 v4, v5, 3, v4")
        A("v_bfe_u32 v2, v2, 1, 2" if N == 64 else "v_and_b32 v2, 1, v3")
        A(f"s_lshr_b32 s{sT0}, s{sW}, 1\ns_mul_i32 s{sT0}, s{sT0}, {NT}")
        for i in range(NT):
            A(f"s_add_u32 s{sT1}, s{sT0}, {i}\nv_xor_b32 v3, s{sT1}, v2\nv_lshl_add_u32 v3, v3, 5, v4\nv_add_u32 v{vWa+i}, {g['wbase'][0]}, v3\nv_add_u32 v{vWa+3+i}, {g['wbase'][1]}, v3")

    def p2_wreads(self, role, ch, base, ks_list=(0, 1)):
        g = self.p2geom(role)
        N = g["N"]; NT = N // 32
        wb = 1 if g["w"][ch % len(g['w'])] >= g["wbase"][1] else 0
        wo = g["w"][ch % len(g['w'])] - g["wbase"][wb]
        return [f"ds_read_b64_tr_b16 {v(base+4*(NT*ks+i)+2*hf,2)}, v{8+3*wb+i} offset:{wo+(32*ks+16*hf)*2*N}"
                for ks in ks_list for i in range(NT) for hf in range(2)]

    def p2_colbytes(self, N):
        if N == 64:
            self.A(f"s_lshl_b32 s{sCOL}, s{sCOL}, 7\ns_add_u32 s{sCOL}, s{sCOL}, 768")
        else:
            self.A(f"s_mul_i32 s{sCOL}, s{sCOL}, 192")

    def p2_loader_setup(self, role):
        A, g = self.A, self.p2geom(role)
        self.wnext = 0
        if not self.c.phase2:
            return
        self.p2_colbytes(g["N"])
        if g["N"] == 64:
            A(f"v_lshrrev_b32 v2, 3, v0\nv_and_b32 v3, 6, v2\nv_and_b32 v4, 7, v0\nv_xor_b32 v3, v3, v4\nv_mul_u32_u24 v2, 1280, v2\nv_lshl_add_u32 v2, v3, 4, v2")
            A(f"s_mul_i32 s{sT0}, s{sW}, {16*1280}\ns_add_u32 s{sT0}, s{sT0}, s{sCOL}\nv_add_u32 v{self.P2W}, s{sT0}, v2\nv_add_u32 v{self.P2W+1}, {8*1280-K}, v{self.P2W}")
        else:
            for i in range(3):
                A(f"s_mul_i32 s{sT0}, s{sW}, 192\ns_add_u32 s{sT0}, s{sT0}, {64*i}\nv_add_u32 v2, s{sT0}, v0")
                A("v_mul_u32_u24 v3, 5462, v2\nv_lshrrev_b32 v3, 16, v3\nv_mul_u32_u24 v4, 12, v3\nv_sub_u32 v2, v2, v4")
                A("v_lshrrev_b32 v4, 1, v3\nv_and_b32 v4, 2, v4\nv_xor_b32 v2, v2, v4\nv_mul_u32_u24 v3, 1280, v3\nv_lshl_add_u32 v2, v2, 4, v3")
                A(f"s_sub_u32 s{sT0}, s{sCOL}, {K*i}\nv_add_u32 v{self.P2W+i}, s{sT0}, v2")
        A(f"s_lshl_b32 s{self.sPN}, s{sW}, 11\nv_lshl_add_u32 v{self.P2A}, v0, 4, s{self.sPN}")
        if self.selfrun(role):
            srd(A, OUT_, 16, 2048 * 1280)
        A(f"s_lshr_b32 s{self.sOWN}, s{sJ}, 2\ns_xor_b32 s{self.sOTH}, s{self.sOWN}, 1\ns_lshl_b32 s{sT0}, s{sRB}, 9\ns_add_u32 s{sT0}, s{sT0}, {FLAG_BASE}")
        A(f"s_lshl_b32 s{sT1}, s{self.sOTH}, 7\ns_add_u32 s{sT1}, s{sT1}, s{sT0}\nv_mov_b32 v{self.P2F}, s{sT1}\nv_xor_b32 v{self.P2F+1}, 128, v{self.P2F}")
        A(f"s_mul_i32 s{self.sPM}, s{sW}, {K*g['nW']}")
        if self.c.touch and not self.c.split:
            A(f"s_bfe_u32 s{sT0}, s2, 0x40003\ns_lshl2_add_u32 s{sT0}, s{sT0}, s{sW}\nv_mul_u32_u24 v2, 52, v0\nv_lshrrev_b32 v2, 8, v2\nv_mul_u32_u24 v3, 5, v2\nv_sub_u32 v3, v0, v3")
            A(f"s_lshl_b32 s{sT1}, s{self.sOWN}, 7\ns_sub_u32 s{sT1}, 384, s{sT1}\nv_mov_b32 v4, s{sT1}\nv_cmp_le_u32 vcc, 3, v3\nv_cndmask_b32 v4, 0, v4, vcc\nv_lshl_add_u32 v3, v3, 7, v4")
            A(f"v_min_u32 v4, 11, v2\nv_min_u32 v2, 9, v2\nv_mad_u32_u24 v4, v4, s{self.s1280}, v3\nv_mad_u32_u24 v2, v2, s{self.s1280}, v3".replace(f"s{self.s1280}", f"s{sT3}").replace("v_min_u32 v4, 11", f"s_movk_i32 s{sT3}, 1280\nv_min_u32 v4, 11"))
            A(f"s_mul_i32 s{sT1}, s{self.sOWN}, {768*1280 + 384}\ns_mul_i32 s{sT2}, s{sT0}, {12*1280}\ns_add_u32 s{sT1}, s{sT1}, s{sT2}\nv_add_u32 v42, s{sT1}, v4")
            A(f"s_mul_i32 s{sT1}, s{self.sOWN}, 384\ns_mul_i32 s{sT2}, s{sT0}, {10*1280}\ns_add_u32 s{sT1}, s{sT1}, s{sT2}\nv_add_u32 v43, s{sT1}, v2")

    def p2_prep_w(self, cw):
        lim, d = (12 if cw < 24 else 5), (sT2, 12)[cw & 1]
        o = []
        if cw in self.SEG:
            o += lines(f"s_mov_b32 s{self.sPW}, s{sROT2 if cw < 24 else sROT3}\ns_mul_i32 s{self.sBW}, s{self.sOTH if self.SEG[cw][1] else self.sOWN}, {lim}")
        return o + lines(f"s_cmp_ge_u32 s{self.sPW}, {lim}\ns_cselect_b32 s{d}, {lim}, 0\ns_sub_u32 s{self.sPW}, s{self.sPW}, s{d}\ns_add_u32 s{d}, s{self.sPW}, s{self.sBW}\ns_mul_i32 s{d}, s{d}, {64*1280}\ns_add_u32 s{self.sPW}, s{self.sPW}, 1")

    def p2_issue_w(self, role, cw, C=None, fill=()):
        A, g = self.A, self.p2geom(role)
        emit = (C.issue if C else A)
        A(f"s_add_u32 m0, s{self.sPM}, {g['w'][cw % len(g['w'])]}")
        for i in range(g["nW"]):
            tag = emit(f"buffer_load_dwordx4 v{self.P2W+i}, {s(W2_ if cw < 24 else WO_,4)}, s{(sT2, 12)[cw & 1]} offen offset:{K*i} lds")
            if i == 0:
                A.extend(fill)
        return tag

    def p2_prep_a(self, ca):
        lim, d = (12 if ca < 24 else 5), (sT3, 13)[ca & 1]
        o = []
        if ca in self.SEG:
            o += lines(f"s_mov_b32 s{self.sPA}, s{sROT2 if ca < 24 else sROT3}\ns_mul_i32 s{self.sPB}, s{sBLK}, {H_BLK if ca < 24 else O_BLK}\ns_mul_i32 s{d}, s{self.sOTH if self.SEG[ca][1] else self.sOWN}, {8192*lim}")
            o += lines(f"s_add_u32 s{self.sPB}, s{self.sPB}, s{d}\ns_add_u32 s{self.sPB}, s{self.sPB}, {H_BASE if ca < 24 else O_BASE}")
        return o + lines(f"s_cmp_ge_u32 s{self.sPA}, {lim}\ns_cselect_b32 s{d}, {lim}, 0\ns_sub_u32 s{self.sPA}, s{self.sPA}, s{d}\ns_lshl_b32 s{d}, s{self.sPA}, 13\ns_add_u32 s{d}, s{d}, s{self.sPB}\ns_add_u32 s{self.sPA}, s{self.sPA}, 1")

    def p2_issue_a(self, role, ca, C, set_m0=True, fill=()):
        A, g = self.A, self.p2geom(role)
        if set_m0:
            A(f"s_add_u32 m0, s{self.sPN}, {g['a'][ca % len(g['a'])]}")
        mod = "" if self.c.split else self.c.ld_mod
        for i in range(2):
            tag = C.issue(f"buffer_load_dwordx4 v{self.P2A}, {s(WS_,4)}, s{(sT3, 13)[ca & 1]} offen offset:{K*i}{mod} lds")
            if i == 0:
                A.extend(fill)
        return tag

    def p2_prefetch(self, role, upto):
        k = 0
        while self.wnext < upto:
            self.A.extend(self.p2_prep_w(self.wnext))
            self.p2_issue_w(role, self.wnext)
            self.wnext += 1
            k += self.p2geom(role)["nW"]
        return k

    def p2_loader(self, role, pending):
        A, g, c = self.A, self.p2geom(role), self.c
        C = Counter(A, "vmcnt", 62)
        RW, RA, nW, NR = len(g["w"]), len(g["a"]), g["nW"], self.resident(role)
        tw, ta, later = {}, {}, []
        vR = self.P2F + 2
        def next_w():
            A.extend(self.p2_prep_w(self.wnext))
            tw[self.wnext] = self.p2_issue_w(role, self.wnext, C)
            self.wnext += 1
        def one_a(ca):
            A.extend(self.p2_prep_a(ca)); ta[ca] = self.p2_issue_a(role, ca, C)
        def poll(seg):
            return C.issue(f"buffer_load_dword v{vR}, v{self.P2F + 1 - self.SEG[seg][1]}, {s(WS_,4)}, 0 offen offset:{256 * (seg >= 24)}{COH}")
        def confirm(seg, tag):
            C.wait(tag)
            self.check(vR, self.P2F + 1 - self.SEG[seg][1], WS_, 4, 256 * (seg >= 24))
        C.n = pending
        for cw in range(self.wnext):
            tw[cw] = max(0, pending - nW * (self.wnext - 1 - cw))
        if c.split:
            next_w()
            for ca in range(RA):
                one_a(ca)
            while self.wnext < RW:
                next_w()
        else:
            if NR:
                assert self.wnext >= NR
                C.wait(tw[NR - 1])
                A("s_barrier\ns_barrier")
            stop = min(RW + NR, self.wnext + c.gapw) if role == "h" else RW
            while self.wnext < stop - 2:
                next_w()
            pollt = poll(0)
            while self.wnext < stop:
                next_w()
            confirm(0, pollt)
            self.trace(11)
            self.stamp(3)
            for ca in range(c.na0[role]):
                one_a(ca)
            later = [lambda ca=ca: one_a(ca) for ca in range(c.na0[role], RA)] + [next_w] * (RW + NR - self.wnext)
            if role == "q" and c.touch:
                C.issue(f"buffer_load_dword v58, v42, {s(W2_,4)}, 0 offen")
                if c.touch == "q":
                    C.issue(f"buffer_load_dword v59, v43, {s(WO_,4)}, 0 offen")
        want_a = lambda ch: ch >= 2 and ch - 2 + RA < 34
        want_w = lambda ch: ch >= 2 + NR and ch - 2 + RW < 34
        state = dict(pollt=None)

        def epoch(ch, set_m0):
            ca, cw = ch - 2 + RA, ch - 2 + RW
            for _ in range(-(-len(later) // (2 - ch)) if later else 0):
                later.pop(0)()
            if ca in (12, 24, 29) and not c.split:
                if ca == 24:
                    self.stamp(4)
                confirm(ca, state["pollt"])
                if ca == 24:
                    self.stamp(5)
            if ca + 2 in (12, 24, 29) and not c.split:
                state["pollt"] = poll(ca + 2)
            pa = self.p2_prep_a(ca + 1) if want_a(ch + 1) else []
            pw = self.p2_prep_w(cw + 1) if want_w(ch + 1) else []
            if want_a(ch):
                ta[ca] = self.p2_issue_a(role, ca, C, set_m0, pa); pa = []
            if want_w(ch):
                tw[cw] = self.p2_issue_w(role, cw, C, pw); pw = []
            A.extend(pa + pw)

        if self.selfrun(role):
            self.p2_compute(role, (C, ta, tw, epoch))
            return
        for ch in range(34):
            if want_a(ch):
                A(f"s_add_u32 m0, s{self.sPN}, {g['a'][(ch - 2 + RA) % RA]}")
            C.wait(max(ta[ch], tw[ch]))
            A("s_barrier")
            self.trace(12 + ch)
            epoch(ch, c.trace)
        self.stamp(6)

    def selfrun(self, role):
        c = self.c
        return role == "q" and c.selfq and c.phase2 and not c.split

    def p2_compute(self, role, own=None):
        A, g, c = self.A, self.p2geom(role), self.c
        N = g["N"]; NT = N // 32; RB = 2 * N
        vB, vO = (14, 10), (15, 13)
        NR = self.resident(role)
        ACC, FB, FW, XR = (64, 88, 120, 168) if own else (16, 40, 72, 120)
        if not own:
            self.p2_colbytes(N)
        A(f"s_and_b32 s{sT0}, s{sW}, 1\ns_lshl1_add_u32 s{sT0}, s{sBLK}, s{sT0}\ns_mul_i32 s{sT0}, s{sT0}, {32*1280}\ns_add_u32 s{sT0}, s{sT0}, s{sCOL}")
        A(f"s_lshr_b32 s{sT1}, s{sW}, 1\ns_mul_i32 s{sT1}, s{sT1}, {32*NT}\ns_add_u32 s{sF}, s{sT0}, s{sT1}\ns_add_u32 s{sE}, s{sF}, {16*1280}")
        A(f"v_and_b32 v2, 15, v0\nv_mul_u32_u24 v2, 1280, v2\nv_lshrrev_b32 v3, 5, v0\nv_lshl_add_u32 v2, v3, 4, v2\nv_bfe_u32 v3, v0, 4, 1\nv_lshl_add_u32 v6, v3, 5, v2")
        jobs = [(NT * p, NT * p + 1, 6, sE if p else sF, 0) for p in range(2)]
        if NT == 3:
            A(f"v_mul_u32_u24 v3, {16*1280}, v3\nv_add_u32 v7, v2, v3")
            jobs.append((2, 5, 7, sF, 64))
        xl = [f"buffer_load_dwordx4 {v(XR+4*n,4)}, v{va}, {s(X_,4)}, s{so} offen offset:{off}" for n, (_, _, va, so, off) in enumerate(jobs)]
        xat = c.xat[role]
        if not NR:
            self.p2_waddr(role)
        A(f"s_and_b32 s{sT0}, s{sW}, 1\ns_lshl_b32 s{sT0}, s{sT0}, 12\ns_add_u32 s{sT0}, s{sT0}, {g['abase'][0]}\nv_lshl_add_u32 v{vB[0]}, v0, 4, s{sT0}\nv_lshl_add_u32 v{vO[0]}, v0, 3, s{sT0}")
        if g["abase"][1] < LDS_BYTES:
            A(f"v_add_u32 v{vB[1]}, {g['abase'][1]-g['abase'][0]}, v{vB[0]}\nv_add_u32 v{vO[1]}, {g['abase'][1]-g['abase'][0]}, v{vO[0]}")

        def mfmas(ch):
            out = []
            if ch < 0:
                return out
            st = ch & 1
            fw = self.RES + 8 * NT * ch if ch < NR else FW + 8 * NT * st
            for ks in range(2):
                for i in range(NT):
                    for p in range(2):
                        a = v(ACC + 4 * (NT * p + i), 4)
                        out.append(f"{MF} {a}, {v(fw+4*(NT*ks+i),4)}, {v(FB+16*st+8*ks+4*p,4)}, {a if ch or ks else 0}")
            return out

        def chunk(ch, extra=(), head=()):
            st, opart = ch & 1, ch >= 24
            aa = g["a"][ch % len(g["a"])]
            ab = 1 if aa >= g["abase"][1] else 0
            ao = aa - g["abase"][ab]
            ld = []
            if own:
                C, ta, tw, epoch = own
                l, d = self.lab("ps"), self.lab("pd")
                A(f"s_waitcnt lgkmcnt(0)\nv_cmp_gt_u32 vcc, {ch + 1}, v{vPG+2}\nv_add_u32 v{vPG+3}, 1, v{vPG+3}\ns_mov_b32 s{sT1}, {SPIN_LIMIT}\ns_cbranch_vccz {d}")
                A.label(l)
                A(f"ds_read_b32 v{vPG+2}, v{vPG+1}\ns_waitcnt lgkmcnt(0)\nv_cmp_gt_u32 vcc, {ch + 1}, v{vPG+2}\ns_cbranch_vccz {d}\ns_sub_u32 s{sT1}, s{sT1}, 1\ns_cbranch_scc0 {l}")
                A.label(d)
                self.trace(12 + ch)
                if ch < 33:
                    C.wait(max(ta[ch + 1], tw[ch + 1]))
                    A(f"ds_write_b32 v{vPG}, v{vPG+3}")
                m = len(A.lines)
                epoch(ch, True)
                ld = A.lines[m:]; del A.lines[m:]
            else:
                A("s_barrier\ns_waitcnt lgkmcnt(0)")
            if ch == 0:
                self.stamp(4 if not own else 6)
            A.extend(head)
            rd = []
            for ks in range(2):
                for p in range(2):
                    d = FB + 16 * st + 8 * ks + 4 * p
                    if opart:
                        rd += [f"ds_read_b64 {v(d+2*hf,2)}, v{vO[ab]} offset:{ao+2048*p+512*(2*ks+hf)}" for hf in range(2)]
                    else:
                        rd.append(f"ds_read_b128 {v(d,4)}, v{vB[ab]} offset:{ao+2048*p+K*ks}")
                if ch >= NR:
                    rd += self.p2_wreads(role, ch, FW + 8 * NT * st, (ks,))
            rd += list(extra)
            ms = mfmas(ch - 1)
            if own and 'selfskipm' in c.abl:
                ms = ['s_nop 0'] * len(ms)
            if own and 'selfskipr' in c.abl:
                rd = list(extra)
            if own:
                nrd = len(rd) - len(extra)
                if ch < 33:
                    rd.insert(nrd, f"ds_read_b32 v{vPG+2}, v{vPG+1}")
                rd += ld
            per = max(2, -(-len(rd) // max(1, len(ms))))
            solid = any(x.endswith(":") for x in rd)
            for i, m in enumerate(ms):
                A(m)
                k = min(per, len(rd) - len(ld)) if solid else per
                A.extend(rd[:k]); rd = rd[k:]
            A.extend(rd)

        vPG = 16
        if own:
            A(f"s_lshl_b32 s{sT0}, s{sW}, 2\ns_add_u32 s{sT0}, s{sT0}, {MISC + PRG_OFF}\nv_mov_b32 v{vPG}, s{sT0}\nv_and_b32 v{vPG+1}, 3, v0\nv_lshlrev_b32 v{vPG+1}, 2, v{vPG+1}\nv_add_u32 v{vPG+1}, {MISC + PRG_OFF}, v{vPG+1}")
            A(f"v_mov_b32 v{vPG+3}, 1")
            own[0].wait(max(own[1][0], own[2][0]))
            A(f"ds_write_b32 v{vPG}, v{vPG+3}\nds_read_b32 v{vPG+2}, v{vPG+1}")
        heads = {}
        if role == "q" and c.pubq and not c.split and not own:
            heads[c.pubq], heads[c.pubq + 1] = self.publish("q", len(xl) if xat + len(xl) <= c.pubq else 0)
        assert role == "h" or xat + len(xl) <= c.pubq or xat > c.pubq
        for ch in range(24):
            chunk(ch, xl[ch - xat: ch - xat + 1] if ch >= xat else [], heads.get(ch, ()))
        if not own:
            self.stamp(5)
        XU = XR + 16
        unpack = [] if own else ["s_waitcnt vmcnt(0)"]
        for n, (k0, k1, va, so, off) in enumerate(jobs):
            d = XR + 4 * n
            unpack += [f"v_permlane16_swap_b32 v{d}, v{d+2}", f"v_permlane16_swap_b32 v{d+1}, v{d+3}"]
            for x, k in ((d, k0), (d + 2, k1)):
                unpack += lines(f"v_lshlrev_b32 v{XU+4*k}, 16, v{x}\nv_and_b32 v{XU+4*k+1}, 0xffff0000, v{x}\nv_lshlrev_b32 v{XU+4*k+2}, 16, v{x+1}\nv_and_b32 v{XU+4*k+3}, 0xffff0000, v{x+1}")
        for ch in range(24, 34):
            n = -(-len(unpack) // (30 - ch)) if unpack else 0
            chunk(ch, unpack[:n]); unpack = unpack[n:]
        A("s_waitcnt lgkmcnt(0)")
        A.extend(mfmas(33))
        if not own:
            self.stamp(6)
        O = FB
        for n, (k0, k1, va, so, off) in enumerate(jobs):
            d = O + 4 * n
            for dd, k in ((d, k0), (d + 2, k1)):
                for h in (0, 2):
                    A(f"v_pk_add_f32 {v(ACC+4*k+h,2)}, {v(ACC+4*k+h,2)}, {v(XU+4*k+h,2)}")
                A.extend(self.pack(dd, ACC + 4 * k))
            A(f"v_permlane16_swap_b32 v{d}, v{d+2}\nv_permlane16_swap_b32 v{d+1}, v{d+3}")
            A(f"buffer_store_dwordx4 {v(d,4)}, v{va}, {s(OUT_,4)}, s{so} offen offset:{off}{c.out_mod}")

    def kernel(self, name, tag, do1, do2):
        A = self.A
        self.tag = tag
        self.entry(name, tag)
        for role in ("q", "h"):
            if role == "h":
                A.label(f"L_HH_{tag}")
            pending = 0
            if do1:
                pending = self.helper1(role)
            else:
                A("s_waitcnt lgkmcnt(0)")
                self.srds_helper2()
                self.p2_loader_setup(role)
            if do2:
                self.p2_loader(role, pending)
            self.stamp(7)
            self.stamp_out(8, 1)
            A("s_endpgm")
        for role in ("q", "h"):
            A.label(f"L_{role.upper()}C_{tag}")
            if do1:
                (self.compute_q if role == "q" else self.compute_h)()
            else:
                self.srds_compute()
            if do2 and not self.selfrun(role):
                self.p2_compute(role)
            self.stamp(7)
            self.stamp_out(8, 0)
            A("s_endpgm")
        A.label(f"L_end_{tag}")
        A("s_endpgm")

    def build(self):
        A, c = self.A, self.c
        A(open(os.path.join(os.path.dirname(os.path.abspath(__file__)), "header.txt")).read().rstrip())
        if c.split:
            A(f"; @launch kernel=phase1_kernel grid=(256,1,1) block=(512,1,1) lds={LDS_BYTES}")
            A(f"; @launch kernel=phase2_kernel grid=(256,1,1) block=(512,1,1) lds={LDS_BYTES}")
        else:
            A(f"; @launch grid=(256,1,1) block=(512,1,1) lds={LDS_BYTES}")
        A('.amdgcn_target "amdgcn-amd-amdhsa--gfx950"')
        if c.split:
            p2 = c.phase2
            c.phase2 = False
            self.kernel("phase1_kernel", "a", True, False)
            c.phase2 = p2
            self.kernel("phase2_kernel", "b", False, True)
            A(kernel_desc("phase1_kernel", 256, 256)); A(kernel_desc("phase2_kernel", 256, 256))
        else:
            self.kernel(NAME + "_kernel", "a", True, c.phase2)
            A(kernel_desc(NAME + "_kernel", 256, 256))
        return A.text()

def make(**kw):
    import asmlib
    asmlib.EXTRA.clear(); asmlib.EXTRA.update(kw.pop('extra', {}))
    return Gen(Cfg(**kw)).build()

if __name__ == "__main__":
    kw = {}
    for a_ in sys.argv[2:]:
        k, val = a_.split("=", 1)
        kw[k] = eval(val)
    open(sys.argv[1], "w").write(make(**kw))
```

```python
import sys, os
from asmlib import *

NAME = "parallel_sum__sliding_local_dilated__dense_activation_relu__prompt"
MF = "v_mfma_f32_16x16x32_bf16"

H_BLK = 24 * 8192
O_BLK = 10 * 8192
H_BASE = 0
O_BASE = 32 * H_BLK
FLAG_BASE = 16 << 20
STAT_BASE = 18 << 20
CSUM_BASE = 19 << 20
STAMP_BASE = 20 << 20
PART_BASE = 22 << 20
WS_BYTES = 32 << 20

X_, W1_, W2_, WO_, WS_, DBG_, FLEX_, OUT_ = 20, 24, 28, 32, 36, 40, 44, 48
sWAVE, sW, sRB, sJ, sBLK, sCOL, sROT, sCNT = 52, 53, 54, 55, 56, 57, 58, 59
sT0, sT1, sT2, sT3 = 60, 61, 62, 63
sA, sB, sC, sD, sE, sF = 64, 65, 66, 67, 68, 69
mG1, mG2, mG3, mU0 = 70, 72, 74, 76
sROT2, sROT3 = 78, 79
sG, sH, sI = 3, 80, 81
sSTAMP = 82

K = 1024
Q_SLOT, H_SLOT = 48 * K, 40 * K
Q_WH, H_WH = 15 * K, 12 * K
MISC = 157 * K
ST_RSTD = 576
CS_OFF = 1152
CTR_OFF = 2304
XFL_OFF = 2320
PRG_OFF = 2368
F_STAT, F_CSUM, F_PAIR = 8192, 10240, 16384
LDS_BYTES = 163840
SPIN_LIMIT = 20000
COH = " sc0 sc1"

class Cfg:
    def __init__(self, **kw):
        self.split = False
        self.stamps = False
        self.dbgstamps = False
        self.epi = False
        self.trace = False
        self.phase2 = True
        self.rot = True
        self.rot2 = True
        self.pre1 = {'q': 8, 'h': 7}
        self.pre0 = 2
        self.prio_h = 1
        self.abl = ''
        self.preq = {8: 2, 9: 4}
        self.preh = {8: 2, 9: 4}
        self.nreg0 = {"q": 10, "h": 8}
        self.warm = 0
        self.warm_c = 0
        self.pubq = 8
        self.selfq = False
        self.wide = 'h'
        self.prio_self = 1
        self.na0 = {'q': 6, 'h': 3}
        self.touch = 'q'
        self.cstat = 5
        self.pair = False
        self.twin = False
        self.ssplit = 10
        self.owntouch = False
        self.midw = 4
        self.defer = True
        self.ostart = {'q': 8, 'h': 14}
        self.pub4 = 5
        self.snd = 8
        self.rcv = 5
        self.gap4 = 3
        self.na4 = {'q': 3, 'h': 2}
        self.x4 = {'q': 18, 'h': 18}
        self.nb = 6
        self.pd = 2
        self.qring = 0
        self.pk = 4
        self.pre3 = {'q': {8: 2, 9: 4}, 'h': {8: 2, 9: 4}}
        self.pub3 = 2
        self.gap3 = 3
        self.na3 = {'q': 3, 'h': 2}
        self.touch_h = 2
        self.gapw = 6
        self.nres = 4
        self.npoll = 1
        self.rotf = (7, 0, 0, 1)
        self.swap = False
        self.codepf = 7
        self.align = 5
        self.thr = {'q': 4, 'h': 4}
        self.aoff = {'q': 3, 'h': 3}
        self.age = {'q': 10, 'h': 10}
        self.e64 = False
        self.xat = {'q': 0, 'h': 2}
        self.spread = True
        self.ld_mod = COH
        self.st_mod = COH
        self.comp = False
        self.out_mod = ''
        self.stage = {'q': 0, 'h': 0}
        self.hold = False
        self.__dict__.update(kw)

def srd(A, d, b, n):
    A(f"s_mov_b32 s{d}, s{b}\ns_mov_b32 s{d+1}, s{b+1}\ns_mov_b32 s{d+2}, {n}\ns_mov_b32 s{d+3}, 0x20000")

def lines(txt):
    return [l for l in txt.split("\n") if l]

def weave(main, extra, every=2, start=0):
    out, extra = [], list(extra)
    for i, l in enumerate(main):
        out.append(l)
        if extra and i + 1 >= start and (i + 1 - start) % every == 0:
            out.append(extra.pop(0))
    return out + extra

class Gen:
    def __init__(self, cfg):
        self.c = cfg
        self.A = Asm()
        self.uid = 0

    def lab(self, p):
        self.uid += 1
        return f"L_{p}_{self.uid}"

    def estamp(self, i):
        if self.c.epi:
            self.stamp(i, True)

    def stamp(self, i, force=False):
        if self.c.epi and not force and i > 0:
            return
        if self.c.stamps:
            op = "s_memtime" if self.c.stamps == "cyc" else "s_memrealtime"
            self.A(f"{op} s[{sSTAMP+2*i}:{sSTAMP+2*i+1}]")

    def trace(self, lane):
        if self.c.trace:
            if isinstance(lane, str):
                self.A(f"s_mov_b32 m0, {lane}")
                lane = "m0"
            op = "s_memtime" if self.c.stamps == "cyc" else "s_memrealtime"
            self.A(f"{op} s[98:99]\ns_waitcnt lgkmcnt(0)\nv_writelane_b32 v30, s98, {lane}")

    def stamp_out(self, n, row):
        if not self.c.stamps:
            return
        A = self.A
        if self.c.trace and row == 1:
            l = self.lab("tr")
            A(f"s_cmp_lg_u32 s{sW}, 0\ns_cbranch_scc1 {l}\ns_lshl_b32 s{sT0}, s2, 8\ns_add_u32 s{sT0}, s{sT0}, {STAMP_BASE + (1 << 20)}\nv_lshl_add_u32 v1, v0, 2, s{sT0}")
            A(f"buffer_store_dword v30, v1, {s(WS_,4)}, 0 offen\ns_waitcnt vmcnt(0)")
            A.label(l)
        l = self.lab("st")
        A(f"s_waitcnt lgkmcnt(0)\ns_cmp_lg_u32 s{sW}, 0\ns_cbranch_scc1 {l}")
        if self.c.dbgstamps:
            if row == 0:
                A(f"s_lshr_b32 s{sT1}, s2, 7\ns_mul_i32 s{sT1}, s{sT1}, 28\nv_mov_b32 v1, s{sT1}\nv_mov_b32 v3, 0\ns_mov_b64 exec, 1")
                A(f"s_not_b32 s{sT0}, s{sSTAMP}\nv_mov_b32 v2, s{sT0}\nbuffer_atomic_umax v2, v3, {s(DBG_,4)}, 0 offen offset:4 sc1")
                for i in range(1, 8):
                    A(f"v_mov_b32 v2, s{sSTAMP+2*i}\nbuffer_atomic_umax v2, v1, {s(DBG_,4)}, 0 offen offset:{4+4*i} sc1")
                A("s_waitcnt vmcnt(0)")
            A.label(l)
            return
        A(f"s_lshl_b32 s{sT0}, s2, 7\ns_add_u32 s{sT0}, s{sT0}, {STAMP_BASE + 64*row}\nv_mov_b32 v1, s{sT0}")
        for i in range(n):
            A(f"v_mov_b32 v2, s{sSTAMP+2*i}\nbuffer_store_dword v2, v1, {s(WS_,4)}, 0 offen offset:{4*i}")
        A("s_waitcnt vmcnt(0)")
        A.label(l)

    def entry(self, name, tag):
        A, c = self.A, self.c
        A(kernel_header(name))
        A("s_cmp_ge_u32 s2, 256\ns_cbranch_scc1 L_end_" + tag)
        self.stamp(0)
        A("s_load_dwordx4 s[4:7], s[0:1], 0\ns_load_dwordx2 s[8:9], s[0:1], 16")
        A("s_load_dwordx4 s[12:15], s[0:1], 32\ns_load_dwordx4 s[16:19], s[0:1], 48\ns_load_dwordx2 s[10:11], s[0:1], 64")
        A(f"v_lshrrev_b32 v1, 6, v0\nv_and_b32 v0, 63, v0\nv_readfirstlane_b32 s{sWAVE}, v1")
        A(f"s_bfe_u32 s{sT0}, s2, 0x20001\ns_bfe_u32 s{sT1}, s2, 0x20003\ns_lshl2_add_u32 s{sRB}, s{sT0}, s{sT1}")
        A(f"s_and_b32 s{sT0}, s2, 1\ns_bfe_u32 s{sT2}, s2, 0x20005\ns_lshl2_add_u32 s{sJ}, s{sT0}, s{sT2}")
        A(f"s_and_b32 s{sT3}, s{sT2}, 1\ns_lshl1_add_u32 s{sBLK}, s{sRB}, s{sT3}")
        A(f"s_lshr_b32 s{sT3}, s{sT2}, 1\ns_lshl1_add_u32 s{sCOL}, s{sT0}, s{sT3}")
        A(f"s_lshr_b32 s{sA}, s2, 7")
        if c.rot:
            ra, rb_, rc, rd = c.rotf
            if ra >= 0:
                A(f"s_mul_i32 s{sROT}, s{sRB}, {ra}")
            elif ra == -2:
                A(f"s_and_b32 s{sROT}, s{sRB}, 1\ns_mul_i32 s{sROT}, s{sROT}, 5\ns_lshr_b32 s{sT1}, s{sRB}, 2\ns_add_u32 s{sROT}, s{sROT}, s{sT1}")
            elif ra == -3:
                A(f"s_and_b32 s{sROT}, s{sRB}, 1\ns_mul_i32 s{sROT}, s{sROT}, 5")
            elif ra == -4:
                A(f"s_and_b32 s{sROT}, s{sRB}, 3\ns_mul_i32 s{sROT}, s{sROT}, 7")
            if rb_:
                A(f"s_mul_i32 s{sT1}, s{sT2}, {rb_}\ns_add_u32 s{sROT}, s{sROT}, s{sT1}")
            if rc:
                A(f"s_and_b32 s{sT1}, s{sT2}, 1\ns_mul_i32 s{sT1}, s{sT1}, {rc}\ns_add_u32 s{sROT}, s{sROT}, s{sT1}")
            if rd:
                A(f"s_mul_i32 s{sT1}, s{sA}, {rd}\ns_add_u32 s{sROT}, s{sROT}, s{sT1}")
            A(f"s_mul_i32 s{sT1}, s{sROT}, 205\ns_lshr_b32 s{sT1}, s{sT1}, 11\ns_mul_i32 s{sT1}, s{sT1}, 10\ns_sub_u32 s{sROT}, s{sROT}, s{sT1}")
        A(f"s_and_b32 s{sT0}, s{sBLK}, 7\ns_lshl1_add_u32 s{sT3}, s{sA}, s{sT3}\ns_mul_i32 s{sT1}, s{sT0}, 3\ns_lshr_b32 s{sT1}, s{sT1}, 1\ns_mul_i32 s{sROT2}, s{sT3}, 3\ns_add_u32 s{sROT2}, s{sROT2}, s{sT1}")
        A(f"s_mul_i32 s{sT0}, s{sT0}, 5\ns_lshr_b32 s{sT0}, s{sT0}, 3\ns_add_u32 s{sROT3}, s{sT0}, s{sT3}")
        A(f"s_and_b32 s{sW}, s{sWAVE}, 3")
        A(f"s_cmp_ge_u32 s{sWAVE}, 4\ns_cbranch_scc{0 if c.swap else 1} L_helper_{tag}")
        A(f"s_cmp_eq_u32 s{sA}, 0\ns_cbranch_scc1 L_QC_{tag}\ns_branch L_HC_{tag}")
        A.label(f"L_helper_{tag}")
        if c.prio_h:
            A(f"s_setprio {c.prio_h}")
        A(f"s_cmp_eq_u32 s{sA}, 0\ns_cbranch_scc0 L_HH_{tag}")

    def srds_helper2(self):
        A = self.A
        srd(A, W2_, 14, 1536 * 1280); srd(A, WO_, 8, 640 * 1280); srd(A, WS_, 10, WS_BYTES); srd(A, DBG_, 18, 256)

    def srds_compute(self):
        A = self.A
        A("s_waitcnt lgkmcnt(0)")
        srd(A, X_, 4, 2048 * 1280); srd(A, WS_, 10, WS_BYTES); srd(A, DBG_, 18, 256); srd(A, OUT_, 16, 2048 * 1280)

    def xfrag_addr(self, d0, d1, base_s, t):
        A = self.A
        A(f"v_and_b32 v{t}, 15, v0\nv_lshrrev_b32 v{d1}, 1, v{t}\nv_lshrrev_b32 v{d0}, 4, v0\nv_xor_b32 v{d0}, v{d0}, v{d1}")
        A(f"v_lshlrev_b32 v{d0}, 4, v{d0}\nv_lshl_add_u32 v{d0}, v{t}, 7, v{d0}\nv_add_u32 v{d0}, s{base_s}, v{d0}\nv_xor_b32 v{d1}, 64, v{d0}")

    def check(self, vres, vaddr, srd_, target, off=0, depth=1):
        A = self.A
        l, d = self.lab("sp"), self.lab("sd")
        A(f"v_cmp_gt_u32 vcc, {target}, v{vres}\ns_cbranch_vccz {d}\ns_mov_b32 s{sT1}, {SPIN_LIMIT}")
        if depth > 1:
            ld = lambda r: f"buffer_load_dword v{r}, v{vaddr}, {s(srd_,4)}, 0 offen offset:{off}{COH}"
            regs = [vres] + list(range(2, 1 + depth))
            e = self.lab("se")
            for r in regs[1:]:
                A(ld(r) + "\ns_nop 15\ns_nop 15")
            A.label(l)
            for i, r in enumerate(regs):
                A(ld(r) + f"\ns_waitcnt vmcnt({depth-1})\nv_cmp_gt_u32 vcc, {target}, v{regs[(i + 1) % depth]}\ns_cbranch_vccz {e}")
            A(f"s_sub_u32 s{sT1}, s{sT1}, 1\ns_cbranch_scc0 {l}")
            A.label(e)
            A.label(d)
            return depth - 1
        A.label(l)
        A(f"buffer_load_dword v{vres}, v{vaddr}, {s(srd_,4)}, 0 offen offset:{off}{COH}\ns_waitcnt vmcnt(0)\nv_cmp_gt_u32 vcc, {target}, v{vres}")
        A(f"s_cbranch_vccz {d}\ns_sub_u32 s{sT1}, s{sT1}, 1\ns_cbranch_scc0 {l}")
        A.label(d)

    def helper1(self, role):
        A, c = self.A, self.c
        q = role == "q"
        slot, wh = (Q_SLOT, Q_WH) if q else (H_SLOT, H_WH)
        xoff = 2 * wh
        wstride = 3840 if q else 3072
        vA, vB, vC, vF = 8, 11, 14, 18
        sOWa, sOWb, sOX, sSa, sSb = sA, sB, sC, sD, sE
        sMA, sMX, sF1o, sF1m, sF2o, sF2m = sF, sG, mG1, mG1 + 1, mG1 + 2, mG1 + 3
        sMF1, sMF2, sPa, sPb, sPx = mG1 + 4, mG1 + 5, mG1 + 6, mG1 + 7, sI
        nA, nB = (4, 8) if q else (3, 7)
        per = 4 if q else 3

        A("v_lshrrev_b32 v2, 3, v0\nv_mul_u32_u24 v2, 1280, v2\nv_and_b32 v3, 7, v0\nv_lshrrev_b32 v4, 4, v0\nv_xor_b32 v3, v3, v4\nv_lshl_add_u32 v6, v3, 4, v2\nv_xor_b32 v7, 64, v6")
        A(f"s_lshl_b32 s{sT0}, s{sRB}, 7\ns_lshl_b32 s{sT1}, s{sW}, 5\ns_add_u32 s{sT0}, s{sT0}, s{sT1}")
        if q:
            A(f"s_sub_u32 s{sT0}, s{sT0}, 16")
        A(f"s_mul_i32 s{sPx}, s{sT0}, 1280")
        A(f"s_mul_i32 s{sH}, s{sJ}, {160 if q else 384}\ns_movk_i32 s{sCNT}, 1120\ns_mul_i32 s{sMA}, s{sW}, {per}\ns_lshl_b32 s{sMX}, s{sW}, 12\ns_add_u32 s{sMX}, s{sMX}, {xoff}")

        def xoffs(d, i):
            A(f"s_add_u32 s{sT0}, s{sPx}, {8*1280*i}\nv_add_u32 v{d}, s{sT0}, v{6 + (i & 1)}")

        def woff(d, kb):
            A(f"s_add_u32 s{sT0}, s{sMA}, {kb}\ns_lshl_b32 s{sT0}, s{sT0}, 6\nv_add_u32 v2, s{sT0}, v0")
            if q:
                A("v_mul_u32_u24 v3, 2185, v2\nv_lshrrev_b32 v3, 16, v3\nv_mul_u32_u24 v4, 30, v3\nv_sub_u32 v2, v2, v4")
            else:
                A("v_mul_u32_u24 v3, 2731, v2\nv_lshrrev_b32 v3, 16, v3\nv_mul_u32_u24 v4, 24, v3\nv_sub_u32 v2, v2, v4\nv_and_b32 v4, 6, v3\nv_xor_b32 v2, v2, v4")
            A("v_and_b32 v4, 4, v3\nv_add_u32 v5, v3, v4\nv_bfe_u32 v4, v3, 3, 1\nv_mad_i32_i24 v5, v4, -4, v5")
            A(f"v_mul_u32_u24 v5, {wstride}, v5")
            if q:
                A(f"v_mul_u32_u24 v4, 26, v2\nv_lshrrev_b32 v4, 8, v4\nv_mad_u32_u24 v5, v4, s{sCNT}, v5")
            A(f"v_lshl_add_u32 v5, v2, 4, v5\nv_add_u32 v{d}, s{sH}, v5")

        def advance():
            A(f"s_mov_b32 s{sOWa}, s{sOWb}\ns_add_u32 s{sPa}, s{sSb}, s{sMA}")
            if q:
                A(f"s_add_u32 s{sSb}, s{sSb}, {slot}\ns_cmp_ge_u32 s{sSb}, {3*slot}\ns_cselect_b32 s{sSb}, 0, s{sSb}")
            else:
                A(f"s_sub_u32 s{sSb}, s{sSb}, {slot}\ns_cselect_b32 s{sSb}, {2*slot}, s{sSb}")
            rot()

        def rot():
            A(f"s_cmp_ge_u32 s{sROT}, 10\ns_cselect_b32 s{sT0}, 10, 0\ns_sub_u32 s{sROT}, s{sROT}, s{sT0}")
            A(f"s_mul_i32 s{sOWb}, s{sROT}, {64*wstride}\ns_lshl_b32 s{sOX}, s{sROT}, 7\ns_add_u32 s{sROT}, s{sROT}, 1")
            A(f"s_add_u32 s{sPb}, s{sSb}, s{sMA}\ns_add_u32 s{sPx}, s{sSb}, s{sMX}")
            if q:
                A(f"s_cmp_lt_u32 s{sW}, 3\ns_cselect_b32 s{sF1o}, s{sOWa}, s{sOX}\ns_cselect_b32 s{sF2o}, s{sOWb}, s{sOX}\ns_cselect_b32 s{sF1m}, s{sPa}, s{sPx}\ns_cselect_b32 s{sF2m}, s{sPb}, s{sPx}")
                A(f"s_add_u32 s{sF1m}, s{sF1m}, s{sMF1}\ns_add_u32 s{sF2m}, s{sF2m}, s{sMF2}")

        def dma(vr, srd_, so, m0s, add):
            A(f"s_add_u32 m0, s{m0s}, {add}\nbuffer_load_dwordx4 v{vr}, {s(srd_,4)}, s{so} offen lds")

        opsA = [(vA + i, W1_, sOWa, sPa, i * K) for i in range(3)]
        opF1 = (vF, FLEX_, sF1o, sF1m, 0)
        opF2 = (vF + 1, FLEX_, sF2o, sF2m, 0)
        opsC = [(vC + i, X_, sOX, sPx, i * K) for i in range(4)]
        opsB = [(vB + i, W1_, sOWb, sPb, wh + i * K) for i in range(3)]
        group = opsA + ([opF1] if q else []) + opsC + ([opF2] if q else []) + opsB

        def woven_group():
            sN1, sN2 = 12, 13
            after_a = [[f"s_mov_b32 s{sOWa}, s{sOWb}"], [f"s_add_u32 s{sPa}, s{sSb}, s{sMA}"]]
            if q:
                after_a.append(lines(f"s_add_u32 s{sSb}, s{sSb}, {slot}\ns_cmp_ge_u32 s{sSb}, {3*slot}\ns_cselect_b32 s{sSb}, 0, s{sSb}"))
            else:
                after_a.append(lines(f"s_sub_u32 s{sSb}, s{sSb}, {slot}\ns_cselect_b32 s{sSb}, {2*slot}, s{sSb}"))
            after_a.append(lines(f"s_cmp_ge_u32 s{sROT}, 10\ns_cselect_b32 s{sT0}, 10, 0\ns_sub_u32 s{sROT}, s{sROT}, s{sT0}\ns_mul_i32 s{sN1}, s{sROT}, {64*wstride}\ns_add_u32 s{sN2}, s{sSb}, s{sMA}"))
            after_c = [lines(f"s_lshl_b32 s{sOX}, s{sROT}, 7\ns_add_u32 s{sROT}, s{sROT}, 1\ns_add_u32 s{sPx}, s{sSb}, s{sMX}")]
            if q:
                after_c.append(lines(f"s_cmp_lt_u32 s{sW}, 3\ns_cselect_b32 s{sF1o}, s{sOWa}, s{sOX}\ns_cselect_b32 s{sF2o}, s{sN1}, s{sOX}\ns_cselect_b32 s{sF1m}, s{sPa}, s{sPx}\ns_cselect_b32 s{sF2m}, s{sN2}, s{sPx}"))
                after_c.append(lines(f"s_add_u32 s{sF1m}, s{sF1m}, s{sMF1}\ns_add_u32 s{sF2m}, s{sF2m}, s{sMF2}"))
            fill, out = [], []
            for n, (vr, srd_, so, m0s, add) in enumerate(group):
                if n == nA:
                    fill = after_a
                if n == len(group) - 3:
                    assert not fill
                    fill = after_c
                out.append([f"s_add_u32 m0, s{m0s}, {add}"] + (fill.pop(0) if fill else []) + [f"buffer_load_dwordx4 v{vr}, {s(srd_,4)}, s{so} offen lds"])
            assert not fill
            out[-1] += [f"s_mov_b32 s{sOWb}, s{sN1}", f"s_mov_b32 s{sPb}, s{sN2}"]
            return out
        E = woven_group()
        J = c.pre1[role]
        head, rest = sum(E[: nA + J], []), sum(E[nA + J:], [])

        for i in range(4):
            xoffs(vC + i, i)
        if q:
            l1, l2 = self.lab("fx"), self.lab("fd")
            xoffs(vF, 4); xoffs(vF + 1, 5)
        woff(vB, 0)
        self.trace(50)
        A("s_waitcnt lgkmcnt(0)")
        srd(A, X_, 4, 2048 * 1280)
        srd(A, W1_, 6 if q else 12, 640 * wstride)
        if q:
            A(f"s_cmp_lt_u32 s{sW}, 3\ns_cselect_b32 s{FLEX_}, s6, s4\ns_cselect_b32 s{FLEX_+1}, s7, s5\ns_mov_b32 s{FLEX_+2}, {640*3840}\ns_cselect_b32 s{FLEX_+2}, s{FLEX_+2}, s{X_+2}\ns_mov_b32 s{FLEX_+3}, 0x20000")
            A(f"s_movk_i32 s{sMF1}, {3*K}\ns_cselect_b32 s{sMF1}, s{sMF1}, {4*K}\ns_movk_i32 s{sMF2}, {wh + 3*K}\ns_cselect_b32 s{sMF2}, s{sMF2}, {5*K}")
        A(f"s_mov_b32 s{sT3}, s{sMA}\ns_lshl_b32 s{sMA}, s{sMA}, 10\ns_mov_b32 s{sSb}, 0\ns_mov_b32 s{sOWa}, 0\ns_mov_b32 s{sPa}, 0")
        A(f"s_mov_b32 s100, s{sROT}")
        rot()
        A(f"s_mov_b32 s{sSa}, s{sMA}\ns_mov_b32 s{sMA}, s{sT3}")
        self.trace(51)
        for o in opsC:
            dma(*o)
        self.trace(52)
        for i in range(3):
            if i:
                woff(vB + i, i)
            dma(*opsB[i])
            A(f"v_add_u32 v{vA+i}, {32*wstride}, v{vB+i}")
        if q:
            A(f"s_cmp_lt_u32 s{sW}, 3\ns_cbranch_scc0 {l1}")
            woff(vF + 1, 3)
            A(f"v_add_u32 v{vF}, {32*wstride}, v{vF+1}\ns_branch {l2}")
            A.label(l1)
            dma(*opF1)
            A.label(l2)
            dma(*opF2)
        self.trace(53)
        A(f"s_mov_b32 s{sMA}, s{sSa}\ns_mov_b32 s{sSa}, s100")
        advance()
        J0 = min(J, c.pre0)
        A.extend(sum(E[: nA + J0], []))
        self.trace(54)
        self.srds_helper2()
        self.p2_loader_setup(role)
        vZ, vP, vD, vS = 23, 24, 26, 32
        ridx = 0 if q else 8
        A(f"s_lshl_b32 s{sT0}, s{sRB}, 7\ns_add_u32 s{sT0}, s{sT0}, {FLAG_BASE + F_STAT}\nv_mov_b32 v20, s{sT0}\nv_mov_b32 v{vZ}, 0\nv_mov_b32 v25, 16")
        A(f"s_lshl_b32 s{sT1}, s{sRB}, 7\ns_lshl_b32 s{sT2}, s{sW}, 5\ns_add_u32 s{sT1}, s{sT1}, s{sT2}\nv_and_b32 v3, 31, v0\nv_add_u32 v21, s{sT1}, v3")
        A(f"s_lshl_b32 s{sT2}, s{sW}, 7\ns_add_u32 s{sT2}, s{sT2}, {MISC + (64 if q else 0)}\nv_lshl_add_u32 v22, v3, 2, s{sT2}")
        if q:
            A(f"s_cmp_eq_u32 s{sRB}, 0\ns_cselect_b32 s{sT2}, 0, 128\ns_sub_u32 s{sT0}, s{sT0}, s{sT2}\nv_mov_b32 v4, s{sT0}")
            A(f"s_lshl_b32 s{sT1}, s{sRB}, 7\ns_sub_u32 s{sT1}, s{sT1}, 16\nv_and_b32 v2, 15, v0\nv_add_u32 v3, s{sT1}, v2")
            A(f"s_mov_b32 s{sT1}, {MISC}\nv_lshl_add_u32 v5, v2, 2, s{sT1}\nv_cmp_le_u32 vcc, 32, v0")
            A("v_cndmask_b32 v20, v20, v4, vcc\nv_cndmask_b32 v21, v21, v3, vcc\nv_cndmask_b32 v22, v22, v5, vcc")
        A(f"v_cmp_gt_i32 vcc, 0, v21\nv_lshlrev_b32 v21, 3, v21\nv_add_u32 v21, {STAT_BASE}, v21\nv_mov_b32 v3, -16\nv_cndmask_b32 v21, v21, v3, vcc")
        A(f"s_add_u32 s{sT0}, s{sJ}, {ridx}\ns_lshl_b32 s{sT1}, s{sT0}, 7\ns_add_u32 s{sT1}, s{sT1}, {FLAG_BASE + F_CSUM}\nv_mov_b32 v31, s{sT1}\nv_mov_b32 v4, 10\nv_cmp_le_u32 vcc, 48, v0")
        A(f"v_cndmask_b32 v20, v20, v31, vcc\nv_cndmask_b32 v25, v25, v4, vcc")
        A(f"s_mul_i32 s9, s{sT0}, 10240\ns_add_u32 s9, s9, {CSUM_BASE}\ns_lshl_b32 s{sT1}, s{sW}, 8\ns_add_u32 s{sT2}, s9, s{sT1}\nv_lshl_add_u32 v28, v0, 2, s{sT2}")
        A(f"s_add_u32 s{sT1}, s{sT1}, {MISC + CS_OFF}\nv_lshl_add_u32 v29, v0, 2, s{sT1}")
        nt = 4 if q else 3
        A("v_bfe_u32 v2, v0, 2, 3\nv_lshrrev_b32 v3, 5, v0\nv_lshl_add_u32 v3, v3, 4, v2")
        A(f"v_mul_u32_u24 v3, {480 if q else 384}, v3\nv_and_b32 v4, 3, v0\nv_lshl_add_u32 v3, v4, 3, v3\ns_mul_i32 s{sT1}, s{sW}, {nt}")
        if q:
            A(f"s_lshl_b32 s{sT2}, s{sT1}, 5\nv_add_u32 v44, s{sT2}, v3")
        else:
            A("v_lshrrev_b32 v2, 1, v2")
            for t in range(3):
                A(f"s_add_u32 s{sT2}, s{sT1}, {t}\nv_xor_b32 v4, s{sT2}, v2\nv_lshl_add_u32 v{44+t}, v4, 5, v3")
        A(f"s_lshl_b32 s{sT1}, s{sT1}, 6\ns_lshl_b32 s{sT2}, s{sSa}, 10\ns_add_u32 s{sT1}, s{sT1}, s{sT2}\ns_add_u32 s{sT1}, s{sT1}, s9\nv_lshrrev_b32 v2, 4, v0\nv_lshl_add_u32 v47, v2, 4, s{sT1}")
        for r in range(4):
            A(f"v_mov_b32 v{60+r}, 0x3f803f80")
        self.trace(55)
        A(f"s_waitcnt vmcnt({J0})\ns_barrier")
        self.trace(0)
        self.stamp(1)
        A.extend(sum(E[nA + J0: nA + J], []))
        A(f"s_mov_b32 s{sCNT}, 0")
        loop, lw_, lb = (self.lab(x) for x in ("hl", "wt", "bar"))
        pre = (c.pre3[role] if c.pair else c.preq if q else c.preh) if (c.phase2 and not c.split) else {}
        special = [0, 1, 2, c.cstat, c.cstat + 1] + ([c.cstat + 2] if c.ssplit < 10 else [])
        lx = {k: self.lab("x") for k in special}
        A.label(loop)
        mark0 = len(A.lines)
        A.extend(rest + head)
        ld = self.lab("dsp")
        A(f"s_bitcmp1_b32 {sum(1 << k for k in special)}, s{sCNT}\ns_cbranch_scc1 {ld}")
        A.label(lw_)
        A(f"s_waitcnt vmcnt({J})")
        A.label(lb)
        A(f"s_add_u32 s{sCNT}, s{sCNT}, 1\ns_cmp_lt_u32 s{sCNT}, 8\ns_barrier")
        self.trace(f"s{sCNT}")
        l8 = self.lab("c8")
        A(f"s_cbranch_scc1 {loop}\ns_branch {l8}")
        if "nodma" in c.abl:
            A.lines[mark0:] = [l for l in A.lines[mark0:] if not l.startswith("buffer_load")]
        if "nobar" in c.abl:
            A.lines[mark0:] = [l for l in A.lines[mark0:] if not l.startswith("s_barrier")]
        A.label(ld)
        for k in special[1:]:
            A(f"s_cmp_eq_u32 s{sCNT}, {k}\ns_cbranch_scc1 {lx[k]}")
        for k in special:
            A.label(lx[k])
            n = 0
            if k == 0:
                l = self.lab("np")
                A(f"buffer_load_dword v{vP}, v{vZ}, {s(DBG_,4)}, 0 offen{COH}")
                A(f"s_cmp_ge_u32 s{sRB}, 10\ns_cbranch_scc1 {l}")
                for t in range(nt):
                    for st in range(2):
                        for hf in range(2):
                            ad, off = (44, 32 * t) if q else (44 + t, 0)
                            A(f"ds_read_b64_tr_b16 {v(64+8*t+4*st+2*hf,2)}, v{ad} offset:{off + wh*(1-st) + 8*(480 if q else 384)*hf}")
                A("s_waitcnt lgkmcnt(0)")
                for st in range(2):
                    for t in range(nt):
                        A(f"{MF} {v(96+4*t,4)}, {v(64+8*t+4*st,4)}, v[60:63], {v(96+4*t,4) if st else 0}")
                A("s_mov_b32 exec_lo, 0x10001\ns_mov_b32 exec_hi, 0x10001")
                for t in range(nt):
                    A(f"buffer_store_dwordx4 {v(96+4*t,4)}, v47, {s(WS_,4)}, 0 offen offset:{64*t}{COH}")
                A(f"s_mov_b64 exec, -1\ns_waitcnt vmcnt({J + 1 + nt})\ns_branch {lb}")
                A.label(l)
                n = 1
            if k == 1:
                A(f"s_waitcnt vmcnt({nA + nB})")
                self.check(vP, vZ, DBG_, 1)
                A(f"s_cmp_lg_u32 s{sW}, 0\ns_cbranch_scc1 {lw_}\nv_mov_b32 v2, 1\ns_mov_b64 exec, 1\nbuffer_atomic_add v2, v20, {s(WS_,4)}, 0 offen sc1\ns_mov_b64 exec, -1")
                n = 1
            if k == 2:
                A(f"s_cmp_ge_u32 s{sRB}, 10\ns_cselect_b32 s{sT0}, 1, s{sW}\ns_cmp_lg_u32 s{sT0}, 0\ns_cbranch_scc1 {lw_}")
                A(f"v_mov_b32 v2, 1\ns_mov_b64 exec, 1\nbuffer_atomic_add v2, v31, {s(WS_,4)}, 0 offen sc1\ns_mov_b64 exec, -1")
                n = 1
            if k == c.cstat:
                A(f"buffer_load_dword v{vP}, v20, {s(WS_,4)}, 0 offen{COH}")
                n = 1
            if k == c.cstat + 1:
                A(f"s_waitcnt vmcnt({nA + nB})")
                self.check(vP, 20, WS_, "v25")
                A(f"buffer_load_dwordx2 {v(vD,2)}, v21, {s(WS_,4)}, 0 offen{COH}")
                n = 1
            if k > c.cstat:
                for i in (range(c.ssplit) if k == c.cstat + 1 else range(c.ssplit, 10)):
                    A(f"s_movk_i32 s{sT0}, {K*i}\nbuffer_load_dword v{vS+i}, v28, {s(WS_,4)}, s{sT0} offen{COH}")
                    n += 1
            A(f"s_waitcnt vmcnt({J + n})\ns_branch {lb}")
        A.label(l8)
        A.extend(rest + sum(E[:3], []))
        if q:
            l = self.lab("nf")
            A(f"s_cmp_lt_u32 s{sW}, 3\ns_cbranch_scc0 {l}")
            A.extend(E[3])
            A.label(l)
        def stats_to_lds():
            A(f"ds_write_b32 v22, v{vD}\nds_write_b32 v22, v{vD+1} offset:{ST_RSTD}")
            for i in range(1, 10):
                A(f"v_add_f32 v{vS}, v{vS}, v{vS+i}")
            A(f"ds_write_b32 v29, v{vS}")
        bar = "" if "nobar" in c.abl else "s_barrier"
        k1 = self.p2_prefetch(role, pre.get(8, 0))
        A(f"s_waitcnt vmcnt({k1})\n{bar}")
        self.trace(9)
        stats_to_lds()
        k2 = self.p2_prefetch(role, pre.get(9, 0))
        A(f"s_waitcnt lgkmcnt(0)\n{bar}")
        self.trace(10)
        self.stamp(2)
        return k1 + k2

    def row_stats_load(self, role, base):
        A = self.A
        self.l_ns = self.lab("ns")
        l = self.lab("nl")
        A(f"s_cmp_ge_u32 s{sW}, 2\ns_cbranch_scc1 {l}")
        A(f"s_lshl4_add_u32 s{sT0}, s{sRB}, s{sJ}\ns_add_u32 s{sT0}, s{sT0}, {0 if role == 'q' else 8}\ns_lshl1_add_u32 s{sT0}, s{sT0}, s{sW}\ns_lshl_b32 s{sT0}, s{sT0}, 2")
        A(f"v_lshrrev_b32 v{base+20}, 4, v0\nv_add_u32 v{base+20}, s{sT0}, v{base+20}\nv_mul_u32_u24 v{base+21}, 1280, v{base+20}\nv_and_b32 v{base+22}, 15, v0\nv_lshl_add_u32 v{base+21}, v{base+22}, 4, v{base+21}")
        for i in range(5):
            A(f"buffer_load_dwordx4 {v(base+4*i,4)}, v{base+21}, {s(X_,4)}, 0 offen offset:{256*i}")
        A.label(l)

    def code_prefetch(self, tag):
        A, n = self.A, self.c.codepf
        if not n:
            return
        l = self.lab("pc")
        A(f"s_getpc_b64 s[32:33]")
        A.label(l)
        A(f"s_lshr_b32 s{sT0}, s2, 3\ns_lshl2_add_u32 s{sT0}, s{sT0}, s{sW}\ns_mul_i32 s{sT0}, s{sT0}, {64*n}\ns_min_u32 s{sT0}, s{sT0}, L_end_{tag}-L_helper_{tag}-{64*n}")
        A(f"s_sub_u32 s32, s32, {l}-L_helper_{tag}\ns_subb_u32 s33, s33, 0\ns_add_u32 s32, s32, s{sT0}\ns_addc_u32 s33, s33, 0")
        for i in range(n):
            A(f"s_load_dword s101, s[32:33], {64*i}")

    def row_stats_finish(self, base):
        A = self.A
        a, b = base + 22, base + 23
        A(f"s_cmp_ge_u32 s{sW}, 2\ns_cbranch_scc1 {self.l_ns}")
        A(f"v_mov_b32 v{a}, 0\nv_mov_b32 v{b}, 0\nv_mov_b32 v{base+21}, 0x3f803f80\nv_lshlrev_b32 v{base+20}, 3, v{base+20}\nv_add_u32 v{base+20}, {STAT_BASE}, v{base+20}")
        for i in range(5):
            A(f"s_waitcnt vmcnt({4-i})")
            for r in range(4):
                d = base + 4 * i + r
                A(f"v_dot2c_f32_bf16 v{a}, v{d}, v{base+21}\nv_dot2c_f32_bf16 v{b}, v{d}, v{d}")
        for sh in (8, 4, 2, 1):
            A(f"v_add_f32_dpp v{a}, v{a}, v{a} row_ror:{sh} row_mask:0xf bank_mask:0xf\nv_add_f32_dpp v{b}, v{b}, v{b} row_ror:{sh} row_mask:0xf bank_mask:0xf")
        A(f"s_mov_b32 s{sT1}, 0x3acccccd\ns_mov_b32 s{sT2}, 0x3727c5ac")
        A(f"v_mul_f32 v{a}, s{sT1}, v{a}\nv_mul_f32 v{base}, v{a}, v{a}\nv_fma_f32 v{b}, v{b}, s{sT1}, -v{base}\nv_max_f32 v{b}, 0, v{b}\nv_add_f32 v{b}, s{sT2}, v{b}\nv_rsq_f32 v{b}, v{b}")
        A(f"s_mov_b32 exec_lo, 0x10001\ns_mov_b32 exec_hi, 0x10001\nbuffer_store_dwordx2 {v(a,2)}, v{base+20}, {s(WS_,4)}, 0 offen{COH}\ns_mov_b64 exec, -1")
        A.label(self.l_ns)

    def init_flags(self):
        A = self.A
        l = self.lab("nf")
        A(f"s_xor_b32 s{sT0}, s{sW}, 3\ns_or_b32 s{sT0}, s2, s{sT0}\ns_cmp_lg_u32 s{sT0}, 0\ns_cbranch_scc1 {l}")
        A(f"v_lshlrev_b32 v2, 7, v0\nv_add_u32 v2, {FLAG_BASE}, v2\nv_mov_b32 v3, 0\ns_movk_i32 s{sT0}, 0x2000")
        A(f"buffer_store_dword v3, v2, {s(WS_,4)}, 0 offen{COH}\nbuffer_store_dword v3, v2, {s(WS_,4)}, s{sT0} offen{COH}")
        for k in ((2, 3, 4, 5) if (self.c.pair or self.c.twin) else ()):
            A(f"s_mov_b32 s{sT0}, {k * 0x2000}\nbuffer_store_dword v3, v2, {s(WS_,4)}, s{sT0} offen{COH}")
        A("s_waitcnt vmcnt(0)")
        A(f"v_mov_b32 v2, 1\ns_mov_b64 exec, 1\nbuffer_store_dword v2, v3, {s(DBG_,4)}, 0 offen{COH}\ns_mov_b64 exec, -1")
        A.label(l)

    def publish(self, role, younger=0, pairflag=False):
        l = self.lab("pb")
        a = lines(f"v_mov_b32 v4, {MISC + CTR_OFF}\nv_mov_b32 v5, 1\ns_waitcnt vmcnt({younger})\ns_mov_b64 exec, 1\nds_add_rtn_u32 v1, v4, v5\ns_mov_b64 exec, -1")
        a += lines(f"s_lshr_b32 s{sT0}, s{sJ}, 2\ns_lshl2_add_u32 s{sT0}, s{sRB}, s{sT0}\ns_lshl_b32 s{sT0}, s{sT0}, 7\ns_add_u32 s{sT0}, s{sT0}, {FLAG_BASE + (256 if role == 'q' else 0)}\nv_mov_b32 v4, s{sT0}")
        if pairflag:
            a = a[:6] + lines(f"s_lshl3_add_u32 s{sT0}, s{sRB}, s{sJ}\ns_lshl_b32 s{sT0}, s{sT0}, 7\ns_add_u32 s{sT0}, s{sT0}, {FLAG_BASE + F_PAIR + (16384 if self.c.twin and role == 'h' else 0)}\nv_mov_b32 v4, s{sT0}")
        b = lines(f"v_readfirstlane_b32 s{sT0}, v1\ns_cmp_lg_u32 s{sT0}, {7 if pairflag else 3}\ns_cbranch_scc1 {l}\ns_mov_b64 exec, 1\nbuffer_atomic_add v5, v4, {s(WS_,4)}, 0 offen sc1\ns_mov_b64 exec, -1\n{l}:")
        return a, b

    def publish_now(self, role):
        if self.c.split:
            return
        a, b = self.publish(role)
        self.A.extend(a + ["s_waitcnt lgkmcnt(0)"] + b)

    def mfma_loop(self, role, mfmas, frags, fixups, niter, tail):
        A = self.A
        nm = len(mfmas)
        bpos = nm // 2 - 1
        first, last = {}, {}
        for i, (_, fs) in enumerate(mfmas):
            for f in fs:
                first.setdefault(f, i); last[f] = i
        order = sorted(frags, key=lambda f: first[f])
        lastuse = {}
        for f in order:
            lastuse[frags[f][1]] = f
        seq = [(it, f) for it in range(5) for f in order]
        tail = [(max([bpos] + [last[f] for f in fs]), t) for fs, t in tail]
        occupant, ready, part = {}, {}, {}
        for it, f in seq:
            key = frags[f][0]
            e = (it - 1) * nm + bpos
            if key in occupant:
                pit, pf = occupant[key]
                e = max(e, pit * nm + last[pf])
            ready[(it, f)] = e
            occupant[key] = (it, f)
        if role == "q":
            step = lines(f"s_add_u32 s{sH}, s{sH}, 1\ns_cmp_eq_u32 s{sH}, 3\ns_cselect_b32 s{sH}, 0, s{sH}\ns_cselect_b32 s{sT0}, s{sB}, s{sA}")
        else:
            step = lines(f"s_cmp_eq_u32 s{sH}, 0\ns_cselect_b32 s{sH}, 3, s{sH}\ns_cselect_b32 s{sT0}, s{sB}, s{sA}\ns_sub_u32 s{sH}, s{sH}, 1")
        bodies, origin, pend, tags = [], [], list(seq), {}
        T = Asm(); C = Counter(T, "lgkmcnt", 14)
        upd, issued_at = [], {}
        def wide_wait(tag, g):
            if tag > C.done:
                C.wait(max([tag] + [t for t, at in issued_at.items() if at <= g - self.c.age[role]]))
        for it in range(-1, 5):
            T.lines = []
            org = []
            steps = list(step) if 0 <= it < 4 else []
            for i in range(nm):
                g = it * nm + i
                if it >= 0:
                    assert all((it, f) not in pend for f in mfmas[i][1]), "operand read not issued before use"
                    wide_wait(max(tags[(it, f)] for f in mfmas[i][1]), g)
                    T(mfmas[i][0])
                n0 = len(T.lines)
                if it >= 0:
                    for f, pre, tx in fixups:
                        for h in range(2):
                            at = first[f] - pre - 2 + h
                            if at % nm == i:
                                C.wait(tags[(it if at >= 0 else it + 1, f)]); T.extend(tx[2 * h: 2 * h + 2])
                    if i == bpos - 2:
                        T(f"s_sub_u32 s{sCNT}, s{sCNT}, 1")
                    if i == bpos:
                        xs = [(it, f) for f in frags if f[0] == "X"]
                        assert all(x not in pend for x in xs)
                        m = len(T.lines)
                        wide_wait(max(tags[x] for x in xs), g)
                        T.lines[m:] = ["s_waitcnt vmcnt(0) " + (T.lines[m].split()[1] if len(T.lines) > m else "")]
                        T("s_barrier\ns_cbranch_scc1 @tail")
                if bpos + 3 <= i and steps and len(T.lines) - n0 < 2 and all(u[0] > it for u in upd) and (it, order[-1]) not in pend:
                    T(steps.pop(0))
                nready = len(upd)
                for x in pend[:6]:
                    if ready[x] > g:
                        break
                    nready += len(frags[x[1]][2]) - part.get(x, 0)
                budget = (2 if nready >= self.c.thr[role] or (it == 4 and i > bpos) else 1) - (len(T.lines) - n0)
                while budget > 0:
                    if it == 4 and i > bpos:
                        upd = []
                        if not pend:
                            if tail and tail[0][0] <= i:
                                C.issue(tail.pop(0)[1]); budget -= 1
                                continue
                            break
                    if upd and (upd[0][0] <= it or not steps):
                        ui, ut = upd.pop(0)
                        assert it < 0 or it == 4 or (len(steps) == 0 if ui > it else len(steps) == len(step)), "address update uses the wrong slot step"
                        T(ut); budget -= 1
                        continue
                    if not (pend and ready[pend[0]] <= g):
                        break
                    x = pend[0]
                    k = part.get(x, 0)
                    tags[x] = C.issue(frags[x[1]][2][k])
                    issued_at[tags[x]] = g
                    org.append((x[0], T.lines[-1]))
                    part[x] = k + 1
                    budget -= 1
                    if k + 1 == len(frags[x[1]][2]):
                        pend.pop(0)
                        ar = frags[x[1]][1]
                        if lastuse[ar] == x[1]:
                            upd.append((x[0], f"v_add_u32 v{ar}, s{sT0}, v{ar}"))
                            org.append(upd[-1])
            assert it < 0 or not steps
            if it == -1:
                C.done = C.n
            bodies.append(list(T.lines)); origin.append(org)
        assert bodies[2] == bodies[3] == bodies[4], "loop body is not periodic"
        k = bodies[2].index("s_barrier") + 2
        assert bodies[5][:k] == bodies[2][:k], "first half of the last iteration differs from the loop body"
        last_half = bodies[5][bodies[5].index("s_barrier") + 2:] + [t for _, t in tail]
        A.extend(step)
        A.extend([l for o, l in origin[2] if o == 2])
        A("s_waitcnt lgkmcnt(0)")
        for f, pre, tx in fixups:
            for h in range(2):
                if first[f] - pre - 2 + h < 0:
                    A.extend(tx[2 * h: 2 * h + 2])
        loop = self.lab("ml")
        A(f"s_mov_b32 s{sCNT}, {niter - 1}")
        if self.c.align:
            A(f"s_branch {loop}\n.p2align {self.c.align}")
            A.extend(["s_nop 0"] * self.c.aoff[role])
        A.label(loop)
        lt = self.lab("tl")
        body = [l.replace("@tail", lt) for l in bodies[2]]
        for key, pat in (("nomfma", "v_mfma"), ("notr", "ds_read_b64_tr"), ("nox", "ds_read_b128"), ("nobar", "s_barrier"), ("nowait", "s_waitcnt"), ("noupd", "v_add_u32")):
            if key in self.c.abl:
                body = [l for l in body if not l.startswith(pat)]
        if self.c.e64:
            body = self.even_bytes(body)
        A.extend(body)
        A(f"s_branch {loop}")
        A.label(lt)
        A.extend(last_half)

    @staticmethod
    def even_bytes(body):
        out, run = [], []
        short = lambda l: l.startswith(("s_waitcnt", "s_barrier", "s_cbranch", "v_add_u32 ", "s_cmp", "s_cselect", "s_add_u32", "s_sub_u32"))
        for l in body + ["v_mfma"]:
            if l.startswith("v_mfma"):
                if sum(short(x) for x in run) % 2:
                    k = [i for i, x in enumerate(run) if x.startswith("v_add_u32 ")]
                    if k:
                        run[k[0]] = run[k[0]].replace("v_add_u32 ", "v_add_u32_e64 ")
                    else:
                        run.append("s_nop 0")
                out += run + [l]; run = []
            else:
                run.append(l)
        return out[:-1]

    @staticmethod
    def fold_t(a, cs, mr, scale=True):
        o = [f"v_pk_fma_f32 {v(a+h,2)}, {v(cs+h,2)}, {v(mr,2)}, {v(a+h,2)} op_sel_hi:[1,0,1] neg_lo:[0,1,0] neg_hi:[0,1,0]" for h in (0, 2)]
        if scale:
            o += [f"v_pk_mul_f32 {v(a+h,2)}, {v(a+h,2)}, {v(mr,2)} op_sel:[0,1] op_sel_hi:[1,1]" for h in (0, 2)]
        return o

    @staticmethod
    def fold_v(a, csreg, mean4, rstd4):
        p, sel = csreg & ~1, csreg & 1
        o = [f"v_pk_fma_f32 {v(a+h,2)}, {v(mean4+h,2)}, {v(p,2)}, {v(a+h,2)} op_sel:[0,{sel},0] op_sel_hi:[1,{sel},1] neg_lo:[0,1,0] neg_hi:[0,1,0]" for h in (0, 2)]
        return o + [f"v_pk_mul_f32 {v(a+h,2)}, {v(a+h,2)}, {v(rstd4+h,2)}" for h in (0, 2)]

    @staticmethod
    def pack(d, a):
        o = [f"v_cvt_pk_bf16_f32 v{d}, v{a}, v{a+1}", f"v_cvt_pk_bf16_f32 v{d+1}, v{a+2}, v{a+3}"]
        return o[::-1] if d == a + 2 else o

    def compute_h(self):
        A, c = self.A, self.c
        vWa, vX0, vX1 = 8, 14, 15
        XF, WF, ACC, ACS, ONE, RS = 24, 56, 80, 176, 188, 192
        self.srds_compute()
        self.row_stats_load("h", RS)
        self.code_prefetch(self.tag)
        A(f"s_lshr_b32 s{sT3}, s{sW}, 1\ns_mul_i32 s{sT3}, s{sT3}, 6")
        A("v_bfe_u32 v2, v0, 2, 3\nv_lshrrev_b32 v3, 5, v0\nv_lshl_add_u32 v3, v3, 4, v2\nv_mul_u32_u24 v3, 384, v3")
        A("v_and_b32 v4, 3, v0\nv_lshl_add_u32 v3, v4, 3, v3\nv_lshrrev_b32 v2, 1, v2")
        for t in range(4):
            A(f"s_add_u32 s{sT2}, s{sT3}, {t}\nv_xor_b32 v4, s{sT2}, v2\nv_lshl_add_u32 v{vWa+t}, v4, 5, v3")
        A(f"s_and_b32 s{sT0}, s{sW}, 1\ns_lshl_b32 s{sT0}, s{sT0}, 13\ns_add_u32 s{sT0}, s{sT0}, {2*H_WH}")
        self.xfrag_addr(vX0, vX1, sT0, 2)
        for i in range(96):
            A(f"v_mov_b32 v{ACC+i}, 0")
        A(f"v_lshrrev_b32 v2, 4, v0\ns_lshr_b32 s{sT2}, s{sW}, 1\ns_mul_i32 s{sT1}, s{sT2}, 384\ns_add_u32 s{sT1}, s{sT1}, {MISC + CS_OFF}\nv_lshl_add_u32 v16, v2, 4, s{sT1}")
        A(f"v_and_b32 v2, 15, v0\ns_and_b32 s{sT0}, s{sW}, 1\ns_lshl_b32 s{sT1}, s{sT0}, 8\ns_add_u32 s{sT1}, s{sT1}, {MISC}\nv_lshl_add_u32 v17, v2, 2, s{sT1}")
        A(f"v_lshlrev_b32 v18, 4, v0\nv_add_u32 v19, 4096, v18")
        A(f"s_lshl1_add_u32 s{sT0}, s{sRB}, s{sT0}\ns_mul_i32 s{sT0}, s{sT0}, {H_BLK}")
        A(f"s_mul_i32 s{sT1}, s{sJ}, 6\ns_mul_i32 s{sT2}, s{sT2}, 3\ns_add_u32 s{sT1}, s{sT1}, s{sT2}")
        for pr, d in enumerate([sC, sD, sE]):
            A(f"s_add_u32 s{sT2}, s{sT1}, {pr}\ns_lshr_b32 s{sT3}, s{sT2}, 1\ns_lshl_b32 s{sT3}, s{sT3}, 13\ns_and_b32 s{sT2}, s{sT2}, 1\ns_lshl_b32 s{sT2}, s{sT2}, 10")
            A(f"s_add_u32 s{d}, s{sT0}, s{sT3}\ns_add_u32 s{d}, s{d}, s{sT2}")
        A(f"v_mov_b32 v2, {MISC + CTR_OFF}\nv_mov_b32 v3, 0\nds_write_b32 v2, v3")
        self.row_stats_finish(RS)
        A(f"s_mov_b32 s{sA}, {-H_SLOT}\ns_mov_b32 s{sB}, {2*H_SLOT}\ns_mov_b32 s{sH}, 0")
        A("s_waitcnt lgkmcnt(0)\ns_barrier")
        self.stamp(1)
        mf, fr = [], {}
        for st in range(2):
            xa = vX1 if st else vX0
            for i in range(4):
                fr[("X", st, i)] = (("X", st, i), xa, [f"ds_read_b128 {v(XF+16*st+4*i,4)}, v{xa} offset:{2048*i}"])
            for t in range(6):
                fr[("W", st, t)] = (("W", t), vWa + t % 4, [f"ds_read_b64_tr_b16 {v(WF+4*t+2*hf,2)}, v{vWa+t%4} offset:{H_WH*(1-st)+8*384*hf+128*(t//4)}" for hf in range(2)])
                for i in range(4):
                    a = v(ACC + 4 * (6 * i + t), 4)
                    mf.append((f"{MF} {a}, {v(WF+4*t,4)}, {v(XF+16*st+4*i,4)}, {a}", [("W", st, t), ("X", st, i)]))
        MR, CS = 216, 176
        tail = [([], f"ds_read2_b32 {v(MR+2*i,2)}, v17 offset0:{16*i} offset1:{16*i+144}") for i in range(4)]
        tail += [([], f"ds_read_b128 {v(CS+4*t,4)}, v16 offset:{64*t}") for t in range(6)]
        self.mfma_loop("h", mf, fr, [], 10, tail)
        self.stamp(2)
        A("s_waitcnt lgkmcnt(0)")
        st_mod = "" if c.split else c.st_mod
        for pr in range(3):
            for i in range(4):
                o = 224 + 4 * ((4 * pr + i) % 6)
                for tt in range(2):
                    t = 2 * pr + tt
                    a = ACC + 4 * (6 * i + t)
                    A.extend(self.fold_t(a, CS + 4 * t, MR + 2 * i, scale=not c.defer) + self.pack(o + 2 * tt, a))
                for r in range(4):
                    A(f"v_pk_max_i16 v{o+r}, v{o+r}, 0")
                A(f"buffer_store_dwordx4 {v(o,4)}, v{19 if i >= 2 else 18}, {s(WS_,4)}, s{[sC,sD,sE][pr]} offen offset:{2048*(i&1)}{st_mod}")
        self.stamp(3)
        if self.resident("h"):
            self.p2_waddr("h")
            A("s_barrier")
            for ch in range(c.nres):
                A.extend(self.p2_wreads("h", ch, self.RES + self.p2geom("h")["N"] // 4 * ch))
        self.publish_now("h")
        if (c.pair or c.twin) and c.phase2:
            A("s_barrier")
        if self.resident("h"):
            A("s_barrier")

    def compute_q(self):
        A, c = self.A, self.c
        vW, vX0, vX1, vH0, vH1 = 1, 2, 3, 4, 5
        BC, BP, AC, AP, ONE, vT = 8, 12, 20, 22, 28, 29
        XF, WF, AQ, AK, AV, AH = 36, 60, 120, 160, 200, 240
        RS = 60
        so = [8, 9, 12, 13, 14]
        self.srds_compute()
        self.row_stats_load("q", RS)
        self.code_prefetch(self.tag)
        self.init_flags()
        A(f"v_lshrrev_b32 v6, 4, v0\nv_and_b32 v7, 15, v0\nv_cmp_le_u32 {s(mG1,2)}, 1, v6\nv_cmp_le_u32 {s(mG2,2)}, 2, v6\nv_cmp_le_u32 {s(mG3,2)}, 3, v6")
        A(f"s_or_b32 s{sT3}, s{sRB}, s{sW}\ns_cmp_eq_u32 s{sT3}, 0\ns_cselect_b64 {s(sC,2)}, 0, -1")
        A(f"v_mov_b32 v40, 0xf149f2ca\nv_mov_b32 v41, 0\nv_mov_b32 v42, 0xffff\nv_mov_b32 v43, 0xffff0000")
        for k in range(6):
            A(f"v_mov_b32 v{AC+k}, 0")
        for r in range(4):
            A(f"v_lshl_add_u32 v44, v6, 2, {r}\nv_sub_u32 v45, v7, v44\nv_and_b32 v46, 0x80000001, v45\nv_cmp_eq_u32 vcc, 0, v46")
            A(f"v_cndmask_b32 v{BC+r}, v40, v41, vcc\nv_cndmask_b32 v47, v41, v{42+(r&1)}, vcc\nv_or_b32 v{AC+(r>>1)}, v{AC+(r>>1)}, v47")
            A(f"v_cmp_eq_u32 vcc, 0x80000000, v46")
            A(f"v_cndmask_b32 v{BP+4+r}, v40, v41, vcc\nv_cndmask_b32 v47, v41, v{42+(r&1)}, vcc\nv_or_b32 v{AP+2+(r>>1)}, v{AP+2+(r>>1)}, v47")
            A(f"s_and_b64 vcc, vcc, {s(sC,2)}")
            A(f"v_cndmask_b32 v{BP+r}, v40, v41, vcc\nv_cndmask_b32 v47, v41, v{42+(r&1)}, vcc\nv_or_b32 v{AP+(r>>1)}, v{AP+(r>>1)}, v47")
        A(f"v_mov_b32 v{ONE}, 0x3f803f80")
        A(f"s_lshl_b32 s{sT0}, s{sW}, 7\ns_add_u32 s{sT0}, s{sT0}, {MISC + 64}\ns_mov_b32 s{sT1}, {MISC}\ns_mov_b32 s{sT2}, {MISC + CS_OFF}")
        A(f"v_lshl_add_u32 v{vT}, v7, 2, s{sT0}\nv_lshl_add_u32 v{vT+1}, v7, 2, s{sT1}\nv_lshl_add_u32 v{vT+2}, v6, 4, s{sT0}\nv_lshl_add_u32 v{vT+3}, v6, 4, s{sT1}")
        A(f"v_lshl_add_u32 v{vT+4}, v6, 4, s{sT2}\nv_lshl_add_u32 v{vT+5}, v7, 2, s{sT2}")
        A(f"s_mul_i32 s{sT0}, s{sW}, 5120\ns_add_u32 s{sT0}, s{sT0}, {15*K}\nv_lshl_add_u32 v26, v0, 4, s{sT0}\nv_lshl_add_u32 v35, v0, 3, s{sT0}\nv_lshlrev_b32 v27, 3, v0")
        A(f"s_lshr_b32 s{sT0}, s{sW}, 1\ns_lshl1_add_u32 s{sT0}, s{sRB}, s{sT0}\ns_mul_i32 s{sT0}, s{sT0}, {O_BLK}\ns_and_b32 s{sT1}, s{sW}, 1\ns_lshl_b32 s{sT1}, s{sT1}, 12")
        A(f"s_add_u32 s{sT0}, s{sT0}, s{sT1}\ns_add_u32 s{sT0}, s{sT0}, {O_BASE}\ns_mul_i32 s{sT1}, s{sJ}, 5")
        for t in range(5):
            A(f"s_add_u32 s{sT2}, s{sT1}, {t}\ns_lshr_b32 s{sT3}, s{sT2}, 2\ns_lshl_b32 s{sT3}, s{sT3}, 13\ns_and_b32 s{sT2}, s{sT2}, 3\ns_lshl_b32 s{sT2}, s{sT2}, 9")
            A(f"s_add_u32 s{so[t]}, s{sT0}, s{sT3}\ns_add_u32 s{so[t]}, s{so[t]}, s{sT2}")
        A(f"v_bfe_u32 v6, v0, 2, 3\nv_lshrrev_b32 v7, 5, v0\nv_lshl_add_u32 v6, v7, 4, v6\nv_mul_u32_u24 v6, 480, v6\nv_and_b32 v7, 3, v0\nv_lshl_add_u32 v{vW}, v7, 3, v6")
        A(f"s_lshl_b32 s{sT0}, s{sW}, 12\ns_add_u32 s{sT0}, s{sT0}, {2*Q_WH + 2048}")
        self.xfrag_addr(vX0, vX1, sT0, 6)
        A(f"s_mov_b32 s{sT0}, {2*Q_WH}")
        self.xfrag_addr(vH0, vH1, sT0, 6)
        for i in range(AQ, 256):
            A(f"v_mov_b32 v{i}, 0")
        A(f"v_lshlrev_b32 v6, 2, v0\nv_add_u32 v6, {MISC + CTR_OFF}, v6\nv_mov_b32 v7, 0\nds_write_b32 v6, v7")
        self.row_stats_finish(RS)
        A(f"s_mov_b32 s{sA}, {Q_SLOT}\ns_mov_b32 s{sB}, {-2*Q_SLOT}\ns_mov_b32 s{sH}, 0")
        A("s_waitcnt lgkmcnt(0)\ns_barrier")
        self.stamp(1)
        lw = [self.lab("qw") for _ in range(4)]
        le1 = self.lab("e1")
        A(f"s_cmp_eq_u32 s{sW}, 1\ns_cbranch_scc1 {lw[1]}\ns_cmp_eq_u32 s{sW}, 2\ns_cbranch_scc1 {lw[2]}\ns_cmp_eq_u32 s{sW}, 3\ns_cbranch_scc1 {lw[3]}")
        accq = lambda t, p: (AQ + 20 * p + 4 * t) if t < 5 else (AK + 20 * p + 4 * (t - 5)) if t < 10 else (AV + 8 * (t - 10) + 4 * p)
        halo = [[t for t in range(5, 15) if (t - 5) % 4 == w] for w in range(4)]
        MR, CSV, CSK, CSQ = 36, 42, 60, 80
        VMM, VMR = (100, 104, 48), (108, 112, 52)
        XB = 15 * K
        tail = [([], f"ds_read2_b32 {v(MR,2)}, v{vT} offset0:0 offset1:144"), ([], f"ds_read2_b32 {v(MR+2,2)}, v{vT} offset0:16 offset1:160"),
                ([], f"ds_read2_b32 {v(MR+4,2)}, v{vT+1} offset0:0 offset1:144")]
        tail += [([], f"ds_read_b32 v{CSV+t}, v{vT+5} offset:{64*(10+t)}") for t in range(5)]
        tail += [([("W", 1, t)], f"ds_read_b128 {v(CSK+4*t,4)}, v{vT+4} offset:{64*(5+t)}") for t in range(5)]
        tail += [([("W", 1, 5 + t)], f"ds_read_b128 {v(CSQ+4*t,4)}, v{vT+4} offset:{64*t}") for t in range(5)]
        for i in range(3):
            ad, off = (vT + 2, 64 * i) if i < 2 else (vT + 3, 0)
            for reg, o2 in ((VMM[i], 0), (VMR[i], ST_RSTD)):
                tail.append(([("W", 1, (reg - WF) // 4 if reg >= WF else 14)], f"ds_read_b128 {v(reg,4)}, v{ad} offset:{off + o2}"))
        tail[18:] = sorted(tail[18:], key=lambda x: x[0][0][2])
        for w in range(4):
            A.label(lw[w])
            mf, fr, fix = [], {}, []
            for st in range(2):
                for i in range(3):
                    xa = [vH0, vH1][st] if i == 2 else [vX0, vX1][st]
                    fr[("X", st, i)] = (("X", st, i), xa, [f"ds_read_b128 {v(XF+12*st+4*i,4)}, v{xa} offset:{2048*i if i < 2 else 0}"])
                for t in range(15):
                    fr[("W", st, t)] = (("W", t), vW, [f"ds_read_b64_tr_b16 {v(WF+4*t+2*hf,2)}, v{vW} offset:{Q_WH*(1-st)+8*480*hf+32*t}" for hf in range(2)])
                    for i in [0, 1] + ([2] if t in halo[w] else []):
                        a = v(accq(t, i) if i < 2 else AH + 4 * halo[w].index(t), 4)
                        wf, xf = v(WF + 4 * t, 4), v(XF + 12 * st + 4 * i, 4)
                        ops = f"{wf}, {xf}" if t < 10 else f"{xf}, {wf}"
                        mf.append((f"{MF} {a}, {ops}, {a}", [("W", st, t), ("X", st, i)]))
            self.mfma_loop("q", mf, fr, fix, 10, tail)
            if w < 3:
                A(f"s_branch {le1}")
        A.label(le1)
        self.stamp(2); self.estamp(1)
        A(f"v_lshlrev_b32 v7, 3, v0\nv_add_u32 v6, {XB}, v7\nv_add_u32 v7, v6, v7\ns_waitcnt lgkmcnt(6)")
        self.estamp(2)
        KC = lambda p: AK + 10 * p
        KP = AK + 20
        foldk = lambda p, t: self.fold_t(AK + 20 * p + 4 * t, CSK + 4 * t, MR + 2 * p) + self.pack(KC(p) + 2 * t, AK + 20 * p + 4 * t)
        def foldv(p, t):
            a = AV + 8 * t + 4 * p
            return self.fold_v(a, CSV + t, VMM[p], VMR[p]) + self.pack(AV + 8 * t + 4 + 2 * p, a)
        for t in range(5):
            A.extend(foldk(0, t))
        wr = {}
        wr["k"] = [f"ds_write_b128 v26, {v(KC(1),4)} offset:5120", f"ds_write_b128 v26, {v(KC(1)+4,4)} offset:6144", f"ds_write_b64 v35, {v(KC(1)+8,2)} offset:7168"]
        lh = [self.lab("hw") for _ in range(5)]
        for t in range(5):
            A.extend(foldk(1, t))
        if c.phase2 and not c.split and c.xat["q"] == -2:
            setup, _, xl = self.p2_out("q", 192, early=True)
            A.extend(setup + xl)
        A(f"s_waitcnt lgkmcnt(0)\ns_cmp_eq_u32 s{sW}, 1\ns_cbranch_scc1 {lh[1]}\ns_cmp_eq_u32 s{sW}, 2\ns_cbranch_scc1 {lh[2]}\ns_cmp_eq_u32 s{sW}, 3\ns_cbranch_scc1 {lh[3]}")
        for w in range(4):
            A.label(lh[w])
            blocks = []
            for t in halo[w]:
                a = AH + 4 * halo[w].index(t)
                if 5 <= t < 10:
                    k = t - 5
                    blocks.append(self.fold_t(a, CSK + 4 * k, MR + 4) + self.pack(a, a) +
                                  [f"ds_write_b64 v7, {v(a,2)} offset:{K*(k>>1)+8*(k&1)}" if k < 4 else f"ds_write_b64 v6, {v(a,2)} offset:2048"])
                elif t >= 10:
                    k = t - 10
                    blocks.append(self.fold_v(a, CSV + k, VMM[2], VMR[2]) + self.pack(a, a) + [f"ds_write_b64 v6, {v(a,2)} offset:{2560+512*k}"])
            for t in range(5):
                blocks.append(foldv(1, t) + ([f"ds_write_b64 v35, {v(AV+8*t+6,2)} offset:{5120+2560+512*t}"] if w < 3 else []))
            seq = sum(blocks, [])
            if c.spread:
                wv = [l for l in seq if l.startswith("ds_write")][: len(halo[w])]
                seq = [l for l in seq if not l.startswith("ds_write")]
                n0 = 6 * len(halo[w])
                A.extend(weave(seq[:n0], wr["k"][:1] if w < 3 else [], 6, 1))
                A.extend(weave(seq[n0:], (wr["k"][1:] if w < 3 else []) + wv, 6, 1))
            else:
                A.extend(weave(seq, wr["k"] if w < 3 else [], 14, 1))
            if w < 3:
                A(f"s_branch {lh[4]}")
        A.label(lh[4])
        fv0 = sum((foldv(0, t) for t in range(5)), [])
        if c.spread:
            fv0 = weave(fv0, [f"ds_write_b64 v35, {v(AV+8*t+6,2)} offset:{5120+2560+512*t}" for t in range(5)], 6, 1)
        A.extend(fv0)
        A(f"s_mov_b32 s{sT0}, 0x3ea52b5c\nv_mul_f32 v{MR+1}, s{sT0}, v{MR+1}\nv_mul_f32 v{MR+3}, s{sT0}, v{MR+3}")
        QH = lambda p, h: 42 + 16 * p + 4 * h
        masks = [None, mG1, mG2, mG3]
        def foldq(p):
            o = []
            for t in range(5):
                a = AQ + 20 * p + 4 * t
                d = QH(p, 0) if t == 0 else (QH(p, 3) + 2 if t == 4 else a)
                o += self.fold_t(a, CSQ + 4 * t, MR + 2 * p, scale=False) + self.pack(d, a)
                if 1 <= t <= 3:
                    for r in range(2):
                        o += [f"v_cndmask_b32 v{QH(p,t)+r}, 0, v{a+r}, {s(masks[t],2)}", f"v_cndmask_b32 v{QH(p,t-1)+2+r}, v{a+r}, 0, {s(masks[t],2)}"]
            return o
        A(f"v_mov_b32 v1, {MISC + XFL_OFF}\nv_mov_b32 v2, 1\nv_mov_b32 v3, 4\ns_lshl_b32 s{sT0}, s{sW}, 2\nv_add_u32 v4, s{sT0}, v1")
        fq = foldq(1)
        k = len(fq) // 2 if c.spread else 0
        A.extend(fq[:k])
        A(f"s_waitcnt lgkmcnt(0)\ns_mov_b64 exec, 1\nds_add_u32 v1, v2\nds_write_b32 v4, v3 offset:4\ns_mov_b64 exec, -1")
        A.extend(fq[k:])
        self.estamp(3)
        A("ds_read_b32 v5, v4")
        SP = lambda p, h: (140 + 8 * h if h < 2 else 240 + 8 * (h - 2)) if p else 74 + 8 * h
        MX, MRS, ONE4 = 106, 114, 116
        def qk(p):
            prev = KC(0) if p else KP
            return [f"{MF} {v(SP(p,h)+4,4)}, {v(KC(p)+2*h,4)}, {v(QH(p,h),4)}, {v(BC,4)}" for h in range(4)] + \
                   [f"{MF} {v(SP(p,h),4)}, {v(prev+2*h,4)}, {v(QH(p,h),4)}, {v(BP+4*p,4)}" for h in range(4)]
        def rowmax(p):
            o, m = [], MX + 4 * p
            for h in range(4):
                b = SP(p, h)
                o += [f"v_max_f32 v{b+4+r}, v{b+r}, v{b+4+r}" for r in range(4)]
                o += [f"v_max3_f32 v{m+h}, v{b+4}, v{b+5}, v{b+6}", f"v_max_f32 v{m+h}, v{m+h}, v{b+7}"]
            o += lines(f"v_permlane32_swap_b32 v{m}, v{m+1}\nv_permlane32_swap_b32 v{m+2}, v{m+3}\nv_max_f32 v{m}, v{m}, v{m+1}\nv_max_f32 v{m+2}, v{m+2}, v{m+3}")
            o += lines(f"v_permlane16_swap_b32 v{m}, v{m+2}\nv_max_f32 v{m}, v{m}, v{m+2}\nv_mul_f32 v{m}, v{m}, v{MR+2*p+1}\nv_mov_b32 v{m+2}, v{m}\nv_permlane16_swap_b32 v{m}, v{m+2}")
            o += lines(f"v_mov_b32 v{m+1}, v{m}\nv_mov_b32 v{m+3}, v{m+2}\nv_permlane32_swap_b32 v{m}, v{m+1}\nv_permlane32_swap_b32 v{m+2}, v{m+3}")
            return o
        def probs(p):
            o = []
            for h in range(4):
                b, m = SP(p, h), MX + 4 * p + h
                o += [f"v_pk_fma_f32 {v(b+4+r,2)}, {v(b+4+r,2)}, {v(MR+2*p,2)}, {v(m & ~1,2)} op_sel:[0,1,{m&1}] op_sel_hi:[1,1,{m&1}] neg_lo:[0,0,1] neg_hi:[0,0,1]" for r in (0, 2)]
                o += [f"v_exp_f32 v{b+4+r}, v{b+4+r}" for r in range(4)]
            for h in range(4):
                b = SP(p, h)
                o += self.pack(b + 4, b + 4)
                o += lines(f"v_and_b32 v{b}, v{AP+2*p}, v{b+4}\nv_and_b32 v{b+1}, v{AP+2*p+1}, v{b+5}\nv_and_b32 v{b+2}, v{AC}, v{b+4}\nv_and_b32 v{b+3}, v{AC+1}, v{b+5}")
            return o
        OT = {}
        pool = {1: list(range(42, 74, 4)), 0: list(range(160, 192, 4))}
        def pv(p):
            o = [f"{MF} {v(SP(p,h)+4,4)}, {v(ONE4,4)}, {v(SP(p,h),4)}, 0" for h in range(4)]
            for t in range(5):
                for h in ([t - 1] if t >= 1 else []) + ([t] if t <= 3 else []):
                    OT[(p, t, h)] = pool[p].pop(0)
                    o.append(f"{MF} {v(OT[(p,t,h)],4)}, {v(AV+8*t+2+2*p,4)}, {v(SP(p,h),4)}, 0")
            return o
        st_mod = "" if c.split else c.st_mod
        def final(p):
            m0 = MX + 4 * p
            o = [f"v_rcp_f32 v{m0+h}, v{SP(p,h)+4}" for h in range(4)]
            for t in range(5):
                if 1 <= t <= 3:
                    a, b2 = OT[(p, t, t - 1)], OT[(p, t, t)]
                    o += [f"v_cndmask_b32 v{a+r}, v{a+r}, v{b2+r}, {s(masks[t],2)}" for r in range(4)]
                    o.append(f"v_cndmask_b32 v{b2}, v{m0+t-1}, v{m0+t}, {s(masks[t],2)}")
                    m = b2
                else:
                    a, m = OT[(p, t, min(t, 3))], m0 + min(t, 3)
                o += [f"v_pk_mul_f32 {v(a+r,2)}, {v(a+r,2)}, {v(m & ~1,2)} op_sel:[0,{m&1}] op_sel_hi:[1,{m&1}]" for r in (0, 2)]
                o += self.pack(a, a)
                o.append(f"buffer_store_dwordx2 {v(a,2)}, v27, {s(WS_,4)}, s{so[t]} offen offset:{2048*p}{st_mod}")
            return o
        A.extend(weave(foldq(0), qk(1), 3, 1))
        lx, ly = self.lab("xs"), self.lab("xd")
        A(f"s_waitcnt lgkmcnt(0)\nv_cmp_gt_u32 vcc, 4, v5\ns_cbranch_vccz {ly}\ns_mov_b32 s{sT1}, {SPIN_LIMIT}")
        A.label(lx)
        A(f"ds_read_b32 v5, v4\ns_waitcnt lgkmcnt(0)\nv_cmp_gt_u32 vcc, 4, v5\ns_cbranch_vccz {ly}\ns_sub_u32 s{sT1}, s{sT1}, 1\ns_cbranch_scc0 {lx}")
        A.label(ly)
        self.estamp(4)
        A(f"ds_read_b128 {v(KP,4)}, v26\nds_read_b128 {v(KP+4,4)}, v26 offset:1024\nds_read_b64 {v(KP+8,2)}, v35 offset:2048")
        for t in range(5):
            A(f"ds_read_b64 {v(AV+8*t+2,2)}, v35 offset:{2560+512*t}")
        A.extend([f"v_mov_b32 v{ONE4+r}, v{ONE}" for r in range(4)] + rowmax(1))
        self.estamp(5)
        A("s_waitcnt lgkmcnt(0)")
        A.extend(weave(probs(1), qk(0), 3, 1))
        A.extend(weave(rowmax(0) + probs(0), pv(1), 3, 2))
        self.estamp(6)
        A.extend(weave(final(1), pv(0), 3, 2))
        A.extend(final(0))
        self.stamp(3); self.estamp(7)
        if not (c.phase2 and c.pubq) or self.selfrun("q"):
            self.publish_now("q")

    def p2geom(self, role):
        wide = self.c.wide == role
        kb = lambda *x: [i * K for i in x]
        if self.c.twin and role == "q":
            return dict(N=64, nW=2, w=kb(148, 64, 72, 80, 128, 136, 88, 32), wbase=kb(32, 128), a=kb(112, 48, 96, 0, 16), abase=kb(0, 96), wpre=7)
        if self.c.twin:
            return dict(N=96, nW=3, w=kb(144, 132, 120, 108, 96, 84, 72), wbase=kb(72, 120), a=kb(48, 32, 16, 0), abase=kb(0, 160), wpre=7)
        if role == "q" and not wide:
            return dict(N=64, nW=2, w=kb(64, 72, 80, 88, 112, 120, 128, 136), wbase=kb(64, 112), a=kb(144, 48, 56, 96, 104, 40), abase=kb(40, 96))
        if role == "q":
            return dict(N=96, nW=3, w=kb(144, 84, 132, 120, 108, 96), wbase=kb(84, 120), a=kb(76, 68, 60, 52, 44, 36), abase=kb(36, 160))
        if wide:
            return dict(N=96, nW=3, w=kb(144, 132, 120, 108, 96, 84, 72, 60), wbase=kb(60, 108), a=kb(52, 44, 36, 28, 20, 12), abase=kb(12, 160))
        return dict(N=64, nW=2, w=kb(144, 136, 128, 120, 112, 104, 96, 88, 80, 72), wbase=kb(72, 112), a=kb(64, 56, 48, 40, 32, 24, 16), abase=kb(16, 160))

    P2W, P2A, P2F, P2L, STG = 48, 51, 52, 56, 64
    sPW, sPA, sPM, sPN, sPB, sBW, sOWN, sOTH = 4, 5, 6, 7, 8, 11, 16, 17
    SEG = {0: (12, 1), 12: (12, 0), 24: (5, 1), 29: (5, 0)}

    RES = 160
    s1280 = 999

    def resident(self, role):
        c = self.c
        return 0 if (c.pair or c.twin) else c.nres if (role == "h" and c.phase2 and not c.split) else 0

    def p2_waddr(self, role):
        A, g = self.A, self.p2geom(role)
        N = g["N"]; NT = N // 32; vWa = 8
        A(f"v_lshrrev_b32 v3, 4, v0\nv_bfe_u32 v2, v0, 2, 2\nv_lshl_add_u32 v2, v3, 2, v2\nv_mul_u32_u24 v4, {2*N}, v2\nv_and_b32 v5, 3, v0\nv_lshl_add_u32 v4, v5, 3, v4")
        A("v_bfe_u32 v2, v2, 1, 2" if N == 64 else "v_and_b32 v2, 1, v3")
        A(f"s_lshr_b32 s{sT0}, s{sW}, 1\ns_mul_i32 s{sT0}, s{sT0}, {NT}")
        for i in range(NT):
            A(f"s_add_u32 s{sT1}, s{sT0}, {i}\nv_xor_b32 v3, s{sT1}, v2\nv_lshl_add_u32 v3, v3, 5, v4\nv_add_u32 v{vWa+i}, {g['wbase'][0]}, v3\nv_add_u32 v{vWa+3+i}, {g['wbase'][1]}, v3")

    def p2_wreads(self, role, ch, base, ks_list=(0, 1)):
        g = self.p2geom(role)
        N = g["N"]; NT = N // 32
        wb = 1 if g["w"][ch % len(g['w'])] >= g["wbase"][1] else 0
        wo = g["w"][ch % len(g['w'])] - g["wbase"][wb]
        return [f"ds_read_b64_tr_b16 {v(base+4*(NT*ks+i)+2*hf,2)}, v{8+3*wb+i} offset:{wo+(32*ks+16*hf)*2*N}"
                for ks in ks_list for i in range(NT) for hf in range(2)]

    def p2_colbytes(self, N):
        if N == 64:
            self.A(f"s_lshl_b32 s{sCOL}, s{sCOL}, 7\ns_add_u32 s{sCOL}, s{sCOL}, 768")
        else:
            self.A(f"s_mul_i32 s{sCOL}, s{sCOL}, 192")

    def p2_loader_setup(self, role):
        A, g = self.A, self.p2geom(role)
        self.wnext = 0
        if not self.c.phase2:
            return
        if self.c.pair:
            return self.p3_loader_setup(role)
        self.p2_colbytes(g["N"])
        if g["N"] == 64:
            A(f"v_lshrrev_b32 v2, 3, v0\nv_and_b32 v3, 6, v2\nv_and_b32 v4, 7, v0\nv_xor_b32 v3, v3, v4\nv_mul_u32_u24 v2, 1280, v2\nv_lshl_add_u32 v2, v3, 4, v2")
            A(f"s_mul_i32 s{sT0}, s{sW}, {16*1280}\ns_add_u32 s{sT0}, s{sT0}, s{sCOL}\nv_add_u32 v{self.P2W}, s{sT0}, v2\nv_add_u32 v{self.P2W+1}, {8*1280-K}, v{self.P2W}")
        else:
            for i in range(3):
                A(f"s_mul_i32 s{sT0}, s{sW}, 192\ns_add_u32 s{sT0}, s{sT0}, {64*i}\nv_add_u32 v2, s{sT0}, v0")
                A("v_mul_u32_u24 v3, 5462, v2\nv_lshrrev_b32 v3, 16, v3\nv_mul_u32_u24 v4, 12, v3\nv_sub_u32 v2, v2, v4")
                A("v_lshrrev_b32 v4, 1, v3\nv_and_b32 v4, 2, v4\nv_xor_b32 v2, v2, v4\nv_mul_u32_u24 v3, 1280, v3\nv_lshl_add_u32 v2, v2, 4, v3")
                A(f"s_sub_u32 s{sT0}, s{sCOL}, {K*i}\nv_add_u32 v{self.P2W+i}, s{sT0}, v2")
        A(f"s_lshl_b32 s{self.sPN}, s{sW}, 11\nv_lshl_add_u32 v{self.P2A}, v0, 4, s{self.sPN}")
        if self.selfrun(role):
            srd(A, OUT_, 16, 2048 * 1280)
        A(f"s_lshr_b32 s{self.sOWN}, s{sJ}, 2\ns_xor_b32 s{self.sOTH}, s{self.sOWN}, 1\ns_lshl_b32 s{sT0}, s{sRB}, 9\ns_add_u32 s{sT0}, s{sT0}, {FLAG_BASE}")
        A(f"s_lshl_b32 s{sT1}, s{self.sOTH}, 7\ns_add_u32 s{sT1}, s{sT1}, s{sT0}\nv_mov_b32 v{self.P2F}, s{sT1}\nv_xor_b32 v{self.P2F+1}, 128, v{self.P2F}")
        A(f"s_mul_i32 s{self.sPM}, s{sW}, {K*g['nW']}")
        if self.c.twin:
            A(f"s_and_b32 s{sT0}, s{sW}, 1\ns_lshl_b32 s{sT0}, s{sT0}, 12\nv_lshl_add_u32 v{self.P2L}, v0, 4, s{sT0}\ns_lshr_b32 s{sT0}, s{sW}, 1\ns_xor_b32 s14, s{sBLK}, s{sT0}\ns_lshl_b32 s15, s{sW}, 12")
            A(f"s_bfe_u32 s{sT0}, s{sJ}, 0x10001\ns_add_u32 s{sT0}, s{sT0}, s{sRB}\ns_add_u32 s{sT0}, s{sT0}, {0 if role == 'q' else 2}\ns_and_b32 s{sT0}, s{sT0}, 3\ns_mul_i32 s18, s{sT0}, 3\ns_lshr_b32 s18, s18, 1")
            A(f"s_xor_b32 s{sT0}, s{sJ}, 1\ns_lshl3_add_u32 s{sT0}, s{sRB}, s{sT0}\ns_lshl_b32 s{sT0}, s{sT0}, 7\ns_add_u32 s{sT0}, s{sT0}, {FLAG_BASE + F_PAIR + (0 if role == 'q' else 16384)}\nv_mov_b32 v{self.P2F+3}, s{sT0}")
        if self.c.touch and not self.c.split:
            A(f"s_bfe_u32 s{sT0}, s2, 0x40003\ns_lshl2_add_u32 s{sT0}, s{sT0}, s{sW}\nv_mul_u32_u24 v2, 52, v0\nv_lshrrev_b32 v2, 8, v2\nv_mul_u32_u24 v3, 5, v2\nv_sub_u32 v3, v0, v3")
            A(f"s_lshl_b32 s{sT1}, s{self.sOWN}, 7\ns_sub_u32 s{sT1}, 384, s{sT1}\nv_mov_b32 v4, s{sT1}\nv_cmp_le_u32 vcc, 3, v3\nv_cndmask_b32 v4, 0, v4, vcc\nv_lshl_add_u32 v3, v3, 7, v4")
            A(f"v_min_u32 v4, 11, v2\nv_min_u32 v2, 9, v2\nv_mad_u32_u24 v4, v4, s{self.s1280}, v3\nv_mad_u32_u24 v2, v2, s{self.s1280}, v3".replace(f"s{self.s1280}", f"s{sT3}").replace("v_min_u32 v4, 11", f"s_movk_i32 s{sT3}, 1280\nv_min_u32 v4, 11"))
            A(f"s_mul_i32 s{sT1}, s{self.sOWN}, {768*1280 + 384}\ns_mul_i32 s{sT2}, s{sT0}, {12*1280}\ns_add_u32 s{sT1}, s{sT1}, s{sT2}\nv_add_u32 v42, s{sT1}, v4")
            A(f"s_mul_i32 s{sT1}, s{self.sOWN}, 384\ns_mul_i32 s{sT2}, s{sT0}, {10*1280}\ns_add_u32 s{sT1}, s{sT1}, s{sT2}\nv_add_u32 v43, s{sT1}, v2")

    def p2_prep_w(self, cw):
        lim, d = (12 if cw < 24 else 5), (sT2, 12)[cw & 1]
        o = []
        if cw in self.SEG:
            o += lines(f"s_mov_b32 s{self.sPW}, s{sROT2 if cw < 24 else sROT3}\ns_mul_i32 s{self.sBW}, s{self.sOTH if self.SEG[cw][1] else self.sOWN}, {lim}")
        return o + lines(f"s_cmp_ge_u32 s{self.sPW}, {lim}\ns_cselect_b32 s{d}, {lim}, 0\ns_sub_u32 s{self.sPW}, s{self.sPW}, s{d}\ns_add_u32 s{d}, s{self.sPW}, s{self.sBW}\ns_mul_i32 s{d}, s{d}, {64*1280}\ns_add_u32 s{self.sPW}, s{self.sPW}, 1")

    def p2_issue_w(self, role, cw, C=None, fill=()):
        A, g = self.A, self.p2geom(role)
        emit = (C.issue if C else A)
        A(f"s_add_u32 m0, s{self.sPM}, {g['w'][cw % len(g['w'])]}")
        for i in range(g["nW"]):
            tag = emit(f"buffer_load_dwordx4 v{self.P2W+i}, {s(W2_ if cw < 24 else WO_,4)}, s{(sT2, 12)[cw & 1]} offen offset:{K*i} lds")
            if i == 0:
                A.extend(fill)
        return tag

    def p2_prep_a(self, ca):
        lim, d = (12 if ca < 24 else 5), (sT3, 13)[ca & 1]
        o = []
        if ca in self.SEG:
            o += lines(f"s_mov_b32 s{self.sPA}, s{sROT2 if ca < 24 else sROT3}\ns_mul_i32 s{self.sPB}, s{sBLK}, {H_BLK if ca < 24 else O_BLK}\ns_mul_i32 s{d}, s{self.sOTH if self.SEG[ca][1] else self.sOWN}, {8192*lim}")
            o += lines(f"s_add_u32 s{self.sPB}, s{self.sPB}, s{d}\ns_add_u32 s{self.sPB}, s{self.sPB}, {H_BASE if ca < 24 else O_BASE}")
        return o + lines(f"s_cmp_ge_u32 s{self.sPA}, {lim}\ns_cselect_b32 s{d}, {lim}, 0\ns_sub_u32 s{self.sPA}, s{self.sPA}, s{d}\ns_lshl_b32 s{d}, s{self.sPA}, 13\ns_add_u32 s{d}, s{d}, s{self.sPB}\ns_add_u32 s{self.sPA}, s{self.sPA}, 1")

    def p2_issue_a(self, role, ca, C, set_m0=True, fill=()):
        A, g = self.A, self.p2geom(role)
        if set_m0:
            A(f"s_add_u32 m0, s{self.sPN}, {g['a'][ca % len(g['a'])]}")
        mod = "" if self.c.split else self.c.ld_mod
        for i in range(2):
            tag = C.issue(f"buffer_load_dwordx4 v{self.P2A}, {s(WS_,4)}, s{(sT3, 13)[ca & 1]} offen offset:{K*i}{mod} lds")
            if i == 0:
                A.extend(fill)
        return tag

    def p2_prefetch(self, role, upto):
        k = 0
        while self.wnext < upto:
            if self.c.twin:
                self.A.extend(self.p4_prep(role, "w", self.wnext))
                self.p4_issue_w(role, self.wnext)
            elif self.c.pair:
                self.A.extend(self.p3_prep(role, "w", self.wnext))
                self.p3_issue_w(role, self.wnext)
            else:
                self.A.extend(self.p2_prep_w(self.wnext))
                self.p2_issue_w(role, self.wnext)
            self.wnext += 1
            k += 3 if self.c.pair else self.p2geom(role)["nW"]
        return k

    def p2_loader(self, role, pending):
        A, g, c = self.A, self.p2geom(role), self.c
        C = Counter(A, "vmcnt", 62)
        RW, RA, nW, NR = len(g["w"]), len(g["a"]), g["nW"], self.resident(role)
        tw, ta, later = {}, {}, []
        vR = self.P2F + 2
        def next_w():
            A.extend(self.p2_prep_w(self.wnext))
            tw[self.wnext] = self.p2_issue_w(role, self.wnext, C)
            self.wnext += 1
        def one_a(ca):
            A.extend(self.p2_prep_a(ca)); ta[ca] = self.p2_issue_a(role, ca, C)
        def poll(seg):
            return C.issue(f"buffer_load_dword v{vR}, v{self.P2F + 1 - self.SEG[seg][1]}, {s(WS_,4)}, 0 offen offset:{256 * (seg >= 24)}{COH}")
        def confirm(seg, tag):
            C.wait(tag)
            self.check(vR, self.P2F + 1 - self.SEG[seg][1], WS_, 4, 256 * (seg >= 24))
        C.n = pending
        for cw in range(self.wnext):
            tw[cw] = max(0, pending - nW * (self.wnext - 1 - cw))
        if c.split:
            next_w()
            for ca in range(RA):
                one_a(ca)
            while self.wnext < RW:
                next_w()
        else:
            if NR:
                assert self.wnext >= NR
                C.wait(tw[NR - 1])
                A("s_barrier")
                for _ in range(min(c.midw, RW - self.wnext)):
                    next_w()
                A("s_barrier")
            if role == "h" and c.owntouch:
                A(f"s_lshr_b32 s{sT0}, s{sW}, 1\ns_lshl1_add_u32 s{sT0}, s{sRB}, s{sT0}\ns_mul_i32 s{sT0}, s{sT0}, {H_BLK}\ns_mul_i32 s{sT1}, s{sJ}, {3*8192}\ns_add_u32 s{sT0}, s{sT0}, s{sT1}")
                A(f"s_and_b32 s{sT1}, s{sW}, 1\ns_mul_i32 s{sT1}, s{sT1}, {96*128}\ns_add_u32 s{sT0}, s{sT0}, s{sT1}\nv_lshlrev_b32 v2, 7, v0\nv_and_b32 v3, 31, v0\nv_lshlrev_b32 v3, 7, v3\ns_add_u32 s{sT1}, s{sT0}, 8192")
                own = [f"buffer_load_dword v58, v2, {s(WS_,4)}, s{sT0} offen{COH}", f"buffer_load_dword v59, v3, {s(WS_,4)}, s{sT1} offen{COH}"]
                if c.owntouch == 1:
                    for o in own:
                        C.issue(o)
            stop = min(RW + NR, self.wnext + c.gapw) if role == "h" else RW
            while self.wnext < stop - 2:
                next_w()
            pollt = poll(0)
            while self.wnext < stop:
                next_w()
            confirm(0, pollt)
            self.trace(11)
            self.stamp(3)
            for ca in range(c.na0[role]):
                one_a(ca)
            if role == "h" and c.owntouch == 2:
                A(f"s_lshr_b32 s{sT0}, s{sW}, 1\ns_lshl1_add_u32 s{sT0}, s{sRB}, s{sT0}\ns_mul_i32 s{sT0}, s{sT0}, {H_BLK}\ns_mul_i32 s{sT1}, s{sJ}, {3*8192}\ns_add_u32 s{sT0}, s{sT0}, s{sT1}")
                A(f"s_and_b32 s{sT1}, s{sW}, 1\ns_mul_i32 s{sT1}, s{sT1}, {96*128}\ns_add_u32 s{sT0}, s{sT0}, s{sT1}\ns_add_u32 s{sT1}, s{sT0}, 8192")
                for o in own:
                    C.issue(o)
            later = [lambda ca=ca: one_a(ca) for ca in range(c.na0[role], RA)] + [next_w] * (RW + NR - self.wnext)
            if role == "q" and c.touch:
                C.issue(f"buffer_load_dword v58, v42, {s(W2_,4)}, 0 offen")
                if c.touch == "q":
                    C.issue(f"buffer_load_dword v59, v43, {s(WO_,4)}, 0 offen")
        want_a = lambda ch: ch >= 2 and ch - 2 + RA < 34
        want_w = lambda ch: ch >= 2 + NR and ch - 2 + RW < 34
        state = dict(pollt=None)

        def epoch(ch, set_m0):
            ca, cw = ch - 2 + RA, ch - 2 + RW
            for _ in range(-(-len(later) // (2 - ch)) if later else 0):
                later.pop(0)()
            if ca in (12, 24, 29) and not c.split:
                if ca == 24:
                    self.stamp(4)
                confirm(ca, state["pollt"])
                if ca == 24:
                    self.stamp(5)
            if ca + 2 in (12, 24, 29) and not c.split:
                state["pollt"] = poll(ca + 2)
            pa = self.p2_prep_a(ca + 1) if want_a(ch + 1) else []
            pw = self.p2_prep_w(cw + 1) if want_w(ch + 1) else []
            if want_a(ch):
                ta[ca] = self.p2_issue_a(role, ca, C, set_m0, pa); pa = []
            if want_w(ch):
                tw[cw] = self.p2_issue_w(role, cw, C, pw); pw = []
            A.extend(pa + pw)

        if self.selfrun(role):
            self.p2_compute(role, (C, ta, tw, epoch))
            return
        for ch in range(34):
            if want_a(ch):
                A(f"s_add_u32 m0, s{self.sPN}, {g['a'][(ch - 2 + RA) % RA]}")
            C.wait(max(ta[ch], tw[ch]))
            A("s_barrier")
            self.trace(12 + ch)
            epoch(ch, c.trace)
        self.stamp(6)

    def selfrun(self, role):
        c = self.c
        return role == "q" and c.selfq and c.phase2 and not c.split

    def p2_out(self, role, XR, own=None, early=False):
        A, g = self.A, self.p2geom(role)
        NT = g["N"] // 32
        va, vb, t0, t1 = (190, 7, 191, 192) if early else (6, 7, 2, 3)
        m = len(A.lines)
        if not own:
            self.p2_colbytes(g["N"])
        A(f"s_and_b32 s{sT0}, s{sW}, 1\ns_lshl1_add_u32 s{sT0}, s{sBLK}, s{sT0}\ns_mul_i32 s{sT0}, s{sT0}, {32*1280}\ns_add_u32 s{sT0}, s{sT0}, s{sCOL}")
        A(f"s_lshr_b32 s{sT1}, s{sW}, 1\ns_mul_i32 s{sT1}, s{sT1}, {32*NT}\ns_add_u32 s{sF}, s{sT0}, s{sT1}\ns_add_u32 s{sE}, s{sF}, {16*1280}")
        A(f"v_and_b32 v{t0}, 15, v0\nv_mul_u32_u24 v{t0}, 1280, v{t0}\nv_lshrrev_b32 v{t1}, 5, v0\nv_lshl_add_u32 v{t0}, v{t1}, 4, v{t0}\nv_bfe_u32 v{t1}, v0, 4, 1\nv_lshl_add_u32 v{va}, v{t1}, 5, v{t0}")
        jobs = [(NT * p, NT * p + 1, va, sE if p else sF, 0) for p in range(2)]
        if NT == 3:
            A(f"v_mul_u32_u24 v{t1}, {16*1280}, v{t1}\nv_add_u32 v{vb}, v{t0}, v{t1}")
            jobs.append((2, 5, vb, sF, 64))
        setup = A.lines[m:]; del A.lines[m:]
        return setup, jobs, [f"buffer_load_dwordx4 {v(XR+4*n,4)}, v{a}, {s(X_,4)}, s{so} offen offset:{off}" for n, (_, _, a, so, off) in enumerate(jobs)]

    def p2_compute(self, role, own=None):
        A, g, c = self.A, self.p2geom(role), self.c
        N = g["N"]; NT = N // 32; RB = 2 * N
        vB, vO = (14, 10), (15, 13)
        NR = self.resident(role)
        ACC, FB, FW, XR = (64, 88, 120, 168) if own else (16, 40, 72, 120)
        xat = c.xat[role]
        if xat == -2 and not c.split:
            XR = 192
        setup, jobs, xl = self.p2_out(role, XR, own)
        A.extend([l for l in setup if l.startswith("v_") or xat != -2 or c.split])
        if xat < 0:
            if xat == -1 or c.split:
                A.extend(xl)
            xl = []
        if not NR:
            self.p2_waddr(role)
        A(f"s_and_b32 s{sT0}, s{sW}, 1\ns_lshl_b32 s{sT0}, s{sT0}, 12\ns_add_u32 s{sT0}, s{sT0}, {g['abase'][0]}\nv_lshl_add_u32 v{vB[0]}, v0, 4, s{sT0}\nv_lshl_add_u32 v{vO[0]}, v0, 3, s{sT0}")
        if g["abase"][1] < LDS_BYTES:
            A(f"v_add_u32 v{vB[1]}, {g['abase'][1]-g['abase'][0]}, v{vB[0]}\nv_add_u32 v{vO[1]}, {g['abase'][1]-g['abase'][0]}, v{vO[0]}")

        def mfmas(ch):
            out = []
            if ch < 0:
                return out
            st = ch & 1
            fw = self.RES + 8 * NT * ch if ch < NR else FW + 8 * NT * st
            for ks in range(2):
                for i in range(NT):
                    for p in range(2):
                        a = v(ACC + 4 * (NT * p + i), 4)
                        out.append(f"{MF} {a}, {v(fw+4*(NT*ks+i),4)}, {v(FB+16*st+8*ks+4*p,4)}, {a if ch or ks else 0}")
            return out

        def chunk(ch, extra=(), head=()):
            st, opart = ch & 1, ch >= 24
            aa = g["a"][ch % len(g["a"])]
            ab = 1 if aa >= g["abase"][1] else 0
            ao = aa - g["abase"][ab]
            ld = []
            if own:
                C, ta, tw, epoch = own
                l, d = self.lab("ps"), self.lab("pd")
                A(f"s_waitcnt lgkmcnt(0)\nv_cmp_gt_u32 vcc, {ch + 1}, v{vPG+2}\nv_add_u32 v{vPG+3}, 1, v{vPG+3}\ns_mov_b32 s{sT1}, {SPIN_LIMIT}\ns_cbranch_vccz {d}")
                A.label(l)
                A(f"ds_read_b32 v{vPG+2}, v{vPG+1}\ns_waitcnt lgkmcnt(0)\nv_cmp_gt_u32 vcc, {ch + 1}, v{vPG+2}\ns_cbranch_vccz {d}\ns_sub_u32 s{sT1}, s{sT1}, 1\ns_cbranch_scc0 {l}")
                A.label(d)
                self.trace(12 + ch)
                if ch < 33:
                    C.wait(max(ta[ch + 1], tw[ch + 1]))
                    A(f"ds_write_b32 v{vPG}, v{vPG+3}")
                m = len(A.lines)
                epoch(ch, True)
                ld = A.lines[m:]; del A.lines[m:]
            else:
                A("s_barrier\ns_waitcnt lgkmcnt(0)")
            if ch == 0:
                self.stamp(4 if not own else 6)
            A.extend(head)
            rd = []
            for ks in range(2):
                for p in range(2):
                    d = FB + 16 * st + 8 * ks + 4 * p
                    if opart:
                        rd += [f"ds_read_b64 {v(d+2*hf,2)}, v{vO[ab]} offset:{ao+2048*p+512*(2*ks+hf)}" for hf in range(2)]
                    else:
                        rd.append(f"ds_read_b128 {v(d,4)}, v{vB[ab]} offset:{ao+2048*p+K*ks}")
                if ch >= NR:
                    rd += self.p2_wreads(role, ch, FW + 8 * NT * st, (ks,))
            rd += list(extra)
            ms = mfmas(ch - 1)
            if own and 'selfskipm' in c.abl:
                ms = ['s_nop 0'] * len(ms)
            if own and 'selfskipr' in c.abl:
                rd = list(extra)
            if own:
                nrd = len(rd) - len(extra)
                if ch < 33:
                    rd.insert(nrd, f"ds_read_b32 v{vPG+2}, v{vPG+1}")
                rd += ld
            per = max(2, -(-len(rd) // max(1, len(ms))))
            solid = any(x.endswith(":") for x in rd)
            for i, m in enumerate(ms):
                A(m)
                k = min(per, len(rd) - len(ld)) if solid else per
                A.extend(rd[:k]); rd = rd[k:]
            A.extend(rd)

        vPG = 16
        if own:
            A(f"s_lshl_b32 s{sT0}, s{sW}, 2\ns_add_u32 s{sT0}, s{sT0}, {MISC + PRG_OFF}\nv_mov_b32 v{vPG}, s{sT0}\nv_and_b32 v{vPG+1}, 3, v0\nv_lshlrev_b32 v{vPG+1}, 2, v{vPG+1}\nv_add_u32 v{vPG+1}, {MISC + PRG_OFF}, v{vPG+1}")
            A(f"v_mov_b32 v{vPG+3}, 1")
            own[0].wait(max(own[1][0], own[2][0]))
            A(f"ds_write_b32 v{vPG}, v{vPG+3}\nds_read_b32 v{vPG+2}, v{vPG+1}")
        heads = {}
        if role == "q" and c.pubq and not c.split and not own:
            heads[c.pubq], heads[c.pubq + 1] = self.publish("q", (2 if xat == -1 else len(xl)) if xat + len(xl) <= c.pubq else 0)
        assert role == "h" or xat + len(xl) <= c.pubq or xat > c.pubq
        RS = 132
        rs = []
        if c.defer:
            rs = lines(f"s_and_b32 s{sT0}, s{sBLK}, 1\ns_and_b32 s{sT1}, s{sW}, 1\ns_lshl1_add_u32 s{sT0}, s{sT0}, s{sT1}\ns_lshl_b32 s{sT0}, s{sT0}, 7\ns_add_u32 s{sT0}, s{sT0}, {MISC + ST_RSTD + (64 if role == 'q' else 0)}")
            rs += lines(f"v_and_b32 v2, 15, v0\nv_lshl_add_u32 v2, v2, 2, s{sT0}\nds_read_b32 v{RS}, v2\nds_read_b32 v{RS+2}, v2 offset:64")
        for ch in range(24):
            chunk(ch, (xl[ch - xat: ch - xat + 1] if ch >= xat >= 0 else []) + (rs if ch == 20 else []), heads.get(ch, ()))
        if not own:
            self.stamp(5)
        XU = 136
        unpack = [] if own else ["s_waitcnt vmcnt(0)"]
        for n, (k0, k1, va, so, off) in enumerate(jobs):
            d = XR + 4 * n
            unpack += [f"v_permlane16_swap_b32 v{d}, v{d+2}", f"v_permlane16_swap_b32 v{d+1}, v{d+3}"]
            for x, k in ((d, k0), (d + 2, k1)):
                unpack += lines(f"v_lshlrev_b32 v{XU+4*k}, 16, v{x}\nv_and_b32 v{XU+4*k+1}, 0xffff0000, v{x}\nv_lshlrev_b32 v{XU+4*k+2}, 16, v{x+1}\nv_and_b32 v{XU+4*k+3}, 0xffff0000, v{x+1}")
        if c.defer:
            for p in range(2):
                for i in range(2 * NT):
                    heads.setdefault(25, []).append(f"v_pk_mul_f32 {v(ACC+4*NT*p+2*i,2)}, {v(ACC+4*NT*p+2*i,2)}, {v(RS+2*p,2)} op_sel_hi:[1,0]")
        for ch in range(24, 34):
            n = -(-len(unpack) // (30 - ch)) if unpack else 0
            chunk(ch, unpack[:n], heads.get(ch, ())); unpack = unpack[n:]
        A("s_waitcnt lgkmcnt(0)")
        A.extend(mfmas(33))
        if not own:
            self.stamp(6)
        O = FB
        for n, (k0, k1, va, so, off) in enumerate(jobs):
            d = O + 4 * n
            for dd, k in ((d, k0), (d + 2, k1)):
                for h in (0, 2):
                    A(f"v_pk_add_f32 {v(ACC+4*k+h,2)}, {v(ACC+4*k+h,2)}, {v(XU+4*k+h,2)}")
                A.extend(self.pack(dd, ACC + 4 * k))
            A(f"v_permlane16_swap_b32 v{d}, v{d+2}\nv_permlane16_swap_b32 v{d+1}, v{d+3}")
            A(f"buffer_store_dwordx4 {v(d,4)}, v{va}, {s(OUT_,4)}, s{so} offen offset:{off}{c.out_mod}")

    def p3geom(self, role):
        kb = lambda *x: [i * K for i in x]
        nb = self.c.nb
        if role == "q" and self.c.qring:
            return dict(w=kb(147, 64, 74, 84, 127, 137, 32, 22, 12), wbase=kb(12, 74, 127), a=kb(111, 48, 95), abase=kb(48, 95), wpre=6,
                        seg=[("h", 0, nb, 12 - nb), ("o", 1, 0, 5), ("o", 0, 0, 5)])
        if role == "q":
            return dict(w=kb(147, 64, 74, 84, 127, 137, 32), wbase=kb(32, 127), a=kb(111, 48, 95, 0, 16), abase=kb(0, 95), wpre=6,
                        seg=[("h", 0, nb, 12 - nb), ("o", 1, 0, 5), ("o", 0, 0, 5)])
        return dict(w=kb(147, 137, 127, 110, 100, 90, 80), wbase=kb(80, 127), a=kb(64, 48, 32, 16, 0), abase=kb(0, 48), wpre=7,
                    seg=[("h", 1, 0, 12), ("h", 0, 0, nb)])

    def p3seg(self, role, ch):
        for kind, oth, lo, n in self.p3geom(role)["seg"]:
            if ch < n:
                return kind, oth, lo, n, ch
            ch -= n

    def p3_loader_setup(self, role):
        A, c = self.A, self.c
        A(f"s_mul_i32 s{sCOL}, s{sJ}, 160\ns_mul_i32 s{sT0}, s{sW}, {16*1280}\ns_add_u32 s{sT0}, s{sT0}, s{sCOL}")
        for i in range(3):
            A(f"v_add_u32 v2, {64*i}, v0\nv_mul_u32_u24 v3, 6554, v2\nv_lshrrev_b32 v3, 16, v3\nv_mul_u32_u24 v4, {1280-160}, v3\nv_lshl_add_u32 v2, v2, 4, v4")
            A(f"s_sub_u32 s{sT1}, s{sT0}, {K*i}\nv_add_u32 v{self.P2W+i}, s{sT1}, v2")
        A(f"s_mul_i32 s{self.sPM}, s{sW}, 2560\ns_lshl_b32 s{self.sPN}, s{sW}, 12\ns_and_b32 s{sT0}, s{sW}, 1\ns_lshl_b32 s{sT0}, s{sT0}, 12\nv_lshl_add_u32 v{self.P2A}, v0, 4, s{sT0}")
        A(f"s_lshr_b32 s{sT0}, s{sW}, 1\ns_lshl1_add_u32 s{sBLK}, s{sRB}, s{sT0}\ns_add_u32 s{sROT2}, s{sRB}, s{sJ}\ns_and_b32 s{sROT2}, s{sROT2}, 3")
        A(f"s_lshr_b32 s{self.sOWN}, s{sJ}, 2\ns_xor_b32 s{self.sOTH}, s{self.sOWN}, 1\ns_lshl_b32 s{sT0}, s{sRB}, 9\ns_add_u32 s{sT0}, s{sT0}, {FLAG_BASE}")
        A(f"s_lshl_b32 s{sT1}, s{self.sOTH}, 7\ns_add_u32 s{sT1}, s{sT1}, s{sT0}\nv_mov_b32 v{self.P2F}, s{sT1}\nv_xor_b32 v{self.P2F+1}, 128, v{self.P2F}")
        if role == "q":
            A(f"s_lshl3_add_u32 s{sT0}, s{sRB}, s{sJ}\ns_lshl_b32 s{sT0}, s{sT0}, 7\ns_add_u32 s{sT0}, s{sT0}, {FLAG_BASE + F_PAIR}\nv_mov_b32 v{self.P2F+3}, s{sT0}")
            if c.touch:
                r2 = c.nb
                A(f"s_bfe_u32 s{sT0}, s2, 0x40003\ns_lshl2_add_u32 s{sT0}, s{sT0}, s{sW}\nv_mul_u32_u24 v2, 52, v0\nv_lshrrev_b32 v2, 8, v2\nv_mul_u32_u24 v3, 5, v2\nv_sub_u32 v3, v0, v3\nv_lshlrev_b32 v3, 7, v3")
                A(f"s_movk_i32 s{sT3}, 1280\nv_min_u32 v4, {r2-1}, v2\nv_min_u32 v2, 9, v2\nv_mad_u32_u24 v4, v4, s{sT3}, v3\nv_mad_u32_u24 v2, v2, s{sT3}, v3")
                A(f"s_mul_i32 s{sT1}, s{self.sOWN}, {768*1280 + 640}\ns_mul_i32 s{sT2}, s{sT0}, {r2*1280}\ns_add_u32 s{sT1}, s{sT1}, s{sT2}\nv_add_u32 v42, s{sT1}, v4")
                A(f"s_mul_i32 s{sT1}, s{self.sOWN}, 640\ns_mul_i32 s{sT2}, s{sT0}, {10*1280}\ns_add_u32 s{sT1}, s{sT1}, s{sT2}\nv_add_u32 v43, s{sT1}, v2")

    def p3_prep(self, role, which, ch):
        kind, oth, lo, n, pos = self.p3seg(role, ch)
        cnt, base, d = (self.sPW, self.sBW, (sT2, 12)[ch & 1]) if which == "w" else (self.sPA, self.sPB, (sT3, 13)[ch & 1])
        step = 64 * 1280 if which == "w" else 8192
        o = []
        if pos == 0:
            half = 12 if kind == "h" else 5
            o += lines(f"s_mul_i32 s{cnt}, s{sROT2}, {max(1, n // 4)}\ns_mul_i32 s{base}, s{self.sOTH if oth else self.sOWN}, {half * step}")
            if which == "a":
                o += lines(f"s_mul_i32 s{d}, s{sBLK}, {H_BLK if kind == 'h' else O_BLK}\ns_add_u32 s{base}, s{base}, s{d}")
            add = lo * step + ((H_BASE if kind == "h" else O_BASE) if which == "a" else 0)
            if add:
                o.append(f"s_add_u32 s{base}, s{base}, {add}")
        return o + lines(f"s_cmp_ge_u32 s{cnt}, {n}\ns_cselect_b32 s{d}, {n}, 0\ns_sub_u32 s{cnt}, s{cnt}, s{d}\ns_mul_i32 s{d}, s{cnt}, {step}\ns_add_u32 s{d}, s{d}, s{base}\ns_add_u32 s{cnt}, s{cnt}, 1")

    def p3_issue_w(self, role, cw, C=None, fill=()):
        A, g = self.A, self.p3geom(role)
        emit = (C.issue if C else A)
        srd_ = W2_ if self.p3seg(role, cw)[0] == "h" else WO_
        A(f"s_add_u32 m0, s{self.sPM}, {g['w'][cw % len(g['w'])]}")
        for i in range(3):
            if i == 2:
                A("s_mov_b32 exec_hi, 0")
            tag = emit(f"buffer_load_dwordx4 v{self.P2W+i}, {s(srd_,4)}, s{(sT2, 12)[cw & 1]} offen offset:{K*i} lds")
            if i == 0:
                A.extend(fill)
        A("s_mov_b32 exec_hi, -1")
        return tag

    def p3_issue_a(self, role, ca, C, set_m0=True, fill=()):
        A, g = self.A, self.p3geom(role)
        if set_m0:
            A(f"s_add_u32 m0, s{self.sPN}, {g['a'][ca % len(g['a'])]}")
        for i in range(4):
            tag = C.issue(f"buffer_load_dwordx4 v{self.P2A}, {s(WS_,4)}, s{(sT3, 13)[ca & 1]} offen offset:{K*i}{self.c.ld_mod} lds")
            if i == 0:
                A.extend(fill)
        return tag

    def p3_loader(self, role, pending):
        A, g, c = self.A, self.p3geom(role), self.c
        C = Counter(A, "vmcnt", 62)
        RW, RA = len(g["w"]), len(g["a"])
        NC = sum(x[3] for x in g["seg"])
        tw, ta = {}, {}
        vR = self.P2F + 2
        def next_w():
            A.extend(self.p3_prep(role, "w", self.wnext))
            tw[self.wnext] = self.p3_issue_w(role, self.wnext, C)
            self.wnext += 1
        def one_a(ca):
            A.extend(self.p3_prep(role, "a", ca)); ta[ca] = self.p3_issue_a(role, ca, C)
        def where(ca):
            if ca == "pair":
                return self.P2F + 3, 0, 1
            kind, oth = self.p3seg(role, ca)[:2]
            return self.P2F + 1 - oth, 256 * (kind == "o"), 4
        tags, regs = {}, {}
        def poll(ca):
            ad, off, _ = where(ca)
            regs[ca] = 32 + len(regs)
            tags[ca] = C.issue(f"buffer_load_dword v{regs[ca]}, v{ad}, {s(WS_,4)}, 0 offen offset:{off}{COH}")
        def confirm(ca):
            ad, off, n = where(ca)
            C.wait(tags[ca])
            self.check(regs[ca], ad, WS_, n, off)
        C.n = pending
        for cw in range(self.wnext):
            tw[cw] = max(0, pending - 3 * (self.wnext - 1 - cw))
        if role == "h":
            A("s_barrier")
        stop = min(g["wpre"], self.wnext + c.gap3) if role == "h" else g["wpre"]
        while self.wnext < stop - 1:
            next_w()
        poll(0)
        while self.wnext < stop:
            next_w()
        confirm(0)
        self.trace(11)
        self.stamp(3)
        for ca in range(c.na3[role]):
            one_a(ca)
        later = [lambda ca=ca: one_a(ca) for ca in range(c.na3[role], RA)] + [next_w] * (RW - self.wnext)
        if role == "q" and c.touch:
            C.issue(f"buffer_load_dword v58, v42, {s(W2_,4)}, 0 offen")
            C.issue(f"buffer_load_dword v59, v43, {s(WO_,4)}, 0 offen")
        starts = [ca for ca in range(RA, NC) if self.p3seg(role, ca)[4] == 0]
        want_a = lambda ch: ch >= 2 and ch - 2 + RA < NC
        want_w = lambda ch: ch >= 2 and ch - 2 + RW < NC
        kp = NC - c.pk
        for ch in range(NC):
            ca, cw = ch - 2 + RA, ch - 2 + RW
            if role == "q" and ch == kp:
                self.stamp(4)
                confirm("pair")
                self.stamp(5)
            if want_a(ch):
                A(f"s_add_u32 m0, s{self.sPN}, {g['a'][ca % RA]}")
            C.wait(max(ta[ch], tw[ch]))
            A("s_barrier")
            self.trace(12 + ch)
            for _ in range(-(-len(later) // (2 - ch)) if later else 0):
                later.pop(0)()
            if ca in starts:
                if ca not in tags:
                    poll(ca)
                confirm(ca)
            if ca + c.pd in starts:
                poll(ca + c.pd)
            if role == "q" and ch == kp - c.pd:
                poll("pair")
            pa = self.p3_prep(role, "a", ca + 1) if want_a(ch + 1) else []
            pw = self.p3_prep(role, "w", cw + 1) if want_w(ch + 1) else []
            if want_a(ch):
                ta[ca] = self.p3_issue_a(role, ca, C, c.trace, pa); pa = []
            if want_w(ch):
                tw[cw] = self.p3_issue_w(role, cw, C, pw); pw = []
            A.extend(pa + pw)
        self.stamp(6)

    def p3_compute(self, role):
        A, g, c = self.A, self.p3geom(role), self.c
        q = role == "q"
        NC = sum(x[3] for x in g["seg"])
        vW, vB, vO = (8, 9), (10, 11), (12, 13)
        ACC, FB, FW, XR, PT = 16, 56, 88, 168, 188
        A(f"v_lshrrev_b32 v3, 4, v0\nv_bfe_u32 v2, v0, 2, 2\nv_lshl_add_u32 v2, v3, 2, v2\nv_mul_u32_u24 v2, 160, v2\nv_and_b32 v4, 3, v0\nv_lshl_add_u32 v2, v4, 3, v2")
        A(f"v_add_u32 v{vW[0]}, {g['wbase'][0]}, v2\nv_add_u32 v{vW[1]}, {g['wbase'][1]}, v2")
        A(f"s_lshl_b32 s{sT0}, s{sW}, 12\nv_lshl_add_u32 v{vB[0]}, v0, 4, s{sT0}\nv_add_u32 v{vB[1]}, {g['abase'][1]}, v{vB[0]}")
        if q:
            A(f"v_lshl_add_u32 v{vO[0]}, v0, 3, s{sT0}\nv_add_u32 v{vO[1]}, {g['abase'][1]}, v{vO[0]}")
        part = lines(f"s_lshl3_add_u32 s{sD}, s{sRB}, s{sJ}\ns_lshl2_add_u32 s{sD}, s{sD}, s{sW}\ns_mul_i32 s{sD}, s{sD}, 10240\ns_add_u32 s{sD}, s{sD}, {PART_BASE}\ns_add_u32 s{sC}, s{sD}, 4096\ns_add_u32 s{sB}, s{sD}, 8192\nv_lshlrev_b32 v14, 4, v0")
        pop = lambda op, n, r: f"buffer_{op}_dwordx4 {v(r,4)}, v14, {s(WS_,4)}, s{(sD, sC, sB)[n // 4]} offen offset:{K*(n % 4)}{COH}"
        extra, heads = {0: part}, {}
        if q:
            out = lines(f"s_lshl2_add_u32 s{sT0}, s{sRB}, s{sW}\ns_mul_i32 s{sT0}, s{sT0}, {32*1280}\ns_mul_i32 s{sT1}, s{sJ}, 160\ns_add_u32 s{sF}, s{sT0}, s{sT1}\ns_add_u32 s{sE}, s{sF}, {16*1280}")
            out += lines(f"v_and_b32 v2, 15, v0\nv_mul_u32_u24 v2, 1280, v2\nv_lshrrev_b32 v3, 5, v0\nv_lshl_add_u32 v2, v3, 4, v2\nv_bfe_u32 v3, v0, 4, 1\nv_lshl_add_u32 v6, v3, 5, v2\nv_mul_u32_u24 v3, {16*1280}, v3\nv_add_u32 v7, v2, v3")
            extra[1] = out
            jobs = [(5 * p + 2 * i, 5 * p + 2 * i + 1, 6, sE if p else sF, 64 * i) for p in range(2) for i in range(2)] + [(4, 9, 7, sF, 128)]
            heads[c.pub3], heads[c.pub3 + 1] = self.publish("q")
            for n, (_, _, va, so, off) in enumerate(jobs):
                extra.setdefault(c.pub3 + 2 + n, []).append(f"buffer_load_dwordx4 {v(XR+4*n,4)}, v{va}, {s(X_,4)}, s{so} offen offset:{off}")
            for n in range(10):
                extra.setdefault(NC - c.pk + n // 5, []).append(pop("load", n, PT + 4 * n))

        def mfmas(ch):
            st = ch & 1
            return [f"{MF} {v(ACC+4*(5*p+i),4)}, {v(FW+40*st+4*(5*ks+i),4)}, {v(FB+16*st+8*ks+4*p,4)}, {v(ACC+4*(5*p+i),4) if ch or ks else 0}"
                    for ks in range(2) for i in range(5) for p in range(2)] if ch >= 0 else []

        for ch in range(NC):
            st, opart = ch & 1, self.p3seg(role, ch)[0] == "o"
            aa, ww = g["a"][ch % len(g["a"])], g["w"][ch % len(g["w"])]
            ab, wb = int(aa >= g["abase"][1]), int(ww >= g["wbase"][1])
            ao, wo = aa - g["abase"][ab], ww - g["wbase"][wb]
            A("s_barrier\ns_waitcnt lgkmcnt(0)")
            if ch == 0:
                self.stamp(4)
            if q and opart and self.p3seg(role, ch - 1)[0] == "h":
                self.stamp(5)
            A.extend(heads.get(ch, ()))
            rd = []
            for ks in range(2):
                for p in range(2):
                    d = FB + 16 * st + 8 * ks + 4 * p
                    if opart:
                        rd += [f"ds_read_b64 {v(d+2*hf,2)}, v{vO[ab]} offset:{ao+2048*p+512*(2*ks+hf)}" for hf in range(2)]
                    else:
                        rd.append(f"ds_read_b128 {v(d,4)}, v{vB[ab]} offset:{ao+2048*p+K*ks}")
                rd += [f"ds_read_b64_tr_b16 {v(FW+40*st+4*(5*ks+i)+2*hf,2)}, v{vW[wb]} offset:{wo+(32*ks+16*hf)*160+32*i}" for i in range(5) for hf in range(2)]
            rd += extra.get(ch, [])
            ms = mfmas(ch - 1)
            for i, m in enumerate(ms):
                k = -(-len(rd) // (len(ms) - i - 2)) if i < len(ms) - 2 else len(rd)
                A(m); A.extend(rd[:k]); rd = rd[k:]
            A.extend(rd)
        last = mfmas(NC - 1)
        A("s_waitcnt lgkmcnt(0)")
        if not q:
            self.stamp(5)
            A.extend(last)
            self.stamp(6)
            for n in range(10):
                A(pop("store", n, ACC + 4 * n))
            a, b = self.publish("h", pairflag=True)
            A.extend(a + ["s_waitcnt lgkmcnt(0)"] + b)
            return
        pre = ["s_waitcnt vmcnt(0)"]
        for n, (k0, k1, va, so, off) in enumerate(jobs):
            d = XR + 4 * n
            pre += [f"v_permlane16_swap_b32 v{d}, v{d+2}", f"v_permlane16_swap_b32 v{d+1}, v{d+3}"]
            for x, k in ((d, k0), (d + 2, k1)):
                for h in range(2):
                    t = 228 + 2 * h
                    pre += lines(f"v_lshlrev_b32 v{t}, 16, v{x+h}\nv_and_b32 v{t+1}, 0xffff0000, v{x+h}\nv_pk_add_f32 {v(PT+4*k+2*h,2)}, {v(PT+4*k+2*h,2)}, {v(t,2)}")
        A.extend(last[:2] + weave(pre, last[2:], 2, 1))
        self.stamp(6)
        for n, (k0, k1, va, so, off) in enumerate(jobs):
            d = XR + 4 * n
            for dd, k in ((d, k0), (d + 2, k1)):
                for h in (0, 2):
                    A(f"v_pk_add_f32 {v(ACC+4*k+h,2)}, {v(ACC+4*k+h,2)}, {v(PT+4*k+h,2)}")
                A.extend(self.pack(dd, ACC + 4 * k))
            A(f"v_permlane16_swap_b32 v{d}, v{d+2}\nv_permlane16_swap_b32 v{d+1}, v{d+3}")
            A(f"buffer_store_dwordx4 {v(d,4)}, v{va}, {s(OUT_,4)}, s{so} offen offset:{off}{c.out_mod}")

    SEG4 = [("t", 1, 6), ("h", 0, 12), ("o", 1, 5), ("o", 0, 5)]
    NT4, NH4, NC4 = 6, 18, 28

    def p4seg(self, ch):
        for kind, oth, n in self.SEG4:
            if ch < n:
                return kind, oth, n, ch
            ch -= n

    def p4slots(self, role):
        g = self.p2geom(role)
        RA = len(g["a"])
        T = self.NT4
        addr = [g["a"][ch % RA] for ch in range(T)]
        order = [g["a"][(T + i) % RA] for i in range(RA)]
        halves = [b + h for b in order for h in (0, 8192)]
        addr += [halves[i % len(halves)] for i in range(self.NC4 - T)]
        first = []
        for ch, a in enumerate(addr):
            size = 16384 if ch < T else 8192
            prev = [p for p in range(ch) if addr[p] < a + size and a < addr[p] + (16384 if p < T else 8192)]
            first.append(max(prev) + 2 if prev else -1)
        return addr, first

    def p4_prep(self, role, which, ch):
        kind, oth, n, pos = self.p4seg(ch)
        cnt, base, d = (self.sPW, self.sBW, (sT2, 12)[ch & 1]) if which == "w" else (self.sPA, self.sPB, (sT3, 13)[ch & 1])
        step = 64 * 1280 if which == "w" else 8192
        o = []
        if pos == 0:
            half = 5 if kind == "o" else 12
            o += lines(f"s_mov_b32 s{cnt}, s{dict(t=18, h=sROT2, o=sROT3)[kind]}\ns_mul_i32 s{base}, s{self.sOTH if oth else self.sOWN}, {half * step}")
            if kind == "t":
                o += lines(f"s_and_b32 s{d}, s{sJ}, 1\ns_mul_i32 s{d}, s{d}, {6 * step}\ns_add_u32 s{base}, s{base}, s{d}")
            if which == "a":
                o += lines(f"s_mul_i32 s{d}, s{14 if kind == 't' else sBLK}, {O_BLK if kind == 'o' else H_BLK}\ns_add_u32 s{base}, s{base}, s{d}")
                if kind == "o":
                    o.append(f"s_add_u32 s{base}, s{base}, {O_BASE}")
        return o + lines(f"s_cmp_ge_u32 s{cnt}, {n}\ns_cselect_b32 s{d}, {n}, 0\ns_sub_u32 s{cnt}, s{cnt}, s{d}\ns_mul_i32 s{d}, s{cnt}, {step}\ns_add_u32 s{d}, s{d}, s{base}\ns_add_u32 s{cnt}, s{cnt}, 1")

    def p4_issue_w(self, role, cw, C=None, fill=()):
        A, g = self.A, self.p2geom(role)
        emit = (C.issue if C else A)
        A(f"s_add_u32 m0, s{self.sPM}, {g['w'][cw % len(g['w'])]}")
        for i in range(g["nW"]):
            tag = emit(f"buffer_load_dwordx4 v{self.P2W+i}, {s(W2_ if cw < self.NH4 else WO_,4)}, s{(sT2, 12)[cw & 1]} offen offset:{K*i} lds")
            if i == 0:
                A.extend(fill)
        return tag

    def p4_loader(self, role, pending):
        A, g, c = self.A, self.p2geom(role), self.c
        C = Counter(A, "vmcnt", 62)
        RW, nW, NC, T, NH = len(g["w"]), g["nW"], self.NC4, self.NT4, self.NH4
        starts = (T, NH, NH + 5)
        addr, first = self.p4slots(role)
        tw, ta, tags, regs = {}, {}, {}, {}
        st = dict(a=0, pa=0, pw=self.wnext)
        def prep(which):
            k = "p" + which
            if st[k] >= NC:
                return []
            st[k] += 1
            return self.p4_prep(role, which, st[k] - 1)
        def next_w():
            cw = self.wnext
            if st["pw"] == cw:
                A.extend(prep("w"))
            tw[cw] = self.p4_issue_w(role, cw, C, prep("w"))
            self.wnext += 1
        def next_a():
            ca = st["a"]
            if st["pa"] == ca:
                A.extend(prep("a"))
            A(f"s_add_u32 m0, s{15 if ca < T else self.sPN}, {addr[ca]}")
            for i in range(4 if ca < T else 2):
                ta[ca] = C.issue(f"buffer_load_dwordx4 v{self.P2L if ca < T else self.P2A}, {s(WS_,4)}, s{(sT3, 13)[ca & 1]} offen offset:{K*i}{c.ld_mod} lds")
                if i == 0:
                    A.extend(prep("a"))
            st["a"] += 1
        def where(x):
            if x == "pair":
                return self.P2F + 3, 0, 1
            kind, oth = self.p4seg(x)[:2]
            return self.P2F + 1 - oth, 256 * (kind == "o"), 4
        def poll(x):
            ad, off, _ = where(x)
            regs[x] = 32 + len(regs)
            tags[x] = C.issue(f"buffer_load_dword v{regs[x]}, v{ad}, {s(WS_,4)}, 0 offen offset:{off}{COH}")
        def confirm(x):
            ad, off, n = where(x)
            if x not in tags:
                poll(x)
            C.wait(tags[x])
            self.check(regs[x], ad, WS_, n, off)
        C.n = pending
        for cw in range(self.wnext):
            tw[cw] = max(0, pending - nW * (self.wnext - 1 - cw))
        if role == "h":
            A("s_barrier")
        stop = min(g["wpre"], self.wnext + c.gap4) if role == "h" else g["wpre"]
        while self.wnext < stop - 1:
            next_w()
        poll(0)
        while self.wnext < stop:
            next_w()
        confirm(0)
        self.trace(11)
        self.stamp(3)
        for _ in range(c.na4[role]):
            next_a()
        if role == "q" and c.touch:
            C.issue(f"buffer_load_dword v58, v42, {s(W2_,4)}, 0 offen")
            C.issue(f"buffer_load_dword v59, v43, {s(WO_,4)}, 0 offen")
        when, e, k = {}, 0, 0
        for ca in range(st["a"], NC):
            lo = max(first[ca], c.ostart[role] if ca >= NH else 0)
            if lo > e or k == 2:
                e, k = max(lo, e + 1), 0
            when[ca] = e; k += 1
            assert e < ca
        assert role == "h" or when[NH] > c.pub4 + 1
        kp = NC - c.rcv
        assert kp > T + 1 + c.snd + 1
        for ch in range(NC):
            if ch == kp:
                confirm("pair")
            C.wait(max(ta[ch], tw[ch]))
            A("s_barrier")
            self.trace(12 + ch)
            for x in starts:
                if when[x] - c.pd == ch:
                    poll(x)
            if ch == kp - c.pd:
                poll("pair")
            while st["a"] < NC and when[st["a"]] == ch:
                if st["a"] in starts:
                    if st["a"] == NH:
                        self.stamp(4)
                    confirm(st["a"])
                    if st["a"] == NH:
                        self.stamp(5)
                next_a()
            n = 0
            while self.wnext < NC and self.wnext - RW + 2 <= ch and n < 2:
                next_w(); n += 1
        self.stamp(6)

    def p4_compute(self, role):
        A, g, c = self.A, self.p2geom(role), self.c
        q = role == "q"
        N = g["N"]; NT = N // 32; NC, T, NH = self.NC4, self.NT4, self.NH4
        addr, _ = self.p4slots(role)
        vB, vO = (14, 10), (15, 13)
        ACC, AC2, FB, FW, XR, XU, PT = 16, 40, 64, 128, 176, 188, 212
        self.p2_waddr(role)
        A(f"s_and_b32 s{sT0}, s{sW}, 1\ns_lshl_b32 s{sT0}, s{sT0}, 12\nv_lshl_add_u32 v{vB[0]}, v0, 4, s{sT0}\nv_lshl_add_u32 v{vO[0]}, v0, 3, s{sT0}")
        if g["abase"][1] < LDS_BYTES:
            A(f"v_add_u32 v{vB[1]}, {g['abase'][1]}, v{vB[0]}\nv_add_u32 v{vO[1]}, {g['abase'][1]}, v{vO[0]}")
        m = len(A.lines)
        self.p2_colbytes(N)
        A(f"s_and_b32 s{sT0}, s{sW}, 1\ns_lshl1_add_u32 s{sT0}, s{sBLK}, s{sT0}\ns_mul_i32 s{sT0}, s{sT0}, {32*1280}\ns_add_u32 s{sT0}, s{sT0}, s{sCOL}")
        A(f"s_lshr_b32 s{sT1}, s{sW}, 1\ns_mul_i32 s{sT1}, s{sT1}, {32*NT}\ns_add_u32 s{sF}, s{sT0}, s{sT1}\ns_add_u32 s{sE}, s{sF}, {16*1280}")
        A(f"v_and_b32 v2, 15, v0\nv_mul_u32_u24 v2, 1280, v2\nv_lshrrev_b32 v3, 5, v0\nv_lshl_add_u32 v2, v3, 4, v2\nv_bfe_u32 v3, v0, 4, 1\nv_lshl_add_u32 v6, v3, 5, v2")
        jobs = [(NT * p, NT * p + 1, 6, sE if p else sF, 0) for p in range(2)]
        if NT == 3:
            A(f"v_mul_u32_u24 v3, {16*1280}, v3\nv_add_u32 v7, v2, v3")
            jobs.append((2, 5, 7, sF, 64))
        A(f"s_lshl3_add_u32 s{sT0}, s{sRB}, s{sJ}\ns_add_u32 s{sT0}, s{sT0}, {0 if q else 128}\ns_xor_b32 s{sT1}, s{sT0}, 1\nv_lshlrev_b32 v240, 4, v0")
        for d, t in ((sD, sT0), (sB, sT1)):
            A(f"s_lshl2_add_u32 s{d}, s{t}, s{sW}\ns_mul_i32 s{d}, s{d}, 6144\ns_add_u32 s{d}, s{d}, {PART_BASE}\ns_add_u32 s{d-1}, s{d}, 4096")
        setup = A.lines[m:]; del A.lines[m:]
        pop = lambda op, n, r, b: f"buffer_{op}_dwordx4 {v(r,4)}, v240, {s(WS_,4)}, s{b - n // 4} offen offset:{K*(n % 4)}{COH}"
        extra, heads = {0: setup}, {}
        vm = []
        def add(ch, kind, text):
            extra.setdefault(ch, []).append(text); vm.append((ch, kind))
        for n, (_, _, va, so, off) in enumerate(jobs):
            add(c.x4[role] + n, "x", f"buffer_load_dwordx4 {v(XR+4*n,4)}, v{va}, {s(X_,4)}, s{so} offen offset:{off}")
        for n in range(2 * NT):
            add(T + 1 + n // 2, "s", pop("store", n, AC2 + 4 * n, sD))
        for n in range(2 * NT):
            add(NC - c.rcv + n // 3, "r", pop("load", n, PT + 4 * n, sB))
        if q:
            assert c.pub4 <= T
            heads[c.pub4], heads[c.pub4 + 1] = self.publish("q")
        assert c.x4[role] > T + 1 + c.snd
        heads[T + 1 + c.snd], heads[T + 2 + c.snd] = self.publish(role, pairflag=True)
        unpack = []
        for n, (k0, k1, va, so, off) in enumerate(jobs):
            d = XR + 4 * n
            unpack += [f"v_permlane16_swap_b32 v{d}, v{d+2}", f"v_permlane16_swap_b32 v{d+1}, v{d+3}"]
            for x, k in ((d, k0), (d + 2, k1)):
                unpack += lines(f"v_lshlrev_b32 v{XU+4*k}, 16, v{x}\nv_and_b32 v{XU+4*k+1}, 0xffff0000, v{x}\nv_lshlrev_b32 v{XU+4*k+2}, 16, v{x+1}\nv_and_b32 v{XU+4*k+3}, 0xffff0000, v{x+1}")
        extra.setdefault(NC - c.rcv - 1, []).extend(["s_waitcnt vmcnt(0)"] + unpack)

        def mfmas(ch):
            if ch < 0:
                return []
            st = ch & 1
            return [f"{MF} {v(a+4*(NT*p+i),4)}, {v(FW+8*NT*st+4*(NT*ks+i),4)}, {v(FB+32*st+16*b+8*ks+4*p,4)}, {v(a+4*(NT*p+i),4) if ch or ks else 0}"
                    for ks in range(2) for i in range(NT) for b, a in ((0, ACC), (1, AC2))[: 2 if ch < T else 1] for p in range(2)]

        for ch in range(NC):
            st = ch & 1
            ab = int(addr[ch] >= g["abase"][1])
            ao = addr[ch] - g["abase"][ab]
            A("s_barrier\ns_waitcnt lgkmcnt(0)")
            if ch == 0:
                self.stamp(4)
            if ch == NH:
                self.stamp(5)
            A.extend(heads.get(ch, ()))
            rd = []
            for ks in range(2):
                wr = self.p2_wreads(role, ch, FW + 8 * NT * st, (ks,))
                ar = []
                for b in range(2 if ch < T else 1):
                    for p in range(2):
                        d = FB + 32 * st + 16 * b + 8 * ks + 4 * p
                        if ch >= NH:
                            ar += [f"ds_read_b64 {v(d+2*hf,2)}, v{vO[ab]} offset:{ao+2048*p+512*(2*ks+hf)}" for hf in range(2)]
                        else:
                            ar.append(f"ds_read_b128 {v(d,4)}, v{vB[ab]} offset:{ao+8192*b+2048*p+K*ks}")
                rd += ar + wr
            rd += extra.get(ch, [])
            ms = mfmas(ch - 1)
            for i, mm in enumerate(ms):
                k = max(1, -(-len(rd) // max(1, len(ms) - i - 2)))
                A(mm); A.extend(rd[:k]); rd = rd[k:]
            A.extend(rd)
        pre = ["s_waitcnt vmcnt(0)"] + [f"v_pk_add_f32 {v(XU+2*i,2)}, {v(XU+2*i,2)}, {v(PT+2*i,2)}" for i in range(4 * NT)]
        last = mfmas(NC - 1)
        A("s_waitcnt lgkmcnt(0)")
        A.extend(last[:2] + weave(pre, last[2:], 1, 1))
        self.stamp(6)
        for n, (k0, k1, va, so, off) in enumerate(jobs):
            d = XR + 4 * n
            for dd, k in ((d, k0), (d + 2, k1)):
                for h in (0, 2):
                    A(f"v_pk_add_f32 {v(ACC+4*k+h,2)}, {v(ACC+4*k+h,2)}, {v(XU+4*k+h,2)}")
                A.extend(self.pack(dd, ACC + 4 * k))
            A(f"v_permlane16_swap_b32 v{d}, v{d+2}\nv_permlane16_swap_b32 v{d+1}, v{d+3}")
            A(f"buffer_store_dwordx4 {v(d,4)}, v{va}, {s(OUT_,4)}, s{so} offen offset:{off}{c.out_mod}")

    def kernel(self, name, tag, do1, do2):
        A = self.A
        self.tag = tag
        self.entry(name, tag)
        for role in ("q", "h"):
            if role == "h":
                A.label(f"L_HH_{tag}")
            pending = 0
            if do1:
                pending = self.helper1(role)
            else:
                A("s_waitcnt lgkmcnt(0)")
                self.srds_helper2()
                self.p2_loader_setup(role)
            if do2:
                (self.p4_loader if self.c.twin else self.p3_loader if self.c.pair else self.p2_loader)(role, pending)
            self.stamp(7)
            self.stamp_out(8, 1)
            A("s_endpgm")
        for role in ("q", "h"):
            A.label(f"L_{role.upper()}C_{tag}")
            if do1:
                (self.compute_q if role == "q" else self.compute_h)()
            else:
                self.srds_compute()
            if do2 and not self.selfrun(role):
                (self.p4_compute if self.c.twin else self.p3_compute if self.c.pair else self.p2_compute)(role)
            self.stamp(7)
            self.stamp_out(8, 0)
            A("s_endpgm")
        A.label(f"L_end_{tag}")
        A("s_endpgm")

    def build(self):
        A, c = self.A, self.c
        A(open(os.path.join(os.path.dirname(os.path.abspath(__file__)), "header.txt")).read().rstrip())
        if c.split:
            A(f"; @launch kernel=phase1_kernel grid=(256,1,1) block=(512,1,1) lds={LDS_BYTES}")
            A(f"; @launch kernel=phase2_kernel grid=(256,1,1) block=(512,1,1) lds={LDS_BYTES}")
        else:
            A(f"; @launch grid=(256,1,1) block=(512,1,1) lds={LDS_BYTES}")
        A('.amdgcn_target "amdgcn-amd-amdhsa--gfx950"')
        if c.split:
            p2 = c.phase2
            c.phase2 = False
            self.kernel("phase1_kernel", "a", True, False)
            c.phase2 = p2
            self.kernel("phase2_kernel", "b", False, True)
            A(kernel_desc("phase1_kernel", 256, 256)); A(kernel_desc("phase2_kernel", 256, 256))
        else:
            self.kernel(NAME + "_kernel", "a", True, c.phase2)
            A(kernel_desc(NAME + "_kernel", 256, 256))
        return A.text()

def make(**kw):
    import asmlib
    asmlib.EXTRA.clear(); asmlib.EXTRA.update(kw.pop('extra', {}))
    return Gen(Cfg(**kw)).build()

if __name__ == "__main__":
    kw = {}
    for a_ in sys.argv[2:]:
        k, val = a_.split("=", 1)
        kw[k] = eval(val)
    open(sys.argv[1], "w").write(make(**kw))
```

```python
import sys, os
from asmlib import *

NAME = "parallel_sum__sliding_local_dilated__dense_activation_relu__prompt"
MF = "v_mfma_f32_16x16x32_bf16"

H_BLK = 24 * 8192
O_BLK = 10 * 8192
H_BASE = 0
O_BASE = 32 * H_BLK
FLAG_BASE = 16 << 20
STAT_BASE = 18 << 20
CSUM_BASE = 19 << 20
STAMP_BASE = 20 << 20
PART_BASE = 22 << 20
PACK_BASE = 28 << 20
PACK_CT = 2176 * 192
WS_BYTES = 32 << 20

X_, W1_, W2_, WO_, WS_, DBG_, FLEX_, OUT_ = 20, 24, 28, 32, 36, 40, 44, 48
sWAVE, sW, sRB, sJ, sBLK, sCOL, sROT, sCNT = 52, 53, 54, 55, 56, 57, 58, 59
sT0, sT1, sT2, sT3 = 60, 61, 62, 63
sA, sB, sC, sD, sE, sF = 64, 65, 66, 67, 68, 69
mG1, mG2, mG3, mU0 = 70, 72, 74, 76
sROT2, sROT3 = 78, 79
sG, sH, sI = 3, 80, 81
sSTAMP = 82

K = 1024
Q_SLOT, H_SLOT = 48 * K, 40 * K
Q_WH, H_WH = 15 * K, 12 * K
MISC = 157 * K
ST_RSTD = 576
CS_OFF = 1152
CTR_OFF = 2304
XFL_OFF = 2320
PRG_OFF = 2368
F_STAT, F_CSUM, F_PAIR = 8192, 10240, 16384
LDS_BYTES = 163840
SPIN_LIMIT = 20000
COH = " sc0 sc1"

DOC = """
;
; waves 0-3 run the MFMAs, waves 4-7 stream operands into LDS with buffer_load ... lds.
"""

class Cfg:
    def __init__(self, **kw):
        self.split = False
        self.stamps = False
        self.dbgstamps = False
        self.epi = False
        self.trace = False
        self.phase2 = True
        self.rot = True
        self.rot2 = True
        self.pre1 = {'q': 8, 'h': 7}
        self.pre0 = 2
        self.prio_h = 1
        self.abl = ''
        self.preq = {8: 2, 9: 4}
        self.preh = {8: 2, 9: 4}
        self.nreg0 = {"q": 10, "h": 8}
        self.warm = 0
        self.warm_c = 0
        self.pubq = 8
        self.selfq = False
        self.wide = 'h'
        self.prio_self = 1
        self.na0 = {'q': 6, 'h': 3}
        self.touch = 'q'
        self.cstat = 5
        self.pair = False
        self.twin = False
        self.ssplit = 10
        self.owntouch = False
        self.midw = 4
        self.repack = False
        self.cs4 = False
        self.fast0 = True
        self.tpack = True
        self.tfirst = False
        self.defer = True
        self.ostart = {'q': 8, 'h': 14}
        self.pub4 = 5
        self.snd = 8
        self.rcv = 5
        self.gap4 = 3
        self.na4 = {'q': 3, 'h': 2}
        self.x4 = {'q': 18, 'h': 18}
        self.nb = 6
        self.pd = 2
        self.qring = 0
        self.pk = 4
        self.pre3 = {'q': {8: 2, 9: 4}, 'h': {8: 2, 9: 4}}
        self.pub3 = 2
        self.gap3 = 3
        self.na3 = {'q': 3, 'h': 2}
        self.touch_h = 2
        self.gapw = 6
        self.nres = 4
        self.npoll = 1
        self.rotf = (7, 0, 0, 1)
        self.swap = False
        self.codepf = 7
        self.align = 5
        self.thr = {'q': 4, 'h': 4}
        self.aoff = {'q': 3, 'h': 3}
        self.age = {'q': 10, 'h': 10}
        self.e64 = False
        self.xat = {'q': 0, 'h': 2}
        self.spread = True
        self.ld_mod = COH
        self.st_mod = COH
        self.comp = False
        self.out_mod = ''
        self.stage = {'q': 0, 'h': 0}
        self.hold = False
        self.__dict__.update(kw)

def srd(A, d, b, n):
    A(f"s_mov_b32 s{d}, s{b}\ns_mov_b32 s{d+1}, s{b+1}\ns_mov_b32 s{d+2}, {n}\ns_mov_b32 s{d+3}, 0x20000")

def lines(txt):
    return [l for l in txt.split("\n") if l]

def weave(main, extra, every=2, start=0):
    out, extra = [], list(extra)
    for i, l in enumerate(main):
        out.append(l)
        if extra and i + 1 >= start and (i + 1 - start) % every == 0:
            out.append(extra.pop(0))
    return out + extra

class Gen:
    def __init__(self, cfg):
        self.c = cfg
        self.A = Asm()
        self.uid = 0

    def lab(self, p):
        self.uid += 1
        return f"L_{p}_{self.uid}"

    def estamp(self, i):
        if self.c.epi:
            self.stamp(i, True)

    def stamp(self, i, force=False):
        if self.c.epi and not force and i > 0:
            return
        if self.c.stamps:
            op = "s_memtime" if self.c.stamps == "cyc" else "s_memrealtime"
            self.A(f"{op} s[{sSTAMP+2*i}:{sSTAMP+2*i+1}]")

    def trace(self, lane):
        if self.c.trace:
            if isinstance(lane, str):
                self.A(f"s_mov_b32 m0, {lane}")
                lane = "m0"
            op = "s_memtime" if self.c.stamps == "cyc" else "s_memrealtime"
            self.A(f"{op} s[98:99]\ns_waitcnt lgkmcnt(0)\nv_writelane_b32 v30, s98, {lane}")

    def stamp_out(self, n, row):
        if not self.c.stamps:
            return
        A = self.A
        if self.c.trace and row == 1:
            l = self.lab("tr")
            A(f"s_cmp_lg_u32 s{sW}, 0\ns_cbranch_scc1 {l}\ns_lshl_b32 s{sT0}, s2, 8\ns_add_u32 s{sT0}, s{sT0}, {STAMP_BASE + (1 << 20)}\nv_lshl_add_u32 v1, v0, 2, s{sT0}")
            A(f"buffer_store_dword v30, v1, {s(WS_,4)}, 0 offen\ns_waitcnt vmcnt(0)")
            A.label(l)
        l = self.lab("st")
        A(f"s_waitcnt lgkmcnt(0)\ns_cmp_lg_u32 s{sW}, 0\ns_cbranch_scc1 {l}")
        if self.c.dbgstamps:
            if row == 0:
                A(f"s_lshr_b32 s{sT1}, s2, 7\ns_mul_i32 s{sT1}, s{sT1}, 28\nv_mov_b32 v1, s{sT1}\nv_mov_b32 v3, 0\ns_mov_b64 exec, 1")
                A(f"s_not_b32 s{sT0}, s{sSTAMP}\nv_mov_b32 v2, s{sT0}\nbuffer_atomic_umax v2, v3, {s(DBG_,4)}, 0 offen offset:4 sc1")
                for i in range(1, 8):
                    A(f"v_mov_b32 v2, s{sSTAMP+2*i}\nbuffer_atomic_umax v2, v1, {s(DBG_,4)}, 0 offen offset:{4+4*i} sc1")
                A("s_waitcnt vmcnt(0)")
            A.label(l)
            return
        A(f"s_lshl_b32 s{sT0}, s2, 7\ns_add_u32 s{sT0}, s{sT0}, {STAMP_BASE + 64*row}\nv_mov_b32 v1, s{sT0}")
        for i in range(n):
            A(f"v_mov_b32 v2, s{sSTAMP+2*i}\nbuffer_store_dword v2, v1, {s(WS_,4)}, 0 offen offset:{4*i}")
        A("s_waitcnt vmcnt(0)")
        A.label(l)

    def entry(self, name, tag):
        A, c = self.A, self.c
        A(kernel_header(name))
        A("s_cmp_ge_u32 s2, 256\ns_cbranch_scc1 L_end_" + tag)
        self.stamp(0)
        A("s_load_dwordx4 s[4:7], s[0:1], 0\ns_load_dwordx2 s[8:9], s[0:1], 16")
        A("s_load_dwordx4 s[12:15], s[0:1], 32\ns_load_dwordx4 s[16:19], s[0:1], 48\ns_load_dwordx2 s[10:11], s[0:1], 64")
        A(f"v_lshrrev_b32 v1, 6, v0\nv_and_b32 v0, 63, v0\nv_readfirstlane_b32 s{sWAVE}, v1")
        A(f"s_bfe_u32 s{sT0}, s2, 0x20001\ns_bfe_u32 s{sT1}, s2, 0x20003\ns_lshl2_add_u32 s{sRB}, s{sT0}, s{sT1}")
        A(f"s_and_b32 s{sT0}, s2, 1\ns_bfe_u32 s{sT2}, s2, 0x20005\ns_lshl2_add_u32 s{sJ}, s{sT0}, s{sT2}")
        A(f"s_lshr_b32 s{sA}, s2, 7")
        if c.rot:
            ra, rb_, rc, rd = c.rotf
            if ra >= 0:
                A(f"s_mul_i32 s{sROT}, s{sRB}, {ra}")
            elif ra == -2:
                A(f"s_and_b32 s{sROT}, s{sRB}, 1\ns_mul_i32 s{sROT}, s{sROT}, 5\ns_lshr_b32 s{sT1}, s{sRB}, 2\ns_add_u32 s{sROT}, s{sROT}, s{sT1}")
            elif ra == -3:
                A(f"s_and_b32 s{sROT}, s{sRB}, 1\ns_mul_i32 s{sROT}, s{sROT}, 5")
            elif ra == -4:
                A(f"s_and_b32 s{sROT}, s{sRB}, 3\ns_mul_i32 s{sROT}, s{sROT}, 7")
            if rb_:
                A(f"s_mul_i32 s{sT1}, s{sT2}, {rb_}\ns_add_u32 s{sROT}, s{sROT}, s{sT1}")
            if rc:
                A(f"s_and_b32 s{sT1}, s{sT2}, 1\ns_mul_i32 s{sT1}, s{sT1}, {rc}\ns_add_u32 s{sROT}, s{sROT}, s{sT1}")
            if rd:
                A(f"s_mul_i32 s{sT1}, s{sA}, {rd}\ns_add_u32 s{sROT}, s{sROT}, s{sT1}")
            A(f"s_mul_i32 s{sT1}, s{sROT}, 205\ns_lshr_b32 s{sT1}, s{sT1}, 11\ns_mul_i32 s{sT1}, s{sT1}, 10\ns_sub_u32 s{sROT}, s{sROT}, s{sT1}")
        if not c.fast0:
            self.decode2()
        A(f"s_and_b32 s{sW}, s{sWAVE}, 3")
        A(f"s_cmp_ge_u32 s{sWAVE}, 4\ns_cbranch_scc{0 if c.swap else 1} L_helper_{tag}")
        A(f"s_cmp_eq_u32 s{sA}, 0\ns_cbranch_scc1 L_QC_{tag}\ns_branch L_HC_{tag}")
        A.label(f"L_helper_{tag}")
        if c.prio_h:
            A(f"s_setprio {c.prio_h}")
        A(f"s_cmp_eq_u32 s{sA}, 0\ns_cbranch_scc0 L_HH_{tag}")

    def decode2(self):
        A = self.A
        A(f"s_and_b32 s{sT3}, s{sJ}, 1\ns_lshl1_add_u32 s{sBLK}, s{sRB}, s{sT3}\ns_lshr_b32 s{sCOL}, s{sJ}, 1\ns_and_b32 s{sT3}, s{sCOL}, 1\ns_lshr_b32 s{sT1}, s2, 7")
        A(f"s_and_b32 s{sT0}, s{sBLK}, 7\ns_lshl1_add_u32 s{sT3}, s{sT1}, s{sT3}\ns_mul_i32 s{sT1}, s{sT0}, 3\ns_lshr_b32 s{sT1}, s{sT1}, 1\ns_mul_i32 s{sROT2}, s{sT3}, 3\ns_add_u32 s{sROT2}, s{sROT2}, s{sT1}")
        A(f"s_mul_i32 s{sT0}, s{sT0}, 5\ns_lshr_b32 s{sT0}, s{sT0}, 3\ns_add_u32 s{sROT3}, s{sT0}, s{sT3}")

    def srds_helper2(self):
        A = self.A
        if self.c.fast0:
            self.decode2()
        srd(A, W2_, 14, 1536 * 1280); srd(A, WO_, 8, 640 * 1280); srd(A, WS_, 10, WS_BYTES); srd(A, DBG_, 18, 256)

    def srds_compute(self):
        A = self.A
        if self.c.fast0:
            self.decode2()
        A("s_waitcnt lgkmcnt(0)")
        srd(A, X_, 4, 2048 * 1280); srd(A, WS_, 10, WS_BYTES); srd(A, DBG_, 18, 256); srd(A, OUT_, 16, 2048 * 1280)

    def xfrag_addr(self, d0, d1, base_s, t):
        A = self.A
        A(f"v_and_b32 v{t}, 15, v0\nv_lshrrev_b32 v{d1}, 1, v{t}\nv_lshrrev_b32 v{d0}, 4, v0\nv_xor_b32 v{d0}, v{d0}, v{d1}")
        A(f"v_lshlrev_b32 v{d0}, 4, v{d0}\nv_lshl_add_u32 v{d0}, v{t}, 7, v{d0}\nv_add_u32 v{d0}, s{base_s}, v{d0}\nv_xor_b32 v{d1}, 64, v{d0}")

    def check(self, vres, vaddr, srd_, target, off=0, depth=1):
        A = self.A
        l, d = self.lab("sp"), self.lab("sd")
        A(f"v_cmp_gt_u32 vcc, {target}, v{vres}\ns_cbranch_vccz {d}\ns_mov_b32 s{sT1}, {SPIN_LIMIT}")
        if depth > 1:
            ld = lambda r: f"buffer_load_dword v{r}, v{vaddr}, {s(srd_,4)}, 0 offen offset:{off}{COH}"
            regs = [vres] + list(range(2, 1 + depth))
            e = self.lab("se")
            for r in regs[1:]:
                A(ld(r) + "\ns_nop 15\ns_nop 15")
            A.label(l)
            for i, r in enumerate(regs):
                A(ld(r) + f"\ns_waitcnt vmcnt({depth-1})\nv_cmp_gt_u32 vcc, {target}, v{regs[(i + 1) % depth]}\ns_cbranch_vccz {e}")
            A(f"s_sub_u32 s{sT1}, s{sT1}, 1\ns_cbranch_scc0 {l}")
            A.label(e)
            A.label(d)
            return depth - 1
        A.label(l)
        A(f"buffer_load_dword v{vres}, v{vaddr}, {s(srd_,4)}, 0 offen offset:{off}{COH}\ns_waitcnt vmcnt(0)\nv_cmp_gt_u32 vcc, {target}, v{vres}")
        A(f"s_cbranch_vccz {d}\ns_sub_u32 s{sT1}, s{sT1}, 1\ns_cbranch_scc0 {l}")
        A.label(d)

    def helper1(self, role):
        A, c = self.A, self.c
        q = role == "q"
        slot, wh = (Q_SLOT, Q_WH) if q else (H_SLOT, H_WH)
        xoff = 2 * wh
        wstride = 3840 if q else 3072
        vA, vB, vC, vF = 8, 11, 14, 18
        sOWa, sOWb, sOX, sSa, sSb = sA, sB, sC, sD, sE
        sMA, sMX, sF1o, sF1m, sF2o, sF2m = sF, sG, mG1, mG1 + 1, mG1 + 2, mG1 + 3
        sMF1, sMF2, sPa, sPb, sPx = mG1 + 4, mG1 + 5, mG1 + 6, mG1 + 7, sI
        nA, nB = (4, 8) if q else (3, 7)
        per = 4 if q else 3

        A("v_lshrrev_b32 v2, 3, v0\nv_mul_u32_u24 v2, 1280, v2\nv_and_b32 v3, 7, v0\nv_lshrrev_b32 v4, 4, v0\nv_xor_b32 v3, v3, v4\nv_lshl_add_u32 v6, v3, 4, v2\nv_xor_b32 v7, 64, v6")
        A(f"s_lshl_b32 s{sT0}, s{sRB}, 7\ns_lshl_b32 s{sT1}, s{sW}, 5\ns_add_u32 s{sT0}, s{sT0}, s{sT1}")
        if q:
            A(f"s_sub_u32 s{sT0}, s{sT0}, 16")
        A(f"s_mul_i32 s{sPx}, s{sT0}, 1280")
        A(f"s_mul_i32 s{sH}, s{sJ}, {160 if q else 384}\ns_movk_i32 s{sCNT}, 1120\ns_mul_i32 s{sMA}, s{sW}, {per}\ns_lshl_b32 s{sMX}, s{sW}, 12\ns_add_u32 s{sMX}, s{sMX}, {xoff}")

        def xoffs(d, i):
            A(f"s_add_u32 s{sT0}, s{sPx}, {8*1280*i}\nv_add_u32 v{d}, s{sT0}, v{6 + (i & 1)}")

        def woff(d, kb):
            A(f"s_add_u32 s{sT0}, s{sMA}, {kb}\ns_lshl_b32 s{sT0}, s{sT0}, 6\nv_add_u32 v2, s{sT0}, v0")
            if q:
                A("v_mul_u32_u24 v3, 2185, v2\nv_lshrrev_b32 v3, 16, v3\nv_mul_u32_u24 v4, 30, v3\nv_sub_u32 v2, v2, v4")
            else:
                A("v_mul_u32_u24 v3, 2731, v2\nv_lshrrev_b32 v3, 16, v3\nv_mul_u32_u24 v4, 24, v3\nv_sub_u32 v2, v2, v4\nv_and_b32 v4, 6, v3\nv_xor_b32 v2, v2, v4")
            A("v_and_b32 v4, 4, v3\nv_add_u32 v5, v3, v4\nv_bfe_u32 v4, v3, 3, 1\nv_mad_i32_i24 v5, v4, -4, v5")
            A(f"v_mul_u32_u24 v5, {wstride}, v5")
            if q:
                A(f"v_mul_u32_u24 v4, 26, v2\nv_lshrrev_b32 v4, 8, v4\nv_mad_u32_u24 v5, v4, s{sCNT}, v5")
            A(f"v_lshl_add_u32 v5, v2, 4, v5\nv_add_u32 v{d}, s{sH}, v5")

        def advance():
            A(f"s_mov_b32 s{sOWa}, s{sOWb}\ns_add_u32 s{sPa}, s{sSb}, s{sMA}")
            if q:
                A(f"s_add_u32 s{sSb}, s{sSb}, {slot}\ns_cmp_ge_u32 s{sSb}, {3*slot}\ns_cselect_b32 s{sSb}, 0, s{sSb}")
            else:
                A(f"s_sub_u32 s{sSb}, s{sSb}, {slot}\ns_cselect_b32 s{sSb}, {2*slot}, s{sSb}")
            rot()

        def rot():
            A(f"s_cmp_ge_u32 s{sROT}, 10\ns_cselect_b32 s{sT0}, 10, 0\ns_sub_u32 s{sROT}, s{sROT}, s{sT0}")
            A(f"s_mul_i32 s{sOWb}, s{sROT}, {64*wstride}\ns_lshl_b32 s{sOX}, s{sROT}, 7\ns_add_u32 s{sROT}, s{sROT}, 1")
            A(f"s_add_u32 s{sPb}, s{sSb}, s{sMA}\ns_add_u32 s{sPx}, s{sSb}, s{sMX}")
            if q:
                A(f"s_cmp_lt_u32 s{sW}, 3\ns_cselect_b32 s{sF1o}, s{sOWa}, s{sOX}\ns_cselect_b32 s{sF2o}, s{sOWb}, s{sOX}\ns_cselect_b32 s{sF1m}, s{sPa}, s{sPx}\ns_cselect_b32 s{sF2m}, s{sPb}, s{sPx}")
                A(f"s_add_u32 s{sF1m}, s{sF1m}, s{sMF1}\ns_add_u32 s{sF2m}, s{sF2m}, s{sMF2}")

        def dma(vr, srd_, so, m0s, add):
            A(f"s_add_u32 m0, s{m0s}, {add}\nbuffer_load_dwordx4 v{vr}, {s(srd_,4)}, s{so} offen lds")

        opsA = [(vA + i, W1_, sOWa, sPa, i * K) for i in range(3)]
        opF1 = (vF, FLEX_, sF1o, sF1m, 0)
        opF2 = (vF + 1, FLEX_, sF2o, sF2m, 0)
        opsC = [(vC + i, X_, sOX, sPx, i * K) for i in range(4)]
        opsB = [(vB + i, W1_, sOWb, sPb, wh + i * K) for i in range(3)]
        group = opsA + ([opF1] if q else []) + opsC + ([opF2] if q else []) + opsB

        def woven_group():
            sN1, sN2 = 12, 13
            after_a = [[f"s_mov_b32 s{sOWa}, s{sOWb}"], [f"s_add_u32 s{sPa}, s{sSb}, s{sMA}"]]
            if q:
                after_a.append(lines(f"s_add_u32 s{sSb}, s{sSb}, {slot}\ns_cmp_ge_u32 s{sSb}, {3*slot}\ns_cselect_b32 s{sSb}, 0, s{sSb}"))
            else:
                after_a.append(lines(f"s_sub_u32 s{sSb}, s{sSb}, {slot}\ns_cselect_b32 s{sSb}, {2*slot}, s{sSb}"))
            after_a.append(lines(f"s_cmp_ge_u32 s{sROT}, 10\ns_cselect_b32 s{sT0}, 10, 0\ns_sub_u32 s{sROT}, s{sROT}, s{sT0}\ns_mul_i32 s{sN1}, s{sROT}, {64*wstride}\ns_add_u32 s{sN2}, s{sSb}, s{sMA}"))
            after_c = [lines(f"s_lshl_b32 s{sOX}, s{sROT}, 7\ns_add_u32 s{sROT}, s{sROT}, 1\ns_add_u32 s{sPx}, s{sSb}, s{sMX}")]
            if q:
                after_c.append(lines(f"s_cmp_lt_u32 s{sW}, 3\ns_cselect_b32 s{sF1o}, s{sOWa}, s{sOX}\ns_cselect_b32 s{sF2o}, s{sN1}, s{sOX}\ns_cselect_b32 s{sF1m}, s{sPa}, s{sPx}\ns_cselect_b32 s{sF2m}, s{sN2}, s{sPx}"))
                after_c.append(lines(f"s_add_u32 s{sF1m}, s{sF1m}, s{sMF1}\ns_add_u32 s{sF2m}, s{sF2m}, s{sMF2}"))
            fill, out = [], []
            for n, (vr, srd_, so, m0s, add) in enumerate(group):
                if n == nA:
                    fill = after_a
                if n == len(group) - 3:
                    assert not fill
                    fill = after_c
                out.append([f"s_add_u32 m0, s{m0s}, {add}"] + (fill.pop(0) if fill else []) + [f"buffer_load_dwordx4 v{vr}, {s(srd_,4)}, s{so} offen lds"])
            assert not fill
            out[-1] += [f"s_mov_b32 s{sOWb}, s{sN1}", f"s_mov_b32 s{sPb}, s{sN2}"]
            return out
        E = woven_group()
        J = c.pre1[role]
        head, rest = sum(E[: nA + J], []), sum(E[nA + J:], [])

        if q:
            l1, l2 = self.lab("fx"), self.lab("fd")
        if c.fast0:
            xoffs(vC, 0)
            A(f"s_lshl_b32 s{sOX}, s{sROT}, 7")
            self.trace(50)
            A("s_waitcnt lgkmcnt(0)")
            srd(A, X_, 4, 2048 * 1280)
            self.trace(51)
            for i in range(4):
                A(f"s_add_u32 m0, s{sMX}, {i*K}")
                if i < 3:
                    xoffs(vC + i + 1, i + 1)
                A(f"buffer_load_dwordx4 v{vC+i}, {s(X_,4)}, s{sOX} offen lds")
        else:
            for i in range(4):
                xoffs(vC + i, i)
        if q:
            xoffs(vF, 4); xoffs(vF + 1, 5)
        woff(vB, 0)
        if not c.fast0:
            self.trace(50)
            A("s_waitcnt lgkmcnt(0)")
            srd(A, X_, 4, 2048 * 1280)
        srd(A, W1_, 6 if q else 12, 640 * wstride)
        if q:
            A(f"s_cmp_lt_u32 s{sW}, 3\ns_cselect_b32 s{FLEX_}, s6, s4\ns_cselect_b32 s{FLEX_+1}, s7, s5\ns_mov_b32 s{FLEX_+2}, {640*3840}\ns_cselect_b32 s{FLEX_+2}, s{FLEX_+2}, s{X_+2}\ns_mov_b32 s{FLEX_+3}, 0x20000")
            A(f"s_movk_i32 s{sMF1}, {3*K}\ns_cselect_b32 s{sMF1}, s{sMF1}, {4*K}\ns_movk_i32 s{sMF2}, {wh + 3*K}\ns_cselect_b32 s{sMF2}, s{sMF2}, {5*K}")
        A(f"s_mov_b32 s{sT3}, s{sMA}\ns_lshl_b32 s{sMA}, s{sMA}, 10\ns_mov_b32 s{sSb}, 0\ns_mov_b32 s{sOWa}, 0\ns_mov_b32 s{sPa}, 0")
        A(f"s_mov_b32 s100, s{sROT}")
        rot()
        A(f"s_mov_b32 s{sSa}, s{sMA}\ns_mov_b32 s{sMA}, s{sT3}")
        if not c.fast0:
            self.trace(51)
            for o in opsC:
                dma(*o)
        self.trace(52)
        for i in range(3):
            if i:
                woff(vB + i, i)
            dma(*opsB[i])
            A(f"v_add_u32 v{vA+i}, {32*wstride}, v{vB+i}")
        if q:
            A(f"s_cmp_lt_u32 s{sW}, 3\ns_cbranch_scc0 {l1}")
            woff(vF + 1, 3)
            A(f"v_add_u32 v{vF}, {32*wstride}, v{vF+1}\ns_branch {l2}")
            A.label(l1)
            dma(*opF1)
            A.label(l2)
            dma(*opF2)
        self.trace(53)
        A(f"s_mov_b32 s{sMA}, s{sSa}\ns_mov_b32 s{sSa}, s100")
        advance()
        J0 = min(J, c.pre0)
        A.extend(sum(E[: nA + J0], []))
        self.trace(54)
        self.srds_helper2()
        self.p2_loader_setup(role)
        vZ, vP, vD, vS = 23, 24, 26, 32
        ridx = 0 if q else 8
        A(f"s_lshl_b32 s{sT0}, s{sRB}, 7\ns_add_u32 s{sT0}, s{sT0}, {FLAG_BASE + F_STAT}\nv_mov_b32 v20, s{sT0}\nv_mov_b32 v{vZ}, 0\nv_mov_b32 v25, 16")
        A(f"s_lshl_b32 s{sT1}, s{sRB}, 7\ns_lshl_b32 s{sT2}, s{sW}, 5\ns_add_u32 s{sT1}, s{sT1}, s{sT2}\nv_and_b32 v3, 31, v0\nv_add_u32 v21, s{sT1}, v3")
        A(f"s_lshl_b32 s{sT2}, s{sW}, 7\ns_add_u32 s{sT2}, s{sT2}, {MISC + (64 if q else 0)}\nv_lshl_add_u32 v22, v3, 2, s{sT2}")
        A(f"v_mov_b32 v57, v20")
        if self.packed():
            A(f"v_and_b32 v2, 15, v0\nv_lshlrev_b32 v2, 7, v2\nv_add_u32 v20, {FLAG_BASE + F_STAT}, v2")
        if q:
            A(f"s_cmp_eq_u32 s{sRB}, 0\ns_cselect_b32 s{sT2}, 0, 128\ns_sub_u32 s{sT0}, s{sT0}, s{sT2}\nv_mov_b32 v4, s{sT0}")
            A(f"s_lshl_b32 s{sT1}, s{sRB}, 7\ns_sub_u32 s{sT1}, s{sT1}, 16\nv_and_b32 v2, 15, v0\nv_add_u32 v3, s{sT1}, v2")
            A(f"s_mov_b32 s{sT1}, {MISC}\nv_lshl_add_u32 v5, v2, 2, s{sT1}\nv_cmp_le_u32 vcc, 32, v0")
            A("v_cndmask_b32 v20, v20, v4, vcc\nv_cndmask_b32 v21, v21, v3, vcc\nv_cndmask_b32 v22, v22, v5, vcc")
        A(f"v_cmp_gt_i32 vcc, 0, v21\nv_lshlrev_b32 v21, 3, v21\nv_add_u32 v21, {STAT_BASE}, v21\nv_mov_b32 v3, -16\nv_cndmask_b32 v21, v21, v3, vcc")
        A(f"s_add_u32 s{sT0}, s{sJ}, {ridx}\ns_lshl_b32 s{sT1}, s{sT0}, 7\ns_add_u32 s{sT1}, s{sT1}, {FLAG_BASE + F_CSUM}\nv_mov_b32 v31, s{sT1}\nv_mov_b32 v4, 10\nv_cmp_le_u32 vcc, 48, v0")
        A(f"v_cndmask_b32 v20, v20, v31, vcc\nv_cndmask_b32 v25, v25, v4, vcc")
        A(f"s_mul_i32 s9, s{sT0}, 10240\ns_add_u32 s9, s9, {CSUM_BASE}\ns_lshl_b32 s{sT1}, s{sW}, 8\ns_add_u32 s{sT2}, s9, s{sT1}\nv_lshl_add_u32 v28, v0, 2, s{sT2}")
        if not q:
            A(f"s_cmp_eq_u32 s{sW}, 3\ns_cselect_b32 s{sT3}, {WS_BYTES}, 0\nv_add_u32 v28, s{sT3}, v28")
        A(f"s_add_u32 s{sT1}, s{sT1}, {MISC + CS_OFF}\nv_lshl_add_u32 v29, v0, 2, s{sT1}")
        if c.cs4:
            A(f"v_lshrrev_b32 v2, 4, v0\nv_and_b32 v3, 15, v0\nv_lshlrev_b32 v4, 10, v2\nv_lshl_add_u32 v4, v3, 4, v4\nv_add_u32 v28, s{sT2}, v4")
            A(f"v_add_u32 v130, 8192, v28\nv_mov_b32 v4, -16\nv_cmp_le_u32 vcc, 32, v0\nv_cndmask_b32 v130, v130, v4, vcc")
            A(f"v_lshrrev_b32 v4, 1, v2\nv_and_b32 v2, 1, v2\nv_lshl_add_u32 v2, v2, 1, v4\nv_lshl_add_u32 v2, v3, 2, v2\nv_lshl_add_u32 v29, v2, 2, s{sT1}")
        nt = 4 if q else 3
        A("v_bfe_u32 v2, v0, 2, 3\nv_lshrrev_b32 v3, 5, v0\nv_lshl_add_u32 v3, v3, 4, v2")
        A(f"v_mul_u32_u24 v3, {480 if q else 384}, v3\nv_and_b32 v4, 3, v0\nv_lshl_add_u32 v3, v4, 3, v3\ns_mul_i32 s{sT1}, s{sW}, {nt}")
        if q:
            A(f"s_lshl_b32 s{sT2}, s{sT1}, 5\nv_add_u32 v44, s{sT2}, v3")
        else:
            A("v_lshrrev_b32 v2, 1, v2")
            for t in range(3):
                A(f"s_add_u32 s{sT2}, s{sT1}, {t}\nv_xor_b32 v4, s{sT2}, v2\nv_lshl_add_u32 v{44+t}, v4, 5, v3")
        A(f"s_lshl_b32 s{sT1}, s{sT1}, 6\ns_lshl_b32 s{sT2}, s{sSa}, 10\ns_add_u32 s{sT1}, s{sT1}, s{sT2}\ns_add_u32 s{sT1}, s{sT1}, s9\nv_lshrrev_b32 v2, 4, v0\nv_lshl_add_u32 v47, v2, 4, s{sT1}")
        for r in range(4):
            A(f"v_mov_b32 v{60+r}, 0x3f803f80")
        self.trace(55)
        A(f"s_waitcnt vmcnt({J0})\ns_barrier")
        self.trace(0)
        self.stamp(1)
        A.extend(sum(E[nA + J0: nA + J], []))
        A(f"s_mov_b32 s{sCNT}, 0")
        loop, lw_, lb = (self.lab(x) for x in ("hl", "wt", "bar"))
        pre = (c.pre3[role] if c.pair else c.preq if q else c.preh) if (c.phase2 and not c.split) else {}
        special = [0, 1, 2, c.cstat, c.cstat + 1] + ([c.cstat + 2] if c.ssplit < 10 else [])
        lx = {k: self.lab("x") for k in special}
        A.label(loop)
        mark0 = len(A.lines)
        A.extend(rest + head)
        ld = self.lab("dsp")
        A(f"s_bitcmp1_b32 {sum(1 << k for k in special)}, s{sCNT}\ns_cbranch_scc1 {ld}")
        A.label(lw_)
        A(f"s_waitcnt vmcnt({J})")
        A.label(lb)
        A(f"s_add_u32 s{sCNT}, s{sCNT}, 1\ns_cmp_lt_u32 s{sCNT}, 8\ns_barrier")
        self.trace(f"s{sCNT}")
        l8 = self.lab("c8")
        A(f"s_cbranch_scc1 {loop}\ns_branch {l8}")
        if "nodma" in c.abl:
            A.lines[mark0:] = [l for l in A.lines[mark0:] if not l.startswith("buffer_load")]
        if "nobar" in c.abl:
            A.lines[mark0:] = [l for l in A.lines[mark0:] if not l.startswith("s_barrier")]
        A.label(ld)
        for k in special[1:]:
            A(f"s_cmp_eq_u32 s{sCNT}, {k}\ns_cbranch_scc1 {lx[k]}")
        for k in special:
            A.label(lx[k])
            n = 0
            if k == 0:
                l = self.lab("np")
                A(f"buffer_load_dword v{vP}, v{vZ}, {s(DBG_,4)}, 0 offen{COH}")
                A(f"s_cmp_ge_u32 s{sRB}, 10\ns_cbranch_scc1 {l}")
                for t in range(nt):
                    for st in range(2):
                        for hf in range(2):
                            ad, off = (44, 32 * t) if q else (44 + t, 0)
                            A(f"ds_read_b64_tr_b16 {v(64+8*t+4*st+2*hf,2)}, v{ad} offset:{off + wh*(1-st) + 8*(480 if q else 384)*hf}")
                A("s_waitcnt lgkmcnt(0)")
                for st in range(2):
                    for t in range(nt):
                        A(f"{MF} {v(96+4*t,4)}, {v(64+8*t+4*st,4)}, v[60:63], {v(96+4*t,4) if st else 0}")
                A("s_mov_b32 exec_lo, 0x10001\ns_mov_b32 exec_hi, 0x10001")
                for t in range(nt):
                    A(f"buffer_store_dwordx4 {v(96+4*t,4)}, v47, {s(WS_,4)}, 0 offen offset:{64*t}{COH}")
                A(f"s_mov_b64 exec, -1\ns_waitcnt vmcnt({J + 1 + nt})\ns_branch {lb}")
                A.label(l)
                n = 1
            if k == 1:
                A(f"s_waitcnt vmcnt({nA + nB})")
                self.check(vP, vZ, DBG_, 1)
                A(f"s_cmp_lg_u32 s{sW}, 0\ns_cbranch_scc1 {lw_}\nv_mov_b32 v2, 1\ns_mov_b64 exec, 1\nbuffer_atomic_add v2, v57, {s(WS_,4)}, 0 offen sc1\ns_mov_b64 exec, -1")
                n = 1
            if k == 2:
                A(f"s_cmp_ge_u32 s{sRB}, 10\ns_cselect_b32 s{sT0}, 1, s{sW}\ns_cmp_lg_u32 s{sT0}, 0\ns_cbranch_scc1 {lw_}")
                A(f"v_mov_b32 v2, 1\ns_mov_b64 exec, 1\nbuffer_atomic_add v2, v31, {s(WS_,4)}, 0 offen sc1\ns_mov_b64 exec, -1")
                n = 1
            if k == c.cstat:
                A(f"buffer_load_dword v{vP}, v20, {s(WS_,4)}, 0 offen{COH}")
                n = 1
            if k == c.cstat + 1:
                A(f"s_waitcnt vmcnt({nA + nB})")
                self.check(vP, 20, WS_, "v25")
                A(f"buffer_load_dwordx2 {v(vD,2)}, v21, {s(WS_,4)}, 0 offen{COH}")
                n = 1
            if k == c.cstat + 1 and c.cs4:
                A(f"buffer_load_dwordx4 {v(vS,4)}, v28, {s(WS_,4)}, 0 offen{COH}\ns_movk_i32 s{sT0}, 4096\nbuffer_load_dwordx4 {v(vS+4,4)}, v28, {s(WS_,4)}, s{sT0} offen{COH}")
                A(f"buffer_load_dwordx4 {v(132,4)}, v130, {s(WS_,4)}, 0 offen{COH}")
                n += 3
            elif k > c.cstat:
                for i in (range(c.ssplit) if k == c.cstat + 1 else range(c.ssplit, 10)):
                    A(f"s_movk_i32 s{sT0}, {K*i}\nbuffer_load_dword v{vS+i}, v28, {s(WS_,4)}, s{sT0} offen{COH}")
                    n += 1
            A(f"s_waitcnt vmcnt({J + n})\ns_branch {lb}")
        A.label(l8)
        A.extend(rest + sum(E[:3], []))
        if q:
            l = self.lab("nf")
            A(f"s_cmp_lt_u32 s{sW}, 3\ns_cbranch_scc0 {l}")
            A.extend(E[3])
            A.label(l)
        def stats_to_lds():
            A(f"ds_write_b32 v22, v{vD}\nds_write_b32 v22, v{vD+1} offset:{ST_RSTD}")
            if c.cs4:
                for o in (vS + 4, 132):
                    for r in range(4):
                        A(f"v_add_f32 v{vS+r}, v{vS+r}, v{o+r}")
                A(f"v_permlane32_swap_b32 v{vS}, v{vS+1}\nv_permlane32_swap_b32 v{vS+2}, v{vS+3}\nv_add_f32 v{vS}, v{vS}, v{vS+1}\nv_add_f32 v{vS+2}, v{vS+2}, v{vS+3}")
                A(f"v_permlane16_swap_b32 v{vS}, v{vS+2}\nv_add_f32 v{vS}, v{vS}, v{vS+2}")
            else:
                for i in range(1, 10):
                    A(f"v_add_f32 v{vS}, v{vS}, v{vS+i}")
            A(f"ds_write_b32 v29, v{vS}")
        bar = "" if "nobar" in c.abl else "s_barrier"
        k1 = self.p2_prefetch(role, pre.get(8, 0))
        A(f"s_waitcnt vmcnt({k1})\n{bar}")
        self.trace(9)
        stats_to_lds()
        k2 = self.p2_prefetch(role, pre.get(9, 0))
        A(f"s_waitcnt lgkmcnt(0)\n{bar}")
        self.trace(10)
        self.stamp(2)
        return k1 + k2

    def row_stats_load(self, role, base):
        A = self.A
        self.l_ns = self.lab("ns")
        l = self.lab("nl")
        A(f"s_cmp_ge_u32 s{sW}, 2\ns_cbranch_scc1 {l}")
        A(f"s_lshl4_add_u32 s{sT0}, s{sRB}, s{sJ}\ns_add_u32 s{sT0}, s{sT0}, {0 if role == 'q' else 8}\ns_lshl1_add_u32 s{sT0}, s{sT0}, s{sW}\ns_lshl_b32 s{sT0}, s{sT0}, 2")
        A(f"v_lshrrev_b32 v{base+20}, 4, v0\nv_add_u32 v{base+20}, s{sT0}, v{base+20}\nv_mul_u32_u24 v{base+21}, 1280, v{base+20}\nv_and_b32 v{base+22}, 15, v0\nv_lshl_add_u32 v{base+21}, v{base+22}, 4, v{base+21}")
        for i in range(5):
            A(f"buffer_load_dwordx4 {v(base+4*i,4)}, v{base+21}, {s(X_,4)}, 0 offen offset:{256*i}")
        A.label(l)

    def packed(self):
        c = self.c
        return c.repack and c.phase2 and not (c.split or c.pair or c.twin)

    def repack_load(self, base):
        A = self.A
        if not self.packed():
            return
        self.l_rp = self.lab("rp")
        l = self.lab("rl")
        A(f"s_xor_b32 s{sG}, s2, 255\ns_lshl1_add_u32 s{sG}, s{sG}, s{sW}\ns_sub_u32 s{sG}, s{sG}, 2\ns_cmp_ge_u32 s{sW}, 2\ns_cselect_b32 s{sG}, s{sG}, 999\ns_cmp_ge_u32 s{sG}, 408\ns_cbranch_scc1 {l}")
        A(f"s_mul_i32 s{sT0}, s{sG}, 643\ns_lshr_b32 s{sT0}, s{sT0}, 16\ns_mul_i32 s{sT1}, s{sT0}, 102\ns_sub_u32 s{sT1}, s{sG}, s{sT1}\ns_mul_i32 s{sT0}, s{sT0}, 192")
        A(f"s_cmp_lt_u32 s{sT1}, 72\ns_cselect_b32 s{FLEX_}, s14, s8\ns_cselect_b32 s{FLEX_+1}, s15, s9\ns_mov_b32 s{FLEX_+2}, {640*1280}\ns_cselect_b32 s{FLEX_+2}, {1536*1280}, s{FLEX_+2}\ns_mov_b32 s{FLEX_+3}, 0x20000")
        A(f"s_cselect_b32 s{sT2}, 0, 72\ns_sub_u32 s{sT1}, s{sT1}, s{sT2}\ns_lshl_b32 s{sT1}, s{sT1}, 8\ns_movk_i32 s{sT3}, 1280")
        t = base + 16
        for i in range(4):
            A(f"s_add_u32 s{sT2}, s{sT1}, {64*i}\nv_add_u32 v{t}, s{sT2}, v0\nv_mul_u32_u24 v{t+1}, 43691, v{t}\nv_lshrrev_b32 v{t+1}, 19, v{t+1}\nv_mul_u32_u24 v{t+2}, 12, v{t+1}\nv_sub_u32 v{t}, v{t}, v{t+2}")
            A(f"v_lshrrev_b32 v{t+2}, 1, v{t+1}\nv_and_b32 v{t+2}, 2, v{t+2}\nv_xor_b32 v{t}, v{t}, v{t+2}\nv_lshlrev_b32 v{t}, 4, v{t}\nv_mad_u32_u24 v{t}, v{t+1}, s{sT3}, v{t}")
            A(f"buffer_load_dwordx4 {v(base+4*i,4)}, v{t}, {s(FLEX_,4)}, s{sT0} offen")
        A.label(l)

    def repack_store(self, base):
        A = self.A
        if not self.packed():
            return
        A(f"s_cmp_ge_u32 s{sG}, 408\ns_cbranch_scc1 {self.l_rp}")
        A(f"s_lshl_b32 s{sT0}, s{sG}, 12\ns_add_u32 s{sT0}, s{sT0}, {PACK_BASE}\nv_lshlrev_b32 v{base+16}, 4, v0")
        for i in range(4):
            A(f"s_waitcnt vmcnt(3)\nbuffer_store_dwordx4 {v(base+4*i,4)}, v{base+16}, {s(WS_,4)}, s{sT0} offen offset:{K*i}{COH}")
        A.label(self.l_rp)

    def code_prefetch(self, tag):
        A, n = self.A, self.c.codepf
        if not n:
            return
        l = self.lab("pc")
        A(f"s_getpc_b64 s[32:33]")
        A.label(l)
        A(f"s_lshr_b32 s{sT0}, s2, 3\ns_lshl2_add_u32 s{sT0}, s{sT0}, s{sW}\ns_mul_i32 s{sT0}, s{sT0}, {64*n}\ns_min_u32 s{sT0}, s{sT0}, L_end_{tag}-L_helper_{tag}-{64*n}")
        A(f"s_sub_u32 s32, s32, {l}-L_helper_{tag}\ns_subb_u32 s33, s33, 0\ns_add_u32 s32, s32, s{sT0}\ns_addc_u32 s33, s33, 0")
        for i in range(n):
            A(f"s_load_dword s101, s[32:33], {64*i}")

    def row_stats_finish(self, base):
        A = self.A
        a, b = base + 22, base + 23
        A(f"s_cmp_ge_u32 s{sW}, 2\ns_cbranch_scc1 {self.l_ns}")
        A(f"v_mov_b32 v{a}, 0\nv_mov_b32 v{b}, 0\nv_mov_b32 v{base+21}, 0x3f803f80\nv_lshlrev_b32 v{base+20}, 3, v{base+20}\nv_add_u32 v{base+20}, {STAT_BASE}, v{base+20}")
        for i in range(5):
            A(f"s_waitcnt vmcnt({4-i})")
            for r in range(4):
                d = base + 4 * i + r
                A(f"v_dot2c_f32_bf16 v{a}, v{d}, v{base+21}\nv_dot2c_f32_bf16 v{b}, v{d}, v{d}")
        for sh in (8, 4, 2, 1):
            A(f"v_add_f32_dpp v{a}, v{a}, v{a} row_ror:{sh} row_mask:0xf bank_mask:0xf\nv_add_f32_dpp v{b}, v{b}, v{b} row_ror:{sh} row_mask:0xf bank_mask:0xf")
        A(f"s_mov_b32 s{sT1}, 0x3acccccd\ns_mov_b32 s{sT2}, 0x3727c5ac")
        A(f"v_mul_f32 v{a}, s{sT1}, v{a}\nv_mul_f32 v{base}, v{a}, v{a}\nv_fma_f32 v{b}, v{b}, s{sT1}, -v{base}\nv_max_f32 v{b}, 0, v{b}\nv_add_f32 v{b}, s{sT2}, v{b}\nv_rsq_f32 v{b}, v{b}")
        A(f"s_mov_b32 exec_lo, 0x10001\ns_mov_b32 exec_hi, 0x10001\nbuffer_store_dwordx2 {v(a,2)}, v{base+20}, {s(WS_,4)}, 0 offen{COH}\ns_mov_b64 exec, -1")
        A.label(self.l_ns)

    def init_flags(self):
        A = self.A
        l = self.lab("nf")
        A(f"s_xor_b32 s{sT0}, s{sW}, 3\ns_or_b32 s{sT0}, s2, s{sT0}\ns_cmp_lg_u32 s{sT0}, 0\ns_cbranch_scc1 {l}")
        A(f"v_lshlrev_b32 v2, 7, v0\nv_add_u32 v2, {FLAG_BASE}, v2\nv_mov_b32 v3, 0\ns_movk_i32 s{sT0}, 0x2000")
        A(f"buffer_store_dword v3, v2, {s(WS_,4)}, 0 offen{COH}\nbuffer_store_dword v3, v2, {s(WS_,4)}, s{sT0} offen{COH}")
        for k in ((2, 3, 4, 5) if (self.c.pair or self.c.twin) else ()):
            A(f"s_mov_b32 s{sT0}, {k * 0x2000}\nbuffer_store_dword v3, v2, {s(WS_,4)}, s{sT0} offen{COH}")
        A("s_waitcnt vmcnt(0)")
        A(f"v_mov_b32 v2, 1\ns_mov_b64 exec, 1\nbuffer_store_dword v2, v3, {s(DBG_,4)}, 0 offen{COH}\ns_mov_b64 exec, -1")
        A.label(l)

    def publish(self, role, younger=0, pairflag=False):
        l = self.lab("pb")
        a = lines(f"v_mov_b32 v4, {MISC + CTR_OFF}\nv_mov_b32 v5, 1\ns_waitcnt vmcnt({younger})\ns_mov_b64 exec, 1\nds_add_rtn_u32 v1, v4, v5\ns_mov_b64 exec, -1")
        a += lines(f"s_lshr_b32 s{sT0}, s{sJ}, 2\ns_lshl2_add_u32 s{sT0}, s{sRB}, s{sT0}\ns_lshl_b32 s{sT0}, s{sT0}, 7\ns_add_u32 s{sT0}, s{sT0}, {FLAG_BASE + (256 if role == 'q' else 0)}\nv_mov_b32 v4, s{sT0}")
        if pairflag:
            a = a[:6] + lines(f"s_lshl3_add_u32 s{sT0}, s{sRB}, s{sJ}\ns_lshl_b32 s{sT0}, s{sT0}, 7\ns_add_u32 s{sT0}, s{sT0}, {FLAG_BASE + F_PAIR + (16384 if self.c.twin and role == 'h' else 0)}\nv_mov_b32 v4, s{sT0}")
        b = lines(f"v_readfirstlane_b32 s{sT0}, v1\ns_cmp_lg_u32 s{sT0}, {7 if pairflag else 3}\ns_cbranch_scc1 {l}\ns_mov_b64 exec, 1\nbuffer_atomic_add v5, v4, {s(WS_,4)}, 0 offen sc1\ns_mov_b64 exec, -1\n{l}:")
        return a, b

    def publish_now(self, role):
        if self.c.split:
            return
        a, b = self.publish(role)
        self.A.extend(a + ["s_waitcnt lgkmcnt(0)"] + b)

    def mfma_loop(self, role, mfmas, frags, fixups, niter, tail):
        A = self.A
        nm = len(mfmas)
        bpos = nm // 2 - 1
        first, last = {}, {}
        for i, (_, fs) in enumerate(mfmas):
            for f in fs:
                first.setdefault(f, i); last[f] = i
        order = sorted(frags, key=lambda f: first[f])
        lastuse = {}
        for f in order:
            lastuse[frags[f][1]] = f
        seq = [(it, f) for it in range(5) for f in order]
        tail = [(max([bpos] + [last[f] for f in fs]), t) for fs, t in tail]
        occupant, ready, part = {}, {}, {}
        for it, f in seq:
            key = frags[f][0]
            e = (it - 1) * nm + bpos
            if key in occupant:
                pit, pf = occupant[key]
                e = max(e, pit * nm + last[pf])
            ready[(it, f)] = e
            occupant[key] = (it, f)
        if role == "q":
            step = lines(f"s_add_u32 s{sH}, s{sH}, 1\ns_cmp_eq_u32 s{sH}, 3\ns_cselect_b32 s{sH}, 0, s{sH}\ns_cselect_b32 s{sT0}, s{sB}, s{sA}")
        else:
            step = lines(f"s_cmp_eq_u32 s{sH}, 0\ns_cselect_b32 s{sH}, 3, s{sH}\ns_cselect_b32 s{sT0}, s{sB}, s{sA}\ns_sub_u32 s{sH}, s{sH}, 1")
        bodies, origin, pend, tags = [], [], list(seq), {}
        T = Asm(); C = Counter(T, "lgkmcnt", 14)
        upd, issued_at = [], {}
        def wide_wait(tag, g):
            if tag > C.done:
                C.wait(max([tag] + [t for t, at in issued_at.items() if at <= g - self.c.age[role]]))
        for it in range(-1, 5):
            T.lines = []
            org = []
            steps = list(step) if 0 <= it < 4 else []
            for i in range(nm):
                g = it * nm + i
                if it >= 0:
                    assert all((it, f) not in pend for f in mfmas[i][1]), "operand read not issued before use"
                    wide_wait(max(tags[(it, f)] for f in mfmas[i][1]), g)
                    T(mfmas[i][0])
                n0 = len(T.lines)
                if it >= 0:
                    for f, pre, tx in fixups:
                        for h in range(2):
                            at = first[f] - pre - 2 + h
                            if at % nm == i:
                                C.wait(tags[(it if at >= 0 else it + 1, f)]); T.extend(tx[2 * h: 2 * h + 2])
                    if i == bpos - 2:
                        T(f"s_sub_u32 s{sCNT}, s{sCNT}, 1")
                    if i == bpos:
                        xs = [(it, f) for f in frags if f[0] == "X"]
                        assert all(x not in pend for x in xs)
                        m = len(T.lines)
                        wide_wait(max(tags[x] for x in xs), g)
                        T.lines[m:] = ["s_waitcnt vmcnt(0) " + (T.lines[m].split()[1] if len(T.lines) > m else "")]
                        T("s_barrier\ns_cbranch_scc1 @tail")
                if bpos + 3 <= i and steps and len(T.lines) - n0 < 2 and all(u[0] > it for u in upd) and (it, order[-1]) not in pend:
                    T(steps.pop(0))
                nready = len(upd)
                for x in pend[:6]:
                    if ready[x] > g:
                        break
                    nready += len(frags[x[1]][2]) - part.get(x, 0)
                budget = (2 if nready >= self.c.thr[role] or (it == 4 and i > bpos) else 1) - (len(T.lines) - n0)
                while budget > 0:
                    if it == 4 and i > bpos:
                        upd = []
                        if not pend:
                            if tail and tail[0][0] <= i:
                                C.issue(tail.pop(0)[1]); budget -= 1
                                continue
                            break
                    if upd and (upd[0][0] <= it or not steps):
                        ui, ut = upd.pop(0)
                        assert it < 0 or it == 4 or (len(steps) == 0 if ui > it else len(steps) == len(step)), "address update uses the wrong slot step"
                        T(ut); budget -= 1
                        continue
                    if not (pend and ready[pend[0]] <= g):
                        break
                    x = pend[0]
                    k = part.get(x, 0)
                    tags[x] = C.issue(frags[x[1]][2][k])
                    issued_at[tags[x]] = g
                    org.append((x[0], T.lines[-1]))
                    part[x] = k + 1
                    budget -= 1
                    if k + 1 == len(frags[x[1]][2]):
                        pend.pop(0)
                        ar = frags[x[1]][1]
                        if lastuse[ar] == x[1]:
                            upd.append((x[0], f"v_add_u32 v{ar}, s{sT0}, v{ar}"))
                            org.append(upd[-1])
            assert it < 0 or not steps
            if it == -1:
                C.done = C.n
            bodies.append(list(T.lines)); origin.append(org)
        assert bodies[2] == bodies[3] == bodies[4], "loop body is not periodic"
        k = bodies[2].index("s_barrier") + 2
        assert bodies[5][:k] == bodies[2][:k], "first half of the last iteration differs from the loop body"
        last_half = bodies[5][bodies[5].index("s_barrier") + 2:] + [t for _, t in tail]
        A.extend(step)
        A.extend([l for o, l in origin[2] if o == 2])
        A("s_waitcnt lgkmcnt(0)")
        for f, pre, tx in fixups:
            for h in range(2):
                if first[f] - pre - 2 + h < 0:
                    A.extend(tx[2 * h: 2 * h + 2])
        loop = self.lab("ml")
        A(f"s_mov_b32 s{sCNT}, {niter - 1}")
        if self.c.align:
            A(f"s_branch {loop}\n.p2align {self.c.align}")
            A.extend(["s_nop 0"] * self.c.aoff[role])
        A.label(loop)
        lt = self.lab("tl")
        body = [l.replace("@tail", lt) for l in bodies[2]]
        for key, pat in (("nomfma", "v_mfma"), ("notr", "ds_read_b64_tr"), ("nox", "ds_read_b128"), ("nobar", "s_barrier"), ("nowait", "s_waitcnt"), ("noupd", "v_add_u32")):
            if key in self.c.abl:
                body = [l for l in body if not l.startswith(pat)]
        if self.c.e64:
            body = self.even_bytes(body)
        A.extend(body)
        A(f"s_branch {loop}")
        A.label(lt)
        A.extend(last_half)

    @staticmethod
    def even_bytes(body):
        out, run = [], []
        short = lambda l: l.startswith(("s_waitcnt", "s_barrier", "s_cbranch", "v_add_u32 ", "s_cmp", "s_cselect", "s_add_u32", "s_sub_u32"))
        for l in body + ["v_mfma"]:
            if l.startswith("v_mfma"):
                if sum(short(x) for x in run) % 2:
                    k = [i for i, x in enumerate(run) if x.startswith("v_add_u32 ")]
                    if k:
                        run[k[0]] = run[k[0]].replace("v_add_u32 ", "v_add_u32_e64 ")
                    else:
                        run.append("s_nop 0")
                out += run + [l]; run = []
            else:
                run.append(l)
        return out[:-1]

    @staticmethod
    def fold_t(a, cs, mr, scale=True):
        o = [f"v_pk_fma_f32 {v(a+h,2)}, {v(cs+h,2)}, {v(mr,2)}, {v(a+h,2)} op_sel_hi:[1,0,1] neg_lo:[0,1,0] neg_hi:[0,1,0]" for h in (0, 2)]
        if scale:
            o += [f"v_pk_mul_f32 {v(a+h,2)}, {v(a+h,2)}, {v(mr,2)} op_sel:[0,1] op_sel_hi:[1,1]" for h in (0, 2)]
        return o

    @staticmethod
    def fold_v(a, csreg, mean4, rstd4):
        p, sel = csreg & ~1, csreg & 1
        o = [f"v_pk_fma_f32 {v(a+h,2)}, {v(mean4+h,2)}, {v(p,2)}, {v(a+h,2)} op_sel:[0,{sel},0] op_sel_hi:[1,{sel},1] neg_lo:[0,1,0] neg_hi:[0,1,0]" for h in (0, 2)]
        return o + [f"v_pk_mul_f32 {v(a+h,2)}, {v(a+h,2)}, {v(rstd4+h,2)}" for h in (0, 2)]

    @staticmethod
    def pack(d, a):
        o = [f"v_cvt_pk_bf16_f32 v{d}, v{a}, v{a+1}", f"v_cvt_pk_bf16_f32 v{d+1}, v{a+2}, v{a+3}"]
        return o[::-1] if d == a + 2 else o

    def compute_h(self):
        A, c = self.A, self.c
        vWa, vX0, vX1 = 8, 14, 15
        XF, WF, ACC, ACS, ONE, RS = 24, 56, 80, 176, 188, 192
        self.srds_compute()
        self.row_stats_load("h", RS)
        self.repack_load(RS)
        self.code_prefetch(self.tag)
        A(f"s_lshr_b32 s{sT3}, s{sW}, 1\ns_mul_i32 s{sT3}, s{sT3}, 6")
        A("v_bfe_u32 v2, v0, 2, 3\nv_lshrrev_b32 v3, 5, v0\nv_lshl_add_u32 v3, v3, 4, v2\nv_mul_u32_u24 v3, 384, v3")
        A("v_and_b32 v4, 3, v0\nv_lshl_add_u32 v3, v4, 3, v3\nv_lshrrev_b32 v2, 1, v2")
        for t in range(4):
            A(f"s_add_u32 s{sT2}, s{sT3}, {t}\nv_xor_b32 v4, s{sT2}, v2\nv_lshl_add_u32 v{vWa+t}, v4, 5, v3")
        A(f"s_and_b32 s{sT0}, s{sW}, 1\ns_lshl_b32 s{sT0}, s{sT0}, 13\ns_add_u32 s{sT0}, s{sT0}, {2*H_WH}")
        self.xfrag_addr(vX0, vX1, sT0, 2)
        for i in range(96):
            A(f"v_mov_b32 v{ACC+i}, 0")
        A(f"v_lshrrev_b32 v2, 4, v0\ns_lshr_b32 s{sT2}, s{sW}, 1\ns_mul_i32 s{sT1}, s{sT2}, 384\ns_add_u32 s{sT1}, s{sT1}, {MISC + CS_OFF}\nv_lshl_add_u32 v16, v2, 4, s{sT1}")
        A(f"v_and_b32 v2, 15, v0\ns_and_b32 s{sT0}, s{sW}, 1\ns_lshl_b32 s{sT1}, s{sT0}, 8\ns_add_u32 s{sT1}, s{sT1}, {MISC}\nv_lshl_add_u32 v17, v2, 2, s{sT1}")
        A(f"v_lshlrev_b32 v18, 4, v0\nv_add_u32 v19, 4096, v18")
        A(f"s_lshl1_add_u32 s{sT0}, s{sRB}, s{sT0}\ns_mul_i32 s{sT0}, s{sT0}, {H_BLK}")
        A(f"s_mul_i32 s{sT1}, s{sJ}, 6\ns_mul_i32 s{sT2}, s{sT2}, 3\ns_add_u32 s{sT1}, s{sT1}, s{sT2}")
        for pr, d in enumerate([sC, sD, sE]):
            A(f"s_add_u32 s{sT2}, s{sT1}, {pr}\ns_lshr_b32 s{sT3}, s{sT2}, 1\ns_lshl_b32 s{sT3}, s{sT3}, 13\ns_and_b32 s{sT2}, s{sT2}, 1\ns_lshl_b32 s{sT2}, s{sT2}, 10")
            A(f"s_add_u32 s{d}, s{sT0}, s{sT3}\ns_add_u32 s{d}, s{d}, s{sT2}")
        A(f"v_mov_b32 v2, {MISC + CTR_OFF}\nv_mov_b32 v3, 0\nds_write_b32 v2, v3")
        self.row_stats_finish(RS)
        self.repack_store(RS)
        A(f"s_mov_b32 s{sA}, {-H_SLOT}\ns_mov_b32 s{sB}, {2*H_SLOT}\ns_mov_b32 s{sH}, 0")
        A("s_waitcnt lgkmcnt(0)\ns_barrier")
        self.stamp(1)
        mf, fr = [], {}
        for st in range(2):
            xa = vX1 if st else vX0
            for i in range(4):
                fr[("X", st, i)] = (("X", st, i), xa, [f"ds_read_b128 {v(XF+16*st+4*i,4)}, v{xa} offset:{2048*i}"])
            for t in range(6):
                fr[("W", st, t)] = (("W", t), vWa + t % 4, [f"ds_read_b64_tr_b16 {v(WF+4*t+2*hf,2)}, v{vWa+t%4} offset:{H_WH*(1-st)+8*384*hf+128*(t//4)}" for hf in range(2)])
                for i in range(4):
                    a = v(ACC + 4 * (6 * i + t), 4)
                    mf.append((f"{MF} {a}, {v(WF+4*t,4)}, {v(XF+16*st+4*i,4)}, {a}", [("W", st, t), ("X", st, i)]))
        MR, CS = 216, 176
        tail = [([], f"ds_read2_b32 {v(MR+2*i,2)}, v17 offset0:{16*i} offset1:{16*i+144}") for i in range(4)]
        tail += [([], f"ds_read_b128 {v(CS+4*t,4)}, v16 offset:{64*t}") for t in range(6)]
        self.mfma_loop("h", mf, fr, [], 10, tail)
        self.stamp(2)
        A("s_waitcnt lgkmcnt(0)")
        st_mod = "" if c.split else c.st_mod
        for pr in range(3):
            for i in range(4):
                o = 224 + 4 * ((4 * pr + i) % 6)
                for tt in range(2):
                    t = 2 * pr + tt
                    a = ACC + 4 * (6 * i + t)
                    A.extend(self.fold_t(a, CS + 4 * t, MR + 2 * i, scale=not c.defer) + self.pack(o + 2 * tt, a))
                for r in range(4):
                    A(f"v_pk_max_i16 v{o+r}, v{o+r}, 0")
                A(f"buffer_store_dwordx4 {v(o,4)}, v{19 if i >= 2 else 18}, {s(WS_,4)}, s{[sC,sD,sE][pr]} offen offset:{2048*(i&1)}{st_mod}")
        self.stamp(3)
        if self.resident("h"):
            self.p2_waddr("h")
            A("s_barrier")
            for ch in range(c.nres):
                A.extend(self.p2_wreads("h", ch, self.RES + self.p2geom("h")["N"] // 4 * ch))
        self.publish_now("h")
        if (c.pair or c.twin) and c.phase2:
            A("s_barrier")
        if self.resident("h"):
            A("s_barrier")

    def compute_q(self):
        A, c = self.A, self.c
        vW, vX0, vX1, vH0, vH1 = 1, 2, 3, 4, 5
        BC, BP, AC, AP, ONE, vT = 8, 12, 20, 22, 28, 29
        XF, WF, AQ, AK, AV, AH = 36, 60, 120, 160, 200, 240
        RS = 60
        so = [8, 9, 12, 13, 14]
        self.srds_compute()
        self.row_stats_load("q", RS)
        self.repack_load(RS)
        self.code_prefetch(self.tag)
        self.init_flags()
        A(f"v_lshrrev_b32 v6, 4, v0\nv_and_b32 v7, 15, v0\nv_cmp_le_u32 {s(mG1,2)}, 1, v6\nv_cmp_le_u32 {s(mG2,2)}, 2, v6\nv_cmp_le_u32 {s(mG3,2)}, 3, v6")
        A(f"s_or_b32 s{sT3}, s{sRB}, s{sW}\ns_cmp_eq_u32 s{sT3}, 0\ns_cselect_b64 {s(sC,2)}, 0, -1")
        A(f"v_mov_b32 v40, 0xf149f2ca\nv_mov_b32 v41, 0\nv_mov_b32 v42, 0xffff\nv_mov_b32 v43, 0xffff0000")
        for k in range(6):
            A(f"v_mov_b32 v{AC+k}, 0")
        for r in range(4):
            A(f"v_lshl_add_u32 v44, v6, 2, {r}\nv_sub_u32 v45, v7, v44\nv_and_b32 v46, 0x80000001, v45\nv_cmp_eq_u32 vcc, 0, v46")
            A(f"v_cndmask_b32 v{BC+r}, v40, v41, vcc\nv_cndmask_b32 v47, v41, v{42+(r&1)}, vcc\nv_or_b32 v{AC+(r>>1)}, v{AC+(r>>1)}, v47")
            A(f"v_cmp_eq_u32 vcc, 0x80000000, v46")
            A(f"v_cndmask_b32 v{BP+4+r}, v40, v41, vcc\nv_cndmask_b32 v47, v41, v{42+(r&1)}, vcc\nv_or_b32 v{AP+2+(r>>1)}, v{AP+2+(r>>1)}, v47")
            A(f"s_and_b64 vcc, vcc, {s(sC,2)}")
            A(f"v_cndmask_b32 v{BP+r}, v40, v41, vcc\nv_cndmask_b32 v47, v41, v{42+(r&1)}, vcc\nv_or_b32 v{AP+(r>>1)}, v{AP+(r>>1)}, v47")
        A(f"v_mov_b32 v{ONE}, 0x3f803f80")
        A(f"s_lshl_b32 s{sT0}, s{sW}, 7\ns_add_u32 s{sT0}, s{sT0}, {MISC + 64}\ns_mov_b32 s{sT1}, {MISC}\ns_mov_b32 s{sT2}, {MISC + CS_OFF}")
        A(f"v_lshl_add_u32 v{vT}, v7, 2, s{sT0}\nv_lshl_add_u32 v{vT+1}, v7, 2, s{sT1}\nv_lshl_add_u32 v{vT+2}, v6, 4, s{sT0}\nv_lshl_add_u32 v{vT+3}, v6, 4, s{sT1}")
        A(f"v_lshl_add_u32 v{vT+4}, v6, 4, s{sT2}\nv_lshl_add_u32 v{vT+5}, v7, 2, s{sT2}")
        A(f"s_mul_i32 s{sT0}, s{sW}, 5120\ns_add_u32 s{sT0}, s{sT0}, {15*K}\nv_lshl_add_u32 v26, v0, 4, s{sT0}\nv_lshl_add_u32 v35, v0, 3, s{sT0}\nv_lshlrev_b32 v27, 3, v0")
        A(f"s_lshr_b32 s{sT0}, s{sW}, 1\ns_lshl1_add_u32 s{sT0}, s{sRB}, s{sT0}\ns_mul_i32 s{sT0}, s{sT0}, {O_BLK}\ns_and_b32 s{sT1}, s{sW}, 1\ns_lshl_b32 s{sT1}, s{sT1}, 12")
        A(f"s_add_u32 s{sT0}, s{sT0}, s{sT1}\ns_add_u32 s{sT0}, s{sT0}, {O_BASE}\ns_mul_i32 s{sT1}, s{sJ}, 5")
        for t in range(5):
            A(f"s_add_u32 s{sT2}, s{sT1}, {t}\ns_lshr_b32 s{sT3}, s{sT2}, 2\ns_lshl_b32 s{sT3}, s{sT3}, 13\ns_and_b32 s{sT2}, s{sT2}, 3\ns_lshl_b32 s{sT2}, s{sT2}, 9")
            A(f"s_add_u32 s{so[t]}, s{sT0}, s{sT3}\ns_add_u32 s{so[t]}, s{so[t]}, s{sT2}")
        A(f"v_bfe_u32 v6, v0, 2, 3\nv_lshrrev_b32 v7, 5, v0\nv_lshl_add_u32 v6, v7, 4, v6\nv_mul_u32_u24 v6, 480, v6\nv_and_b32 v7, 3, v0\nv_lshl_add_u32 v{vW}, v7, 3, v6")
        A(f"s_lshl_b32 s{sT0}, s{sW}, 12\ns_add_u32 s{sT0}, s{sT0}, {2*Q_WH + 2048}")
        self.xfrag_addr(vX0, vX1, sT0, 6)
        A(f"s_mov_b32 s{sT0}, {2*Q_WH}")
        self.xfrag_addr(vH0, vH1, sT0, 6)
        for i in range(AQ, 256):
            A(f"v_mov_b32 v{i}, 0")
        A(f"v_lshlrev_b32 v6, 2, v0\nv_add_u32 v6, {MISC + CTR_OFF}, v6\nv_mov_b32 v7, 0\nds_write_b32 v6, v7")
        self.row_stats_finish(RS)
        self.repack_store(RS)
        A(f"s_mov_b32 s{sA}, {Q_SLOT}\ns_mov_b32 s{sB}, {-2*Q_SLOT}\ns_mov_b32 s{sH}, 0")
        A("s_waitcnt lgkmcnt(0)\ns_barrier")
        self.stamp(1)
        lw = [self.lab("qw") for _ in range(4)]
        le1 = self.lab("e1")
        A(f"s_cmp_eq_u32 s{sW}, 1\ns_cbranch_scc1 {lw[1]}\ns_cmp_eq_u32 s{sW}, 2\ns_cbranch_scc1 {lw[2]}\ns_cmp_eq_u32 s{sW}, 3\ns_cbranch_scc1 {lw[3]}")
        accq = lambda t, p: (AQ + 20 * p + 4 * t) if t < 5 else (AK + 20 * p + 4 * (t - 5)) if t < 10 else (AV + 8 * (t - 10) + 4 * p)
        halo = [[t for t in range(5, 15) if (t - 5) % 4 == w] for w in range(4)]
        MR, CSV, CSK, CSQ = 36, 42, 60, 80
        VMM, VMR = (100, 104, 48), (108, 112, 52)
        XB = 15 * K
        tail = [([], f"ds_read2_b32 {v(MR,2)}, v{vT} offset0:0 offset1:144"), ([], f"ds_read2_b32 {v(MR+2,2)}, v{vT} offset0:16 offset1:160"),
                ([], f"ds_read2_b32 {v(MR+4,2)}, v{vT+1} offset0:0 offset1:144")]
        tail += [([], f"ds_read_b32 v{CSV+t}, v{vT+5} offset:{64*(10+t)}") for t in range(5)]
        tail += [([("W", 1, t)], f"ds_read_b128 {v(CSK+4*t,4)}, v{vT+4} offset:{64*(5+t)}") for t in range(5)]
        tail += [([("W", 1, 5 + t)], f"ds_read_b128 {v(CSQ+4*t,4)}, v{vT+4} offset:{64*t}") for t in range(5)]
        for i in range(3):
            ad, off = (vT + 2, 64 * i) if i < 2 else (vT + 3, 0)
            for reg, o2 in ((VMM[i], 0), (VMR[i], ST_RSTD)):
                tail.append(([("W", 1, (reg - WF) // 4 if reg >= WF else 14)], f"ds_read_b128 {v(reg,4)}, v{ad} offset:{off + o2}"))
        tail[18:] = sorted(tail[18:], key=lambda x: x[0][0][2])
        for w in range(4):
            A.label(lw[w])
            mf, fr, fix = [], {}, []
            for st in range(2):
                for i in range(3):
                    xa = [vH0, vH1][st] if i == 2 else [vX0, vX1][st]
                    fr[("X", st, i)] = (("X", st, i), xa, [f"ds_read_b128 {v(XF+12*st+4*i,4)}, v{xa} offset:{2048*i if i < 2 else 0}"])
                for t in range(15):
                    fr[("W", st, t)] = (("W", t), vW, [f"ds_read_b64_tr_b16 {v(WF+4*t+2*hf,2)}, v{vW} offset:{Q_WH*(1-st)+8*480*hf+32*t}" for hf in range(2)])
                    for i in [0, 1] + ([2] if t in halo[w] else []):
                        a = v(accq(t, i) if i < 2 else AH + 4 * halo[w].index(t), 4)
                        wf, xf = v(WF + 4 * t, 4), v(XF + 12 * st + 4 * i, 4)
                        ops = f"{wf}, {xf}" if t < 10 else f"{xf}, {wf}"
                        mf.append((f"{MF} {a}, {ops}, {a}", [("W", st, t), ("X", st, i)]))
            self.mfma_loop("q", mf, fr, fix, 10, tail)
            if w < 3:
                A(f"s_branch {le1}")
        A.label(le1)
        self.stamp(2); self.estamp(1)
        A(f"v_lshlrev_b32 v7, 3, v0\nv_add_u32 v6, {XB}, v7\nv_add_u32 v7, v6, v7\ns_waitcnt lgkmcnt(6)")
        self.estamp(2)
        KC = lambda p: AK + 10 * p
        KP = AK + 20
        foldk = lambda p, t: self.fold_t(AK + 20 * p + 4 * t, CSK + 4 * t, MR + 2 * p) + self.pack(KC(p) + 2 * t, AK + 20 * p + 4 * t)
        def foldv(p, t):
            a = AV + 8 * t + 4 * p
            return self.fold_v(a, CSV + t, VMM[p], VMR[p]) + self.pack(AV + 8 * t + 4 + 2 * p, a)
        for t in range(5):
            A.extend(foldk(0, t))
        wr = {}
        wr["k"] = [f"ds_write_b128 v26, {v(KC(1),4)} offset:5120", f"ds_write_b128 v26, {v(KC(1)+4,4)} offset:6144", f"ds_write_b64 v35, {v(KC(1)+8,2)} offset:7168"]
        lh = [self.lab("hw") for _ in range(5)]
        for t in range(5):
            A.extend(foldk(1, t))
        if c.phase2 and not c.split and c.xat["q"] == -2:
            setup, _, xl = self.p2_out("q", 192, early=True)
            A.extend(setup + xl)
        A(f"s_waitcnt lgkmcnt(0)\ns_cmp_eq_u32 s{sW}, 1\ns_cbranch_scc1 {lh[1]}\ns_cmp_eq_u32 s{sW}, 2\ns_cbranch_scc1 {lh[2]}\ns_cmp_eq_u32 s{sW}, 3\ns_cbranch_scc1 {lh[3]}")
        for w in range(4):
            A.label(lh[w])
            blocks = []
            for t in halo[w]:
                a = AH + 4 * halo[w].index(t)
                if 5 <= t < 10:
                    k = t - 5
                    blocks.append(self.fold_t(a, CSK + 4 * k, MR + 4) + self.pack(a, a) +
                                  [f"ds_write_b64 v7, {v(a,2)} offset:{K*(k>>1)+8*(k&1)}" if k < 4 else f"ds_write_b64 v6, {v(a,2)} offset:2048"])
                elif t >= 10:
                    k = t - 10
                    blocks.append(self.fold_v(a, CSV + k, VMM[2], VMR[2]) + self.pack(a, a) + [f"ds_write_b64 v6, {v(a,2)} offset:{2560+512*k}"])
            for t in range(5):
                blocks.append(foldv(1, t) + ([f"ds_write_b64 v35, {v(AV+8*t+6,2)} offset:{5120+2560+512*t}"] if w < 3 else []))
            seq = sum(blocks, [])
            if c.spread:
                wv = [l for l in seq if l.startswith("ds_write")][: len(halo[w])]
                seq = [l for l in seq if not l.startswith("ds_write")]
                n0 = 6 * len(halo[w])
                A.extend(weave(seq[:n0], wr["k"][:1] if w < 3 else [], 6, 1))
                A.extend(weave(seq[n0:], (wr["k"][1:] if w < 3 else []) + wv, 6, 1))
            else:
                A.extend(weave(seq, wr["k"] if w < 3 else [], 14, 1))
            if w < 3:
                A(f"s_branch {lh[4]}")
        A.label(lh[4])
        fv0 = sum((foldv(0, t) for t in range(5)), [])
        if c.spread:
            fv0 = weave(fv0, [f"ds_write_b64 v35, {v(AV+8*t+6,2)} offset:{5120+2560+512*t}" for t in range(5)], 6, 1)
        A.extend(fv0)
        A(f"s_mov_b32 s{sT0}, 0x3ea52b5c\nv_mul_f32 v{MR+1}, s{sT0}, v{MR+1}\nv_mul_f32 v{MR+3}, s{sT0}, v{MR+3}")
        QH = lambda p, h: 42 + 16 * p + 4 * h
        masks = [None, mG1, mG2, mG3]
        def foldq(p):
            o = []
            for t in range(5):
                a = AQ + 20 * p + 4 * t
                d = QH(p, 0) if t == 0 else (QH(p, 3) + 2 if t == 4 else a)
                o += self.fold_t(a, CSQ + 4 * t, MR + 2 * p, scale=False) + self.pack(d, a)
                if 1 <= t <= 3:
                    for r in range(2):
                        o += [f"v_cndmask_b32 v{QH(p,t)+r}, 0, v{a+r}, {s(masks[t],2)}", f"v_cndmask_b32 v{QH(p,t-1)+2+r}, v{a+r}, 0, {s(masks[t],2)}"]
            return o
        A(f"v_mov_b32 v1, {MISC + XFL_OFF}\nv_mov_b32 v2, 1\nv_mov_b32 v3, 4\ns_lshl_b32 s{sT0}, s{sW}, 2\nv_add_u32 v4, s{sT0}, v1")
        fq = foldq(1)
        k = len(fq) // 2 if c.spread else 0
        A.extend(fq[:k])
        A(f"s_waitcnt lgkmcnt(0)\ns_mov_b64 exec, 1\nds_add_u32 v1, v2\nds_write_b32 v4, v3 offset:4\ns_mov_b64 exec, -1")
        A.extend(fq[k:])
        self.estamp(3)
        A("ds_read_b32 v5, v4")
        SP = lambda p, h: (140 + 8 * h if h < 2 else 240 + 8 * (h - 2)) if p else 74 + 8 * h
        MX, MRS, ONE4 = 106, 114, 116
        def qk(p):
            prev = KC(0) if p else KP
            return [f"{MF} {v(SP(p,h)+4,4)}, {v(KC(p)+2*h,4)}, {v(QH(p,h),4)}, {v(BC,4)}" for h in range(4)] + \
                   [f"{MF} {v(SP(p,h),4)}, {v(prev+2*h,4)}, {v(QH(p,h),4)}, {v(BP+4*p,4)}" for h in range(4)]
        def rowmax(p):
            o, m = [], MX + 4 * p
            for h in range(4):
                b = SP(p, h)
                o += [f"v_max_f32 v{b+4+r}, v{b+r}, v{b+4+r}" for r in range(4)]
                o += [f"v_max3_f32 v{m+h}, v{b+4}, v{b+5}, v{b+6}", f"v_max_f32 v{m+h}, v{m+h}, v{b+7}"]
            o += lines(f"v_permlane32_swap_b32 v{m}, v{m+1}\nv_permlane32_swap_b32 v{m+2}, v{m+3}\nv_max_f32 v{m}, v{m}, v{m+1}\nv_max_f32 v{m+2}, v{m+2}, v{m+3}")
            o += lines(f"v_permlane16_swap_b32 v{m}, v{m+2}\nv_max_f32 v{m}, v{m}, v{m+2}\nv_mul_f32 v{m}, v{m}, v{MR+2*p+1}\nv_mov_b32 v{m+2}, v{m}\nv_permlane16_swap_b32 v{m}, v{m+2}")
            o += lines(f"v_mov_b32 v{m+1}, v{m}\nv_mov_b32 v{m+3}, v{m+2}\nv_permlane32_swap_b32 v{m}, v{m+1}\nv_permlane32_swap_b32 v{m+2}, v{m+3}")
            return o
        def probs(p):
            o = []
            for h in range(4):
                b, m = SP(p, h), MX + 4 * p + h
                o += [f"v_pk_fma_f32 {v(b+4+r,2)}, {v(b+4+r,2)}, {v(MR+2*p,2)}, {v(m & ~1,2)} op_sel:[0,1,{m&1}] op_sel_hi:[1,1,{m&1}] neg_lo:[0,0,1] neg_hi:[0,0,1]" for r in (0, 2)]
                o += [f"v_exp_f32 v{b+4+r}, v{b+4+r}" for r in range(4)]
            for h in range(4):
                b = SP(p, h)
                o += self.pack(b + 4, b + 4)
                o += lines(f"v_and_b32 v{b}, v{AP+2*p}, v{b+4}\nv_and_b32 v{b+1}, v{AP+2*p+1}, v{b+5}\nv_and_b32 v{b+2}, v{AC}, v{b+4}\nv_and_b32 v{b+3}, v{AC+1}, v{b+5}")
            return o
        OT = {}
        pool = {1: list(range(42, 74, 4)), 0: list(range(160, 192, 4))}
        def pv(p):
            o = [f"{MF} {v(SP(p,h)+4,4)}, {v(ONE4,4)}, {v(SP(p,h),4)}, 0" for h in range(4)]
            for t in range(5):
                for h in ([t - 1] if t >= 1 else []) + ([t] if t <= 3 else []):
                    OT[(p, t, h)] = pool[p].pop(0)
                    o.append(f"{MF} {v(OT[(p,t,h)],4)}, {v(AV+8*t+2+2*p,4)}, {v(SP(p,h),4)}, 0")
            return o
        st_mod = "" if c.split else c.st_mod
        def final(p):
            m0 = MX + 4 * p
            o = [f"v_rcp_f32 v{m0+h}, v{SP(p,h)+4}" for h in range(4)]
            for t in range(5):
                if 1 <= t <= 3:
                    a, b2 = OT[(p, t, t - 1)], OT[(p, t, t)]
                    o += [f"v_cndmask_b32 v{a+r}, v{a+r}, v{b2+r}, {s(masks[t],2)}" for r in range(4)]
                    o.append(f"v_cndmask_b32 v{b2}, v{m0+t-1}, v{m0+t}, {s(masks[t],2)}")
                    m = b2
                else:
                    a, m = OT[(p, t, min(t, 3))], m0 + min(t, 3)
                o += [f"v_pk_mul_f32 {v(a+r,2)}, {v(a+r,2)}, {v(m & ~1,2)} op_sel:[0,{m&1}] op_sel_hi:[1,{m&1}]" for r in (0, 2)]
                o += self.pack(a, a)
                o.append(f"buffer_store_dwordx2 {v(a,2)}, v27, {s(WS_,4)}, s{so[t]} offen offset:{2048*p}{st_mod}")
            return o
        A.extend(weave(foldq(0), qk(1), 3, 1))
        lx, ly = self.lab("xs"), self.lab("xd")
        A(f"s_waitcnt lgkmcnt(0)\nv_cmp_gt_u32 vcc, 4, v5\ns_cbranch_vccz {ly}\ns_mov_b32 s{sT1}, {SPIN_LIMIT}")
        A.label(lx)
        A(f"ds_read_b32 v5, v4\ns_waitcnt lgkmcnt(0)\nv_cmp_gt_u32 vcc, 4, v5\ns_cbranch_vccz {ly}\ns_sub_u32 s{sT1}, s{sT1}, 1\ns_cbranch_scc0 {lx}")
        A.label(ly)
        self.estamp(4)
        A(f"ds_read_b128 {v(KP,4)}, v26\nds_read_b128 {v(KP+4,4)}, v26 offset:1024\nds_read_b64 {v(KP+8,2)}, v35 offset:2048")
        for t in range(5):
            A(f"ds_read_b64 {v(AV+8*t+2,2)}, v35 offset:{2560+512*t}")
        A.extend([f"v_mov_b32 v{ONE4+r}, v{ONE}" for r in range(4)] + rowmax(1))
        self.estamp(5)
        A("s_waitcnt lgkmcnt(0)")
        A.extend(weave(probs(1), qk(0), 3, 1))
        A.extend(weave(rowmax(0) + probs(0), pv(1), 3, 2))
        self.estamp(6)
        A.extend(weave(final(1), pv(0), 3, 2))
        A.extend(final(0))
        self.stamp(3); self.estamp(7)
        if not (c.phase2 and c.pubq) or self.selfrun("q"):
            self.publish_now("q")

    def p2geom(self, role):
        wide = self.c.wide == role
        kb = lambda *x: [i * K for i in x]
        if self.c.twin and role == "q":
            return dict(N=64, nW=2, w=kb(148, 64, 72, 80, 128, 136, 88, 32), wbase=kb(32, 128), a=kb(112, 48, 96, 0, 16), abase=kb(0, 96), wpre=7)
        if self.c.twin:
            return dict(N=96, nW=3, w=kb(144, 132, 120, 108, 96, 84, 72), wbase=kb(72, 120), a=kb(48, 32, 16, 0), abase=kb(0, 160), wpre=7)
        if role == "q" and not wide:
            return dict(N=64, nW=2, w=kb(64, 72, 80, 88, 112, 120, 128, 136), wbase=kb(64, 112), a=kb(144, 48, 56, 96, 104, 40), abase=kb(40, 96))
        if role == "q":
            return dict(N=96, nW=3, w=kb(144, 84, 132, 120, 108, 96), wbase=kb(84, 120), a=kb(76, 68, 60, 52, 44, 36), abase=kb(36, 160))
        if wide:
            return dict(N=96, nW=3, w=kb(144, 132, 120, 108, 96, 84, 72, 60), wbase=kb(60, 108), a=kb(52, 44, 36, 28, 20, 12), abase=kb(12, 160))
        return dict(N=64, nW=2, w=kb(144, 136, 128, 120, 112, 104, 96, 88, 80, 72), wbase=kb(72, 112), a=kb(64, 56, 48, 40, 32, 24, 16), abase=kb(16, 160))

    P2W, P2A, P2F, P2L, STG = 48, 51, 52, 56, 64
    sPW, sPA, sPM, sPN, sPB, sBW, sOWN, sOTH = 4, 5, 6, 7, 8, 11, 16, 17
    SEG = {0: (12, 1), 12: (12, 0), 24: (5, 1), 29: (5, 0)}

    RES = 160
    s1280 = 999

    def resident(self, role):
        c = self.c
        return 0 if (c.pair or c.twin) else c.nres if (role == "h" and c.phase2 and not c.split) else 0

    def p2_waddr(self, role):
        A, g = self.A, self.p2geom(role)
        N = g["N"]; NT = N // 32; vWa = 8
        A(f"v_lshrrev_b32 v3, 4, v0\nv_bfe_u32 v2, v0, 2, 2\nv_lshl_add_u32 v2, v3, 2, v2\nv_mul_u32_u24 v4, {2*N}, v2\nv_and_b32 v5, 3, v0\nv_lshl_add_u32 v4, v5, 3, v4")
        A("v_bfe_u32 v2, v2, 1, 2" if N == 64 else "v_and_b32 v2, 1, v3")
        A(f"s_lshr_b32 s{sT0}, s{sW}, 1\ns_mul_i32 s{sT0}, s{sT0}, {NT}")
        for i in range(NT):
            A(f"s_add_u32 s{sT1}, s{sT0}, {i}\nv_xor_b32 v3, s{sT1}, v2\nv_lshl_add_u32 v3, v3, 5, v4\nv_add_u32 v{vWa+i}, {g['wbase'][0]}, v3\nv_add_u32 v{vWa+3+i}, {g['wbase'][1]}, v3")

    def p2_wreads(self, role, ch, base, ks_list=(0, 1)):
        g = self.p2geom(role)
        N = g["N"]; NT = N // 32
        wb = 1 if g["w"][ch % len(g['w'])] >= g["wbase"][1] else 0
        wo = g["w"][ch % len(g['w'])] - g["wbase"][wb]
        return [f"ds_read_b64_tr_b16 {v(base+4*(NT*ks+i)+2*hf,2)}, v{8+3*wb+i} offset:{wo+(32*ks+16*hf)*2*N}"
                for ks in ks_list for i in range(NT) for hf in range(2)]

    def p2_colbytes(self, N):
        if N == 64:
            self.A(f"s_lshl_b32 s{sCOL}, s{sCOL}, 7\ns_add_u32 s{sCOL}, s{sCOL}, 768")
        else:
            self.A(f"s_mul_i32 s{sCOL}, s{sCOL}, 192")

    def p2_loader_setup(self, role):
        A, g = self.A, self.p2geom(role)
        self.wnext = 0
        if not self.c.phase2:
            return
        if self.c.pair:
            return self.p3_loader_setup(role)
        self.p2_colbytes(g["N"])
        if g["N"] == 64:
            A(f"v_lshrrev_b32 v2, 3, v0\nv_and_b32 v3, 6, v2\nv_and_b32 v4, 7, v0\nv_xor_b32 v3, v3, v4\nv_mul_u32_u24 v2, 1280, v2\nv_lshl_add_u32 v2, v3, 4, v2")
            A(f"s_mul_i32 s{sT0}, s{sW}, {16*1280}\ns_add_u32 s{sT0}, s{sT0}, s{sCOL}\nv_add_u32 v{self.P2W}, s{sT0}, v2\nv_add_u32 v{self.P2W+1}, {8*1280-K}, v{self.P2W}")
        elif self.packed():
            A(f"s_mul_i32 s{sT0}, s{sCOL}, 2176\ns_mul_i32 s{sT1}, s{sW}, 3072\ns_add_u32 s{sT0}, s{sT0}, s{sT1}\ns_add_u32 s{sT0}, s{sT0}, {PACK_BASE}\nv_lshl_add_u32 v{self.P2W}, v0, 4, s{sT0}")
        else:
            for i in range(3):
                A(f"s_mul_i32 s{sT0}, s{sW}, 192\ns_add_u32 s{sT0}, s{sT0}, {64*i}\nv_add_u32 v2, s{sT0}, v0")
                A("v_mul_u32_u24 v3, 5462, v2\nv_lshrrev_b32 v3, 16, v3\nv_mul_u32_u24 v4, 12, v3\nv_sub_u32 v2, v2, v4")
                A("v_lshrrev_b32 v4, 1, v3\nv_and_b32 v4, 2, v4\nv_xor_b32 v2, v2, v4\nv_mul_u32_u24 v3, 1280, v3\nv_lshl_add_u32 v2, v2, 4, v3")
                A(f"s_sub_u32 s{sT0}, s{sCOL}, {K*i}\nv_add_u32 v{self.P2W+i}, s{sT0}, v2")
        A(f"s_lshl_b32 s{self.sPN}, s{sW}, 11\nv_lshl_add_u32 v{self.P2A}, v0, 4, s{self.sPN}")
        if self.selfrun(role):
            srd(A, OUT_, 16, 2048 * 1280)
        A(f"s_lshr_b32 s{self.sOWN}, s{sJ}, 2\ns_xor_b32 s{self.sOTH}, s{self.sOWN}, 1\ns_lshl_b32 s{sT0}, s{sRB}, 9\ns_add_u32 s{sT0}, s{sT0}, {FLAG_BASE}")
        A(f"s_lshl_b32 s{sT1}, s{self.sOTH}, 7\ns_add_u32 s{sT1}, s{sT1}, s{sT0}\nv_mov_b32 v{self.P2F}, s{sT1}\nv_xor_b32 v{self.P2F+1}, 128, v{self.P2F}")
        A(f"s_mul_i32 s{self.sPM}, s{sW}, {K*g['nW']}")
        if self.c.twin:
            A(f"s_and_b32 s{sT0}, s{sW}, 1\ns_lshl_b32 s{sT0}, s{sT0}, 12\nv_lshl_add_u32 v{self.P2L}, v0, 4, s{sT0}\ns_lshr_b32 s{sT0}, s{sW}, 1\ns_xor_b32 s14, s{sBLK}, s{sT0}\ns_lshl_b32 s15, s{sW}, 12")
            A(f"s_bfe_u32 s{sT0}, s{sJ}, 0x10001\ns_add_u32 s{sT0}, s{sT0}, s{sRB}\ns_add_u32 s{sT0}, s{sT0}, {0 if role == 'q' else 2}\ns_and_b32 s{sT0}, s{sT0}, 3\ns_mul_i32 s18, s{sT0}, 3\ns_lshr_b32 s18, s18, 1")
            A(f"s_xor_b32 s{sT0}, s{sJ}, 1\ns_lshl3_add_u32 s{sT0}, s{sRB}, s{sT0}\ns_lshl_b32 s{sT0}, s{sT0}, 7\ns_add_u32 s{sT0}, s{sT0}, {FLAG_BASE + F_PAIR + (0 if role == 'q' else 16384)}\nv_mov_b32 v{self.P2F+3}, s{sT0}")
        if self.c.touch and self.packed():
            A(f"s_bfe_u32 s{sT0}, s2, 0x40003\ns_lshl2_add_u32 s{sT0}, s{sT0}, s{sW}\nv_lshrrev_b32 v2, 1, v0\nv_and_b32 v3, 1, v0\nv_lshlrev_b32 v3, 7, v3\ns_movk_i32 s{sT3}, 1280")
            A(f"v_min_u32 v4, 11, v2\nv_min_u32 v2, 9, v2\nv_mad_u32_u24 v4, v4, s{sT3}, v3\nv_mad_u32_u24 v2, v2, s{sT3}, v3")
            A(f"s_mul_i32 s{sT1}, s{self.sOWN}, {768*1280 + 256}\ns_mul_i32 s{sT2}, s{sT0}, {12*1280}\ns_add_u32 s{sT1}, s{sT1}, s{sT2}\ns_add_u32 s{sT1}, s{sT1}, 768\nv_add_u32 v42, s{sT1}, v4")
            A(f"s_lshl_b32 s{sT1}, s{self.sOWN}, 8\ns_mul_i32 s{sT2}, s{sT0}, {10*1280}\ns_add_u32 s{sT1}, s{sT1}, s{sT2}\ns_add_u32 s{sT1}, s{sT1}, 768\nv_add_u32 v43, s{sT1}, v2")
            A(f"s_and_b32 s{sT1}, s{sT0}, 1\ns_lshl1_add_u32 s{sT1}, s{self.sOWN}, s{sT1}\ns_mul_i32 s{sT1}, s{sT1}, {PACK_CT}\ns_add_u32 s{sT1}, s{sT1}, {PACK_BASE}\ns_lshr_b32 s{sT0}, s{sT0}, 1")
            A(f"v_min_u32 v2, 35, v0\nv_lshlrev_b32 v2, 7, v2\ns_mul_i32 s{sT2}, s{sT0}, {36*128}\ns_mul_i32 s{sT3}, s{self.sOWN}, {768*192}\ns_add_u32 s{sT2}, s{sT2}, s{sT3}\ns_add_u32 s{sT2}, s{sT2}, s{sT1}\nv_add_u32 v128, s{sT2}, v2")
            A(f"v_min_u32 v2, 29, v0\nv_lshlrev_b32 v2, 7, v2\ns_mul_i32 s{sT2}, s{sT0}, {30*128}\ns_add_u32 s{sT2}, s{sT2}, s{sT1}\ns_add_u32 s{sT2}, s{sT2}, {1536*192}\nv_add_u32 v129, s{sT2}, v2")
        elif self.c.touch and not self.c.split:
            A(f"s_bfe_u32 s{sT0}, s2, 0x40003\ns_lshl2_add_u32 s{sT0}, s{sT0}, s{sW}\nv_mul_u32_u24 v2, 52, v0\nv_lshrrev_b32 v2, 8, v2\nv_mul_u32_u24 v3, 5, v2\nv_sub_u32 v3, v0, v3")
            A(f"s_lshl_b32 s{sT1}, s{self.sOWN}, 7\ns_sub_u32 s{sT1}, 384, s{sT1}\nv_mov_b32 v4, s{sT1}\nv_cmp_le_u32 vcc, 3, v3\nv_cndmask_b32 v4, 0, v4, vcc\nv_lshl_add_u32 v3, v3, 7, v4")
            A(f"v_min_u32 v4, 11, v2\nv_min_u32 v2, 9, v2\nv_mad_u32_u24 v4, v4, s{self.s1280}, v3\nv_mad_u32_u24 v2, v2, s{self.s1280}, v3".replace(f"s{self.s1280}", f"s{sT3}").replace("v_min_u32 v4, 11", f"s_movk_i32 s{sT3}, 1280\nv_min_u32 v4, 11"))
            A(f"s_mul_i32 s{sT1}, s{self.sOWN}, {768*1280 + 384}\ns_mul_i32 s{sT2}, s{sT0}, {12*1280}\ns_add_u32 s{sT1}, s{sT1}, s{sT2}\nv_add_u32 v42, s{sT1}, v4")
            A(f"s_mul_i32 s{sT1}, s{self.sOWN}, 384\ns_mul_i32 s{sT2}, s{sT0}, {10*1280}\ns_add_u32 s{sT1}, s{sT1}, s{sT2}\nv_add_u32 v43, s{sT1}, v2")

    def p2_prep_w(self, cw, role):
        lim, d = (12 if cw < 24 else 5), (sT2, 12)[cw & 1]
        pk = self.packed() and role == self.c.wide
        o = []
        if cw in self.SEG:
            o += lines(f"s_mov_b32 s{self.sPW}, s{sROT2 if cw < 24 else sROT3}\ns_mul_i32 s{self.sBW}, s{self.sOTH if self.SEG[cw][1] else self.sOWN}, {lim}")
            if pk and cw >= 24:
                o.append(f"s_add_u32 s{self.sBW}, s{self.sBW}, 24")
        return o + lines(f"s_cmp_ge_u32 s{self.sPW}, {lim}\ns_cselect_b32 s{d}, {lim}, 0\ns_sub_u32 s{self.sPW}, s{self.sPW}, s{d}\ns_add_u32 s{d}, s{self.sPW}, s{self.sBW}\ns_mul_i32 s{d}, s{d}, {12288 if pk else 64*1280}\ns_add_u32 s{self.sPW}, s{self.sPW}, 1")

    def p2_issue_w(self, role, cw, C=None, fill=()):
        A, g = self.A, self.p2geom(role)
        emit = (C.issue if C else A)
        A(f"s_add_u32 m0, s{self.sPM}, {g['w'][cw % len(g['w'])]}")
        for i in range(g["nW"]):
            if self.packed() and role == self.c.wide:
                tag = emit(f"buffer_load_dwordx4 v{self.P2W}, {s(WS_,4)}, s{(sT2, 12)[cw & 1]} offen offset:{K*i}{COH} lds")
            else:
                tag = emit(f"buffer_load_dwordx4 v{self.P2W+i}, {s(W2_ if cw < 24 else WO_,4)}, s{(sT2, 12)[cw & 1]} offen offset:{K*i} lds")
            if i == 0:
                A.extend(fill)
        return tag

    def p2_prep_a(self, ca):
        lim, d = (12 if ca < 24 else 5), (sT3, 13)[ca & 1]
        o = []
        if ca in self.SEG:
            o += lines(f"s_mov_b32 s{self.sPA}, s{sROT2 if ca < 24 else sROT3}\ns_mul_i32 s{self.sPB}, s{sBLK}, {H_BLK if ca < 24 else O_BLK}\ns_mul_i32 s{d}, s{self.sOTH if self.SEG[ca][1] else self.sOWN}, {8192*lim}")
            o += lines(f"s_add_u32 s{self.sPB}, s{self.sPB}, s{d}\ns_add_u32 s{self.sPB}, s{self.sPB}, {H_BASE if ca < 24 else O_BASE}")
        return o + lines(f"s_cmp_ge_u32 s{self.sPA}, {lim}\ns_cselect_b32 s{d}, {lim}, 0\ns_sub_u32 s{self.sPA}, s{self.sPA}, s{d}\ns_lshl_b32 s{d}, s{self.sPA}, 13\ns_add_u32 s{d}, s{d}, s{self.sPB}\ns_add_u32 s{self.sPA}, s{self.sPA}, 1")

    def p2_issue_a(self, role, ca, C, set_m0=True, fill=()):
        A, g = self.A, self.p2geom(role)
        if set_m0:
            A(f"s_add_u32 m0, s{self.sPN}, {g['a'][ca % len(g['a'])]}")
        mod = "" if self.c.split else self.c.ld_mod
        for i in range(2):
            tag = C.issue(f"buffer_load_dwordx4 v{self.P2A}, {s(WS_,4)}, s{(sT3, 13)[ca & 1]} offen offset:{K*i}{mod} lds")
            if i == 0:
                A.extend(fill)
        return tag

    def p2_prefetch(self, role, upto):
        k = 0
        while self.wnext < upto:
            if self.c.twin:
                self.A.extend(self.p4_prep(role, "w", self.wnext))
                self.p4_issue_w(role, self.wnext)
            elif self.c.pair:
                self.A.extend(self.p3_prep(role, "w", self.wnext))
                self.p3_issue_w(role, self.wnext)
            else:
                self.A.extend(self.p2_prep_w(self.wnext, role))
                self.p2_issue_w(role, self.wnext)
            self.wnext += 1
            k += 3 if self.c.pair else self.p2geom(role)["nW"]
        return k

    def p2_loader(self, role, pending):
        A, g, c = self.A, self.p2geom(role), self.c
        A("; phase 2")
        C = Counter(A, "vmcnt", 62)
        RW, RA, nW, NR = len(g["w"]), len(g["a"]), g["nW"], self.resident(role)
        tw, ta, later = {}, {}, []
        vR = self.P2F + 2
        def next_w():
            A.extend(self.p2_prep_w(self.wnext, role))
            tw[self.wnext] = self.p2_issue_w(role, self.wnext, C)
            self.wnext += 1
        def one_a(ca):
            A.extend(self.p2_prep_a(ca)); ta[ca] = self.p2_issue_a(role, ca, C)
        def poll(seg):
            return C.issue(f"buffer_load_dword v{vR}, v{self.P2F + 1 - self.SEG[seg][1]}, {s(WS_,4)}, 0 offen offset:{256 * (seg >= 24)}{COH}")
        def confirm(seg, tag):
            C.wait(tag)
            self.check(vR, self.P2F + 1 - self.SEG[seg][1], WS_, 4, 256 * (seg >= 24))
        C.n = pending
        for cw in range(self.wnext):
            tw[cw] = max(0, pending - nW * (self.wnext - 1 - cw))
        if c.split:
            next_w()
            for ca in range(RA):
                one_a(ca)
            while self.wnext < RW:
                next_w()
        else:
            if NR:
                assert self.wnext >= NR
                C.wait(tw[NR - 1])
                A("s_barrier")
                for _ in range(min(c.midw, RW - self.wnext)):
                    next_w()
                A("s_barrier")
            if role == "h" and c.owntouch:
                A(f"s_lshr_b32 s{sT0}, s{sW}, 1\ns_lshl1_add_u32 s{sT0}, s{sRB}, s{sT0}\ns_mul_i32 s{sT0}, s{sT0}, {H_BLK}\ns_mul_i32 s{sT1}, s{sJ}, {3*8192}\ns_add_u32 s{sT0}, s{sT0}, s{sT1}")
                A(f"s_and_b32 s{sT1}, s{sW}, 1\ns_mul_i32 s{sT1}, s{sT1}, {96*128}\ns_add_u32 s{sT0}, s{sT0}, s{sT1}\nv_lshlrev_b32 v2, 7, v0\nv_and_b32 v3, 31, v0\nv_lshlrev_b32 v3, 7, v3\ns_add_u32 s{sT1}, s{sT0}, 8192")
                own = [f"buffer_load_dword v58, v2, {s(WS_,4)}, s{sT0} offen{COH}", f"buffer_load_dword v59, v3, {s(WS_,4)}, s{sT1} offen{COH}"]
                if c.owntouch == 1:
                    for o in own:
                        C.issue(o)
            if role == "q" and c.touch and c.tfirst:
                C.issue(f"buffer_load_dword v58, v42, {s(W2_,4)}, 0 offen")
                C.issue(f"buffer_load_dword v59, v43, {s(WO_,4)}, 0 offen")
            stop = min(RW + NR, self.wnext + c.gapw) if role == "h" else RW
            while self.wnext < stop - 2:
                next_w()
            pollt = poll(0)
            while self.wnext < stop:
                next_w()
            confirm(0, pollt)
            self.trace(11)
            self.stamp(3)
            for ca in range(c.na0[role]):
                one_a(ca)
            if role == "h" and c.owntouch == 2:
                A(f"s_lshr_b32 s{sT0}, s{sW}, 1\ns_lshl1_add_u32 s{sT0}, s{sRB}, s{sT0}\ns_mul_i32 s{sT0}, s{sT0}, {H_BLK}\ns_mul_i32 s{sT1}, s{sJ}, {3*8192}\ns_add_u32 s{sT0}, s{sT0}, s{sT1}")
                A(f"s_and_b32 s{sT1}, s{sW}, 1\ns_mul_i32 s{sT1}, s{sT1}, {96*128}\ns_add_u32 s{sT0}, s{sT0}, s{sT1}\ns_add_u32 s{sT1}, s{sT0}, 8192")
                for o in own:
                    C.issue(o)
            later = [lambda ca=ca: one_a(ca) for ca in range(c.na0[role], RA)] + [next_w] * (RW + NR - self.wnext)
            if role == "q" and c.touch and not c.tfirst:
                C.issue(f"buffer_load_dword v58, v42, {s(W2_,4)}, 0 offen")
                if c.touch == "q":
                    C.issue(f"buffer_load_dword v59, v43, {s(WO_,4)}, 0 offen")
                if self.packed() and c.tpack:
                    C.issue(f"buffer_load_dword v58, v128, {s(WS_,4)}, 0 offen{COH}")
                    C.issue(f"buffer_load_dword v59, v129, {s(WS_,4)}, 0 offen{COH}")
        want_a = lambda ch: ch >= 2 and ch - 2 + RA < 34
        want_w = lambda ch: ch >= 2 + NR and ch - 2 + RW < 34
        state = dict(pollt=None)

        def epoch(ch, set_m0):
            ca, cw = ch - 2 + RA, ch - 2 + RW
            for _ in range(-(-len(later) // (2 - ch)) if later else 0):
                later.pop(0)()
            if ca in (12, 24, 29) and not c.split:
                if ca == 24:
                    self.stamp(4)
                confirm(ca, state["pollt"])
                if ca == 24:
                    self.stamp(5)
            if ca + 2 in (12, 24, 29) and not c.split:
                state["pollt"] = poll(ca + 2)
            pa = self.p2_prep_a(ca + 1) if want_a(ch + 1) else []
            pw = self.p2_prep_w(cw + 1, role) if want_w(ch + 1) else []
            if want_a(ch):
                ta[ca] = self.p2_issue_a(role, ca, C, set_m0, pa); pa = []
            if want_w(ch):
                tw[cw] = self.p2_issue_w(role, cw, C, pw); pw = []
            A.extend(pa + pw)

        if self.selfrun(role):
            self.p2_compute(role, (C, ta, tw, epoch))
            return
        for ch in range(34):
            if want_a(ch):
                A(f"s_add_u32 m0, s{self.sPN}, {g['a'][(ch - 2 + RA) % RA]}")
            C.wait(max(ta[ch], tw[ch]))
            A("s_barrier")
            self.trace(12 + ch)
            epoch(ch, c.trace)
        self.stamp(6)

    def selfrun(self, role):
        c = self.c
        return role == "q" and c.selfq and c.phase2 and not c.split

    def p2_out(self, role, XR, own=None, early=False):
        A, g = self.A, self.p2geom(role)
        NT = g["N"] // 32
        va, vb, t0, t1 = (190, 7, 191, 192) if early else (6, 7, 2, 3)
        m = len(A.lines)
        if not own:
            self.p2_colbytes(g["N"])
        A(f"s_and_b32 s{sT0}, s{sW}, 1\ns_lshl1_add_u32 s{sT0}, s{sBLK}, s{sT0}\ns_mul_i32 s{sT0}, s{sT0}, {32*1280}\ns_add_u32 s{sT0}, s{sT0}, s{sCOL}")
        A(f"s_lshr_b32 s{sT1}, s{sW}, 1\ns_mul_i32 s{sT1}, s{sT1}, {32*NT}\ns_add_u32 s{sF}, s{sT0}, s{sT1}\ns_add_u32 s{sE}, s{sF}, {16*1280}")
        A(f"v_and_b32 v{t0}, 15, v0\nv_mul_u32_u24 v{t0}, 1280, v{t0}\nv_lshrrev_b32 v{t1}, 5, v0\nv_lshl_add_u32 v{t0}, v{t1}, 4, v{t0}\nv_bfe_u32 v{t1}, v0, 4, 1\nv_lshl_add_u32 v{va}, v{t1}, 5, v{t0}")
        jobs = [(NT * p, NT * p + 1, va, sE if p else sF, 0) for p in range(2)]
        if NT == 3:
            A(f"v_mul_u32_u24 v{t1}, {16*1280}, v{t1}\nv_add_u32 v{vb}, v{t0}, v{t1}")
            jobs.append((2, 5, vb, sF, 64))
        setup = A.lines[m:]; del A.lines[m:]
        return setup, jobs, [f"buffer_load_dwordx4 {v(XR+4*n,4)}, v{a}, {s(X_,4)}, s{so} offen offset:{off}" for n, (_, _, a, so, off) in enumerate(jobs)]

    def p2_compute(self, role, own=None):
        A, g, c = self.A, self.p2geom(role), self.c
        N = g["N"]; NT = N // 32; RB = 2 * N
        vB, vO = (14, 10), (15, 13)
        NR = self.resident(role)
        ACC, FB, FW, XR = (64, 88, 120, 168) if own else (16, 40, 72, 120)
        A("; phase 2")
        xat = c.xat[role]
        if xat == -2 and not c.split:
            XR = 192
        setup, jobs, xl = self.p2_out(role, XR, own)
        A.extend([l for l in setup if l.startswith("v_") or xat != -2 or c.split])
        if xat < 0:
            if xat == -1 or c.split:
                A.extend(xl)
            xl = []
        if not NR:
            self.p2_waddr(role)
        A(f"s_and_b32 s{sT0}, s{sW}, 1\ns_lshl_b32 s{sT0}, s{sT0}, 12\ns_add_u32 s{sT0}, s{sT0}, {g['abase'][0]}\nv_lshl_add_u32 v{vB[0]}, v0, 4, s{sT0}\nv_lshl_add_u32 v{vO[0]}, v0, 3, s{sT0}")
        if g["abase"][1] < LDS_BYTES:
            A(f"v_add_u32 v{vB[1]}, {g['abase'][1]-g['abase'][0]}, v{vB[0]}\nv_add_u32 v{vO[1]}, {g['abase'][1]-g['abase'][0]}, v{vO[0]}")

        def mfmas(ch):
            out = []
            if ch < 0:
                return out
            st = ch & 1
            fw = self.RES + 8 * NT * ch if ch < NR else FW + 8 * NT * st
            for ks in range(2):
                for i in range(NT):
                    for p in range(2):
                        a = v(ACC + 4 * (NT * p + i), 4)
                        out.append(f"{MF} {a}, {v(fw+4*(NT*ks+i),4)}, {v(FB+16*st+8*ks+4*p,4)}, {a if ch or ks else 0}")
            return out

        def chunk(ch, extra=(), head=()):
            st, opart = ch & 1, ch >= 24
            aa = g["a"][ch % len(g["a"])]
            ab = 1 if aa >= g["abase"][1] else 0
            ao = aa - g["abase"][ab]
            ld = []
            if own:
                C, ta, tw, epoch = own
                l, d = self.lab("ps"), self.lab("pd")
                A(f"s_waitcnt lgkmcnt(0)\nv_cmp_gt_u32 vcc, {ch + 1}, v{vPG+2}\nv_add_u32 v{vPG+3}, 1, v{vPG+3}\ns_mov_b32 s{sT1}, {SPIN_LIMIT}\ns_cbranch_vccz {d}")
                A.label(l)
                A(f"ds_read_b32 v{vPG+2}, v{vPG+1}\ns_waitcnt lgkmcnt(0)\nv_cmp_gt_u32 vcc, {ch + 1}, v{vPG+2}\ns_cbranch_vccz {d}\ns_sub_u32 s{sT1}, s{sT1}, 1\ns_cbranch_scc0 {l}")
                A.label(d)
                self.trace(12 + ch)
                if ch < 33:
                    C.wait(max(ta[ch + 1], tw[ch + 1]))
                    A(f"ds_write_b32 v{vPG}, v{vPG+3}")
                m = len(A.lines)
                epoch(ch, True)
                ld = A.lines[m:]; del A.lines[m:]
            else:
                A("s_barrier\ns_waitcnt lgkmcnt(0)")
            if ch == 0:
                self.stamp(4 if not own else 6)
            A.extend(head)
            rd = []
            for ks in range(2):
                for p in range(2):
                    d = FB + 16 * st + 8 * ks + 4 * p
                    if opart:
                        rd += [f"ds_read_b64 {v(d+2*hf,2)}, v{vO[ab]} offset:{ao+2048*p+512*(2*ks+hf)}" for hf in range(2)]
                    else:
                        rd.append(f"ds_read_b128 {v(d,4)}, v{vB[ab]} offset:{ao+2048*p+K*ks}")
                if ch >= NR:
                    rd += self.p2_wreads(role, ch, FW + 8 * NT * st, (ks,))
            rd += list(extra)
            ms = mfmas(ch - 1)
            if own and 'selfskipm' in c.abl:
                ms = ['s_nop 0'] * len(ms)
            if own and 'selfskipr' in c.abl:
                rd = list(extra)
            if own:
                nrd = len(rd) - len(extra)
                if ch < 33:
                    rd.insert(nrd, f"ds_read_b32 v{vPG+2}, v{vPG+1}")
                rd += ld
            per = max(2, -(-len(rd) // max(1, len(ms))))
            solid = any(x.endswith(":") for x in rd)
            for i, m in enumerate(ms):
                A(m)
                k = min(per, len(rd) - len(ld)) if solid else per
                A.extend(rd[:k]); rd = rd[k:]
            A.extend(rd)

        vPG = 16
        if own:
            A(f"s_lshl_b32 s{sT0}, s{sW}, 2\ns_add_u32 s{sT0}, s{sT0}, {MISC + PRG_OFF}\nv_mov_b32 v{vPG}, s{sT0}\nv_and_b32 v{vPG+1}, 3, v0\nv_lshlrev_b32 v{vPG+1}, 2, v{vPG+1}\nv_add_u32 v{vPG+1}, {MISC + PRG_OFF}, v{vPG+1}")
            A(f"v_mov_b32 v{vPG+3}, 1")
            own[0].wait(max(own[1][0], own[2][0]))
            A(f"ds_write_b32 v{vPG}, v{vPG+3}\nds_read_b32 v{vPG+2}, v{vPG+1}")
        heads = {}
        if role == "q" and c.pubq and not c.split and not own:
            heads[c.pubq], heads[c.pubq + 1] = self.publish("q", (2 if xat == -1 else len(xl)) if xat + len(xl) <= c.pubq else 0)
        assert role == "h" or xat + len(xl) <= c.pubq or xat > c.pubq
        RS = 132
        rs = []
        if c.defer:
            rs = lines(f"s_and_b32 s{sT0}, s{sBLK}, 1\ns_and_b32 s{sT1}, s{sW}, 1\ns_lshl1_add_u32 s{sT0}, s{sT0}, s{sT1}\ns_lshl_b32 s{sT0}, s{sT0}, 7\ns_add_u32 s{sT0}, s{sT0}, {MISC + ST_RSTD + (64 if role == 'q' else 0)}")
            rs += lines(f"v_and_b32 v2, 15, v0\nv_lshl_add_u32 v2, v2, 2, s{sT0}\nds_read_b32 v{RS}, v2\nds_read_b32 v{RS+2}, v2 offset:64")
        for ch in range(24):
            chunk(ch, (xl[ch - xat: ch - xat + 1] if ch >= xat >= 0 else []) + (rs if ch == 20 else []), heads.get(ch, ()))
        if not own:
            self.stamp(5)
        XU = 136
        unpack = [] if own else ["s_waitcnt vmcnt(0)"]
        for n, (k0, k1, va, so, off) in enumerate(jobs):
            d = XR + 4 * n
            unpack += [f"v_permlane16_swap_b32 v{d}, v{d+2}", f"v_permlane16_swap_b32 v{d+1}, v{d+3}"]
            for x, k in ((d, k0), (d + 2, k1)):
                unpack += lines(f"v_lshlrev_b32 v{XU+4*k}, 16, v{x}\nv_and_b32 v{XU+4*k+1}, 0xffff0000, v{x}\nv_lshlrev_b32 v{XU+4*k+2}, 16, v{x+1}\nv_and_b32 v{XU+4*k+3}, 0xffff0000, v{x+1}")
        if c.defer:
            for p in range(2):
                for i in range(2 * NT):
                    heads.setdefault(25, []).append(f"v_pk_mul_f32 {v(ACC+4*NT*p+2*i,2)}, {v(ACC+4*NT*p+2*i,2)}, {v(RS+2*p,2)} op_sel_hi:[1,0]")
        for ch in range(24, 34):
            n = -(-len(unpack) // (30 - ch)) if unpack else 0
            chunk(ch, unpack[:n], heads.get(ch, ())); unpack = unpack[n:]
        A("s_waitcnt lgkmcnt(0)")
        A.extend(mfmas(33))
        if not own:
            self.stamp(6)
        O = FB
        for n, (k0, k1, va, so, off) in enumerate(jobs):
            d = O + 4 * n
            for dd, k in ((d, k0), (d + 2, k1)):
                for h in (0, 2):
                    A(f"v_pk_add_f32 {v(ACC+4*k+h,2)}, {v(ACC+4*k+h,2)}, {v(XU+4*k+h,2)}")
                A.extend(self.pack(dd, ACC + 4 * k))
            A(f"v_permlane16_swap_b32 v{d}, v{d+2}\nv_permlane16_swap_b32 v{d+1}, v{d+3}")
            A(f"buffer_store_dwordx4 {v(d,4)}, v{va}, {s(OUT_,4)}, s{so} offen offset:{off}{c.out_mod}")

    def p3geom(self, role):
        kb = lambda *x: [i * K for i in x]
        nb = self.c.nb
        if role == "q" and self.c.qring:
            return dict(w=kb(147, 64, 74, 84, 127, 137, 32, 22, 12), wbase=kb(12, 74, 127), a=kb(111, 48, 95), abase=kb(48, 95), wpre=6,
                        seg=[("h", 0, nb, 12 - nb), ("o", 1, 0, 5), ("o", 0, 0, 5)])
        if role == "q":
            return dict(w=kb(147, 64, 74, 84, 127, 137, 32), wbase=kb(32, 127), a=kb(111, 48, 95, 0, 16), abase=kb(0, 95), wpre=6,
                        seg=[("h", 0, nb, 12 - nb), ("o", 1, 0, 5), ("o", 0, 0, 5)])
        return dict(w=kb(147, 137, 127, 110, 100, 90, 80), wbase=kb(80, 127), a=kb(64, 48, 32, 16, 0), abase=kb(0, 48), wpre=7,
                    seg=[("h", 1, 0, 12), ("h", 0, 0, nb)])

    def p3seg(self, role, ch):
        for kind, oth, lo, n in self.p3geom(role)["seg"]:
            if ch < n:
                return kind, oth, lo, n, ch
            ch -= n

    def p3_loader_setup(self, role):
        A, c = self.A, self.c
        A(f"s_mul_i32 s{sCOL}, s{sJ}, 160\ns_mul_i32 s{sT0}, s{sW}, {16*1280}\ns_add_u32 s{sT0}, s{sT0}, s{sCOL}")
        for i in range(3):
            A(f"v_add_u32 v2, {64*i}, v0\nv_mul_u32_u24 v3, 6554, v2\nv_lshrrev_b32 v3, 16, v3\nv_mul_u32_u24 v4, {1280-160}, v3\nv_lshl_add_u32 v2, v2, 4, v4")
            A(f"s_sub_u32 s{sT1}, s{sT0}, {K*i}\nv_add_u32 v{self.P2W+i}, s{sT1}, v2")
        A(f"s_mul_i32 s{self.sPM}, s{sW}, 2560\ns_lshl_b32 s{self.sPN}, s{sW}, 12\ns_and_b32 s{sT0}, s{sW}, 1\ns_lshl_b32 s{sT0}, s{sT0}, 12\nv_lshl_add_u32 v{self.P2A}, v0, 4, s{sT0}")
        A(f"s_lshr_b32 s{sT0}, s{sW}, 1\ns_lshl1_add_u32 s{sBLK}, s{sRB}, s{sT0}\ns_add_u32 s{sROT2}, s{sRB}, s{sJ}\ns_and_b32 s{sROT2}, s{sROT2}, 3")
        A(f"s_lshr_b32 s{self.sOWN}, s{sJ}, 2\ns_xor_b32 s{self.sOTH}, s{self.sOWN}, 1\ns_lshl_b32 s{sT0}, s{sRB}, 9\ns_add_u32 s{sT0}, s{sT0}, {FLAG_BASE}")
        A(f"s_lshl_b32 s{sT1}, s{self.sOTH}, 7\ns_add_u32 s{sT1}, s{sT1}, s{sT0}\nv_mov_b32 v{self.P2F}, s{sT1}\nv_xor_b32 v{self.P2F+1}, 128, v{self.P2F}")
        if role == "q":
            A(f"s_lshl3_add_u32 s{sT0}, s{sRB}, s{sJ}\ns_lshl_b32 s{sT0}, s{sT0}, 7\ns_add_u32 s{sT0}, s{sT0}, {FLAG_BASE + F_PAIR}\nv_mov_b32 v{self.P2F+3}, s{sT0}")
            if c.touch:
                r2 = c.nb
                A(f"s_bfe_u32 s{sT0}, s2, 0x40003\ns_lshl2_add_u32 s{sT0}, s{sT0}, s{sW}\nv_mul_u32_u24 v2, 52, v0\nv_lshrrev_b32 v2, 8, v2\nv_mul_u32_u24 v3, 5, v2\nv_sub_u32 v3, v0, v3\nv_lshlrev_b32 v3, 7, v3")
                A(f"s_movk_i32 s{sT3}, 1280\nv_min_u32 v4, {r2-1}, v2\nv_min_u32 v2, 9, v2\nv_mad_u32_u24 v4, v4, s{sT3}, v3\nv_mad_u32_u24 v2, v2, s{sT3}, v3")
                A(f"s_mul_i32 s{sT1}, s{self.sOWN}, {768*1280 + 640}\ns_mul_i32 s{sT2}, s{sT0}, {r2*1280}\ns_add_u32 s{sT1}, s{sT1}, s{sT2}\nv_add_u32 v42, s{sT1}, v4")
                A(f"s_mul_i32 s{sT1}, s{self.sOWN}, 640\ns_mul_i32 s{sT2}, s{sT0}, {10*1280}\ns_add_u32 s{sT1}, s{sT1}, s{sT2}\nv_add_u32 v43, s{sT1}, v2")

    def p3_prep(self, role, which, ch):
        kind, oth, lo, n, pos = self.p3seg(role, ch)
        cnt, base, d = (self.sPW, self.sBW, (sT2, 12)[ch & 1]) if which == "w" else (self.sPA, self.sPB, (sT3, 13)[ch & 1])
        step = 64 * 1280 if which == "w" else 8192
        o = []
        if pos == 0:
            half = 12 if kind == "h" else 5
            o += lines(f"s_mul_i32 s{cnt}, s{sROT2}, {max(1, n // 4)}\ns_mul_i32 s{base}, s{self.sOTH if oth else self.sOWN}, {half * step}")
            if which == "a":
                o += lines(f"s_mul_i32 s{d}, s{sBLK}, {H_BLK if kind == 'h' else O_BLK}\ns_add_u32 s{base}, s{base}, s{d}")
            add = lo * step + ((H_BASE if kind == "h" else O_BASE) if which == "a" else 0)
            if add:
                o.append(f"s_add_u32 s{base}, s{base}, {add}")
        return o + lines(f"s_cmp_ge_u32 s{cnt}, {n}\ns_cselect_b32 s{d}, {n}, 0\ns_sub_u32 s{cnt}, s{cnt}, s{d}\ns_mul_i32 s{d}, s{cnt}, {step}\ns_add_u32 s{d}, s{d}, s{base}\ns_add_u32 s{cnt}, s{cnt}, 1")

    def p3_issue_w(self, role, cw, C=None, fill=()):
        A, g = self.A, self.p3geom(role)
        emit = (C.issue if C else A)
        srd_ = W2_ if self.p3seg(role, cw)[0] == "h" else WO_
        A(f"s_add_u32 m0, s{self.sPM}, {g['w'][cw % len(g['w'])]}")
        for i in range(3):
            if i == 2:
                A("s_mov_b32 exec_hi, 0")
            tag = emit(f"buffer_load_dwordx4 v{self.P2W+i}, {s(srd_,4)}, s{(sT2, 12)[cw & 1]} offen offset:{K*i} lds")
            if i == 0:
                A.extend(fill)
        A("s_mov_b32 exec_hi, -1")
        return tag

    def p3_issue_a(self, role, ca, C, set_m0=True, fill=()):
        A, g = self.A, self.p3geom(role)
        if set_m0:
            A(f"s_add_u32 m0, s{self.sPN}, {g['a'][ca % len(g['a'])]}")
        for i in range(4):
            tag = C.issue(f"buffer_load_dwordx4 v{self.P2A}, {s(WS_,4)}, s{(sT3, 13)[ca & 1]} offen offset:{K*i}{self.c.ld_mod} lds")
            if i == 0:
                A.extend(fill)
        return tag

    def p3_loader(self, role, pending):
        A, g, c = self.A, self.p3geom(role), self.c
        C = Counter(A, "vmcnt", 62)
        RW, RA = len(g["w"]), len(g["a"])
        NC = sum(x[3] for x in g["seg"])
        tw, ta = {}, {}
        vR = self.P2F + 2
        def next_w():
            A.extend(self.p3_prep(role, "w", self.wnext))
            tw[self.wnext] = self.p3_issue_w(role, self.wnext, C)
            self.wnext += 1
        def one_a(ca):
            A.extend(self.p3_prep(role, "a", ca)); ta[ca] = self.p3_issue_a(role, ca, C)
        def where(ca):
            if ca == "pair":
                return self.P2F + 3, 0, 1
            kind, oth = self.p3seg(role, ca)[:2]
            return self.P2F + 1 - oth, 256 * (kind == "o"), 4
        tags, regs = {}, {}
        def poll(ca):
            ad, off, _ = where(ca)
            regs[ca] = 32 + len(regs)
            tags[ca] = C.issue(f"buffer_load_dword v{regs[ca]}, v{ad}, {s(WS_,4)}, 0 offen offset:{off}{COH}")
        def confirm(ca):
            ad, off, n = where(ca)
            C.wait(tags[ca])
            self.check(regs[ca], ad, WS_, n, off)
        C.n = pending
        for cw in range(self.wnext):
            tw[cw] = max(0, pending - 3 * (self.wnext - 1 - cw))
        if role == "h":
            A("s_barrier")
        stop = min(g["wpre"], self.wnext + c.gap3) if role == "h" else g["wpre"]
        while self.wnext < stop - 1:
            next_w()
        poll(0)
        while self.wnext < stop:
            next_w()
        confirm(0)
        self.trace(11)
        self.stamp(3)
        for ca in range(c.na3[role]):
            one_a(ca)
        later = [lambda ca=ca: one_a(ca) for ca in range(c.na3[role], RA)] + [next_w] * (RW - self.wnext)
        if role == "q" and c.touch:
            C.issue(f"buffer_load_dword v58, v42, {s(W2_,4)}, 0 offen")
            C.issue(f"buffer_load_dword v59, v43, {s(WO_,4)}, 0 offen")
        starts = [ca for ca in range(RA, NC) if self.p3seg(role, ca)[4] == 0]
        want_a = lambda ch: ch >= 2 and ch - 2 + RA < NC
        want_w = lambda ch: ch >= 2 and ch - 2 + RW < NC
        kp = NC - c.pk
        for ch in range(NC):
            ca, cw = ch - 2 + RA, ch - 2 + RW
            if role == "q" and ch == kp:
                self.stamp(4)
                confirm("pair")
                self.stamp(5)
            if want_a(ch):
                A(f"s_add_u32 m0, s{self.sPN}, {g['a'][ca % RA]}")
            C.wait(max(ta[ch], tw[ch]))
            A("s_barrier")
            self.trace(12 + ch)
            for _ in range(-(-len(later) // (2 - ch)) if later else 0):
                later.pop(0)()
            if ca in starts:
                if ca not in tags:
                    poll(ca)
                confirm(ca)
            if ca + c.pd in starts:
                poll(ca + c.pd)
            if role == "q" and ch == kp - c.pd:
                poll("pair")
            pa = self.p3_prep(role, "a", ca + 1) if want_a(ch + 1) else []
            pw = self.p3_prep(role, "w", cw + 1) if want_w(ch + 1) else []
            if want_a(ch):
                ta[ca] = self.p3_issue_a(role, ca, C, c.trace, pa); pa = []
            if want_w(ch):
                tw[cw] = self.p3_issue_w(role, cw, C, pw); pw = []
            A.extend(pa + pw)
        self.stamp(6)

    def p3_compute(self, role):
        A, g, c = self.A, self.p3geom(role), self.c
        q = role == "q"
        NC = sum(x[3] for x in g["seg"])
        vW, vB, vO = (8, 9), (10, 11), (12, 13)
        ACC, FB, FW, XR, PT = 16, 56, 88, 168, 188
        A(f"v_lshrrev_b32 v3, 4, v0\nv_bfe_u32 v2, v0, 2, 2\nv_lshl_add_u32 v2, v3, 2, v2\nv_mul_u32_u24 v2, 160, v2\nv_and_b32 v4, 3, v0\nv_lshl_add_u32 v2, v4, 3, v2")
        A(f"v_add_u32 v{vW[0]}, {g['wbase'][0]}, v2\nv_add_u32 v{vW[1]}, {g['wbase'][1]}, v2")
        A(f"s_lshl_b32 s{sT0}, s{sW}, 12\nv_lshl_add_u32 v{vB[0]}, v0, 4, s{sT0}\nv_add_u32 v{vB[1]}, {g['abase'][1]}, v{vB[0]}")
        if q:
            A(f"v_lshl_add_u32 v{vO[0]}, v0, 3, s{sT0}\nv_add_u32 v{vO[1]}, {g['abase'][1]}, v{vO[0]}")
        part = lines(f"s_lshl3_add_u32 s{sD}, s{sRB}, s{sJ}\ns_lshl2_add_u32 s{sD}, s{sD}, s{sW}\ns_mul_i32 s{sD}, s{sD}, 10240\ns_add_u32 s{sD}, s{sD}, {PART_BASE}\ns_add_u32 s{sC}, s{sD}, 4096\ns_add_u32 s{sB}, s{sD}, 8192\nv_lshlrev_b32 v14, 4, v0")
        pop = lambda op, n, r: f"buffer_{op}_dwordx4 {v(r,4)}, v14, {s(WS_,4)}, s{(sD, sC, sB)[n // 4]} offen offset:{K*(n % 4)}{COH}"
        extra, heads = {0: part}, {}
        if q:
            out = lines(f"s_lshl2_add_u32 s{sT0}, s{sRB}, s{sW}\ns_mul_i32 s{sT0}, s{sT0}, {32*1280}\ns_mul_i32 s{sT1}, s{sJ}, 160\ns_add_u32 s{sF}, s{sT0}, s{sT1}\ns_add_u32 s{sE}, s{sF}, {16*1280}")
            out += lines(f"v_and_b32 v2, 15, v0\nv_mul_u32_u24 v2, 1280, v2\nv_lshrrev_b32 v3, 5, v0\nv_lshl_add_u32 v2, v3, 4, v2\nv_bfe_u32 v3, v0, 4, 1\nv_lshl_add_u32 v6, v3, 5, v2\nv_mul_u32_u24 v3, {16*1280}, v3\nv_add_u32 v7, v2, v3")
            extra[1] = out
            jobs = [(5 * p + 2 * i, 5 * p + 2 * i + 1, 6, sE if p else sF, 64 * i) for p in range(2) for i in range(2)] + [(4, 9, 7, sF, 128)]
            heads[c.pub3], heads[c.pub3 + 1] = self.publish("q")
            for n, (_, _, va, so, off) in enumerate(jobs):
                extra.setdefault(c.pub3 + 2 + n, []).append(f"buffer_load_dwordx4 {v(XR+4*n,4)}, v{va}, {s(X_,4)}, s{so} offen offset:{off}")
            for n in range(10):
                extra.setdefault(NC - c.pk + n // 5, []).append(pop("load", n, PT + 4 * n))

        def mfmas(ch):
            st = ch & 1
            return [f"{MF} {v(ACC+4*(5*p+i),4)}, {v(FW+40*st+4*(5*ks+i),4)}, {v(FB+16*st+8*ks+4*p,4)}, {v(ACC+4*(5*p+i),4) if ch or ks else 0}"
                    for ks in range(2) for i in range(5) for p in range(2)] if ch >= 0 else []

        for ch in range(NC):
            st, opart = ch & 1, self.p3seg(role, ch)[0] == "o"
            aa, ww = g["a"][ch % len(g["a"])], g["w"][ch % len(g["w"])]
            ab, wb = int(aa >= g["abase"][1]), int(ww >= g["wbase"][1])
            ao, wo = aa - g["abase"][ab], ww - g["wbase"][wb]
            A("s_barrier\ns_waitcnt lgkmcnt(0)")
            if ch == 0:
                self.stamp(4)
            if q and opart and self.p3seg(role, ch - 1)[0] == "h":
                self.stamp(5)
            A.extend(heads.get(ch, ()))
            rd = []
            for ks in range(2):
                for p in range(2):
                    d = FB + 16 * st + 8 * ks + 4 * p
                    if opart:
                        rd += [f"ds_read_b64 {v(d+2*hf,2)}, v{vO[ab]} offset:{ao+2048*p+512*(2*ks+hf)}" for hf in range(2)]
                    else:
                        rd.append(f"ds_read_b128 {v(d,4)}, v{vB[ab]} offset:{ao+2048*p+K*ks}")
                rd += [f"ds_read_b64_tr_b16 {v(FW+40*st+4*(5*ks+i)+2*hf,2)}, v{vW[wb]} offset:{wo+(32*ks+16*hf)*160+32*i}" for i in range(5) for hf in range(2)]
            rd += extra.get(ch, [])
            ms = mfmas(ch - 1)
            for i, m in enumerate(ms):
                k = -(-len(rd) // (len(ms) - i - 2)) if i < len(ms) - 2 else len(rd)
                A(m); A.extend(rd[:k]); rd = rd[k:]
            A.extend(rd)
        last = mfmas(NC - 1)
        A("s_waitcnt lgkmcnt(0)")
        if not q:
            self.stamp(5)
            A.extend(last)
            self.stamp(6)
            for n in range(10):
                A(pop("store", n, ACC + 4 * n))
            a, b = self.publish("h", pairflag=True)
            A.extend(a + ["s_waitcnt lgkmcnt(0)"] + b)
            return
        pre = ["s_waitcnt vmcnt(0)"]
        for n, (k0, k1, va, so, off) in enumerate(jobs):
            d = XR + 4 * n
            pre += [f"v_permlane16_swap_b32 v{d}, v{d+2}", f"v_permlane16_swap_b32 v{d+1}, v{d+3}"]
            for x, k in ((d, k0), (d + 2, k1)):
                for h in range(2):
                    t = 228 + 2 * h
                    pre += lines(f"v_lshlrev_b32 v{t}, 16, v{x+h}\nv_and_b32 v{t+1}, 0xffff0000, v{x+h}\nv_pk_add_f32 {v(PT+4*k+2*h,2)}, {v(PT+4*k+2*h,2)}, {v(t,2)}")
        A.extend(last[:2] + weave(pre, last[2:], 2, 1))
        self.stamp(6)
        for n, (k0, k1, va, so, off) in enumerate(jobs):
            d = XR + 4 * n
            for dd, k in ((d, k0), (d + 2, k1)):
                for h in (0, 2):
                    A(f"v_pk_add_f32 {v(ACC+4*k+h,2)}, {v(ACC+4*k+h,2)}, {v(PT+4*k+h,2)}")
                A.extend(self.pack(dd, ACC + 4 * k))
            A(f"v_permlane16_swap_b32 v{d}, v{d+2}\nv_permlane16_swap_b32 v{d+1}, v{d+3}")
            A(f"buffer_store_dwordx4 {v(d,4)}, v{va}, {s(OUT_,4)}, s{so} offen offset:{off}{c.out_mod}")

    SEG4 = [("t", 1, 6), ("h", 0, 12), ("o", 1, 5), ("o", 0, 5)]
    NT4, NH4, NC4 = 6, 18, 28

    def p4seg(self, ch):
        for kind, oth, n in self.SEG4:
            if ch < n:
                return kind, oth, n, ch
            ch -= n

    def p4slots(self, role):
        g = self.p2geom(role)
        RA = len(g["a"])
        T = self.NT4
        addr = [g["a"][ch % RA] for ch in range(T)]
        order = [g["a"][(T + i) % RA] for i in range(RA)]
        halves = [b + h for b in order for h in (0, 8192)]
        addr += [halves[i % len(halves)] for i in range(self.NC4 - T)]
        first = []
        for ch, a in enumerate(addr):
            size = 16384 if ch < T else 8192
            prev = [p for p in range(ch) if addr[p] < a + size and a < addr[p] + (16384 if p < T else 8192)]
            first.append(max(prev) + 2 if prev else -1)
        return addr, first

    def p4_prep(self, role, which, ch):
        kind, oth, n, pos = self.p4seg(ch)
        cnt, base, d = (self.sPW, self.sBW, (sT2, 12)[ch & 1]) if which == "w" else (self.sPA, self.sPB, (sT3, 13)[ch & 1])
        step = 64 * 1280 if which == "w" else 8192
        o = []
        if pos == 0:
            half = 5 if kind == "o" else 12
            o += lines(f"s_mov_b32 s{cnt}, s{dict(t=18, h=sROT2, o=sROT3)[kind]}\ns_mul_i32 s{base}, s{self.sOTH if oth else self.sOWN}, {half * step}")
            if kind == "t":
                o += lines(f"s_and_b32 s{d}, s{sJ}, 1\ns_mul_i32 s{d}, s{d}, {6 * step}\ns_add_u32 s{base}, s{base}, s{d}")
            if which == "a":
                o += lines(f"s_mul_i32 s{d}, s{14 if kind == 't' else sBLK}, {O_BLK if kind == 'o' else H_BLK}\ns_add_u32 s{base}, s{base}, s{d}")
                if kind == "o":
                    o.append(f"s_add_u32 s{base}, s{base}, {O_BASE}")
        return o + lines(f"s_cmp_ge_u32 s{cnt}, {n}\ns_cselect_b32 s{d}, {n}, 0\ns_sub_u32 s{cnt}, s{cnt}, s{d}\ns_mul_i32 s{d}, s{cnt}, {step}\ns_add_u32 s{d}, s{d}, s{base}\ns_add_u32 s{cnt}, s{cnt}, 1")

    def p4_issue_w(self, role, cw, C=None, fill=()):
        A, g = self.A, self.p2geom(role)
        emit = (C.issue if C else A)
        A(f"s_add_u32 m0, s{self.sPM}, {g['w'][cw % len(g['w'])]}")
        for i in range(g["nW"]):
            tag = emit(f"buffer_load_dwordx4 v{self.P2W+i}, {s(W2_ if cw < self.NH4 else WO_,4)}, s{(sT2, 12)[cw & 1]} offen offset:{K*i} lds")
            if i == 0:
                A.extend(fill)
        return tag

    def p4_loader(self, role, pending):
        A, g, c = self.A, self.p2geom(role), self.c
        C = Counter(A, "vmcnt", 62)
        RW, nW, NC, T, NH = len(g["w"]), g["nW"], self.NC4, self.NT4, self.NH4
        starts = (T, NH, NH + 5)
        addr, first = self.p4slots(role)
        tw, ta, tags, regs = {}, {}, {}, {}
        st = dict(a=0, pa=0, pw=self.wnext)
        def prep(which):
            k = "p" + which
            if st[k] >= NC:
                return []
            st[k] += 1
            return self.p4_prep(role, which, st[k] - 1)
        def next_w():
            cw = self.wnext
            if st["pw"] == cw:
                A.extend(prep("w"))
            tw[cw] = self.p4_issue_w(role, cw, C, prep("w"))
            self.wnext += 1
        def next_a():
            ca = st["a"]
            if st["pa"] == ca:
                A.extend(prep("a"))
            A(f"s_add_u32 m0, s{15 if ca < T else self.sPN}, {addr[ca]}")
            for i in range(4 if ca < T else 2):
                ta[ca] = C.issue(f"buffer_load_dwordx4 v{self.P2L if ca < T else self.P2A}, {s(WS_,4)}, s{(sT3, 13)[ca & 1]} offen offset:{K*i}{c.ld_mod} lds")
                if i == 0:
                    A.extend(prep("a"))
            st["a"] += 1
        def where(x):
            if x == "pair":
                return self.P2F + 3, 0, 1
            kind, oth = self.p4seg(x)[:2]
            return self.P2F + 1 - oth, 256 * (kind == "o"), 4
        def poll(x):
            ad, off, _ = where(x)
            regs[x] = 32 + len(regs)
            tags[x] = C.issue(f"buffer_load_dword v{regs[x]}, v{ad}, {s(WS_,4)}, 0 offen offset:{off}{COH}")
        def confirm(x):
            ad, off, n = where(x)
            if x not in tags:
                poll(x)
            C.wait(tags[x])
            self.check(regs[x], ad, WS_, n, off)
        C.n = pending
        for cw in range(self.wnext):
            tw[cw] = max(0, pending - nW * (self.wnext - 1 - cw))
        if role == "h":
            A("s_barrier")
        stop = min(g["wpre"], self.wnext + c.gap4) if role == "h" else g["wpre"]
        while self.wnext < stop - 1:
            next_w()
        poll(0)
        while self.wnext < stop:
            next_w()
        confirm(0)
        self.trace(11)
        self.stamp(3)
        for _ in range(c.na4[role]):
            next_a()
        if role == "q" and c.touch:
            C.issue(f"buffer_load_dword v58, v42, {s(W2_,4)}, 0 offen")
            C.issue(f"buffer_load_dword v59, v43, {s(WO_,4)}, 0 offen")
        when, e, k = {}, 0, 0
        for ca in range(st["a"], NC):
            lo = max(first[ca], c.ostart[role] if ca >= NH else 0)
            if lo > e or k == 2:
                e, k = max(lo, e + 1), 0
            when[ca] = e; k += 1
            assert e < ca
        assert role == "h" or when[NH] > c.pub4 + 1
        kp = NC - c.rcv
        assert kp > T + 1 + c.snd + 1
        for ch in range(NC):
            if ch == kp:
                confirm("pair")
            C.wait(max(ta[ch], tw[ch]))
            A("s_barrier")
            self.trace(12 + ch)
            for x in starts:
                if when[x] - c.pd == ch:
                    poll(x)
            if ch == kp - c.pd:
                poll("pair")
            while st["a"] < NC and when[st["a"]] == ch:
                if st["a"] in starts:
                    if st["a"] == NH:
                        self.stamp(4)
                    confirm(st["a"])
                    if st["a"] == NH:
                        self.stamp(5)
                next_a()
            n = 0
            while self.wnext < NC and self.wnext - RW + 2 <= ch and n < 2:
                next_w(); n += 1
        self.stamp(6)

    def p4_compute(self, role):
        A, g, c = self.A, self.p2geom(role), self.c
        q = role == "q"
        N = g["N"]; NT = N // 32; NC, T, NH = self.NC4, self.NT4, self.NH4
        addr, _ = self.p4slots(role)
        vB, vO = (14, 10), (15, 13)
        ACC, AC2, FB, FW, XR, XU, PT = 16, 40, 64, 128, 176, 188, 212
        self.p2_waddr(role)
        A(f"s_and_b32 s{sT0}, s{sW}, 1\ns_lshl_b32 s{sT0}, s{sT0}, 12\nv_lshl_add_u32 v{vB[0]}, v0, 4, s{sT0}\nv_lshl_add_u32 v{vO[0]}, v0, 3, s{sT0}")
        if g["abase"][1] < LDS_BYTES:
            A(f"v_add_u32 v{vB[1]}, {g['abase'][1]}, v{vB[0]}\nv_add_u32 v{vO[1]}, {g['abase'][1]}, v{vO[0]}")
        m = len(A.lines)
        self.p2_colbytes(N)
        A(f"s_and_b32 s{sT0}, s{sW}, 1\ns_lshl1_add_u32 s{sT0}, s{sBLK}, s{sT0}\ns_mul_i32 s{sT0}, s{sT0}, {32*1280}\ns_add_u32 s{sT0}, s{sT0}, s{sCOL}")
        A(f"s_lshr_b32 s{sT1}, s{sW}, 1\ns_mul_i32 s{sT1}, s{sT1}, {32*NT}\ns_add_u32 s{sF}, s{sT0}, s{sT1}\ns_add_u32 s{sE}, s{sF}, {16*1280}")
        A(f"v_and_b32 v2, 15, v0\nv_mul_u32_u24 v2, 1280, v2\nv_lshrrev_b32 v3, 5, v0\nv_lshl_add_u32 v2, v3, 4, v2\nv_bfe_u32 v3, v0, 4, 1\nv_lshl_add_u32 v6, v3, 5, v2")
        jobs = [(NT * p, NT * p + 1, 6, sE if p else sF, 0) for p in range(2)]
        if NT == 3:
            A(f"v_mul_u32_u24 v3, {16*1280}, v3\nv_add_u32 v7, v2, v3")
            jobs.append((2, 5, 7, sF, 64))
        A(f"s_lshl3_add_u32 s{sT0}, s{sRB}, s{sJ}\ns_add_u32 s{sT0}, s{sT0}, {0 if q else 128}\ns_xor_b32 s{sT1}, s{sT0}, 1\nv_lshlrev_b32 v240, 4, v0")
        for d, t in ((sD, sT0), (sB, sT1)):
            A(f"s_lshl2_add_u32 s{d}, s{t}, s{sW}\ns_mul_i32 s{d}, s{d}, 6144\ns_add_u32 s{d}, s{d}, {PART_BASE}\ns_add_u32 s{d-1}, s{d}, 4096")
        setup = A.lines[m:]; del A.lines[m:]
        pop = lambda op, n, r, b: f"buffer_{op}_dwordx4 {v(r,4)}, v240, {s(WS_,4)}, s{b - n // 4} offen offset:{K*(n % 4)}{COH}"
        extra, heads = {0: setup}, {}
        vm = []
        def add(ch, kind, text):
            extra.setdefault(ch, []).append(text); vm.append((ch, kind))
        for n, (_, _, va, so, off) in enumerate(jobs):
            add(c.x4[role] + n, "x", f"buffer_load_dwordx4 {v(XR+4*n,4)}, v{va}, {s(X_,4)}, s{so} offen offset:{off}")
        for n in range(2 * NT):
            add(T + 1 + n // 2, "s", pop("store", n, AC2 + 4 * n, sD))
        for n in range(2 * NT):
            add(NC - c.rcv + n // 3, "r", pop("load", n, PT + 4 * n, sB))
        if q:
            assert c.pub4 <= T
            heads[c.pub4], heads[c.pub4 + 1] = self.publish("q")
        assert c.x4[role] > T + 1 + c.snd
        heads[T + 1 + c.snd], heads[T + 2 + c.snd] = self.publish(role, pairflag=True)
        unpack = []
        for n, (k0, k1, va, so, off) in enumerate(jobs):
            d = XR + 4 * n
            unpack += [f"v_permlane16_swap_b32 v{d}, v{d+2}", f"v_permlane16_swap_b32 v{d+1}, v{d+3}"]
            for x, k in ((d, k0), (d + 2, k1)):
                unpack += lines(f"v_lshlrev_b32 v{XU+4*k}, 16, v{x}\nv_and_b32 v{XU+4*k+1}, 0xffff0000, v{x}\nv_lshlrev_b32 v{XU+4*k+2}, 16, v{x+1}\nv_and_b32 v{XU+4*k+3}, 0xffff0000, v{x+1}")
        extra.setdefault(NC - c.rcv - 1, []).extend(["s_waitcnt vmcnt(0)"] + unpack)

        def mfmas(ch):
            if ch < 0:
                return []
            st = ch & 1
            return [f"{MF} {v(a+4*(NT*p+i),4)}, {v(FW+8*NT*st+4*(NT*ks+i),4)}, {v(FB+32*st+16*b+8*ks+4*p,4)}, {v(a+4*(NT*p+i),4) if ch or ks else 0}"
                    for ks in range(2) for i in range(NT) for b, a in ((0, ACC), (1, AC2))[: 2 if ch < T else 1] for p in range(2)]

        for ch in range(NC):
            st = ch & 1
            ab = int(addr[ch] >= g["abase"][1])
            ao = addr[ch] - g["abase"][ab]
            A("s_barrier\ns_waitcnt lgkmcnt(0)")
            if ch == 0:
                self.stamp(4)
            if ch == NH:
                self.stamp(5)
            A.extend(heads.get(ch, ()))
            rd = []
            for ks in range(2):
                wr = self.p2_wreads(role, ch, FW + 8 * NT * st, (ks,))
                ar = []
                for b in range(2 if ch < T else 1):
                    for p in range(2):
                        d = FB + 32 * st + 16 * b + 8 * ks + 4 * p
                        if ch >= NH:
                            ar += [f"ds_read_b64 {v(d+2*hf,2)}, v{vO[ab]} offset:{ao+2048*p+512*(2*ks+hf)}" for hf in range(2)]
                        else:
                            ar.append(f"ds_read_b128 {v(d,4)}, v{vB[ab]} offset:{ao+8192*b+2048*p+K*ks}")
                rd += ar + wr
            rd += extra.get(ch, [])
            ms = mfmas(ch - 1)
            for i, mm in enumerate(ms):
                k = max(1, -(-len(rd) // max(1, len(ms) - i - 2)))
                A(mm); A.extend(rd[:k]); rd = rd[k:]
            A.extend(rd)
        pre = ["s_waitcnt vmcnt(0)"] + [f"v_pk_add_f32 {v(XU+2*i,2)}, {v(XU+2*i,2)}, {v(PT+2*i,2)}" for i in range(4 * NT)]
        last = mfmas(NC - 1)
        A("s_waitcnt lgkmcnt(0)")
        A.extend(last[:2] + weave(pre, last[2:], 1, 1))
        self.stamp(6)
        for n, (k0, k1, va, so, off) in enumerate(jobs):
            d = XR + 4 * n
            for dd, k in ((d, k0), (d + 2, k1)):
                for h in (0, 2):
                    A(f"v_pk_add_f32 {v(ACC+4*k+h,2)}, {v(ACC+4*k+h,2)}, {v(XU+4*k+h,2)}")
                A.extend(self.pack(dd, ACC + 4 * k))
            A(f"v_permlane16_swap_b32 v{d}, v{d+2}\nv_permlane16_swap_b32 v{d+1}, v{d+3}")
            A(f"buffer_store_dwordx4 {v(d,4)}, v{va}, {s(OUT_,4)}, s{so} offen offset:{off}{c.out_mod}")

    def kernel(self, name, tag, do1, do2):
        A = self.A
        self.tag = tag
        self.entry(name, tag)
        for role in ("q", "h"):
            if role == "h":
                A.label(f"L_HH_{tag}")
            pending = 0
            if do1:
                pending = self.helper1(role)
            else:
                A("s_waitcnt lgkmcnt(0)")
                self.srds_helper2()
                self.p2_loader_setup(role)
            if do2:
                (self.p4_loader if self.c.twin else self.p3_loader if self.c.pair else self.p2_loader)(role, pending)
            self.stamp(7)
            self.stamp_out(8, 1)
            A("s_endpgm")
        for role in ("q", "h"):
            A.label(f"L_{role.upper()}C_{tag}")
            A("; ---- MFMA waves, " + ("attention role" if role == "q" else "hidden-layer role"))
            if do1:
                (self.compute_q if role == "q" else self.compute_h)()
            else:
                self.srds_compute()
            if do2 and not self.selfrun(role):
                (self.p4_compute if self.c.twin else self.p3_compute if self.c.pair else self.p2_compute)(role)
            self.stamp(7)
            self.stamp_out(8, 0)
            A("s_endpgm")
        A.label(f"L_end_{tag}")
        A("s_endpgm")

    def build(self):
        A, c = self.A, self.c
        A(open(os.path.join(os.path.dirname(os.path.abspath(__file__)), "header.txt")).read().rstrip())
        A(DOC.strip())
        if c.split:
            A(f"; @launch kernel=phase1_kernel grid=(256,1,1) block=(512,1,1) lds={LDS_BYTES}")
            A(f"; @launch kernel=phase2_kernel grid=(256,1,1) block=(512,1,1) lds={LDS_BYTES}")
        else:
            A(f"; @launch grid=(256,1,1) block=(512,1,1) lds={LDS_BYTES}")
        A('.amdgcn_target "amdgcn-amd-amdhsa--gfx950"')
        if c.split:
            p2 = c.phase2
            c.phase2 = False
            self.kernel("phase1_kernel", "a", True, False)
            c.phase2 = p2
            self.kernel("phase2_kernel", "b", False, True)
            A(kernel_desc("phase1_kernel", 256, 256)); A(kernel_desc("phase2_kernel", 256, 256))
        else:
            self.kernel(NAME + "_kernel", "a", True, c.phase2)
            A(kernel_desc(NAME + "_kernel", 256, 256))
        return A.text()

def make(**kw):
    import asmlib
    asmlib.EXTRA.clear(); asmlib.EXTRA.update(kw.pop('extra', {}))
    return Gen(Cfg(**kw)).build()

if __name__ == "__main__":
    kw = {}
    for a_ in sys.argv[2:]:
        k, val = a_.split("=", 1)
        kw[k] = eval(val)
    open(sys.argv[1], "w").write(make(**kw))
```

```python
import sys, os
from asmlib import *

NAME = "parallel_sum__sliding_local_dilated__dense_activation_relu__prompt"
MF = "v_mfma_f32_16x16x32_bf16"

H_BLK = 24 * 8192
O_BLK = 10 * 8192
H_BASE = 0
O_BASE = 32 * H_BLK
FLAG_BASE = 16 << 20
STAT_BASE = 18 << 20
CSUM_BASE = 19 << 20
STAMP_BASE = 20 << 20
PART_BASE = 22 << 20
PACK_BASE = 28 << 20
PACK_CT = 2176 * 192
WS_BYTES = 32 << 20

X_, W1_, W2_, WO_, WS_, DBG_, FLEX_, OUT_ = 20, 24, 28, 32, 36, 40, 44, 48
sWAVE, sW, sRB, sJ, sBLK, sCOL, sROT, sCNT = 52, 53, 54, 55, 56, 57, 58, 59
sT0, sT1, sT2, sT3 = 60, 61, 62, 63
sA, sB, sC, sD, sE, sF = 64, 65, 66, 67, 68, 69
mG1, mG2, mG3, mU0 = 70, 72, 74, 76
sROT2, sROT3 = 78, 79
sG, sH, sI = 3, 80, 81
sSTAMP = 82

K = 1024
Q_SLOT, H_SLOT = 48 * K, 40 * K
Q_WH, H_WH = 15 * K, 12 * K
MISC = 157 * K
ST_RSTD = 576
CS_OFF = 1152
CTR_OFF = 2304
XFL_OFF = 2320
PRG_OFF = 2368
F_STAT, F_CSUM, F_PAIR = 8192, 10240, 16384
LDS_BYTES = 163840
SPIN_LIMIT = 20000
COH = " sc0 sc1"

DOC = """
;
; waves 0-3 run the MFMAs, waves 4-7 stream operands into LDS with buffer_load ... lds.
"""

class Cfg:
    def __init__(self, **kw):
        self.split = False
        self.stamps = False
        self.dbgstamps = False
        self.epi = False
        self.trace = False
        self.phase2 = True
        self.rot = True
        self.rot2 = True
        self.pre1 = {'q': 8, 'h': 7}
        self.pre0 = 2
        self.prio_h = 1
        self.abl = ''
        self.preq = {8: 2, 9: 4}
        self.preh = {8: 2, 9: 4}
        self.nreg0 = {"q": 10, "h": 8}
        self.warm = 0
        self.warm_c = 0
        self.pubq = 8
        self.selfq = False
        self.wide = 'h'
        self.prio_self = 1
        self.na0 = {'q': 6, 'h': 3}
        self.touch = 'q'
        self.cstat = 5
        self.pair = False
        self.twin = False
        self.ssplit = 10
        self.owntouch = False
        self.midw = 4
        self.nres2 = 0
        self.w_mod = ''
        self.wlate = 1
        self.repack = False
        self.cs4 = False
        self.fast0 = True
        self.tpack = True
        self.tfirst = False
        self.defer = True
        self.ostart = {'q': 8, 'h': 14}
        self.pub4 = 5
        self.snd = 8
        self.rcv = 5
        self.gap4 = 3
        self.na4 = {'q': 3, 'h': 2}
        self.x4 = {'q': 18, 'h': 18}
        self.nb = 6
        self.pd = 2
        self.qring = 0
        self.pk = 4
        self.pre3 = {'q': {8: 2, 9: 4}, 'h': {8: 2, 9: 4}}
        self.pub3 = 2
        self.gap3 = 3
        self.na3 = {'q': 3, 'h': 2}
        self.touch_h = 2
        self.gapw = 6
        self.nres = 4
        self.npoll = 1
        self.rotf = (7, 0, 0, 1)
        self.swap = False
        self.codepf = 7
        self.align = 5
        self.thr = {'q': 4, 'h': 4}
        self.aoff = {'q': 3, 'h': 3}
        self.age = {'q': 10, 'h': 10}
        self.e64 = False
        self.xat = {'q': 0, 'h': 2}
        self.spread = True
        self.ld_mod = COH
        self.st_mod = COH
        self.comp = False
        self.out_mod = ''
        self.stage = {'q': 0, 'h': 0}
        self.hold = False
        self.__dict__.update(kw)

def srd(A, d, b, n):
    A(f"s_mov_b32 s{d}, s{b}\ns_mov_b32 s{d+1}, s{b+1}\ns_mov_b32 s{d+2}, {n}\ns_mov_b32 s{d+3}, 0x20000")

def lines(txt):
    return [l for l in txt.split("\n") if l]

def weave(main, extra, every=2, start=0):
    out, extra = [], list(extra)
    for i, l in enumerate(main):
        out.append(l)
        if extra and i + 1 >= start and (i + 1 - start) % every == 0:
            out.append(extra.pop(0))
    return out + extra

class Gen:
    def __init__(self, cfg):
        self.c = cfg
        self.A = Asm()
        self.uid = 0

    def lab(self, p):
        self.uid += 1
        return f"L_{p}_{self.uid}"

    def estamp(self, i):
        if self.c.epi:
            self.stamp(i, True)

    def stamp(self, i, force=False):
        if self.c.epi and not force and i > 0:
            return
        if self.c.stamps:
            op = "s_memtime" if self.c.stamps == "cyc" else "s_memrealtime"
            self.A(f"{op} s[{sSTAMP+2*i}:{sSTAMP+2*i+1}]")

    def trace(self, lane):
        if self.c.trace:
            if isinstance(lane, str):
                self.A(f"s_mov_b32 m0, {lane}")
                lane = "m0"
            op = "s_memtime" if self.c.stamps == "cyc" else "s_memrealtime"
            self.A(f"{op} s[98:99]\ns_waitcnt lgkmcnt(0)\nv_writelane_b32 v30, s98, {lane}")

    def stamp_out(self, n, row):
        if not self.c.stamps:
            return
        A = self.A
        if self.c.trace and row == 1:
            l = self.lab("tr")
            A(f"s_cmp_lg_u32 s{sW}, 0\ns_cbranch_scc1 {l}\ns_lshl_b32 s{sT0}, s2, 8\ns_add_u32 s{sT0}, s{sT0}, {STAMP_BASE + (1 << 20)}\nv_lshl_add_u32 v1, v0, 2, s{sT0}")
            A(f"buffer_store_dword v30, v1, {s(WS_,4)}, 0 offen\ns_waitcnt vmcnt(0)")
            A.label(l)
        l = self.lab("st")
        A(f"s_waitcnt lgkmcnt(0)\ns_cmp_lg_u32 s{sW}, 0\ns_cbranch_scc1 {l}")
        if self.c.dbgstamps:
            if row == 0:
                A(f"s_lshr_b32 s{sT1}, s2, 7\ns_mul_i32 s{sT1}, s{sT1}, 28\nv_mov_b32 v1, s{sT1}\nv_mov_b32 v3, 0\ns_mov_b64 exec, 1")
                A(f"s_not_b32 s{sT0}, s{sSTAMP}\nv_mov_b32 v2, s{sT0}\nbuffer_atomic_umax v2, v3, {s(DBG_,4)}, 0 offen offset:4 sc1")
                for i in range(1, 8):
                    A(f"v_mov_b32 v2, s{sSTAMP+2*i}\nbuffer_atomic_umax v2, v1, {s(DBG_,4)}, 0 offen offset:{4+4*i} sc1")
                A("s_waitcnt vmcnt(0)")
            A.label(l)
            return
        A(f"s_lshl_b32 s{sT0}, s2, 7\ns_add_u32 s{sT0}, s{sT0}, {STAMP_BASE + 64*row}\nv_mov_b32 v1, s{sT0}")
        for i in range(n):
            A(f"v_mov_b32 v2, s{sSTAMP+2*i}\nbuffer_store_dword v2, v1, {s(WS_,4)}, 0 offen offset:{4*i}")
        A("s_waitcnt vmcnt(0)")
        A.label(l)

    def entry(self, name, tag):
        A, c = self.A, self.c
        A(kernel_header(name))
        A("s_cmp_ge_u32 s2, 256\ns_cbranch_scc1 L_end_" + tag)
        self.stamp(0)
        A("s_load_dwordx4 s[4:7], s[0:1], 0\ns_load_dwordx2 s[8:9], s[0:1], 16")
        A("s_load_dwordx4 s[12:15], s[0:1], 32\ns_load_dwordx4 s[16:19], s[0:1], 48\ns_load_dwordx2 s[10:11], s[0:1], 64")
        A(f"v_lshrrev_b32 v1, 6, v0\nv_and_b32 v0, 63, v0\nv_readfirstlane_b32 s{sWAVE}, v1")
        A(f"s_bfe_u32 s{sT0}, s2, 0x20001\ns_bfe_u32 s{sT1}, s2, 0x20003\ns_lshl2_add_u32 s{sRB}, s{sT0}, s{sT1}")
        A(f"s_and_b32 s{sT0}, s2, 1\ns_bfe_u32 s{sT2}, s2, 0x20005\ns_lshl2_add_u32 s{sJ}, s{sT0}, s{sT2}")
        A(f"s_lshr_b32 s{sA}, s2, 7")
        if c.rot:
            ra, rb_, rc, rd = c.rotf
            if ra >= 0:
                A(f"s_mul_i32 s{sROT}, s{sRB}, {ra}")
            elif ra == -2:
                A(f"s_and_b32 s{sROT}, s{sRB}, 1\ns_mul_i32 s{sROT}, s{sROT}, 5\ns_lshr_b32 s{sT1}, s{sRB}, 2\ns_add_u32 s{sROT}, s{sROT}, s{sT1}")
            elif ra == -3:
                A(f"s_and_b32 s{sROT}, s{sRB}, 1\ns_mul_i32 s{sROT}, s{sROT}, 5")
            elif ra == -4:
                A(f"s_and_b32 s{sROT}, s{sRB}, 3\ns_mul_i32 s{sROT}, s{sROT}, 7")
            if rb_:
                A(f"s_mul_i32 s{sT1}, s{sT2}, {rb_}\ns_add_u32 s{sROT}, s{sROT}, s{sT1}")
            if rc:
                A(f"s_and_b32 s{sT1}, s{sT2}, 1\ns_mul_i32 s{sT1}, s{sT1}, {rc}\ns_add_u32 s{sROT}, s{sROT}, s{sT1}")
            if rd:
                A(f"s_mul_i32 s{sT1}, s{sA}, {rd}\ns_add_u32 s{sROT}, s{sROT}, s{sT1}")
            A(f"s_mul_i32 s{sT1}, s{sROT}, 205\ns_lshr_b32 s{sT1}, s{sT1}, 11\ns_mul_i32 s{sT1}, s{sT1}, 10\ns_sub_u32 s{sROT}, s{sROT}, s{sT1}")
        if not c.fast0:
            self.decode2()
        A(f"s_and_b32 s{sW}, s{sWAVE}, 3")
        A(f"s_cmp_ge_u32 s{sWAVE}, 4\ns_cbranch_scc{0 if c.swap else 1} L_helper_{tag}")
        A(f"s_cmp_eq_u32 s{sA}, 0\ns_cbranch_scc1 L_QC_{tag}\ns_branch L_HC_{tag}")
        A.label(f"L_helper_{tag}")
        if c.prio_h:
            A(f"s_setprio {c.prio_h}")
        A(f"s_cmp_eq_u32 s{sA}, 0\ns_cbranch_scc0 L_HH_{tag}")

    def decode2(self):
        A = self.A
        A(f"s_and_b32 s{sT3}, s{sJ}, 1\ns_lshl1_add_u32 s{sBLK}, s{sRB}, s{sT3}\ns_lshr_b32 s{sCOL}, s{sJ}, 1\ns_and_b32 s{sT3}, s{sCOL}, 1\ns_lshr_b32 s{sT1}, s2, 7")
        A(f"s_and_b32 s{sT0}, s{sBLK}, 7\ns_lshl1_add_u32 s{sT3}, s{sT1}, s{sT3}\ns_mul_i32 s{sT1}, s{sT0}, 3\ns_lshr_b32 s{sT1}, s{sT1}, 1\ns_mul_i32 s{sROT2}, s{sT3}, 3\ns_add_u32 s{sROT2}, s{sROT2}, s{sT1}")
        A(f"s_mul_i32 s{sT0}, s{sT0}, 5\ns_lshr_b32 s{sT0}, s{sT0}, 3\ns_add_u32 s{sROT3}, s{sT0}, s{sT3}")

    def srds_helper2(self):
        A = self.A
        if self.c.fast0:
            self.decode2()
        srd(A, W2_, 14, 1536 * 1280); srd(A, WO_, 8, 640 * 1280); srd(A, WS_, 10, WS_BYTES); srd(A, DBG_, 18, 256)

    def srds_compute(self):
        A = self.A
        if self.c.fast0:
            self.decode2()
        A("s_waitcnt lgkmcnt(0)")
        srd(A, X_, 4, 2048 * 1280); srd(A, WS_, 10, WS_BYTES); srd(A, DBG_, 18, 256); srd(A, OUT_, 16, 2048 * 1280)

    def xfrag_addr(self, d0, d1, base_s, t):
        A = self.A
        A(f"v_and_b32 v{t}, 15, v0\nv_lshrrev_b32 v{d1}, 1, v{t}\nv_lshrrev_b32 v{d0}, 4, v0\nv_xor_b32 v{d0}, v{d0}, v{d1}")
        A(f"v_lshlrev_b32 v{d0}, 4, v{d0}\nv_lshl_add_u32 v{d0}, v{t}, 7, v{d0}\nv_add_u32 v{d0}, s{base_s}, v{d0}\nv_xor_b32 v{d1}, 64, v{d0}")

    def check(self, vres, vaddr, srd_, target, off=0, depth=1):
        A = self.A
        l, d = self.lab("sp"), self.lab("sd")
        A(f"v_cmp_gt_u32 vcc, {target}, v{vres}\ns_cbranch_vccz {d}\ns_mov_b32 s{sT1}, {SPIN_LIMIT}")
        if depth > 1:
            ld = lambda r: f"buffer_load_dword v{r}, v{vaddr}, {s(srd_,4)}, 0 offen offset:{off}{COH}"
            regs = [vres] + list(range(2, 1 + depth))
            e = self.lab("se")
            for r in regs[1:]:
                A(ld(r) + "\ns_nop 15\ns_nop 15")
            A.label(l)
            for i, r in enumerate(regs):
                A(ld(r) + f"\ns_waitcnt vmcnt({depth-1})\nv_cmp_gt_u32 vcc, {target}, v{regs[(i + 1) % depth]}\ns_cbranch_vccz {e}")
            A(f"s_sub_u32 s{sT1}, s{sT1}, 1\ns_cbranch_scc0 {l}")
            A.label(e)
            A.label(d)
            return depth - 1
        A.label(l)
        A(f"buffer_load_dword v{vres}, v{vaddr}, {s(srd_,4)}, 0 offen offset:{off}{COH}\ns_waitcnt vmcnt(0)\nv_cmp_gt_u32 vcc, {target}, v{vres}")
        A(f"s_cbranch_vccz {d}\ns_sub_u32 s{sT1}, s{sT1}, 1\ns_cbranch_scc0 {l}")
        A.label(d)

    def helper1(self, role):
        A, c = self.A, self.c
        q = role == "q"
        slot, wh = (Q_SLOT, Q_WH) if q else (H_SLOT, H_WH)
        xoff = 2 * wh
        wstride = 3840 if q else 3072
        vA, vB, vC, vF = 8, 11, 14, 18
        sOWa, sOWb, sOX, sSa, sSb = sA, sB, sC, sD, sE
        sMA, sMX, sF1o, sF1m, sF2o, sF2m = sF, sG, mG1, mG1 + 1, mG1 + 2, mG1 + 3
        sMF1, sMF2, sPa, sPb, sPx = mG1 + 4, mG1 + 5, mG1 + 6, mG1 + 7, sI
        nA, nB = (4, 8) if q else (3, 7)
        per = 4 if q else 3

        A("v_lshrrev_b32 v2, 3, v0\nv_mul_u32_u24 v2, 1280, v2\nv_and_b32 v3, 7, v0\nv_lshrrev_b32 v4, 4, v0\nv_xor_b32 v3, v3, v4\nv_lshl_add_u32 v6, v3, 4, v2\nv_xor_b32 v7, 64, v6")
        A(f"s_lshl_b32 s{sT0}, s{sRB}, 7\ns_lshl_b32 s{sT1}, s{sW}, 5\ns_add_u32 s{sT0}, s{sT0}, s{sT1}")
        if q:
            A(f"s_sub_u32 s{sT0}, s{sT0}, 16")
        A(f"s_mul_i32 s{sPx}, s{sT0}, 1280")
        A(f"s_mul_i32 s{sH}, s{sJ}, {160 if q else 384}\ns_movk_i32 s{sCNT}, 1120\ns_mul_i32 s{sMA}, s{sW}, {per}\ns_lshl_b32 s{sMX}, s{sW}, 12\ns_add_u32 s{sMX}, s{sMX}, {xoff}")

        def xoffs(d, i):
            A(f"s_add_u32 s{sT0}, s{sPx}, {8*1280*i}\nv_add_u32 v{d}, s{sT0}, v{6 + (i & 1)}")

        def woff(d, kb):
            A(f"s_add_u32 s{sT0}, s{sMA}, {kb}\ns_lshl_b32 s{sT0}, s{sT0}, 6\nv_add_u32 v2, s{sT0}, v0")
            if q:
                A("v_mul_u32_u24 v3, 2185, v2\nv_lshrrev_b32 v3, 16, v3\nv_mul_u32_u24 v4, 30, v3\nv_sub_u32 v2, v2, v4")
            else:
                A("v_mul_u32_u24 v3, 2731, v2\nv_lshrrev_b32 v3, 16, v3\nv_mul_u32_u24 v4, 24, v3\nv_sub_u32 v2, v2, v4\nv_and_b32 v4, 6, v3\nv_xor_b32 v2, v2, v4")
            A("v_and_b32 v4, 4, v3\nv_add_u32 v5, v3, v4\nv_bfe_u32 v4, v3, 3, 1\nv_mad_i32_i24 v5, v4, -4, v5")
            A(f"v_mul_u32_u24 v5, {wstride}, v5")
            if q:
                A(f"v_mul_u32_u24 v4, 26, v2\nv_lshrrev_b32 v4, 8, v4\nv_mad_u32_u24 v5, v4, s{sCNT}, v5")
            A(f"v_lshl_add_u32 v5, v2, 4, v5\nv_add_u32 v{d}, s{sH}, v5")

        def advance():
            A(f"s_mov_b32 s{sOWa}, s{sOWb}\ns_add_u32 s{sPa}, s{sSb}, s{sMA}")
            if q:
                A(f"s_add_u32 s{sSb}, s{sSb}, {slot}\ns_cmp_ge_u32 s{sSb}, {3*slot}\ns_cselect_b32 s{sSb}, 0, s{sSb}")
            else:
                A(f"s_sub_u32 s{sSb}, s{sSb}, {slot}\ns_cselect_b32 s{sSb}, {2*slot}, s{sSb}")
            rot()

        def rot():
            A(f"s_cmp_ge_u32 s{sROT}, 10\ns_cselect_b32 s{sT0}, 10, 0\ns_sub_u32 s{sROT}, s{sROT}, s{sT0}")
            A(f"s_mul_i32 s{sOWb}, s{sROT}, {64*wstride}\ns_lshl_b32 s{sOX}, s{sROT}, 7\ns_add_u32 s{sROT}, s{sROT}, 1")
            A(f"s_add_u32 s{sPb}, s{sSb}, s{sMA}\ns_add_u32 s{sPx}, s{sSb}, s{sMX}")
            if q:
                A(f"s_cmp_lt_u32 s{sW}, 3\ns_cselect_b32 s{sF1o}, s{sOWa}, s{sOX}\ns_cselect_b32 s{sF2o}, s{sOWb}, s{sOX}\ns_cselect_b32 s{sF1m}, s{sPa}, s{sPx}\ns_cselect_b32 s{sF2m}, s{sPb}, s{sPx}")
                A(f"s_add_u32 s{sF1m}, s{sF1m}, s{sMF1}\ns_add_u32 s{sF2m}, s{sF2m}, s{sMF2}")

        def dma(vr, srd_, so, m0s, add):
            A(f"s_add_u32 m0, s{m0s}, {add}\nbuffer_load_dwordx4 v{vr}, {s(srd_,4)}, s{so} offen lds")

        opsA = [(vA + i, W1_, sOWa, sPa, i * K) for i in range(3)]
        opF1 = (vF, FLEX_, sF1o, sF1m, 0)
        opF2 = (vF + 1, FLEX_, sF2o, sF2m, 0)
        opsC = [(vC + i, X_, sOX, sPx, i * K) for i in range(4)]
        opsB = [(vB + i, W1_, sOWb, sPb, wh + i * K) for i in range(3)]
        group = opsA + ([opF1] if q else []) + opsC + ([opF2] if q else []) + opsB

        def woven_group():
            sN1, sN2 = 12, 13
            after_a = [[f"s_mov_b32 s{sOWa}, s{sOWb}"], [f"s_add_u32 s{sPa}, s{sSb}, s{sMA}"]]
            if q:
                after_a.append(lines(f"s_add_u32 s{sSb}, s{sSb}, {slot}\ns_cmp_ge_u32 s{sSb}, {3*slot}\ns_cselect_b32 s{sSb}, 0, s{sSb}"))
            else:
                after_a.append(lines(f"s_sub_u32 s{sSb}, s{sSb}, {slot}\ns_cselect_b32 s{sSb}, {2*slot}, s{sSb}"))
            after_a.append(lines(f"s_cmp_ge_u32 s{sROT}, 10\ns_cselect_b32 s{sT0}, 10, 0\ns_sub_u32 s{sROT}, s{sROT}, s{sT0}\ns_mul_i32 s{sN1}, s{sROT}, {64*wstride}\ns_add_u32 s{sN2}, s{sSb}, s{sMA}"))
            after_c = [lines(f"s_lshl_b32 s{sOX}, s{sROT}, 7\ns_add_u32 s{sROT}, s{sROT}, 1\ns_add_u32 s{sPx}, s{sSb}, s{sMX}")]
            if q:
                after_c.append(lines(f"s_cmp_lt_u32 s{sW}, 3\ns_cselect_b32 s{sF1o}, s{sOWa}, s{sOX}\ns_cselect_b32 s{sF2o}, s{sN1}, s{sOX}\ns_cselect_b32 s{sF1m}, s{sPa}, s{sPx}\ns_cselect_b32 s{sF2m}, s{sN2}, s{sPx}"))
                after_c.append(lines(f"s_add_u32 s{sF1m}, s{sF1m}, s{sMF1}\ns_add_u32 s{sF2m}, s{sF2m}, s{sMF2}"))
            fill, out = [], []
            for n, (vr, srd_, so, m0s, add) in enumerate(group):
                if n == nA:
                    fill = after_a
                if n == len(group) - 3:
                    assert not fill
                    fill = after_c
                out.append([f"s_add_u32 m0, s{m0s}, {add}"] + (fill.pop(0) if fill else []) + [f"buffer_load_dwordx4 v{vr}, {s(srd_,4)}, s{so} offen lds"])
            assert not fill
            out[-1] += [f"s_mov_b32 s{sOWb}, s{sN1}", f"s_mov_b32 s{sPb}, s{sN2}"]
            return out
        E = woven_group()
        J = c.pre1[role]
        head, rest = sum(E[: nA + J], []), sum(E[nA + J:], [])

        if q:
            l1, l2 = self.lab("fx"), self.lab("fd")
        if c.fast0:
            xoffs(vC, 0)
            A(f"s_lshl_b32 s{sOX}, s{sROT}, 7")
            self.trace(50)
            A("s_waitcnt lgkmcnt(0)")
            srd(A, X_, 4, 2048 * 1280)
            self.trace(51)
            for i in range(4):
                A(f"s_add_u32 m0, s{sMX}, {i*K}")
                if i < 3:
                    xoffs(vC + i + 1, i + 1)
                A(f"buffer_load_dwordx4 v{vC+i}, {s(X_,4)}, s{sOX} offen lds")
        else:
            for i in range(4):
                xoffs(vC + i, i)
        if q:
            xoffs(vF, 4); xoffs(vF + 1, 5)
        woff(vB, 0)
        if not c.fast0:
            self.trace(50)
            A("s_waitcnt lgkmcnt(0)")
            srd(A, X_, 4, 2048 * 1280)
        srd(A, W1_, 6 if q else 12, 640 * wstride)
        if q:
            A(f"s_cmp_lt_u32 s{sW}, 3\ns_cselect_b32 s{FLEX_}, s6, s4\ns_cselect_b32 s{FLEX_+1}, s7, s5\ns_mov_b32 s{FLEX_+2}, {640*3840}\ns_cselect_b32 s{FLEX_+2}, s{FLEX_+2}, s{X_+2}\ns_mov_b32 s{FLEX_+3}, 0x20000")
            A(f"s_movk_i32 s{sMF1}, {3*K}\ns_cselect_b32 s{sMF1}, s{sMF1}, {4*K}\ns_movk_i32 s{sMF2}, {wh + 3*K}\ns_cselect_b32 s{sMF2}, s{sMF2}, {5*K}")
        A(f"s_mov_b32 s{sT3}, s{sMA}\ns_lshl_b32 s{sMA}, s{sMA}, 10\ns_mov_b32 s{sSb}, 0\ns_mov_b32 s{sOWa}, 0\ns_mov_b32 s{sPa}, 0")
        A(f"s_mov_b32 s100, s{sROT}")
        rot()
        A(f"s_mov_b32 s{sSa}, s{sMA}\ns_mov_b32 s{sMA}, s{sT3}")
        if not c.fast0:
            self.trace(51)
            for o in opsC:
                dma(*o)
        self.trace(52)
        for i in range(3):
            if i:
                woff(vB + i, i)
            dma(*opsB[i])
            A(f"v_add_u32 v{vA+i}, {32*wstride}, v{vB+i}")
        if q:
            A(f"s_cmp_lt_u32 s{sW}, 3\ns_cbranch_scc0 {l1}")
            woff(vF + 1, 3)
            A(f"v_add_u32 v{vF}, {32*wstride}, v{vF+1}\ns_branch {l2}")
            A.label(l1)
            dma(*opF1)
            A.label(l2)
            dma(*opF2)
        self.trace(53)
        A(f"s_mov_b32 s{sMA}, s{sSa}\ns_mov_b32 s{sSa}, s100")
        advance()
        J0 = min(J, c.pre0)
        A.extend(sum(E[: nA + J0], []))
        self.trace(54)
        self.srds_helper2()
        self.p2_loader_setup(role)
        vZ, vP, vD, vS = 23, 24, 26, 32
        ridx = 0 if q else 8
        A(f"s_lshl_b32 s{sT0}, s{sRB}, 7\ns_add_u32 s{sT0}, s{sT0}, {FLAG_BASE + F_STAT}\nv_mov_b32 v20, s{sT0}\nv_mov_b32 v{vZ}, 0\nv_mov_b32 v25, 16")
        A(f"s_lshl_b32 s{sT1}, s{sRB}, 7\ns_lshl_b32 s{sT2}, s{sW}, 5\ns_add_u32 s{sT1}, s{sT1}, s{sT2}\nv_and_b32 v3, 31, v0\nv_add_u32 v21, s{sT1}, v3")
        A(f"s_lshl_b32 s{sT2}, s{sW}, 7\ns_add_u32 s{sT2}, s{sT2}, {MISC + (64 if q else 0)}\nv_lshl_add_u32 v22, v3, 2, s{sT2}")
        A(f"v_mov_b32 v57, v20")
        if self.packed():
            A(f"v_and_b32 v2, 15, v0\nv_lshlrev_b32 v2, 7, v2\nv_add_u32 v20, {FLAG_BASE + F_STAT}, v2")
        if q:
            A(f"s_cmp_eq_u32 s{sRB}, 0\ns_cselect_b32 s{sT2}, 0, 128\ns_sub_u32 s{sT0}, s{sT0}, s{sT2}\nv_mov_b32 v4, s{sT0}")
            A(f"s_lshl_b32 s{sT1}, s{sRB}, 7\ns_sub_u32 s{sT1}, s{sT1}, 16\nv_and_b32 v2, 15, v0\nv_add_u32 v3, s{sT1}, v2")
            A(f"s_mov_b32 s{sT1}, {MISC}\nv_lshl_add_u32 v5, v2, 2, s{sT1}\nv_cmp_le_u32 vcc, 32, v0")
            A("v_cndmask_b32 v20, v20, v4, vcc\nv_cndmask_b32 v21, v21, v3, vcc\nv_cndmask_b32 v22, v22, v5, vcc")
        A(f"v_cmp_gt_i32 vcc, 0, v21\nv_lshlrev_b32 v21, 3, v21\nv_add_u32 v21, {STAT_BASE}, v21\nv_mov_b32 v3, -16\nv_cndmask_b32 v21, v21, v3, vcc")
        A(f"s_add_u32 s{sT0}, s{sJ}, {ridx}\ns_lshl_b32 s{sT1}, s{sT0}, 7\ns_add_u32 s{sT1}, s{sT1}, {FLAG_BASE + F_CSUM}\nv_mov_b32 v31, s{sT1}\nv_mov_b32 v4, 10\nv_cmp_le_u32 vcc, 48, v0")
        A(f"v_cndmask_b32 v20, v20, v31, vcc\nv_cndmask_b32 v25, v25, v4, vcc")
        A(f"s_mul_i32 s9, s{sT0}, 10240\ns_add_u32 s9, s9, {CSUM_BASE}\ns_lshl_b32 s{sT1}, s{sW}, 8\ns_add_u32 s{sT2}, s9, s{sT1}\nv_lshl_add_u32 v28, v0, 2, s{sT2}")
        if not q:
            A(f"s_cmp_eq_u32 s{sW}, 3\ns_cselect_b32 s{sT3}, {WS_BYTES}, 0\nv_add_u32 v28, s{sT3}, v28")
        A(f"s_add_u32 s{sT1}, s{sT1}, {MISC + CS_OFF}\nv_lshl_add_u32 v29, v0, 2, s{sT1}")
        if c.cs4:
            A(f"v_lshrrev_b32 v2, 4, v0\nv_and_b32 v3, 15, v0\nv_lshlrev_b32 v4, 10, v2\nv_lshl_add_u32 v4, v3, 4, v4\nv_add_u32 v28, s{sT2}, v4")
            A(f"v_add_u32 v130, 8192, v28\nv_mov_b32 v4, -16\nv_cmp_le_u32 vcc, 32, v0\nv_cndmask_b32 v130, v130, v4, vcc")
            A(f"v_lshrrev_b32 v4, 1, v2\nv_and_b32 v2, 1, v2\nv_lshl_add_u32 v2, v2, 1, v4\nv_lshl_add_u32 v2, v3, 2, v2\nv_lshl_add_u32 v29, v2, 2, s{sT1}")
        nt = 4 if q else 3
        A("v_bfe_u32 v2, v0, 2, 3\nv_lshrrev_b32 v3, 5, v0\nv_lshl_add_u32 v3, v3, 4, v2")
        A(f"v_mul_u32_u24 v3, {480 if q else 384}, v3\nv_and_b32 v4, 3, v0\nv_lshl_add_u32 v3, v4, 3, v3\ns_mul_i32 s{sT1}, s{sW}, {nt}")
        if q:
            A(f"s_lshl_b32 s{sT2}, s{sT1}, 5\nv_add_u32 v44, s{sT2}, v3")
        else:
            A("v_lshrrev_b32 v2, 1, v2")
            for t in range(3):
                A(f"s_add_u32 s{sT2}, s{sT1}, {t}\nv_xor_b32 v4, s{sT2}, v2\nv_lshl_add_u32 v{44+t}, v4, 5, v3")
        A(f"s_lshl_b32 s{sT1}, s{sT1}, 6\ns_lshl_b32 s{sT2}, s{sSa}, 10\ns_add_u32 s{sT1}, s{sT1}, s{sT2}\ns_add_u32 s{sT1}, s{sT1}, s9\nv_lshrrev_b32 v2, 4, v0\nv_lshl_add_u32 v47, v2, 4, s{sT1}")
        for r in range(4):
            A(f"v_mov_b32 v{60+r}, 0x3f803f80")
        self.trace(55)
        A(f"s_waitcnt vmcnt({J0})\ns_barrier")
        self.trace(0)
        self.stamp(1)
        A.extend(sum(E[nA + J0: nA + J], []))
        A(f"s_mov_b32 s{sCNT}, 0")
        loop, lw_, lb = (self.lab(x) for x in ("hl", "wt", "bar"))
        pre = (c.pre3[role] if c.pair else c.preq if q else c.preh) if (c.phase2 and not c.split) else {}
        special = [0, 1, 2, c.cstat, c.cstat + 1] + ([c.cstat + 2] if c.ssplit < 10 else [])
        lx = {k: self.lab("x") for k in special}
        A.label(loop)
        mark0 = len(A.lines)
        A.extend(rest + head)
        ld = self.lab("dsp")
        A(f"s_bitcmp1_b32 {sum(1 << k for k in special)}, s{sCNT}\ns_cbranch_scc1 {ld}")
        A.label(lw_)
        A(f"s_waitcnt vmcnt({J})")
        A.label(lb)
        A(f"s_add_u32 s{sCNT}, s{sCNT}, 1\ns_cmp_lt_u32 s{sCNT}, 8\ns_barrier")
        self.trace(f"s{sCNT}")
        l8 = self.lab("c8")
        A(f"s_cbranch_scc1 {loop}\ns_branch {l8}")
        if "nodma" in c.abl:
            A.lines[mark0:] = [l for l in A.lines[mark0:] if not l.startswith("buffer_load")]
        if "nobar" in c.abl:
            A.lines[mark0:] = [l for l in A.lines[mark0:] if not l.startswith("s_barrier")]
        A.label(ld)
        for k in special[1:]:
            A(f"s_cmp_eq_u32 s{sCNT}, {k}\ns_cbranch_scc1 {lx[k]}")
        for k in special:
            A.label(lx[k])
            n = 0
            if k == 0:
                l = self.lab("np")
                A(f"buffer_load_dword v{vP}, v{vZ}, {s(DBG_,4)}, 0 offen{COH}")
                A(f"s_cmp_ge_u32 s{sRB}, 10\ns_cbranch_scc1 {l}")
                for t in range(nt):
                    for st in range(2):
                        for hf in range(2):
                            ad, off = (44, 32 * t) if q else (44 + t, 0)
                            A(f"ds_read_b64_tr_b16 {v(64+8*t+4*st+2*hf,2)}, v{ad} offset:{off + wh*(1-st) + 8*(480 if q else 384)*hf}")
                A("s_waitcnt lgkmcnt(0)")
                for st in range(2):
                    for t in range(nt):
                        A(f"{MF} {v(96+4*t,4)}, {v(64+8*t+4*st,4)}, v[60:63], {v(96+4*t,4) if st else 0}")
                A("s_mov_b32 exec_lo, 0x10001\ns_mov_b32 exec_hi, 0x10001")
                for t in range(nt):
                    A(f"buffer_store_dwordx4 {v(96+4*t,4)}, v47, {s(WS_,4)}, 0 offen offset:{64*t}{COH}")
                A(f"s_mov_b64 exec, -1\ns_waitcnt vmcnt({J + 1 + nt})\ns_branch {lb}")
                A.label(l)
                n = 1
            if k == 1:
                A(f"s_waitcnt vmcnt({nA + nB})")
                self.check(vP, vZ, DBG_, 1)
                A(f"s_cmp_lg_u32 s{sW}, 0\ns_cbranch_scc1 {lw_}\nv_mov_b32 v2, 1\ns_mov_b64 exec, 1\nbuffer_atomic_add v2, v57, {s(WS_,4)}, 0 offen sc1\ns_mov_b64 exec, -1")
                n = 1
            if k == 2:
                A(f"s_cmp_ge_u32 s{sRB}, 10\ns_cselect_b32 s{sT0}, 1, s{sW}\ns_cmp_lg_u32 s{sT0}, 0\ns_cbranch_scc1 {lw_}")
                A(f"v_mov_b32 v2, 1\ns_mov_b64 exec, 1\nbuffer_atomic_add v2, v31, {s(WS_,4)}, 0 offen sc1\ns_mov_b64 exec, -1")
                n = 1
            if k == c.cstat:
                A(f"buffer_load_dword v{vP}, v20, {s(WS_,4)}, 0 offen{COH}")
                n = 1
            if k == c.cstat + 1:
                A(f"s_waitcnt vmcnt({nA + nB})")
                self.check(vP, 20, WS_, "v25")
                A(f"buffer_load_dwordx2 {v(vD,2)}, v21, {s(WS_,4)}, 0 offen{COH}")
                n = 1
            if k == c.cstat + 1 and c.cs4:
                A(f"buffer_load_dwordx4 {v(vS,4)}, v28, {s(WS_,4)}, 0 offen{COH}\ns_movk_i32 s{sT0}, 4096\nbuffer_load_dwordx4 {v(vS+4,4)}, v28, {s(WS_,4)}, s{sT0} offen{COH}")
                A(f"buffer_load_dwordx4 {v(132,4)}, v130, {s(WS_,4)}, 0 offen{COH}")
                n += 3
            elif k > c.cstat:
                for i in (range(c.ssplit) if k == c.cstat + 1 else range(c.ssplit, 10)):
                    A(f"s_movk_i32 s{sT0}, {K*i}\nbuffer_load_dword v{vS+i}, v28, {s(WS_,4)}, s{sT0} offen{COH}")
                    n += 1
            A(f"s_waitcnt vmcnt({J + n})\ns_branch {lb}")
        A.label(l8)
        A.extend(rest + sum(E[:3], []))
        if q:
            l = self.lab("nf")
            A(f"s_cmp_lt_u32 s{sW}, 3\ns_cbranch_scc0 {l}")
            A.extend(E[3])
            A.label(l)
        def stats_to_lds():
            A(f"ds_write_b32 v22, v{vD}\nds_write_b32 v22, v{vD+1} offset:{ST_RSTD}")
            if c.cs4:
                for o in (vS + 4, 132):
                    for r in range(4):
                        A(f"v_add_f32 v{vS+r}, v{vS+r}, v{o+r}")
                A(f"v_permlane32_swap_b32 v{vS}, v{vS+1}\nv_permlane32_swap_b32 v{vS+2}, v{vS+3}\nv_add_f32 v{vS}, v{vS}, v{vS+1}\nv_add_f32 v{vS+2}, v{vS+2}, v{vS+3}")
                A(f"v_permlane16_swap_b32 v{vS}, v{vS+2}\nv_add_f32 v{vS}, v{vS}, v{vS+2}")
            else:
                for i in range(1, 10):
                    A(f"v_add_f32 v{vS}, v{vS}, v{vS+i}")
            A(f"ds_write_b32 v29, v{vS}")
        bar = "" if "nobar" in c.abl else "s_barrier"
        k1 = self.p2_prefetch(role, pre.get(8, 0))
        A(f"s_waitcnt vmcnt({k1})\n{bar}")
        self.trace(9)
        stats_to_lds()
        k2 = self.p2_prefetch(role, pre.get(9, 0))
        A(f"s_waitcnt lgkmcnt(0)\n{bar}")
        self.trace(10)
        self.stamp(2)
        return k1 + k2

    def row_stats_load(self, role, base):
        A = self.A
        self.l_ns = self.lab("ns")
        l = self.lab("nl")
        A(f"s_cmp_ge_u32 s{sW}, 2\ns_cbranch_scc1 {l}")
        A(f"s_lshl4_add_u32 s{sT0}, s{sRB}, s{sJ}\ns_add_u32 s{sT0}, s{sT0}, {0 if role == 'q' else 8}\ns_lshl1_add_u32 s{sT0}, s{sT0}, s{sW}\ns_lshl_b32 s{sT0}, s{sT0}, 2")
        A(f"v_lshrrev_b32 v{base+20}, 4, v0\nv_add_u32 v{base+20}, s{sT0}, v{base+20}\nv_mul_u32_u24 v{base+21}, 1280, v{base+20}\nv_and_b32 v{base+22}, 15, v0\nv_lshl_add_u32 v{base+21}, v{base+22}, 4, v{base+21}")
        for i in range(5):
            A(f"buffer_load_dwordx4 {v(base+4*i,4)}, v{base+21}, {s(X_,4)}, 0 offen offset:{256*i}")
        A.label(l)

    def packed(self):
        c = self.c
        return c.repack and c.phase2 and not (c.split or c.pair or c.twin)

    def repack_load(self, base):
        A = self.A
        if not self.packed():
            return
        self.l_rp = self.lab("rp")
        l = self.lab("rl")
        A(f"s_xor_b32 s{sG}, s2, 255\ns_lshl1_add_u32 s{sG}, s{sG}, s{sW}\ns_sub_u32 s{sG}, s{sG}, 2\ns_cmp_ge_u32 s{sW}, 2\ns_cselect_b32 s{sG}, s{sG}, 999\ns_cmp_ge_u32 s{sG}, 408\ns_cbranch_scc1 {l}")
        A(f"s_mul_i32 s{sT0}, s{sG}, 643\ns_lshr_b32 s{sT0}, s{sT0}, 16\ns_mul_i32 s{sT1}, s{sT0}, 102\ns_sub_u32 s{sT1}, s{sG}, s{sT1}\ns_mul_i32 s{sT0}, s{sT0}, 192")
        A(f"s_cmp_lt_u32 s{sT1}, 72\ns_cselect_b32 s{FLEX_}, s14, s8\ns_cselect_b32 s{FLEX_+1}, s15, s9\ns_mov_b32 s{FLEX_+2}, {640*1280}\ns_cselect_b32 s{FLEX_+2}, {1536*1280}, s{FLEX_+2}\ns_mov_b32 s{FLEX_+3}, 0x20000")
        A(f"s_cselect_b32 s{sT2}, 0, 72\ns_sub_u32 s{sT1}, s{sT1}, s{sT2}\ns_lshl_b32 s{sT1}, s{sT1}, 8\ns_movk_i32 s{sT3}, 1280")
        t = base + 16
        for i in range(4):
            A(f"s_add_u32 s{sT2}, s{sT1}, {64*i}\nv_add_u32 v{t}, s{sT2}, v0\nv_mul_u32_u24 v{t+1}, 43691, v{t}\nv_lshrrev_b32 v{t+1}, 19, v{t+1}\nv_mul_u32_u24 v{t+2}, 12, v{t+1}\nv_sub_u32 v{t}, v{t}, v{t+2}")
            A(f"v_lshrrev_b32 v{t+2}, 1, v{t+1}\nv_and_b32 v{t+2}, 2, v{t+2}\nv_xor_b32 v{t}, v{t}, v{t+2}\nv_lshlrev_b32 v{t}, 4, v{t}\nv_mad_u32_u24 v{t}, v{t+1}, s{sT3}, v{t}")
            A(f"buffer_load_dwordx4 {v(base+4*i,4)}, v{t}, {s(FLEX_,4)}, s{sT0} offen")
        A.label(l)

    def repack_store(self, base):
        A = self.A
        if not self.packed():
            return
        A(f"s_cmp_ge_u32 s{sG}, 408\ns_cbranch_scc1 {self.l_rp}")
        A(f"s_lshl_b32 s{sT0}, s{sG}, 12\ns_add_u32 s{sT0}, s{sT0}, {PACK_BASE}\nv_lshlrev_b32 v{base+16}, 4, v0")
        for i in range(4):
            A(f"s_waitcnt vmcnt(3)\nbuffer_store_dwordx4 {v(base+4*i,4)}, v{base+16}, {s(WS_,4)}, s{sT0} offen offset:{K*i}{COH}")
        A.label(self.l_rp)

    def code_prefetch(self, tag):
        A, n = self.A, self.c.codepf
        if not n:
            return
        l = self.lab("pc")
        A(f"s_getpc_b64 s[32:33]")
        A.label(l)
        A(f"s_lshr_b32 s{sT0}, s2, 3\ns_lshl2_add_u32 s{sT0}, s{sT0}, s{sW}\ns_mul_i32 s{sT0}, s{sT0}, {64*n}\ns_min_u32 s{sT0}, s{sT0}, L_end_{tag}-L_helper_{tag}-{64*n}")
        A(f"s_sub_u32 s32, s32, {l}-L_helper_{tag}\ns_subb_u32 s33, s33, 0\ns_add_u32 s32, s32, s{sT0}\ns_addc_u32 s33, s33, 0")
        for i in range(n):
            A(f"s_load_dword s101, s[32:33], {64*i}")

    def row_stats_finish(self, base):
        A = self.A
        a, b = base + 22, base + 23
        A(f"s_cmp_ge_u32 s{sW}, 2\ns_cbranch_scc1 {self.l_ns}")
        A(f"v_mov_b32 v{a}, 0\nv_mov_b32 v{b}, 0\nv_mov_b32 v{base+21}, 0x3f803f80\nv_lshlrev_b32 v{base+20}, 3, v{base+20}\nv_add_u32 v{base+20}, {STAT_BASE}, v{base+20}")
        for i in range(5):
            A(f"s_waitcnt vmcnt({4-i})")
            for r in range(4):
                d = base + 4 * i + r
                A(f"v_dot2c_f32_bf16 v{a}, v{d}, v{base+21}\nv_dot2c_f32_bf16 v{b}, v{d}, v{d}")
        for sh in (8, 4, 2, 1):
            A(f"v_add_f32_dpp v{a}, v{a}, v{a} row_ror:{sh} row_mask:0xf bank_mask:0xf\nv_add_f32_dpp v{b}, v{b}, v{b} row_ror:{sh} row_mask:0xf bank_mask:0xf")
        A(f"s_mov_b32 s{sT1}, 0x3acccccd\ns_mov_b32 s{sT2}, 0x3727c5ac")
        A(f"v_mul_f32 v{a}, s{sT1}, v{a}\nv_mul_f32 v{base}, v{a}, v{a}\nv_fma_f32 v{b}, v{b}, s{sT1}, -v{base}\nv_max_f32 v{b}, 0, v{b}\nv_add_f32 v{b}, s{sT2}, v{b}\nv_rsq_f32 v{b}, v{b}")
        A(f"s_mov_b32 exec_lo, 0x10001\ns_mov_b32 exec_hi, 0x10001\nbuffer_store_dwordx2 {v(a,2)}, v{base+20}, {s(WS_,4)}, 0 offen{COH}\ns_mov_b64 exec, -1")
        A.label(self.l_ns)

    def init_flags(self):
        A = self.A
        l = self.lab("nf")
        A(f"s_xor_b32 s{sT0}, s{sW}, 3\ns_or_b32 s{sT0}, s2, s{sT0}\ns_cmp_lg_u32 s{sT0}, 0\ns_cbranch_scc1 {l}")
        A(f"v_lshlrev_b32 v2, 7, v0\nv_add_u32 v2, {FLAG_BASE}, v2\nv_mov_b32 v3, 0\ns_movk_i32 s{sT0}, 0x2000")
        A(f"buffer_store_dword v3, v2, {s(WS_,4)}, 0 offen{COH}\nbuffer_store_dword v3, v2, {s(WS_,4)}, s{sT0} offen{COH}")
        for k in ((2, 3, 4, 5) if (self.c.pair or self.c.twin) else ()):
            A(f"s_mov_b32 s{sT0}, {k * 0x2000}\nbuffer_store_dword v3, v2, {s(WS_,4)}, s{sT0} offen{COH}")
        A("s_waitcnt vmcnt(0)")
        A(f"v_mov_b32 v2, 1\ns_mov_b64 exec, 1\nbuffer_store_dword v2, v3, {s(DBG_,4)}, 0 offen{COH}\ns_mov_b64 exec, -1")
        A.label(l)

    def publish(self, role, younger=0, pairflag=False):
        l = self.lab("pb")
        a = lines(f"v_mov_b32 v4, {MISC + CTR_OFF}\nv_mov_b32 v5, 1\ns_waitcnt vmcnt({younger})\ns_mov_b64 exec, 1\nds_add_rtn_u32 v1, v4, v5\ns_mov_b64 exec, -1")
        a += lines(f"s_lshr_b32 s{sT0}, s{sJ}, 2\ns_lshl2_add_u32 s{sT0}, s{sRB}, s{sT0}\ns_lshl_b32 s{sT0}, s{sT0}, 7\ns_add_u32 s{sT0}, s{sT0}, {FLAG_BASE + (256 if role == 'q' else 0)}\nv_mov_b32 v4, s{sT0}")
        if pairflag:
            a = a[:6] + lines(f"s_lshl3_add_u32 s{sT0}, s{sRB}, s{sJ}\ns_lshl_b32 s{sT0}, s{sT0}, 7\ns_add_u32 s{sT0}, s{sT0}, {FLAG_BASE + F_PAIR + (16384 if self.c.twin and role == 'h' else 0)}\nv_mov_b32 v4, s{sT0}")
        b = lines(f"v_readfirstlane_b32 s{sT0}, v1\ns_cmp_lg_u32 s{sT0}, {7 if pairflag else 3}\ns_cbranch_scc1 {l}\ns_mov_b64 exec, 1\nbuffer_atomic_add v5, v4, {s(WS_,4)}, 0 offen sc1\ns_mov_b64 exec, -1\n{l}:")
        return a, b

    def publish_now(self, role):
        if self.c.split:
            return
        a, b = self.publish(role)
        self.A.extend(a + ["s_waitcnt lgkmcnt(0)"] + b)

    def mfma_loop(self, role, mfmas, frags, fixups, niter, tail):
        A = self.A
        nm = len(mfmas)
        bpos = nm // 2 - 1
        first, last = {}, {}
        for i, (_, fs) in enumerate(mfmas):
            for f in fs:
                first.setdefault(f, i); last[f] = i
        order = sorted(frags, key=lambda f: first[f])
        lastuse = {}
        for f in order:
            lastuse[frags[f][1]] = f
        seq = [(it, f) for it in range(5) for f in order]
        tail = [(max([bpos] + [last[f] for f in fs]), t) for fs, t in tail]
        occupant, ready, part = {}, {}, {}
        for it, f in seq:
            key = frags[f][0]
            e = (it - 1) * nm + bpos
            if key in occupant:
                pit, pf = occupant[key]
                e = max(e, pit * nm + last[pf])
            ready[(it, f)] = e
            occupant[key] = (it, f)
        if role == "q":
            step = lines(f"s_add_u32 s{sH}, s{sH}, 1\ns_cmp_eq_u32 s{sH}, 3\ns_cselect_b32 s{sH}, 0, s{sH}\ns_cselect_b32 s{sT0}, s{sB}, s{sA}")
        else:
            step = lines(f"s_cmp_eq_u32 s{sH}, 0\ns_cselect_b32 s{sH}, 3, s{sH}\ns_cselect_b32 s{sT0}, s{sB}, s{sA}\ns_sub_u32 s{sH}, s{sH}, 1")
        bodies, origin, pend, tags = [], [], list(seq), {}
        T = Asm(); C = Counter(T, "lgkmcnt", 14)
        upd, issued_at = [], {}
        def wide_wait(tag, g):
            if tag > C.done:
                C.wait(max([tag] + [t for t, at in issued_at.items() if at <= g - self.c.age[role]]))
        for it in range(-1, 5):
            T.lines = []
            org = []
            steps = list(step) if 0 <= it < 4 else []
            for i in range(nm):
                g = it * nm + i
                if it >= 0:
                    assert all((it, f) not in pend for f in mfmas[i][1]), "operand read not issued before use"
                    wide_wait(max(tags[(it, f)] for f in mfmas[i][1]), g)
                    T(mfmas[i][0])
                n0 = len(T.lines)
                if it >= 0:
                    for f, pre, tx in fixups:
                        for h in range(2):
                            at = first[f] - pre - 2 + h
                            if at % nm == i:
                                C.wait(tags[(it if at >= 0 else it + 1, f)]); T.extend(tx[2 * h: 2 * h + 2])
                    if i == bpos - 2:
                        T(f"s_sub_u32 s{sCNT}, s{sCNT}, 1")
                    if i == bpos:
                        xs = [(it, f) for f in frags if f[0] == "X"]
                        assert all(x not in pend for x in xs)
                        m = len(T.lines)
                        wide_wait(max(tags[x] for x in xs), g)
                        T.lines[m:] = ["s_waitcnt vmcnt(0) " + (T.lines[m].split()[1] if len(T.lines) > m else "")]
                        T("s_barrier\ns_cbranch_scc1 @tail")
                if bpos + 3 <= i and steps and len(T.lines) - n0 < 2 and all(u[0] > it for u in upd) and (it, order[-1]) not in pend:
                    T(steps.pop(0))
                nready = len(upd)
                for x in pend[:6]:
                    if ready[x] > g:
                        break
                    nready += len(frags[x[1]][2]) - part.get(x, 0)
                budget = (2 if nready >= self.c.thr[role] or (it == 4 and i > bpos) else 1) - (len(T.lines) - n0)
                while budget > 0:
                    if it == 4 and i > bpos:
                        upd = []
                        if not pend:
                            if tail and tail[0][0] <= i:
                                C.issue(tail.pop(0)[1]); budget -= 1
                                continue
                            break
                    if upd and (upd[0][0] <= it or not steps):
                        ui, ut = upd.pop(0)
                        assert it < 0 or it == 4 or (len(steps) == 0 if ui > it else len(steps) == len(step)), "address update uses the wrong slot step"
                        T(ut); budget -= 1
                        continue
                    if not (pend and ready[pend[0]] <= g):
                        break
                    x = pend[0]
                    k = part.get(x, 0)
                    tags[x] = C.issue(frags[x[1]][2][k])
                    issued_at[tags[x]] = g
                    org.append((x[0], T.lines[-1]))
                    part[x] = k + 1
                    budget -= 1
                    if k + 1 == len(frags[x[1]][2]):
                        pend.pop(0)
                        ar = frags[x[1]][1]
                        if lastuse[ar] == x[1]:
                            upd.append((x[0], f"v_add_u32 v{ar}, s{sT0}, v{ar}"))
                            org.append(upd[-1])
            assert it < 0 or not steps
            if it == -1:
                C.done = C.n
            bodies.append(list(T.lines)); origin.append(org)
        assert bodies[2] == bodies[3] == bodies[4], "loop body is not periodic"
        k = bodies[2].index("s_barrier") + 2
        assert bodies[5][:k] == bodies[2][:k], "first half of the last iteration differs from the loop body"
        last_half = bodies[5][bodies[5].index("s_barrier") + 2:] + [t for _, t in tail]
        A.extend(step)
        A.extend([l for o, l in origin[2] if o == 2])
        A("s_waitcnt lgkmcnt(0)")
        for f, pre, tx in fixups:
            for h in range(2):
                if first[f] - pre - 2 + h < 0:
                    A.extend(tx[2 * h: 2 * h + 2])
        loop = self.lab("ml")
        A(f"s_mov_b32 s{sCNT}, {niter - 1}")
        if self.c.align:
            A(f"s_branch {loop}\n.p2align {self.c.align}")
            A.extend(["s_nop 0"] * self.c.aoff[role])
        A.label(loop)
        lt = self.lab("tl")
        body = [l.replace("@tail", lt) for l in bodies[2]]
        for key, pat in (("nomfma", "v_mfma"), ("notr", "ds_read_b64_tr"), ("nox", "ds_read_b128"), ("nobar", "s_barrier"), ("nowait", "s_waitcnt"), ("noupd", "v_add_u32")):
            if key in self.c.abl:
                body = [l for l in body if not l.startswith(pat)]
        if self.c.e64:
            body = self.even_bytes(body)
        A.extend(body)
        A(f"s_branch {loop}")
        A.label(lt)
        A.extend(last_half)

    @staticmethod
    def even_bytes(body):
        out, run = [], []
        short = lambda l: l.startswith(("s_waitcnt", "s_barrier", "s_cbranch", "v_add_u32 ", "s_cmp", "s_cselect", "s_add_u32", "s_sub_u32"))
        for l in body + ["v_mfma"]:
            if l.startswith("v_mfma"):
                if sum(short(x) for x in run) % 2:
                    k = [i for i, x in enumerate(run) if x.startswith("v_add_u32 ")]
                    if k:
                        run[k[0]] = run[k[0]].replace("v_add_u32 ", "v_add_u32_e64 ")
                    else:
                        run.append("s_nop 0")
                out += run + [l]; run = []
            else:
                run.append(l)
        return out[:-1]

    @staticmethod
    def fold_t(a, cs, mr, scale=True):
        o = [f"v_pk_fma_f32 {v(a+h,2)}, {v(cs+h,2)}, {v(mr,2)}, {v(a+h,2)} op_sel_hi:[1,0,1] neg_lo:[0,1,0] neg_hi:[0,1,0]" for h in (0, 2)]
        if scale:
            o += [f"v_pk_mul_f32 {v(a+h,2)}, {v(a+h,2)}, {v(mr,2)} op_sel:[0,1] op_sel_hi:[1,1]" for h in (0, 2)]
        return o

    @staticmethod
    def fold_v(a, csreg, mean4, rstd4):
        p, sel = csreg & ~1, csreg & 1
        o = [f"v_pk_fma_f32 {v(a+h,2)}, {v(mean4+h,2)}, {v(p,2)}, {v(a+h,2)} op_sel:[0,{sel},0] op_sel_hi:[1,{sel},1] neg_lo:[0,1,0] neg_hi:[0,1,0]" for h in (0, 2)]
        return o + [f"v_pk_mul_f32 {v(a+h,2)}, {v(a+h,2)}, {v(rstd4+h,2)}" for h in (0, 2)]

    @staticmethod
    def pack(d, a):
        o = [f"v_cvt_pk_bf16_f32 v{d}, v{a}, v{a+1}", f"v_cvt_pk_bf16_f32 v{d+1}, v{a+2}, v{a+3}"]
        return o[::-1] if d == a + 2 else o

    def compute_h(self):
        A, c = self.A, self.c
        vWa, vX0, vX1 = 8, 14, 15
        XF, WF, ACC, ACS, ONE, RS = 24, 56, 80, 176, 188, 192
        self.srds_compute()
        self.row_stats_load("h", RS)
        self.repack_load(RS)
        self.code_prefetch(self.tag)
        A(f"s_lshr_b32 s{sT3}, s{sW}, 1\ns_mul_i32 s{sT3}, s{sT3}, 6")
        A("v_bfe_u32 v2, v0, 2, 3\nv_lshrrev_b32 v3, 5, v0\nv_lshl_add_u32 v3, v3, 4, v2\nv_mul_u32_u24 v3, 384, v3")
        A("v_and_b32 v4, 3, v0\nv_lshl_add_u32 v3, v4, 3, v3\nv_lshrrev_b32 v2, 1, v2")
        for t in range(4):
            A(f"s_add_u32 s{sT2}, s{sT3}, {t}\nv_xor_b32 v4, s{sT2}, v2\nv_lshl_add_u32 v{vWa+t}, v4, 5, v3")
        A(f"s_and_b32 s{sT0}, s{sW}, 1\ns_lshl_b32 s{sT0}, s{sT0}, 13\ns_add_u32 s{sT0}, s{sT0}, {2*H_WH}")
        self.xfrag_addr(vX0, vX1, sT0, 2)
        for i in range(96):
            A(f"v_mov_b32 v{ACC+i}, 0")
        A(f"v_lshrrev_b32 v2, 4, v0\ns_lshr_b32 s{sT2}, s{sW}, 1\ns_mul_i32 s{sT1}, s{sT2}, 384\ns_add_u32 s{sT1}, s{sT1}, {MISC + CS_OFF}\nv_lshl_add_u32 v16, v2, 4, s{sT1}")
        A(f"v_and_b32 v2, 15, v0\ns_and_b32 s{sT0}, s{sW}, 1\ns_lshl_b32 s{sT1}, s{sT0}, 8\ns_add_u32 s{sT1}, s{sT1}, {MISC}\nv_lshl_add_u32 v17, v2, 2, s{sT1}")
        A(f"v_lshlrev_b32 v18, 4, v0\nv_add_u32 v19, 4096, v18")
        A(f"s_lshl1_add_u32 s{sT0}, s{sRB}, s{sT0}\ns_mul_i32 s{sT0}, s{sT0}, {H_BLK}")
        A(f"s_mul_i32 s{sT1}, s{sJ}, 6\ns_mul_i32 s{sT2}, s{sT2}, 3\ns_add_u32 s{sT1}, s{sT1}, s{sT2}")
        for pr, d in enumerate([sC, sD, sE]):
            A(f"s_add_u32 s{sT2}, s{sT1}, {pr}\ns_lshr_b32 s{sT3}, s{sT2}, 1\ns_lshl_b32 s{sT3}, s{sT3}, 13\ns_and_b32 s{sT2}, s{sT2}, 1\ns_lshl_b32 s{sT2}, s{sT2}, 10")
            A(f"s_add_u32 s{d}, s{sT0}, s{sT3}\ns_add_u32 s{d}, s{d}, s{sT2}")
        A(f"v_mov_b32 v2, {MISC + CTR_OFF}\nv_mov_b32 v3, 0\nds_write_b32 v2, v3")
        self.row_stats_finish(RS)
        self.repack_store(RS)
        A(f"s_mov_b32 s{sA}, {-H_SLOT}\ns_mov_b32 s{sB}, {2*H_SLOT}\ns_mov_b32 s{sH}, 0")
        A("s_waitcnt lgkmcnt(0)\ns_barrier")
        self.stamp(1)
        mf, fr = [], {}
        for st in range(2):
            xa = vX1 if st else vX0
            for i in range(4):
                fr[("X", st, i)] = (("X", st, i), xa, [f"ds_read_b128 {v(XF+16*st+4*i,4)}, v{xa} offset:{2048*i}"])
            for t in range(6):
                fr[("W", st, t)] = (("W", t), vWa + t % 4, [f"ds_read_b64_tr_b16 {v(WF+4*t+2*hf,2)}, v{vWa+t%4} offset:{H_WH*(1-st)+8*384*hf+128*(t//4)}" for hf in range(2)])
                for i in range(4):
                    a = v(ACC + 4 * (6 * i + t), 4)
                    mf.append((f"{MF} {a}, {v(WF+4*t,4)}, {v(XF+16*st+4*i,4)}, {a}", [("W", st, t), ("X", st, i)]))
        MR, CS = 216, 176
        tail = [([], f"ds_read2_b32 {v(MR+2*i,2)}, v17 offset0:{16*i} offset1:{16*i+144}") for i in range(4)]
        tail += [([], f"ds_read_b128 {v(CS+4*t,4)}, v16 offset:{64*t}") for t in range(6)]
        self.mfma_loop("h", mf, fr, [], 10, tail)
        self.stamp(2)
        A("s_waitcnt lgkmcnt(0)")
        st_mod = "" if c.split else c.st_mod
        for pr in range(3):
            for i in range(4):
                o = 224 + 4 * ((4 * pr + i) % 6)
                for tt in range(2):
                    t = 2 * pr + tt
                    a = ACC + 4 * (6 * i + t)
                    A.extend(self.fold_t(a, CS + 4 * t, MR + 2 * i, scale=not c.defer) + self.pack(o + 2 * tt, a))
                for r in range(4):
                    A(f"v_pk_max_i16 v{o+r}, v{o+r}, 0")
                A(f"buffer_store_dwordx4 {v(o,4)}, v{19 if i >= 2 else 18}, {s(WS_,4)}, s{[sC,sD,sE][pr]} offen offset:{2048*(i&1)}{st_mod}")
        self.stamp(3)
        if self.resident("h"):
            self.p2_waddr("h")
            A("s_barrier")
            for ch in range(c.nres):
                A.extend(self.p2_wreads("h", ch, self.RES + self.p2geom("h")["N"] // 4 * ch))
        self.publish_now("h")
        if (c.pair or c.twin) and c.phase2:
            A("s_barrier")
        if self.resident("h"):
            A("s_barrier")
            if c.nres2:
                for ch in range(c.nres, c.nres + c.nres2):
                    A.extend(self.p2_wreads("h", ch, self.RES + self.p2geom("h")["N"] // 4 * ch))
                A("s_waitcnt lgkmcnt(0)\ns_barrier")

    def compute_q(self):
        A, c = self.A, self.c
        vW, vX0, vX1, vH0, vH1 = 1, 2, 3, 4, 5
        BC, BP, AC, AP, ONE, vT = 8, 12, 20, 22, 28, 29
        XF, WF, AQ, AK, AV, AH = 36, 60, 120, 160, 200, 240
        RS = 60
        so = [8, 9, 12, 13, 14]
        self.srds_compute()
        self.row_stats_load("q", RS)
        self.repack_load(RS)
        self.code_prefetch(self.tag)
        self.init_flags()
        A(f"v_lshrrev_b32 v6, 4, v0\nv_and_b32 v7, 15, v0\nv_cmp_le_u32 {s(mG1,2)}, 1, v6\nv_cmp_le_u32 {s(mG2,2)}, 2, v6\nv_cmp_le_u32 {s(mG3,2)}, 3, v6")
        A(f"s_or_b32 s{sT3}, s{sRB}, s{sW}\ns_cmp_eq_u32 s{sT3}, 0\ns_cselect_b64 {s(sC,2)}, 0, -1")
        A(f"v_mov_b32 v40, 0xf149f2ca\nv_mov_b32 v41, 0\nv_mov_b32 v42, 0xffff\nv_mov_b32 v43, 0xffff0000")
        for k in range(6):
            A(f"v_mov_b32 v{AC+k}, 0")
        for r in range(4):
            A(f"v_lshl_add_u32 v44, v6, 2, {r}\nv_sub_u32 v45, v7, v44\nv_and_b32 v46, 0x80000001, v45\nv_cmp_eq_u32 vcc, 0, v46")
            A(f"v_cndmask_b32 v{BC+r}, v40, v41, vcc\nv_cndmask_b32 v47, v41, v{42+(r&1)}, vcc\nv_or_b32 v{AC+(r>>1)}, v{AC+(r>>1)}, v47")
            A(f"v_cmp_eq_u32 vcc, 0x80000000, v46")
            A(f"v_cndmask_b32 v{BP+4+r}, v40, v41, vcc\nv_cndmask_b32 v47, v41, v{42+(r&1)}, vcc\nv_or_b32 v{AP+2+(r>>1)}, v{AP+2+(r>>1)}, v47")
            A(f"s_and_b64 vcc, vcc, {s(sC,2)}")
            A(f"v_cndmask_b32 v{BP+r}, v40, v41, vcc\nv_cndmask_b32 v47, v41, v{42+(r&1)}, vcc\nv_or_b32 v{AP+(r>>1)}, v{AP+(r>>1)}, v47")
        A(f"v_mov_b32 v{ONE}, 0x3f803f80")
        A(f"s_lshl_b32 s{sT0}, s{sW}, 7\ns_add_u32 s{sT0}, s{sT0}, {MISC + 64}\ns_mov_b32 s{sT1}, {MISC}\ns_mov_b32 s{sT2}, {MISC + CS_OFF}")
        A(f"v_lshl_add_u32 v{vT}, v7, 2, s{sT0}\nv_lshl_add_u32 v{vT+1}, v7, 2, s{sT1}\nv_lshl_add_u32 v{vT+2}, v6, 4, s{sT0}\nv_lshl_add_u32 v{vT+3}, v6, 4, s{sT1}")
        A(f"v_lshl_add_u32 v{vT+4}, v6, 4, s{sT2}\nv_lshl_add_u32 v{vT+5}, v7, 2, s{sT2}")
        A(f"s_mul_i32 s{sT0}, s{sW}, 5120\ns_add_u32 s{sT0}, s{sT0}, {15*K}\nv_lshl_add_u32 v26, v0, 4, s{sT0}\nv_lshl_add_u32 v35, v0, 3, s{sT0}\nv_lshlrev_b32 v27, 3, v0")
        A(f"s_lshr_b32 s{sT0}, s{sW}, 1\ns_lshl1_add_u32 s{sT0}, s{sRB}, s{sT0}\ns_mul_i32 s{sT0}, s{sT0}, {O_BLK}\ns_and_b32 s{sT1}, s{sW}, 1\ns_lshl_b32 s{sT1}, s{sT1}, 12")
        A(f"s_add_u32 s{sT0}, s{sT0}, s{sT1}\ns_add_u32 s{sT0}, s{sT0}, {O_BASE}\ns_mul_i32 s{sT1}, s{sJ}, 5")
        for t in range(5):
            A(f"s_add_u32 s{sT2}, s{sT1}, {t}\ns_lshr_b32 s{sT3}, s{sT2}, 2\ns_lshl_b32 s{sT3}, s{sT3}, 13\ns_and_b32 s{sT2}, s{sT2}, 3\ns_lshl_b32 s{sT2}, s{sT2}, 9")
            A(f"s_add_u32 s{so[t]}, s{sT0}, s{sT3}\ns_add_u32 s{so[t]}, s{so[t]}, s{sT2}")
        A(f"v_bfe_u32 v6, v0, 2, 3\nv_lshrrev_b32 v7, 5, v0\nv_lshl_add_u32 v6, v7, 4, v6\nv_mul_u32_u24 v6, 480, v6\nv_and_b32 v7, 3, v0\nv_lshl_add_u32 v{vW}, v7, 3, v6")
        A(f"s_lshl_b32 s{sT0}, s{sW}, 12\ns_add_u32 s{sT0}, s{sT0}, {2*Q_WH + 2048}")
        self.xfrag_addr(vX0, vX1, sT0, 6)
        A(f"s_mov_b32 s{sT0}, {2*Q_WH}")
        self.xfrag_addr(vH0, vH1, sT0, 6)
        for i in range(AQ, 256):
            A(f"v_mov_b32 v{i}, 0")
        A(f"v_lshlrev_b32 v6, 2, v0\nv_add_u32 v6, {MISC + CTR_OFF}, v6\nv_mov_b32 v7, 0\nds_write_b32 v6, v7")
        self.row_stats_finish(RS)
        self.repack_store(RS)
        A(f"s_mov_b32 s{sA}, {Q_SLOT}\ns_mov_b32 s{sB}, {-2*Q_SLOT}\ns_mov_b32 s{sH}, 0")
        A("s_waitcnt lgkmcnt(0)\ns_barrier")
        self.stamp(1)
        lw = [self.lab("qw") for _ in range(4)]
        le1 = self.lab("e1")
        A(f"s_cmp_eq_u32 s{sW}, 1\ns_cbranch_scc1 {lw[1]}\ns_cmp_eq_u32 s{sW}, 2\ns_cbranch_scc1 {lw[2]}\ns_cmp_eq_u32 s{sW}, 3\ns_cbranch_scc1 {lw[3]}")
        accq = lambda t, p: (AQ + 20 * p + 4 * t) if t < 5 else (AK + 20 * p + 4 * (t - 5)) if t < 10 else (AV + 8 * (t - 10) + 4 * p)
        halo = [[t for t in range(5, 15) if (t - 5) % 4 == w] for w in range(4)]
        MR, CSV, CSK, CSQ = 36, 42, 60, 80
        VMM, VMR = (100, 104, 48), (108, 112, 52)
        XB = 15 * K
        tail = [([], f"ds_read2_b32 {v(MR,2)}, v{vT} offset0:0 offset1:144"), ([], f"ds_read2_b32 {v(MR+2,2)}, v{vT} offset0:16 offset1:160"),
                ([], f"ds_read2_b32 {v(MR+4,2)}, v{vT+1} offset0:0 offset1:144")]
        tail += [([], f"ds_read_b32 v{CSV+t}, v{vT+5} offset:{64*(10+t)}") for t in range(5)]
        tail += [([("W", 1, t)], f"ds_read_b128 {v(CSK+4*t,4)}, v{vT+4} offset:{64*(5+t)}") for t in range(5)]
        tail += [([("W", 1, 5 + t)], f"ds_read_b128 {v(CSQ+4*t,4)}, v{vT+4} offset:{64*t}") for t in range(5)]
        for i in range(3):
            ad, off = (vT + 2, 64 * i) if i < 2 else (vT + 3, 0)
            for reg, o2 in ((VMM[i], 0), (VMR[i], ST_RSTD)):
                tail.append(([("W", 1, (reg - WF) // 4 if reg >= WF else 14)], f"ds_read_b128 {v(reg,4)}, v{ad} offset:{off + o2}"))
        tail[18:] = sorted(tail[18:], key=lambda x: x[0][0][2])
        for w in range(4):
            A.label(lw[w])
            mf, fr, fix = [], {}, []
            for st in range(2):
                for i in range(3):
                    xa = [vH0, vH1][st] if i == 2 else [vX0, vX1][st]
                    fr[("X", st, i)] = (("X", st, i), xa, [f"ds_read_b128 {v(XF+12*st+4*i,4)}, v{xa} offset:{2048*i if i < 2 else 0}"])
                for t in range(15):
                    fr[("W", st, t)] = (("W", t), vW, [f"ds_read_b64_tr_b16 {v(WF+4*t+2*hf,2)}, v{vW} offset:{Q_WH*(1-st)+8*480*hf+32*t}" for hf in range(2)])
                    for i in [0, 1] + ([2] if t in halo[w] else []):
                        a = v(accq(t, i) if i < 2 else AH + 4 * halo[w].index(t), 4)
                        wf, xf = v(WF + 4 * t, 4), v(XF + 12 * st + 4 * i, 4)
                        ops = f"{wf}, {xf}" if t < 10 else f"{xf}, {wf}"
                        mf.append((f"{MF} {a}, {ops}, {a}", [("W", st, t), ("X", st, i)]))
            self.mfma_loop("q", mf, fr, fix, 10, tail)
            if w < 3:
                A(f"s_branch {le1}")
        A.label(le1)
        self.stamp(2); self.estamp(1)
        A(f"v_lshlrev_b32 v7, 3, v0\nv_add_u32 v6, {XB}, v7\nv_add_u32 v7, v6, v7\ns_waitcnt lgkmcnt(6)")
        self.estamp(2)
        KC = lambda p: AK + 10 * p
        KP = AK + 20
        foldk = lambda p, t: self.fold_t(AK + 20 * p + 4 * t, CSK + 4 * t, MR + 2 * p) + self.pack(KC(p) + 2 * t, AK + 20 * p + 4 * t)
        def foldv(p, t):
            a = AV + 8 * t + 4 * p
            return self.fold_v(a, CSV + t, VMM[p], VMR[p]) + self.pack(AV + 8 * t + 4 + 2 * p, a)
        for t in range(5):
            A.extend(foldk(0, t))
        wr = {}
        wr["k"] = [f"ds_write_b128 v26, {v(KC(1),4)} offset:5120", f"ds_write_b128 v26, {v(KC(1)+4,4)} offset:6144", f"ds_write_b64 v35, {v(KC(1)+8,2)} offset:7168"]
        lh = [self.lab("hw") for _ in range(5)]
        for t in range(5):
            A.extend(foldk(1, t))
        if c.phase2 and not c.split and c.xat["q"] == -2:
            setup, _, xl = self.p2_out("q", 192, early=True)
            A.extend(setup + xl)
        A(f"s_waitcnt lgkmcnt(0)\ns_cmp_eq_u32 s{sW}, 1\ns_cbranch_scc1 {lh[1]}\ns_cmp_eq_u32 s{sW}, 2\ns_cbranch_scc1 {lh[2]}\ns_cmp_eq_u32 s{sW}, 3\ns_cbranch_scc1 {lh[3]}")
        for w in range(4):
            A.label(lh[w])
            blocks = []
            for t in halo[w]:
                a = AH + 4 * halo[w].index(t)
                if 5 <= t < 10:
                    k = t - 5
                    blocks.append(self.fold_t(a, CSK + 4 * k, MR + 4) + self.pack(a, a) +
                                  [f"ds_write_b64 v7, {v(a,2)} offset:{K*(k>>1)+8*(k&1)}" if k < 4 else f"ds_write_b64 v6, {v(a,2)} offset:2048"])
                elif t >= 10:
                    k = t - 10
                    blocks.append(self.fold_v(a, CSV + k, VMM[2], VMR[2]) + self.pack(a, a) + [f"ds_write_b64 v6, {v(a,2)} offset:{2560+512*k}"])
            for t in range(5):
                blocks.append(foldv(1, t) + ([f"ds_write_b64 v35, {v(AV+8*t+6,2)} offset:{5120+2560+512*t}"] if w < 3 else []))
            seq = sum(blocks, [])
            if c.spread:
                wv = [l for l in seq if l.startswith("ds_write")][: len(halo[w])]
                seq = [l for l in seq if not l.startswith("ds_write")]
                n0 = 6 * len(halo[w])
                A.extend(weave(seq[:n0], wr["k"][:1] if w < 3 else [], 6, 1))
                A.extend(weave(seq[n0:], (wr["k"][1:] if w < 3 else []) + wv, 6, 1))
            else:
                A.extend(weave(seq, wr["k"] if w < 3 else [], 14, 1))
            if w < 3:
                A(f"s_branch {lh[4]}")
        A.label(lh[4])
        fv0 = sum((foldv(0, t) for t in range(5)), [])
        if c.spread:
            fv0 = weave(fv0, [f"ds_write_b64 v35, {v(AV+8*t+6,2)} offset:{5120+2560+512*t}" for t in range(5)], 6, 1)
        A.extend(fv0)
        A(f"s_mov_b32 s{sT0}, 0x3ea52b5c\nv_mul_f32 v{MR+1}, s{sT0}, v{MR+1}\nv_mul_f32 v{MR+3}, s{sT0}, v{MR+3}")
        QH = lambda p, h: 42 + 16 * p + 4 * h
        masks = [None, mG1, mG2, mG3]
        def foldq(p):
            o = []
            for t in range(5):
                a = AQ + 20 * p + 4 * t
                d = QH(p, 0) if t == 0 else (QH(p, 3) + 2 if t == 4 else a)
                o += self.fold_t(a, CSQ + 4 * t, MR + 2 * p, scale=False) + self.pack(d, a)
                if 1 <= t <= 3:
                    for r in range(2):
                        o += [f"v_cndmask_b32 v{QH(p,t)+r}, 0, v{a+r}, {s(masks[t],2)}", f"v_cndmask_b32 v{QH(p,t-1)+2+r}, v{a+r}, 0, {s(masks[t],2)}"]
            return o
        A(f"v_mov_b32 v1, {MISC + XFL_OFF}\nv_mov_b32 v2, 1\nv_mov_b32 v3, 4\ns_lshl_b32 s{sT0}, s{sW}, 2\nv_add_u32 v4, s{sT0}, v1")
        fq = foldq(1)
        k = len(fq) // 2 if c.spread else 0
        A.extend(fq[:k])
        A(f"s_waitcnt lgkmcnt(0)\ns_mov_b64 exec, 1\nds_add_u32 v1, v2\nds_write_b32 v4, v3 offset:4\ns_mov_b64 exec, -1")
        A.extend(fq[k:])
        self.estamp(3)
        A("ds_read_b32 v5, v4")
        SP = lambda p, h: (140 + 8 * h if h < 2 else 240 + 8 * (h - 2)) if p else 74 + 8 * h
        MX, MRS, ONE4 = 106, 114, 116
        def qk(p):
            prev = KC(0) if p else KP
            return [f"{MF} {v(SP(p,h)+4,4)}, {v(KC(p)+2*h,4)}, {v(QH(p,h),4)}, {v(BC,4)}" for h in range(4)] + \
                   [f"{MF} {v(SP(p,h),4)}, {v(prev+2*h,4)}, {v(QH(p,h),4)}, {v(BP+4*p,4)}" for h in range(4)]
        def rowmax(p):
            o, m = [], MX + 4 * p
            for h in range(4):
                b = SP(p, h)
                o += [f"v_max_f32 v{b+4+r}, v{b+r}, v{b+4+r}" for r in range(4)]
                o += [f"v_max3_f32 v{m+h}, v{b+4}, v{b+5}, v{b+6}", f"v_max_f32 v{m+h}, v{m+h}, v{b+7}"]
            o += lines(f"v_permlane32_swap_b32 v{m}, v{m+1}\nv_permlane32_swap_b32 v{m+2}, v{m+3}\nv_max_f32 v{m}, v{m}, v{m+1}\nv_max_f32 v{m+2}, v{m+2}, v{m+3}")
            o += lines(f"v_permlane16_swap_b32 v{m}, v{m+2}\nv_max_f32 v{m}, v{m}, v{m+2}\nv_mul_f32 v{m}, v{m}, v{MR+2*p+1}\nv_mov_b32 v{m+2}, v{m}\nv_permlane16_swap_b32 v{m}, v{m+2}")
            o += lines(f"v_mov_b32 v{m+1}, v{m}\nv_mov_b32 v{m+3}, v{m+2}\nv_permlane32_swap_b32 v{m}, v{m+1}\nv_permlane32_swap_b32 v{m+2}, v{m+3}")
            return o
        def probs(p):
            o = []
            for h in range(4):
                b, m = SP(p, h), MX + 4 * p + h
                o += [f"v_pk_fma_f32 {v(b+4+r,2)}, {v(b+4+r,2)}, {v(MR+2*p,2)}, {v(m & ~1,2)} op_sel:[0,1,{m&1}] op_sel_hi:[1,1,{m&1}] neg_lo:[0,0,1] neg_hi:[0,0,1]" for r in (0, 2)]
                o += [f"v_exp_f32 v{b+4+r}, v{b+4+r}" for r in range(4)]
            for h in range(4):
                b = SP(p, h)
                o += self.pack(b + 4, b + 4)
                o += lines(f"v_and_b32 v{b}, v{AP+2*p}, v{b+4}\nv_and_b32 v{b+1}, v{AP+2*p+1}, v{b+5}\nv_and_b32 v{b+2}, v{AC}, v{b+4}\nv_and_b32 v{b+3}, v{AC+1}, v{b+5}")
            return o
        OT = {}
        pool = {1: list(range(42, 74, 4)), 0: list(range(160, 192, 4))}
        def pv(p):
            o = [f"{MF} {v(SP(p,h)+4,4)}, {v(ONE4,4)}, {v(SP(p,h),4)}, 0" for h in range(4)]
            for t in range(5):
                for h in ([t - 1] if t >= 1 else []) + ([t] if t <= 3 else []):
                    OT[(p, t, h)] = pool[p].pop(0)
                    o.append(f"{MF} {v(OT[(p,t,h)],4)}, {v(AV+8*t+2+2*p,4)}, {v(SP(p,h),4)}, 0")
            return o
        st_mod = "" if c.split else c.st_mod
        def final(p):
            m0 = MX + 4 * p
            o = [f"v_rcp_f32 v{m0+h}, v{SP(p,h)+4}" for h in range(4)]
            for t in range(5):
                if 1 <= t <= 3:
                    a, b2 = OT[(p, t, t - 1)], OT[(p, t, t)]
                    o += [f"v_cndmask_b32 v{a+r}, v{a+r}, v{b2+r}, {s(masks[t],2)}" for r in range(4)]
                    o.append(f"v_cndmask_b32 v{b2}, v{m0+t-1}, v{m0+t}, {s(masks[t],2)}")
                    m = b2
                else:
                    a, m = OT[(p, t, min(t, 3))], m0 + min(t, 3)
                o += [f"v_pk_mul_f32 {v(a+r,2)}, {v(a+r,2)}, {v(m & ~1,2)} op_sel:[0,{m&1}] op_sel_hi:[1,{m&1}]" for r in (0, 2)]
                o += self.pack(a, a)
                o.append(f"buffer_store_dwordx2 {v(a,2)}, v27, {s(WS_,4)}, s{so[t]} offen offset:{2048*p}{st_mod}")
            return o
        A.extend(weave(foldq(0), qk(1), 3, 1))
        lx, ly = self.lab("xs"), self.lab("xd")
        A(f"s_waitcnt lgkmcnt(0)\nv_cmp_gt_u32 vcc, 4, v5\ns_cbranch_vccz {ly}\ns_mov_b32 s{sT1}, {SPIN_LIMIT}")
        A.label(lx)
        A(f"ds_read_b32 v5, v4\ns_waitcnt lgkmcnt(0)\nv_cmp_gt_u32 vcc, 4, v5\ns_cbranch_vccz {ly}\ns_sub_u32 s{sT1}, s{sT1}, 1\ns_cbranch_scc0 {lx}")
        A.label(ly)
        self.estamp(4)
        A(f"ds_read_b128 {v(KP,4)}, v26\nds_read_b128 {v(KP+4,4)}, v26 offset:1024\nds_read_b64 {v(KP+8,2)}, v35 offset:2048")
        for t in range(5):
            A(f"ds_read_b64 {v(AV+8*t+2,2)}, v35 offset:{2560+512*t}")
        A.extend([f"v_mov_b32 v{ONE4+r}, v{ONE}" for r in range(4)] + rowmax(1))
        self.estamp(5)
        A("s_waitcnt lgkmcnt(0)")
        A.extend(weave(probs(1), qk(0), 3, 1))
        A.extend(weave(rowmax(0) + probs(0), pv(1), 3, 2))
        self.estamp(6)
        A.extend(weave(final(1), pv(0), 3, 2))
        A.extend(final(0))
        self.stamp(3); self.estamp(7)
        if not (c.phase2 and c.pubq) or self.selfrun("q"):
            self.publish_now("q")

    def p2geom(self, role):
        wide = self.c.wide == role
        kb = lambda *x: [i * K for i in x]
        if self.c.twin and role == "q":
            return dict(N=64, nW=2, w=kb(148, 64, 72, 80, 128, 136, 88, 32), wbase=kb(32, 128), a=kb(112, 48, 96, 0, 16), abase=kb(0, 96), wpre=7)
        if self.c.twin:
            return dict(N=96, nW=3, w=kb(144, 132, 120, 108, 96, 84, 72), wbase=kb(72, 120), a=kb(48, 32, 16, 0), abase=kb(0, 160), wpre=7)
        if role == "q" and not wide:
            return dict(N=64, nW=2, w=kb(64, 72, 80, 88, 112, 120, 128, 136), wbase=kb(64, 112), a=kb(144, 48, 56, 96, 104, 40), abase=kb(40, 96))
        if role == "q":
            return dict(N=96, nW=3, w=kb(144, 84, 132, 120, 108, 96), wbase=kb(84, 120), a=kb(76, 68, 60, 52, 44, 36), abase=kb(36, 160))
        if wide:
            return dict(N=96, nW=3, w=kb(144, 132, 120, 108, 96, 84, 72, 60), wbase=kb(60, 108), a=kb(52, 44, 36, 28, 20, 12), abase=kb(12, 160))
        return dict(N=64, nW=2, w=kb(144, 136, 128, 120, 112, 104, 96, 88, 80, 72), wbase=kb(72, 112), a=kb(64, 56, 48, 40, 32, 24, 16), abase=kb(16, 160))

    P2W, P2A, P2F, P2L, STG = 48, 51, 52, 56, 64
    sPW, sPA, sPM, sPN, sPB, sBW, sOWN, sOTH = 4, 5, 6, 7, 8, 11, 16, 17
    SEG = {0: (12, 1), 12: (12, 0), 24: (5, 1), 29: (5, 0)}

    RES = 72
    s1280 = 999

    def resident(self, role):
        c = self.c
        return 0 if (c.pair or c.twin) else c.nres + c.nres2 if (role == "h" and c.phase2 and not c.split) else 0

    def p2_waddr(self, role):
        A, g = self.A, self.p2geom(role)
        N = g["N"]; NT = N // 32; vWa = 8
        A(f"v_lshrrev_b32 v3, 4, v0\nv_bfe_u32 v2, v0, 2, 2\nv_lshl_add_u32 v2, v3, 2, v2\nv_mul_u32_u24 v4, {2*N}, v2\nv_and_b32 v5, 3, v0\nv_lshl_add_u32 v4, v5, 3, v4")
        A("v_bfe_u32 v2, v2, 1, 2" if N == 64 else "v_and_b32 v2, 1, v3")
        A(f"s_lshr_b32 s{sT0}, s{sW}, 1\ns_mul_i32 s{sT0}, s{sT0}, {NT}")
        for i in range(NT):
            A(f"s_add_u32 s{sT1}, s{sT0}, {i}\nv_xor_b32 v3, s{sT1}, v2\nv_lshl_add_u32 v3, v3, 5, v4\nv_add_u32 v{vWa+i}, {g['wbase'][0]}, v3\nv_add_u32 v{vWa+3+i}, {g['wbase'][1]}, v3")

    def p2_wreads(self, role, ch, base, ks_list=(0, 1)):
        g = self.p2geom(role)
        N = g["N"]; NT = N // 32
        wb = 1 if g["w"][ch % len(g['w'])] >= g["wbase"][1] else 0
        wo = g["w"][ch % len(g['w'])] - g["wbase"][wb]
        return [f"ds_read_b64_tr_b16 {v(base+4*(NT*ks+i)+2*hf,2)}, v{8+3*wb+i} offset:{wo+(32*ks+16*hf)*2*N}"
                for ks in ks_list for i in range(NT) for hf in range(2)]

    def p2_colbytes(self, N):
        if N == 64:
            self.A(f"s_lshl_b32 s{sCOL}, s{sCOL}, 7\ns_add_u32 s{sCOL}, s{sCOL}, 768")
        else:
            self.A(f"s_mul_i32 s{sCOL}, s{sCOL}, 192")

    def p2_loader_setup(self, role):
        A, g = self.A, self.p2geom(role)
        self.wnext = 0
        if not self.c.phase2:
            return
        if self.c.pair:
            return self.p3_loader_setup(role)
        self.p2_colbytes(g["N"])
        if g["N"] == 64:
            A(f"v_lshrrev_b32 v2, 3, v0\nv_and_b32 v3, 6, v2\nv_and_b32 v4, 7, v0\nv_xor_b32 v3, v3, v4\nv_mul_u32_u24 v2, 1280, v2\nv_lshl_add_u32 v2, v3, 4, v2")
            A(f"s_mul_i32 s{sT0}, s{sW}, {16*1280}\ns_add_u32 s{sT0}, s{sT0}, s{sCOL}\nv_add_u32 v{self.P2W}, s{sT0}, v2\nv_add_u32 v{self.P2W+1}, {8*1280-K}, v{self.P2W}")
        elif self.packed():
            A(f"s_mul_i32 s{sT0}, s{sCOL}, 2176\ns_mul_i32 s{sT1}, s{sW}, 3072\ns_add_u32 s{sT0}, s{sT0}, s{sT1}\ns_add_u32 s{sT0}, s{sT0}, {PACK_BASE}\nv_lshl_add_u32 v{self.P2W}, v0, 4, s{sT0}")
        else:
            for i in range(3):
                A(f"s_mul_i32 s{sT0}, s{sW}, 192\ns_add_u32 s{sT0}, s{sT0}, {64*i}\nv_add_u32 v2, s{sT0}, v0")
                A("v_mul_u32_u24 v3, 5462, v2\nv_lshrrev_b32 v3, 16, v3\nv_mul_u32_u24 v4, 12, v3\nv_sub_u32 v2, v2, v4")
                A("v_lshrrev_b32 v4, 1, v3\nv_and_b32 v4, 2, v4\nv_xor_b32 v2, v2, v4\nv_mul_u32_u24 v3, 1280, v3\nv_lshl_add_u32 v2, v2, 4, v3")
                A(f"s_sub_u32 s{sT0}, s{sCOL}, {K*i}\nv_add_u32 v{self.P2W+i}, s{sT0}, v2")
        A(f"s_lshl_b32 s{self.sPN}, s{sW}, 11\nv_lshl_add_u32 v{self.P2A}, v0, 4, s{self.sPN}")
        if self.selfrun(role):
            srd(A, OUT_, 16, 2048 * 1280)
        A(f"s_lshr_b32 s{self.sOWN}, s{sJ}, 2\ns_xor_b32 s{self.sOTH}, s{self.sOWN}, 1\ns_lshl_b32 s{sT0}, s{sRB}, 9\ns_add_u32 s{sT0}, s{sT0}, {FLAG_BASE}")
        A(f"s_lshl_b32 s{sT1}, s{self.sOTH}, 7\ns_add_u32 s{sT1}, s{sT1}, s{sT0}\nv_mov_b32 v{self.P2F}, s{sT1}\nv_xor_b32 v{self.P2F+1}, 128, v{self.P2F}")
        A(f"s_mul_i32 s{self.sPM}, s{sW}, {K*g['nW']}")
        if self.c.twin:
            A(f"s_and_b32 s{sT0}, s{sW}, 1\ns_lshl_b32 s{sT0}, s{sT0}, 12\nv_lshl_add_u32 v{self.P2L}, v0, 4, s{sT0}\ns_lshr_b32 s{sT0}, s{sW}, 1\ns_xor_b32 s14, s{sBLK}, s{sT0}\ns_lshl_b32 s15, s{sW}, 12")
            A(f"s_bfe_u32 s{sT0}, s{sJ}, 0x10001\ns_add_u32 s{sT0}, s{sT0}, s{sRB}\ns_add_u32 s{sT0}, s{sT0}, {0 if role == 'q' else 2}\ns_and_b32 s{sT0}, s{sT0}, 3\ns_mul_i32 s18, s{sT0}, 3\ns_lshr_b32 s18, s18, 1")
            A(f"s_xor_b32 s{sT0}, s{sJ}, 1\ns_lshl3_add_u32 s{sT0}, s{sRB}, s{sT0}\ns_lshl_b32 s{sT0}, s{sT0}, 7\ns_add_u32 s{sT0}, s{sT0}, {FLAG_BASE + F_PAIR + (0 if role == 'q' else 16384)}\nv_mov_b32 v{self.P2F+3}, s{sT0}")
        if self.c.touch and self.packed():
            A(f"s_bfe_u32 s{sT0}, s2, 0x40003\ns_lshl2_add_u32 s{sT0}, s{sT0}, s{sW}\nv_lshrrev_b32 v2, 1, v0\nv_and_b32 v3, 1, v0\nv_lshlrev_b32 v3, 7, v3\ns_movk_i32 s{sT3}, 1280")
            A(f"v_min_u32 v4, 11, v2\nv_min_u32 v2, 9, v2\nv_mad_u32_u24 v4, v4, s{sT3}, v3\nv_mad_u32_u24 v2, v2, s{sT3}, v3")
            A(f"s_mul_i32 s{sT1}, s{self.sOWN}, {768*1280 + 256}\ns_mul_i32 s{sT2}, s{sT0}, {12*1280}\ns_add_u32 s{sT1}, s{sT1}, s{sT2}\ns_add_u32 s{sT1}, s{sT1}, 768\nv_add_u32 v42, s{sT1}, v4")
            A(f"s_lshl_b32 s{sT1}, s{self.sOWN}, 8\ns_mul_i32 s{sT2}, s{sT0}, {10*1280}\ns_add_u32 s{sT1}, s{sT1}, s{sT2}\ns_add_u32 s{sT1}, s{sT1}, 768\nv_add_u32 v43, s{sT1}, v2")
            A(f"s_and_b32 s{sT1}, s{sT0}, 1\ns_lshl1_add_u32 s{sT1}, s{self.sOWN}, s{sT1}\ns_mul_i32 s{sT1}, s{sT1}, {PACK_CT}\ns_add_u32 s{sT1}, s{sT1}, {PACK_BASE}\ns_lshr_b32 s{sT0}, s{sT0}, 1")
            A(f"v_min_u32 v2, 35, v0\nv_lshlrev_b32 v2, 7, v2\ns_mul_i32 s{sT2}, s{sT0}, {36*128}\ns_mul_i32 s{sT3}, s{self.sOWN}, {768*192}\ns_add_u32 s{sT2}, s{sT2}, s{sT3}\ns_add_u32 s{sT2}, s{sT2}, s{sT1}\nv_add_u32 v128, s{sT2}, v2")
            A(f"v_min_u32 v2, 29, v0\nv_lshlrev_b32 v2, 7, v2\ns_mul_i32 s{sT2}, s{sT0}, {30*128}\ns_add_u32 s{sT2}, s{sT2}, s{sT1}\ns_add_u32 s{sT2}, s{sT2}, {1536*192}\nv_add_u32 v129, s{sT2}, v2")
        elif self.c.touch and not self.c.split:
            A(f"s_bfe_u32 s{sT0}, s2, 0x40003\ns_lshl2_add_u32 s{sT0}, s{sT0}, s{sW}\nv_mul_u32_u24 v2, 52, v0\nv_lshrrev_b32 v2, 8, v2\nv_mul_u32_u24 v3, 5, v2\nv_sub_u32 v3, v0, v3")
            A(f"s_lshl_b32 s{sT1}, s{self.sOWN}, 7\ns_sub_u32 s{sT1}, 384, s{sT1}\nv_mov_b32 v4, s{sT1}\nv_cmp_le_u32 vcc, 3, v3\nv_cndmask_b32 v4, 0, v4, vcc\nv_lshl_add_u32 v3, v3, 7, v4")
            A(f"v_min_u32 v4, 11, v2\nv_min_u32 v2, 9, v2\nv_mad_u32_u24 v4, v4, s{self.s1280}, v3\nv_mad_u32_u24 v2, v2, s{self.s1280}, v3".replace(f"s{self.s1280}", f"s{sT3}").replace("v_min_u32 v4, 11", f"s_movk_i32 s{sT3}, 1280\nv_min_u32 v4, 11"))
            A(f"s_mul_i32 s{sT1}, s{self.sOWN}, {768*1280 + 384}\ns_mul_i32 s{sT2}, s{sT0}, {12*1280}\ns_add_u32 s{sT1}, s{sT1}, s{sT2}\nv_add_u32 v42, s{sT1}, v4")
            A(f"s_mul_i32 s{sT1}, s{self.sOWN}, 384\ns_mul_i32 s{sT2}, s{sT0}, {10*1280}\ns_add_u32 s{sT1}, s{sT1}, s{sT2}\nv_add_u32 v43, s{sT1}, v2")

    def p2_prep_w(self, cw, role):
        lim, d = (12 if cw < 24 else 5), (sT2, 12)[cw & 1]
        pk = self.packed() and role == self.c.wide
        o = []
        if cw in self.SEG:
            o += lines(f"s_mov_b32 s{self.sPW}, s{sROT2 if cw < 24 else sROT3}\ns_mul_i32 s{self.sBW}, s{self.sOTH if self.SEG[cw][1] else self.sOWN}, {lim}")
            if pk and cw >= 24:
                o.append(f"s_add_u32 s{self.sBW}, s{self.sBW}, 24")
        return o + lines(f"s_cmp_ge_u32 s{self.sPW}, {lim}\ns_cselect_b32 s{d}, {lim}, 0\ns_sub_u32 s{self.sPW}, s{self.sPW}, s{d}\ns_add_u32 s{d}, s{self.sPW}, s{self.sBW}\ns_mul_i32 s{d}, s{d}, {12288 if pk else 64*1280}\ns_add_u32 s{self.sPW}, s{self.sPW}, 1")

    def p2_issue_w(self, role, cw, C=None, fill=()):
        A, g = self.A, self.p2geom(role)
        emit = (C.issue if C else A)
        A(f"s_add_u32 m0, s{self.sPM}, {g['w'][cw % len(g['w'])]}")
        for i in range(g["nW"]):
            if self.packed() and role == self.c.wide:
                tag = emit(f"buffer_load_dwordx4 v{self.P2W}, {s(WS_,4)}, s{(sT2, 12)[cw & 1]} offen offset:{K*i}{COH} lds")
            else:
                tag = emit(f"buffer_load_dwordx4 v{self.P2W+i}, {s(W2_ if cw < 24 else WO_,4)}, s{(sT2, 12)[cw & 1]} offen offset:{K*i} lds")
            if i == 0:
                A.extend(fill)
        return tag

    def p2_prep_a(self, ca):
        lim, d = (12 if ca < 24 else 5), (sT3, 13)[ca & 1]
        o = []
        if ca in self.SEG:
            o += lines(f"s_mov_b32 s{self.sPA}, s{sROT2 if ca < 24 else sROT3}\ns_mul_i32 s{self.sPB}, s{sBLK}, {H_BLK if ca < 24 else O_BLK}\ns_mul_i32 s{d}, s{self.sOTH if self.SEG[ca][1] else self.sOWN}, {8192*lim}")
            o += lines(f"s_add_u32 s{self.sPB}, s{self.sPB}, s{d}\ns_add_u32 s{self.sPB}, s{self.sPB}, {H_BASE if ca < 24 else O_BASE}")
        return o + lines(f"s_cmp_ge_u32 s{self.sPA}, {lim}\ns_cselect_b32 s{d}, {lim}, 0\ns_sub_u32 s{self.sPA}, s{self.sPA}, s{d}\ns_lshl_b32 s{d}, s{self.sPA}, 13\ns_add_u32 s{d}, s{d}, s{self.sPB}\ns_add_u32 s{self.sPA}, s{self.sPA}, 1")

    def p2_issue_a(self, role, ca, C, set_m0=True, fill=()):
        A, g = self.A, self.p2geom(role)
        if set_m0:
            A(f"s_add_u32 m0, s{self.sPN}, {g['a'][ca % len(g['a'])]}")
        mod = "" if self.c.split else self.c.ld_mod
        for i in range(2):
            tag = C.issue(f"buffer_load_dwordx4 v{self.P2A}, {s(WS_,4)}, s{(sT3, 13)[ca & 1]} offen offset:{K*i}{mod} lds")
            if i == 0:
                A.extend(fill)
        return tag

    def p2_prefetch(self, role, upto):
        k = 0
        while self.wnext < upto:
            if self.c.twin:
                self.A.extend(self.p4_prep(role, "w", self.wnext))
                self.p4_issue_w(role, self.wnext)
            elif self.c.pair:
                self.A.extend(self.p3_prep(role, "w", self.wnext))
                self.p3_issue_w(role, self.wnext)
            else:
                self.A.extend(self.p2_prep_w(self.wnext, role))
                self.p2_issue_w(role, self.wnext)
            self.wnext += 1
            k += 3 if self.c.pair else self.p2geom(role)["nW"]
        return k

    def p2_loader(self, role, pending):
        A, g, c = self.A, self.p2geom(role), self.c
        A("; phase 2")
        C = Counter(A, "vmcnt", 62)
        RW, RA, nW, NR = len(g["w"]), len(g["a"]), g["nW"], self.resident(role)
        tw, ta, later = {}, {}, []
        vR = self.P2F + 2
        def next_w():
            A.extend(self.p2_prep_w(self.wnext, role))
            tw[self.wnext] = self.p2_issue_w(role, self.wnext, C)
            self.wnext += 1
        def one_a(ca):
            A.extend(self.p2_prep_a(ca)); ta[ca] = self.p2_issue_a(role, ca, C)
        def poll(seg):
            return C.issue(f"buffer_load_dword v{vR}, v{self.P2F + 1 - self.SEG[seg][1]}, {s(WS_,4)}, 0 offen offset:{256 * (seg >= 24)}{COH}")
        def confirm(seg, tag):
            C.wait(tag)
            self.check(vR, self.P2F + 1 - self.SEG[seg][1], WS_, 4, 256 * (seg >= 24))
        C.n = pending
        for cw in range(self.wnext):
            tw[cw] = max(0, pending - nW * (self.wnext - 1 - cw))
        if c.split:
            next_w()
            for ca in range(RA):
                one_a(ca)
            while self.wnext < RW:
                next_w()
        else:
            if NR:
                assert self.wnext >= c.nres
                C.wait(tw[c.nres - 1])
                A("s_barrier")
                for _ in range(min(c.midw, RW - self.wnext)):
                    next_w()
                if c.nres2:
                    C.wait(tw[NR - 1])
                A("s_barrier")
                if c.nres2:
                    next_w()
                    A("s_barrier")
            if role == "h" and c.owntouch:
                A(f"s_lshr_b32 s{sT0}, s{sW}, 1\ns_lshl1_add_u32 s{sT0}, s{sRB}, s{sT0}\ns_mul_i32 s{sT0}, s{sT0}, {H_BLK}\ns_mul_i32 s{sT1}, s{sJ}, {3*8192}\ns_add_u32 s{sT0}, s{sT0}, s{sT1}")
                A(f"s_and_b32 s{sT1}, s{sW}, 1\ns_mul_i32 s{sT1}, s{sT1}, {96*128}\ns_add_u32 s{sT0}, s{sT0}, s{sT1}\nv_lshlrev_b32 v2, 7, v0\nv_and_b32 v3, 31, v0\nv_lshlrev_b32 v3, 7, v3\ns_add_u32 s{sT1}, s{sT0}, 8192")
                own = [f"buffer_load_dword v58, v2, {s(WS_,4)}, s{sT0} offen{COH}", f"buffer_load_dword v59, v3, {s(WS_,4)}, s{sT1} offen{COH}"]
                if c.owntouch == 1:
                    for o in own:
                        C.issue(o)
            if role == "q" and c.touch and c.tfirst:
                C.issue(f"buffer_load_dword v58, v42, {s(W2_,4)}, 0 offen")
                C.issue(f"buffer_load_dword v59, v43, {s(WO_,4)}, 0 offen")
            stop = min(RW + NR, self.wnext + c.gapw) if role == "h" else RW
            while self.wnext < stop - 2:
                next_w()
            pollt = poll(0)
            while self.wnext < stop:
                next_w()
            confirm(0, pollt)
            self.trace(11)
            self.stamp(3)
            for ca in range(c.na0[role]):
                one_a(ca)
            if role == "h" and c.owntouch == 2:
                A(f"s_lshr_b32 s{sT0}, s{sW}, 1\ns_lshl1_add_u32 s{sT0}, s{sRB}, s{sT0}\ns_mul_i32 s{sT0}, s{sT0}, {H_BLK}\ns_mul_i32 s{sT1}, s{sJ}, {3*8192}\ns_add_u32 s{sT0}, s{sT0}, s{sT1}")
                A(f"s_and_b32 s{sT1}, s{sW}, 1\ns_mul_i32 s{sT1}, s{sT1}, {96*128}\ns_add_u32 s{sT0}, s{sT0}, s{sT1}\ns_add_u32 s{sT1}, s{sT0}, 8192")
                for o in own:
                    C.issue(o)
            later = [lambda ca=ca: one_a(ca) for ca in range(c.na0[role], RA)]
            assert RW + NR - self.wnext <= max(2, NR + 1)
            if role == "q" and c.touch and not c.tfirst:
                C.issue(f"buffer_load_dword v58, v42, {s(W2_,4)}, 0 offen")
                if c.touch == "q":
                    C.issue(f"buffer_load_dword v59, v43, {s(WO_,4)}, 0 offen")
                if self.packed() and c.tpack:
                    C.issue(f"buffer_load_dword v58, v128, {s(WS_,4)}, 0 offen{COH}")
                    C.issue(f"buffer_load_dword v59, v129, {s(WS_,4)}, 0 offen{COH}")
        want_a = lambda ch: ch >= 2 and ch - 2 + RA < 34
        want_w = lambda ch: ch >= 2 + NR and ch - 2 + RW < 34
        state = dict(pollt=None)

        def epoch(ch, set_m0):
            ca, cw = ch - 2 + RA, ch - 2 + RW
            for _ in range(-(-len(later) // (2 - ch)) if later else 0):
                later.pop(0)()
            if ca in (12, 24, 29) and not c.split:
                if ca == 24:
                    self.stamp(4)
                confirm(ca, state["pollt"])
                if ca == 24:
                    self.stamp(5)
            if ca + 2 in (12, 24, 29) and not c.split:
                state["pollt"] = poll(ca + 2)
            pa = self.p2_prep_a(ca + 1) if want_a(ch + 1) else []
            pw = self.p2_prep_w(cw + 1, role) if want_w(ch + 1) else []
            if want_a(ch):
                ta[ca] = self.p2_issue_a(role, ca, C, set_m0, pa); pa = []
            if want_w(ch):
                tw[cw] = self.p2_issue_w(role, cw, C, pw); pw = []
            if self.wnext < RW + NR and (ch >= c.wlate or RW + NR - self.wnext > NR - ch):
                assert not pw
                next_w()
            A.extend(pa + pw)

        if self.selfrun(role):
            self.p2_compute(role, (C, ta, tw, epoch))
            return
        for ch in range(34):
            if want_a(ch):
                A(f"s_add_u32 m0, s{self.sPN}, {g['a'][(ch - 2 + RA) % RA]}")
            C.wait(max(ta[ch], tw[ch]))
            A("s_barrier")
            self.trace(12 + ch)
            epoch(ch, c.trace)
        self.stamp(6)

    def selfrun(self, role):
        c = self.c
        return role == "q" and c.selfq and c.phase2 and not c.split

    def p2_out(self, role, XR, own=None, early=False):
        A, g = self.A, self.p2geom(role)
        NT = g["N"] // 32
        va, vb, t0, t1 = (190, 7, 191, 192) if early else (6, 7, 2, 3)
        m = len(A.lines)
        if not own:
            self.p2_colbytes(g["N"])
        A(f"s_and_b32 s{sT0}, s{sW}, 1\ns_lshl1_add_u32 s{sT0}, s{sBLK}, s{sT0}\ns_mul_i32 s{sT0}, s{sT0}, {32*1280}\ns_add_u32 s{sT0}, s{sT0}, s{sCOL}")
        A(f"s_lshr_b32 s{sT1}, s{sW}, 1\ns_mul_i32 s{sT1}, s{sT1}, {32*NT}\ns_add_u32 s{sF}, s{sT0}, s{sT1}\ns_add_u32 s{sE}, s{sF}, {16*1280}")
        A(f"v_and_b32 v{t0}, 15, v0\nv_mul_u32_u24 v{t0}, 1280, v{t0}\nv_lshrrev_b32 v{t1}, 5, v0\nv_lshl_add_u32 v{t0}, v{t1}, 4, v{t0}\nv_bfe_u32 v{t1}, v0, 4, 1\nv_lshl_add_u32 v{va}, v{t1}, 5, v{t0}")
        jobs = [(NT * p, NT * p + 1, va, sE if p else sF, 0) for p in range(2)]
        if NT == 3:
            A(f"v_mul_u32_u24 v{t1}, {16*1280}, v{t1}\nv_add_u32 v{vb}, v{t0}, v{t1}")
            jobs.append((2, 5, vb, sF, 64))
        setup = A.lines[m:]; del A.lines[m:]
        return setup, jobs, [f"buffer_load_dwordx4 {v(XR+4*n,4)}, v{a}, {s(X_,4)}, s{so} offen offset:{off}" for n, (_, _, a, so, off) in enumerate(jobs)]

    def p2_compute(self, role, own=None):
        A, g, c = self.A, self.p2geom(role), self.c
        N = g["N"]; NT = N // 32; RB = 2 * N
        vB, vO = (14, 10), (15, 13)
        NR = self.resident(role)
        ACC, FB, FW, XR = (64, 88, 120, 168) if own else (16, 40, 72, 120)
        A("; phase 2")
        xat = c.xat[role]
        if xat == -2 and not c.split:
            XR = 192
        if NR:
            XR = 240
        setup, jobs, xl = self.p2_out(role, XR, own)
        A.extend([l for l in setup if l.startswith("v_") or xat != -2 or c.split])
        if xat < 0:
            if xat == -1 or c.split:
                A.extend(xl)
            xl = []
        if not NR:
            self.p2_waddr(role)
        A(f"s_and_b32 s{sT0}, s{sW}, 1\ns_lshl_b32 s{sT0}, s{sT0}, 12\ns_add_u32 s{sT0}, s{sT0}, {g['abase'][0]}\nv_lshl_add_u32 v{vB[0]}, v0, 4, s{sT0}\nv_lshl_add_u32 v{vO[0]}, v0, 3, s{sT0}")
        if g["abase"][1] < LDS_BYTES:
            A(f"v_add_u32 v{vB[1]}, {g['abase'][1]-g['abase'][0]}, v{vB[0]}\nv_add_u32 v{vO[1]}, {g['abase'][1]-g['abase'][0]}, v{vO[0]}")

        def mfmas(ch):
            out = []
            if ch < 0:
                return out
            st = ch & 1
            fw = self.RES + 8 * NT * ch if ch < NR else FW + 8 * NT * st
            for ks in range(2):
                for i in range(NT):
                    for p in range(2):
                        a = v(ACC + 4 * (NT * p + i), 4)
                        out.append(f"{MF} {a}, {v(fw+4*(NT*ks+i),4)}, {v(FB+16*st+8*ks+4*p,4)}, {a if ch or ks else 0}")
            return out

        def chunk(ch, extra=(), head=()):
            st, opart = ch & 1, ch >= 24
            aa = g["a"][ch % len(g["a"])]
            ab = 1 if aa >= g["abase"][1] else 0
            ao = aa - g["abase"][ab]
            ld = []
            if own:
                C, ta, tw, epoch = own
                l, d = self.lab("ps"), self.lab("pd")
                A(f"s_waitcnt lgkmcnt(0)\nv_cmp_gt_u32 vcc, {ch + 1}, v{vPG+2}\nv_add_u32 v{vPG+3}, 1, v{vPG+3}\ns_mov_b32 s{sT1}, {SPIN_LIMIT}\ns_cbranch_vccz {d}")
                A.label(l)
                A(f"ds_read_b32 v{vPG+2}, v{vPG+1}\ns_waitcnt lgkmcnt(0)\nv_cmp_gt_u32 vcc, {ch + 1}, v{vPG+2}\ns_cbranch_vccz {d}\ns_sub_u32 s{sT1}, s{sT1}, 1\ns_cbranch_scc0 {l}")
                A.label(d)
                self.trace(12 + ch)
                if ch < 33:
                    C.wait(max(ta[ch + 1], tw[ch + 1]))
                    A(f"ds_write_b32 v{vPG}, v{vPG+3}")
                m = len(A.lines)
                epoch(ch, True)
                ld = A.lines[m:]; del A.lines[m:]
            else:
                A("s_barrier\ns_waitcnt lgkmcnt(0)")
            if ch == 0:
                self.stamp(4 if not own else 6)
            A.extend(head)
            rd = []
            for ks in range(2):
                for p in range(2):
                    d = FB + 16 * st + 8 * ks + 4 * p
                    if opart:
                        rd += [f"ds_read_b64 {v(d+2*hf,2)}, v{vO[ab]} offset:{ao+2048*p+512*(2*ks+hf)}" for hf in range(2)]
                    else:
                        rd.append(f"ds_read_b128 {v(d,4)}, v{vB[ab]} offset:{ao+2048*p+K*ks}")
                if ch >= NR:
                    rd += self.p2_wreads(role, ch, FW + 8 * NT * st, (ks,))
            rd += list(extra)
            ms = mfmas(ch - 1)
            if own and 'selfskipm' in c.abl:
                ms = ['s_nop 0'] * len(ms)
            if own and 'selfskipr' in c.abl:
                rd = list(extra)
            if own:
                nrd = len(rd) - len(extra)
                if ch < 33:
                    rd.insert(nrd, f"ds_read_b32 v{vPG+2}, v{vPG+1}")
                rd += ld
            per = max(2, -(-len(rd) // max(1, len(ms))))
            solid = any(x.endswith(":") for x in rd)
            for i, m in enumerate(ms):
                A(m)
                k = min(per, len(rd) - len(ld)) if solid else per
                A.extend(rd[:k]); rd = rd[k:]
            A.extend(rd)

        vPG = 16
        if own:
            A(f"s_lshl_b32 s{sT0}, s{sW}, 2\ns_add_u32 s{sT0}, s{sT0}, {MISC + PRG_OFF}\nv_mov_b32 v{vPG}, s{sT0}\nv_and_b32 v{vPG+1}, 3, v0\nv_lshlrev_b32 v{vPG+1}, 2, v{vPG+1}\nv_add_u32 v{vPG+1}, {MISC + PRG_OFF}, v{vPG+1}")
            A(f"v_mov_b32 v{vPG+3}, 1")
            own[0].wait(max(own[1][0], own[2][0]))
            A(f"ds_write_b32 v{vPG}, v{vPG+3}\nds_read_b32 v{vPG+2}, v{vPG+1}")
        heads = {}
        if role == "q" and c.pubq and not c.split and not own:
            heads[c.pubq], heads[c.pubq + 1] = self.publish("q", (2 if xat == -1 else len(xl)) if xat + len(xl) <= c.pubq else 0)
        assert role == "h" or xat + len(xl) <= c.pubq or xat > c.pubq
        RS = 252 if NR else 132
        rs = []
        if c.defer:
            rs = lines(f"s_and_b32 s{sT0}, s{sBLK}, 1\ns_and_b32 s{sT1}, s{sW}, 1\ns_lshl1_add_u32 s{sT0}, s{sT0}, s{sT1}\ns_lshl_b32 s{sT0}, s{sT0}, 7\ns_add_u32 s{sT0}, s{sT0}, {MISC + ST_RSTD + (64 if role == 'q' else 0)}")
            rs += lines(f"v_and_b32 v2, 15, v0\nv_lshl_add_u32 v2, v2, 2, s{sT0}\nds_read_b32 v{RS}, v2\nds_read_b32 v{RS+2}, v2 offset:64")
        for ch in range(24):
            chunk(ch, (xl[ch - xat: ch - xat + 1] if ch >= xat >= 0 else []) + (rs if ch == 20 else []), heads.get(ch, ()))
        if not own:
            self.stamp(5)
        XU = 120 if NR else 136
        unpack = [] if own else ["s_waitcnt vmcnt(0)"]
        for n, (k0, k1, va, so, off) in enumerate(jobs):
            d = XR + 4 * n
            unpack += [f"v_permlane16_swap_b32 v{d}, v{d+2}", f"v_permlane16_swap_b32 v{d+1}, v{d+3}"]
            for x, k in ((d, k0), (d + 2, k1)):
                unpack += lines(f"v_lshlrev_b32 v{XU+4*k}, 16, v{x}\nv_and_b32 v{XU+4*k+1}, 0xffff0000, v{x}\nv_lshlrev_b32 v{XU+4*k+2}, 16, v{x+1}\nv_and_b32 v{XU+4*k+3}, 0xffff0000, v{x+1}")
        if c.defer:
            for p in range(2):
                for i in range(2 * NT):
                    heads.setdefault(25, []).append(f"v_pk_mul_f32 {v(ACC+4*NT*p+2*i,2)}, {v(ACC+4*NT*p+2*i,2)}, {v(RS+2*p,2)} op_sel_hi:[1,0]")
        for ch in range(24, 34):
            n = -(-len(unpack) // (30 - ch)) if unpack else 0
            chunk(ch, unpack[:n], heads.get(ch, ())); unpack = unpack[n:]
        A("s_waitcnt lgkmcnt(0)")
        A.extend(mfmas(33))
        if not own:
            self.stamp(6)
        O = FB
        for n, (k0, k1, va, so, off) in enumerate(jobs):
            d = O + 4 * n
            for dd, k in ((d, k0), (d + 2, k1)):
                for h in (0, 2):
                    A(f"v_pk_add_f32 {v(ACC+4*k+h,2)}, {v(ACC+4*k+h,2)}, {v(XU+4*k+h,2)}")
                A.extend(self.pack(dd, ACC + 4 * k))
            A(f"v_permlane16_swap_b32 v{d}, v{d+2}\nv_permlane16_swap_b32 v{d+1}, v{d+3}")
            A(f"buffer_store_dwordx4 {v(d,4)}, v{va}, {s(OUT_,4)}, s{so} offen offset:{off}{c.out_mod}")

    def p3geom(self, role):
        kb = lambda *x: [i * K for i in x]
        nb = self.c.nb
        if role == "q" and self.c.qring:
            return dict(w=kb(147, 64, 74, 84, 127, 137, 32, 22, 12), wbase=kb(12, 74, 127), a=kb(111, 48, 95), abase=kb(48, 95), wpre=6,
                        seg=[("h", 0, nb, 12 - nb), ("o", 1, 0, 5), ("o", 0, 0, 5)])
        if role == "q":
            return dict(w=kb(147, 64, 74, 84, 127, 137, 32), wbase=kb(32, 127), a=kb(111, 48, 95, 0, 16), abase=kb(0, 95), wpre=6,
                        seg=[("h", 0, nb, 12 - nb), ("o", 1, 0, 5), ("o", 0, 0, 5)])
        return dict(w=kb(147, 137, 127, 110, 100, 90, 80), wbase=kb(80, 127), a=kb(64, 48, 32, 16, 0), abase=kb(0, 48), wpre=7,
                    seg=[("h", 1, 0, 12), ("h", 0, 0, nb)])

    def p3seg(self, role, ch):
        for kind, oth, lo, n in self.p3geom(role)["seg"]:
            if ch < n:
                return kind, oth, lo, n, ch
            ch -= n

    def p3_loader_setup(self, role):
        A, c = self.A, self.c
        A(f"s_mul_i32 s{sCOL}, s{sJ}, 160\ns_mul_i32 s{sT0}, s{sW}, {16*1280}\ns_add_u32 s{sT0}, s{sT0}, s{sCOL}")
        for i in range(3):
            A(f"v_add_u32 v2, {64*i}, v0\nv_mul_u32_u24 v3, 6554, v2\nv_lshrrev_b32 v3, 16, v3\nv_mul_u32_u24 v4, {1280-160}, v3\nv_lshl_add_u32 v2, v2, 4, v4")
            A(f"s_sub_u32 s{sT1}, s{sT0}, {K*i}\nv_add_u32 v{self.P2W+i}, s{sT1}, v2")
        A(f"s_mul_i32 s{self.sPM}, s{sW}, 2560\ns_lshl_b32 s{self.sPN}, s{sW}, 12\ns_and_b32 s{sT0}, s{sW}, 1\ns_lshl_b32 s{sT0}, s{sT0}, 12\nv_lshl_add_u32 v{self.P2A}, v0, 4, s{sT0}")
        A(f"s_lshr_b32 s{sT0}, s{sW}, 1\ns_lshl1_add_u32 s{sBLK}, s{sRB}, s{sT0}\ns_add_u32 s{sROT2}, s{sRB}, s{sJ}\ns_and_b32 s{sROT2}, s{sROT2}, 3")
        A(f"s_lshr_b32 s{self.sOWN}, s{sJ}, 2\ns_xor_b32 s{self.sOTH}, s{self.sOWN}, 1\ns_lshl_b32 s{sT0}, s{sRB}, 9\ns_add_u32 s{sT0}, s{sT0}, {FLAG_BASE}")
        A(f"s_lshl_b32 s{sT1}, s{self.sOTH}, 7\ns_add_u32 s{sT1}, s{sT1}, s{sT0}\nv_mov_b32 v{self.P2F}, s{sT1}\nv_xor_b32 v{self.P2F+1}, 128, v{self.P2F}")
        if role == "q":
            A(f"s_lshl3_add_u32 s{sT0}, s{sRB}, s{sJ}\ns_lshl_b32 s{sT0}, s{sT0}, 7\ns_add_u32 s{sT0}, s{sT0}, {FLAG_BASE + F_PAIR}\nv_mov_b32 v{self.P2F+3}, s{sT0}")
            if c.touch:
                r2 = c.nb
                A(f"s_bfe_u32 s{sT0}, s2, 0x40003\ns_lshl2_add_u32 s{sT0}, s{sT0}, s{sW}\nv_mul_u32_u24 v2, 52, v0\nv_lshrrev_b32 v2, 8, v2\nv_mul_u32_u24 v3, 5, v2\nv_sub_u32 v3, v0, v3\nv_lshlrev_b32 v3, 7, v3")
                A(f"s_movk_i32 s{sT3}, 1280\nv_min_u32 v4, {r2-1}, v2\nv_min_u32 v2, 9, v2\nv_mad_u32_u24 v4, v4, s{sT3}, v3\nv_mad_u32_u24 v2, v2, s{sT3}, v3")
                A(f"s_mul_i32 s{sT1}, s{self.sOWN}, {768*1280 + 640}\ns_mul_i32 s{sT2}, s{sT0}, {r2*1280}\ns_add_u32 s{sT1}, s{sT1}, s{sT2}\nv_add_u32 v42, s{sT1}, v4")
                A(f"s_mul_i32 s{sT1}, s{self.sOWN}, 640\ns_mul_i32 s{sT2}, s{sT0}, {10*1280}\ns_add_u32 s{sT1}, s{sT1}, s{sT2}\nv_add_u32 v43, s{sT1}, v2")

    def p3_prep(self, role, which, ch):
        kind, oth, lo, n, pos = self.p3seg(role, ch)
        cnt, base, d = (self.sPW, self.sBW, (sT2, 12)[ch & 1]) if which == "w" else (self.sPA, self.sPB, (sT3, 13)[ch & 1])
        step = 64 * 1280 if which == "w" else 8192
        o = []
        if pos == 0:
            half = 12 if kind == "h" else 5
            o += lines(f"s_mul_i32 s{cnt}, s{sROT2}, {max(1, n // 4)}\ns_mul_i32 s{base}, s{self.sOTH if oth else self.sOWN}, {half * step}")
            if which == "a":
                o += lines(f"s_mul_i32 s{d}, s{sBLK}, {H_BLK if kind == 'h' else O_BLK}\ns_add_u32 s{base}, s{base}, s{d}")
            add = lo * step + ((H_BASE if kind == "h" else O_BASE) if which == "a" else 0)
            if add:
                o.append(f"s_add_u32 s{base}, s{base}, {add}")
        return o + lines(f"s_cmp_ge_u32 s{cnt}, {n}\ns_cselect_b32 s{d}, {n}, 0\ns_sub_u32 s{cnt}, s{cnt}, s{d}\ns_mul_i32 s{d}, s{cnt}, {step}\ns_add_u32 s{d}, s{d}, s{base}\ns_add_u32 s{cnt}, s{cnt}, 1")

    def p3_issue_w(self, role, cw, C=None, fill=()):
        A, g = self.A, self.p3geom(role)
        emit = (C.issue if C else A)
        srd_ = W2_ if self.p3seg(role, cw)[0] == "h" else WO_
        A(f"s_add_u32 m0, s{self.sPM}, {g['w'][cw % len(g['w'])]}")
        for i in range(3):
            if i == 2:
                A("s_mov_b32 exec_hi, 0")
            tag = emit(f"buffer_load_dwordx4 v{self.P2W+i}, {s(srd_,4)}, s{(sT2, 12)[cw & 1]} offen offset:{K*i} lds")
            if i == 0:
                A.extend(fill)
        A("s_mov_b32 exec_hi, -1")
        return tag

    def p3_issue_a(self, role, ca, C, set_m0=True, fill=()):
        A, g = self.A, self.p3geom(role)
        if set_m0:
            A(f"s_add_u32 m0, s{self.sPN}, {g['a'][ca % len(g['a'])]}")
        for i in range(4):
            tag = C.issue(f"buffer_load_dwordx4 v{self.P2A}, {s(WS_,4)}, s{(sT3, 13)[ca & 1]} offen offset:{K*i}{self.c.ld_mod} lds")
            if i == 0:
                A.extend(fill)
        return tag

    def p3_loader(self, role, pending):
        A, g, c = self.A, self.p3geom(role), self.c
        C = Counter(A, "vmcnt", 62)
        RW, RA = len(g["w"]), len(g["a"])
        NC = sum(x[3] for x in g["seg"])
        tw, ta = {}, {}
        vR = self.P2F + 2
        def next_w():
            A.extend(self.p3_prep(role, "w", self.wnext))
            tw[self.wnext] = self.p3_issue_w(role, self.wnext, C)
            self.wnext += 1
        def one_a(ca):
            A.extend(self.p3_prep(role, "a", ca)); ta[ca] = self.p3_issue_a(role, ca, C)
        def where(ca):
            if ca == "pair":
                return self.P2F + 3, 0, 1
            kind, oth = self.p3seg(role, ca)[:2]
            return self.P2F + 1 - oth, 256 * (kind == "o"), 4
        tags, regs = {}, {}
        def poll(ca):
            ad, off, _ = where(ca)
            regs[ca] = 32 + len(regs)
            tags[ca] = C.issue(f"buffer_load_dword v{regs[ca]}, v{ad}, {s(WS_,4)}, 0 offen offset:{off}{COH}")
        def confirm(ca):
            ad, off, n = where(ca)
            C.wait(tags[ca])
            self.check(regs[ca], ad, WS_, n, off)
        C.n = pending
        for cw in range(self.wnext):
            tw[cw] = max(0, pending - 3 * (self.wnext - 1 - cw))
        if role == "h":
            A("s_barrier")
        stop = min(g["wpre"], self.wnext + c.gap3) if role == "h" else g["wpre"]
        while self.wnext < stop - 1:
            next_w()
        poll(0)
        while self.wnext < stop:
            next_w()
        confirm(0)
        self.trace(11)
        self.stamp(3)
        for ca in range(c.na3[role]):
            one_a(ca)
        later = [lambda ca=ca: one_a(ca) for ca in range(c.na3[role], RA)] + [next_w] * (RW - self.wnext)
        if role == "q" and c.touch:
            C.issue(f"buffer_load_dword v58, v42, {s(W2_,4)}, 0 offen")
            C.issue(f"buffer_load_dword v59, v43, {s(WO_,4)}, 0 offen")
        starts = [ca for ca in range(RA, NC) if self.p3seg(role, ca)[4] == 0]
        want_a = lambda ch: ch >= 2 and ch - 2 + RA < NC
        want_w = lambda ch: ch >= 2 and ch - 2 + RW < NC
        kp = NC - c.pk
        for ch in range(NC):
            ca, cw = ch - 2 + RA, ch - 2 + RW
            if role == "q" and ch == kp:
                self.stamp(4)
                confirm("pair")
                self.stamp(5)
            if want_a(ch):
                A(f"s_add_u32 m0, s{self.sPN}, {g['a'][ca % RA]}")
            C.wait(max(ta[ch], tw[ch]))
            A("s_barrier")
            self.trace(12 + ch)
            for _ in range(-(-len(later) // (2 - ch)) if later else 0):
                later.pop(0)()
            if ca in starts:
                if ca not in tags:
                    poll(ca)
                confirm(ca)
            if ca + c.pd in starts:
                poll(ca + c.pd)
            if role == "q" and ch == kp - c.pd:
                poll("pair")
            pa = self.p3_prep(role, "a", ca + 1) if want_a(ch + 1) else []
            pw = self.p3_prep(role, "w", cw + 1) if want_w(ch + 1) else []
            if want_a(ch):
                ta[ca] = self.p3_issue_a(role, ca, C, c.trace, pa); pa = []
            if want_w(ch):
                tw[cw] = self.p3_issue_w(role, cw, C, pw); pw = []
            A.extend(pa + pw)
        self.stamp(6)

    def p3_compute(self, role):
        A, g, c = self.A, self.p3geom(role), self.c
        q = role == "q"
        NC = sum(x[3] for x in g["seg"])
        vW, vB, vO = (8, 9), (10, 11), (12, 13)
        ACC, FB, FW, XR, PT = 16, 56, 88, 168, 188
        A(f"v_lshrrev_b32 v3, 4, v0\nv_bfe_u32 v2, v0, 2, 2\nv_lshl_add_u32 v2, v3, 2, v2\nv_mul_u32_u24 v2, 160, v2\nv_and_b32 v4, 3, v0\nv_lshl_add_u32 v2, v4, 3, v2")
        A(f"v_add_u32 v{vW[0]}, {g['wbase'][0]}, v2\nv_add_u32 v{vW[1]}, {g['wbase'][1]}, v2")
        A(f"s_lshl_b32 s{sT0}, s{sW}, 12\nv_lshl_add_u32 v{vB[0]}, v0, 4, s{sT0}\nv_add_u32 v{vB[1]}, {g['abase'][1]}, v{vB[0]}")
        if q:
            A(f"v_lshl_add_u32 v{vO[0]}, v0, 3, s{sT0}\nv_add_u32 v{vO[1]}, {g['abase'][1]}, v{vO[0]}")
        part = lines(f"s_lshl3_add_u32 s{sD}, s{sRB}, s{sJ}\ns_lshl2_add_u32 s{sD}, s{sD}, s{sW}\ns_mul_i32 s{sD}, s{sD}, 10240\ns_add_u32 s{sD}, s{sD}, {PART_BASE}\ns_add_u32 s{sC}, s{sD}, 4096\ns_add_u32 s{sB}, s{sD}, 8192\nv_lshlrev_b32 v14, 4, v0")
        pop = lambda op, n, r: f"buffer_{op}_dwordx4 {v(r,4)}, v14, {s(WS_,4)}, s{(sD, sC, sB)[n // 4]} offen offset:{K*(n % 4)}{COH}"
        extra, heads = {0: part}, {}
        if q:
            out = lines(f"s_lshl2_add_u32 s{sT0}, s{sRB}, s{sW}\ns_mul_i32 s{sT0}, s{sT0}, {32*1280}\ns_mul_i32 s{sT1}, s{sJ}, 160\ns_add_u32 s{sF}, s{sT0}, s{sT1}\ns_add_u32 s{sE}, s{sF}, {16*1280}")
            out += lines(f"v_and_b32 v2, 15, v0\nv_mul_u32_u24 v2, 1280, v2\nv_lshrrev_b32 v3, 5, v0\nv_lshl_add_u32 v2, v3, 4, v2\nv_bfe_u32 v3, v0, 4, 1\nv_lshl_add_u32 v6, v3, 5, v2\nv_mul_u32_u24 v3, {16*1280}, v3\nv_add_u32 v7, v2, v3")
            extra[1] = out
            jobs = [(5 * p + 2 * i, 5 * p + 2 * i + 1, 6, sE if p else sF, 64 * i) for p in range(2) for i in range(2)] + [(4, 9, 7, sF, 128)]
            heads[c.pub3], heads[c.pub3 + 1] = self.publish("q")
            for n, (_, _, va, so, off) in enumerate(jobs):
                extra.setdefault(c.pub3 + 2 + n, []).append(f"buffer_load_dwordx4 {v(XR+4*n,4)}, v{va}, {s(X_,4)}, s{so} offen offset:{off}")
            for n in range(10):
                extra.setdefault(NC - c.pk + n // 5, []).append(pop("load", n, PT + 4 * n))

        def mfmas(ch):
            st = ch & 1
            return [f"{MF} {v(ACC+4*(5*p+i),4)}, {v(FW+40*st+4*(5*ks+i),4)}, {v(FB+16*st+8*ks+4*p,4)}, {v(ACC+4*(5*p+i),4) if ch or ks else 0}"
                    for ks in range(2) for i in range(5) for p in range(2)] if ch >= 0 else []

        for ch in range(NC):
            st, opart = ch & 1, self.p3seg(role, ch)[0] == "o"
            aa, ww = g["a"][ch % len(g["a"])], g["w"][ch % len(g["w"])]
            ab, wb = int(aa >= g["abase"][1]), int(ww >= g["wbase"][1])
            ao, wo = aa - g["abase"][ab], ww - g["wbase"][wb]
            A("s_barrier\ns_waitcnt lgkmcnt(0)")
            if ch == 0:
                self.stamp(4)
            if q and opart and self.p3seg(role, ch - 1)[0] == "h":
                self.stamp(5)
            A.extend(heads.get(ch, ()))
            rd = []
            for ks in range(2):
                for p in range(2):
                    d = FB + 16 * st + 8 * ks + 4 * p
                    if opart:
                        rd += [f"ds_read_b64 {v(d+2*hf,2)}, v{vO[ab]} offset:{ao+2048*p+512*(2*ks+hf)}" for hf in range(2)]
                    else:
                        rd.append(f"ds_read_b128 {v(d,4)}, v{vB[ab]} offset:{ao+2048*p+K*ks}")
                rd += [f"ds_read_b64_tr_b16 {v(FW+40*st+4*(5*ks+i)+2*hf,2)}, v{vW[wb]} offset:{wo+(32*ks+16*hf)*160+32*i}" for i in range(5) for hf in range(2)]
            rd += extra.get(ch, [])
            ms = mfmas(ch - 1)
            for i, m in enumerate(ms):
                k = -(-len(rd) // (len(ms) - i - 2)) if i < len(ms) - 2 else len(rd)
                A(m); A.extend(rd[:k]); rd = rd[k:]
            A.extend(rd)
        last = mfmas(NC - 1)
        A("s_waitcnt lgkmcnt(0)")
        if not q:
            self.stamp(5)
            A.extend(last)
            self.stamp(6)
            for n in range(10):
                A(pop("store", n, ACC + 4 * n))
            a, b = self.publish("h", pairflag=True)
            A.extend(a + ["s_waitcnt lgkmcnt(0)"] + b)
            return
        pre = ["s_waitcnt vmcnt(0)"]
        for n, (k0, k1, va, so, off) in enumerate(jobs):
            d = XR + 4 * n
            pre += [f"v_permlane16_swap_b32 v{d}, v{d+2}", f"v_permlane16_swap_b32 v{d+1}, v{d+3}"]
            for x, k in ((d, k0), (d + 2, k1)):
                for h in range(2):
                    t = 228 + 2 * h
                    pre += lines(f"v_lshlrev_b32 v{t}, 16, v{x+h}\nv_and_b32 v{t+1}, 0xffff0000, v{x+h}\nv_pk_add_f32 {v(PT+4*k+2*h,2)}, {v(PT+4*k+2*h,2)}, {v(t,2)}")
        A.extend(last[:2] + weave(pre, last[2:], 2, 1))
        self.stamp(6)
        for n, (k0, k1, va, so, off) in enumerate(jobs):
            d = XR + 4 * n
            for dd, k in ((d, k0), (d + 2, k1)):
                for h in (0, 2):
                    A(f"v_pk_add_f32 {v(ACC+4*k+h,2)}, {v(ACC+4*k+h,2)}, {v(PT+4*k+h,2)}")
                A.extend(self.pack(dd, ACC + 4 * k))
            A(f"v_permlane16_swap_b32 v{d}, v{d+2}\nv_permlane16_swap_b32 v{d+1}, v{d+3}")
            A(f"buffer_store_dwordx4 {v(d,4)}, v{va}, {s(OUT_,4)}, s{so} offen offset:{off}{c.out_mod}")

    SEG4 = [("t", 1, 6), ("h", 0, 12), ("o", 1, 5), ("o", 0, 5)]
    NT4, NH4, NC4 = 6, 18, 28

    def p4seg(self, ch):
        for kind, oth, n in self.SEG4:
            if ch < n:
                return kind, oth, n, ch
            ch -= n

    def p4slots(self, role):
        g = self.p2geom(role)
        RA = len(g["a"])
        T = self.NT4
        addr = [g["a"][ch % RA] for ch in range(T)]
        order = [g["a"][(T + i) % RA] for i in range(RA)]
        halves = [b + h for b in order for h in (0, 8192)]
        addr += [halves[i % len(halves)] for i in range(self.NC4 - T)]
        first = []
        for ch, a in enumerate(addr):
            size = 16384 if ch < T else 8192
            prev = [p for p in range(ch) if addr[p] < a + size and a < addr[p] + (16384 if p < T else 8192)]
            first.append(max(prev) + 2 if prev else -1)
        return addr, first

    def p4_prep(self, role, which, ch):
        kind, oth, n, pos = self.p4seg(ch)
        cnt, base, d = (self.sPW, self.sBW, (sT2, 12)[ch & 1]) if which == "w" else (self.sPA, self.sPB, (sT3, 13)[ch & 1])
        step = 64 * 1280 if which == "w" else 8192
        o = []
        if pos == 0:
            half = 5 if kind == "o" else 12
            o += lines(f"s_mov_b32 s{cnt}, s{dict(t=18, h=sROT2, o=sROT3)[kind]}\ns_mul_i32 s{base}, s{self.sOTH if oth else self.sOWN}, {half * step}")
            if kind == "t":
                o += lines(f"s_and_b32 s{d}, s{sJ}, 1\ns_mul_i32 s{d}, s{d}, {6 * step}\ns_add_u32 s{base}, s{base}, s{d}")
            if which == "a":
                o += lines(f"s_mul_i32 s{d}, s{14 if kind == 't' else sBLK}, {O_BLK if kind == 'o' else H_BLK}\ns_add_u32 s{base}, s{base}, s{d}")
                if kind == "o":
                    o.append(f"s_add_u32 s{base}, s{base}, {O_BASE}")
        return o + lines(f"s_cmp_ge_u32 s{cnt}, {n}\ns_cselect_b32 s{d}, {n}, 0\ns_sub_u32 s{cnt}, s{cnt}, s{d}\ns_mul_i32 s{d}, s{cnt}, {step}\ns_add_u32 s{d}, s{d}, s{base}\ns_add_u32 s{cnt}, s{cnt}, 1")

    def p4_issue_w(self, role, cw, C=None, fill=()):
        A, g = self.A, self.p2geom(role)
        emit = (C.issue if C else A)
        A(f"s_add_u32 m0, s{self.sPM}, {g['w'][cw % len(g['w'])]}")
        for i in range(g["nW"]):
            tag = emit(f"buffer_load_dwordx4 v{self.P2W+i}, {s(W2_ if cw < self.NH4 else WO_,4)}, s{(sT2, 12)[cw & 1]} offen offset:{K*i} lds")
            if i == 0:
                A.extend(fill)
        return tag

    def p4_loader(self, role, pending):
        A, g, c = self.A, self.p2geom(role), self.c
        C = Counter(A, "vmcnt", 62)
        RW, nW, NC, T, NH = len(g["w"]), g["nW"], self.NC4, self.NT4, self.NH4
        starts = (T, NH, NH + 5)
        addr, first = self.p4slots(role)
        tw, ta, tags, regs = {}, {}, {}, {}
        st = dict(a=0, pa=0, pw=self.wnext)
        def prep(which):
            k = "p" + which
            if st[k] >= NC:
                return []
            st[k] += 1
            return self.p4_prep(role, which, st[k] - 1)
        def next_w():
            cw = self.wnext
            if st["pw"] == cw:
                A.extend(prep("w"))
            tw[cw] = self.p4_issue_w(role, cw, C, prep("w"))
            self.wnext += 1
        def next_a():
            ca = st["a"]
            if st["pa"] == ca:
                A.extend(prep("a"))
            A(f"s_add_u32 m0, s{15 if ca < T else self.sPN}, {addr[ca]}")
            for i in range(4 if ca < T else 2):
                ta[ca] = C.issue(f"buffer_load_dwordx4 v{self.P2L if ca < T else self.P2A}, {s(WS_,4)}, s{(sT3, 13)[ca & 1]} offen offset:{K*i}{c.ld_mod} lds")
                if i == 0:
                    A.extend(prep("a"))
            st["a"] += 1
        def where(x):
            if x == "pair":
                return self.P2F + 3, 0, 1
            kind, oth = self.p4seg(x)[:2]
            return self.P2F + 1 - oth, 256 * (kind == "o"), 4
        def poll(x):
            ad, off, _ = where(x)
            regs[x] = 32 + len(regs)
            tags[x] = C.issue(f"buffer_load_dword v{regs[x]}, v{ad}, {s(WS_,4)}, 0 offen offset:{off}{COH}")
        def confirm(x):
            ad, off, n = where(x)
            if x not in tags:
                poll(x)
            C.wait(tags[x])
            self.check(regs[x], ad, WS_, n, off)
        C.n = pending
        for cw in range(self.wnext):
            tw[cw] = max(0, pending - nW * (self.wnext - 1 - cw))
        if role == "h":
            A("s_barrier")
        stop = min(g["wpre"], self.wnext + c.gap4) if role == "h" else g["wpre"]
        while self.wnext < stop - 1:
            next_w()
        poll(0)
        while self.wnext < stop:
            next_w()
        confirm(0)
        self.trace(11)
        self.stamp(3)
        for _ in range(c.na4[role]):
            next_a()
        if role == "q" and c.touch:
            C.issue(f"buffer_load_dword v58, v42, {s(W2_,4)}, 0 offen")
            C.issue(f"buffer_load_dword v59, v43, {s(WO_,4)}, 0 offen")
        when, e, k = {}, 0, 0
        for ca in range(st["a"], NC):
            lo = max(first[ca], c.ostart[role] if ca >= NH else 0)
            if lo > e or k == 2:
                e, k = max(lo, e + 1), 0
            when[ca] = e; k += 1
            assert e < ca
        assert role == "h" or when[NH] > c.pub4 + 1
        kp = NC - c.rcv
        assert kp > T + 1 + c.snd + 1
        for ch in range(NC):
            if ch == kp:
                confirm("pair")
            C.wait(max(ta[ch], tw[ch]))
            A("s_barrier")
            self.trace(12 + ch)
            for x in starts:
                if when[x] - c.pd == ch:
                    poll(x)
            if ch == kp - c.pd:
                poll("pair")
            while st["a"] < NC and when[st["a"]] == ch:
                if st["a"] in starts:
                    if st["a"] == NH:
                        self.stamp(4)
                    confirm(st["a"])
                    if st["a"] == NH:
                        self.stamp(5)
                next_a()
            n = 0
            while self.wnext < NC and self.wnext - RW + 2 <= ch and n < 2:
                next_w(); n += 1
        self.stamp(6)

    def p4_compute(self, role):
        A, g, c = self.A, self.p2geom(role), self.c
        q = role == "q"
        N = g["N"]; NT = N // 32; NC, T, NH = self.NC4, self.NT4, self.NH4
        addr, _ = self.p4slots(role)
        vB, vO = (14, 10), (15, 13)
        ACC, AC2, FB, FW, XR, XU, PT = 16, 40, 64, 128, 176, 188, 212
        self.p2_waddr(role)
        A(f"s_and_b32 s{sT0}, s{sW}, 1\ns_lshl_b32 s{sT0}, s{sT0}, 12\nv_lshl_add_u32 v{vB[0]}, v0, 4, s{sT0}\nv_lshl_add_u32 v{vO[0]}, v0, 3, s{sT0}")
        if g["abase"][1] < LDS_BYTES:
            A(f"v_add_u32 v{vB[1]}, {g['abase'][1]}, v{vB[0]}\nv_add_u32 v{vO[1]}, {g['abase'][1]}, v{vO[0]}")
        m = len(A.lines)
        self.p2_colbytes(N)
        A(f"s_and_b32 s{sT0}, s{sW}, 1\ns_lshl1_add_u32 s{sT0}, s{sBLK}, s{sT0}\ns_mul_i32 s{sT0}, s{sT0}, {32*1280}\ns_add_u32 s{sT0}, s{sT0}, s{sCOL}")
        A(f"s_lshr_b32 s{sT1}, s{sW}, 1\ns_mul_i32 s{sT1}, s{sT1}, {32*NT}\ns_add_u32 s{sF}, s{sT0}, s{sT1}\ns_add_u32 s{sE}, s{sF}, {16*1280}")
        A(f"v_and_b32 v2, 15, v0\nv_mul_u32_u24 v2, 1280, v2\nv_lshrrev_b32 v3, 5, v0\nv_lshl_add_u32 v2, v3, 4, v2\nv_bfe_u32 v3, v0, 4, 1\nv_lshl_add_u32 v6, v3, 5, v2")
        jobs = [(NT * p, NT * p + 1, 6, sE if p else sF, 0) for p in range(2)]
        if NT == 3:
            A(f"v_mul_u32_u24 v3, {16*1280}, v3\nv_add_u32 v7, v2, v3")
            jobs.append((2, 5, 7, sF, 64))
        A(f"s_lshl3_add_u32 s{sT0}, s{sRB}, s{sJ}\ns_add_u32 s{sT0}, s{sT0}, {0 if q else 128}\ns_xor_b32 s{sT1}, s{sT0}, 1\nv_lshlrev_b32 v240, 4, v0")
        for d, t in ((sD, sT0), (sB, sT1)):
            A(f"s_lshl2_add_u32 s{d}, s{t}, s{sW}\ns_mul_i32 s{d}, s{d}, 6144\ns_add_u32 s{d}, s{d}, {PART_BASE}\ns_add_u32 s{d-1}, s{d}, 4096")
        setup = A.lines[m:]; del A.lines[m:]
        pop = lambda op, n, r, b: f"buffer_{op}_dwordx4 {v(r,4)}, v240, {s(WS_,4)}, s{b - n // 4} offen offset:{K*(n % 4)}{COH}"
        extra, heads = {0: setup}, {}
        vm = []
        def add(ch, kind, text):
            extra.setdefault(ch, []).append(text); vm.append((ch, kind))
        for n, (_, _, va, so, off) in enumerate(jobs):
            add(c.x4[role] + n, "x", f"buffer_load_dwordx4 {v(XR+4*n,4)}, v{va}, {s(X_,4)}, s{so} offen offset:{off}")
        for n in range(2 * NT):
            add(T + 1 + n // 2, "s", pop("store", n, AC2 + 4 * n, sD))
        for n in range(2 * NT):
            add(NC - c.rcv + n // 3, "r", pop("load", n, PT + 4 * n, sB))
        if q:
            assert c.pub4 <= T
            heads[c.pub4], heads[c.pub4 + 1] = self.publish("q")
        assert c.x4[role] > T + 1 + c.snd
        heads[T + 1 + c.snd], heads[T + 2 + c.snd] = self.publish(role, pairflag=True)
        unpack = []
        for n, (k0, k1, va, so, off) in enumerate(jobs):
            d = XR + 4 * n
            unpack += [f"v_permlane16_swap_b32 v{d}, v{d+2}", f"v_permlane16_swap_b32 v{d+1}, v{d+3}"]
            for x, k in ((d, k0), (d + 2, k1)):
                unpack += lines(f"v_lshlrev_b32 v{XU+4*k}, 16, v{x}\nv_and_b32 v{XU+4*k+1}, 0xffff0000, v{x}\nv_lshlrev_b32 v{XU+4*k+2}, 16, v{x+1}\nv_and_b32 v{XU+4*k+3}, 0xffff0000, v{x+1}")
        extra.setdefault(NC - c.rcv - 1, []).extend(["s_waitcnt vmcnt(0)"] + unpack)

        def mfmas(ch):
            if ch < 0:
                return []
            st = ch & 1
            return [f"{MF} {v(a+4*(NT*p+i),4)}, {v(FW+8*NT*st+4*(NT*ks+i),4)}, {v(FB+32*st+16*b+8*ks+4*p,4)}, {v(a+4*(NT*p+i),4) if ch or ks else 0}"
                    for ks in range(2) for i in range(NT) for b, a in ((0, ACC), (1, AC2))[: 2 if ch < T else 1] for p in range(2)]

        for ch in range(NC):
            st = ch & 1
            ab = int(addr[ch] >= g["abase"][1])
            ao = addr[ch] - g["abase"][ab]
            A("s_barrier\ns_waitcnt lgkmcnt(0)")
            if ch == 0:
                self.stamp(4)
            if ch == NH:
                self.stamp(5)
            A.extend(heads.get(ch, ()))
            rd = []
            for ks in range(2):
                wr = self.p2_wreads(role, ch, FW + 8 * NT * st, (ks,))
                ar = []
                for b in range(2 if ch < T else 1):
                    for p in range(2):
                        d = FB + 32 * st + 16 * b + 8 * ks + 4 * p
                        if ch >= NH:
                            ar += [f"ds_read_b64 {v(d+2*hf,2)}, v{vO[ab]} offset:{ao+2048*p+512*(2*ks+hf)}" for hf in range(2)]
                        else:
                            ar.append(f"ds_read_b128 {v(d,4)}, v{vB[ab]} offset:{ao+8192*b+2048*p+K*ks}")
                rd += ar + wr
            rd += extra.get(ch, [])
            ms = mfmas(ch - 1)
            for i, mm in enumerate(ms):
                k = max(1, -(-len(rd) // max(1, len(ms) - i - 2)))
                A(mm); A.extend(rd[:k]); rd = rd[k:]
            A.extend(rd)
        pre = ["s_waitcnt vmcnt(0)"] + [f"v_pk_add_f32 {v(XU+2*i,2)}, {v(XU+2*i,2)}, {v(PT+2*i,2)}" for i in range(4 * NT)]
        last = mfmas(NC - 1)
        A("s_waitcnt lgkmcnt(0)")
        A.extend(last[:2] + weave(pre, last[2:], 1, 1))
        self.stamp(6)
        for n, (k0, k1, va, so, off) in enumerate(jobs):
            d = XR + 4 * n
            for dd, k in ((d, k0), (d + 2, k1)):
                for h in (0, 2):
                    A(f"v_pk_add_f32 {v(ACC+4*k+h,2)}, {v(ACC+4*k+h,2)}, {v(XU+4*k+h,2)}")
                A.extend(self.pack(dd, ACC + 4 * k))
            A(f"v_permlane16_swap_b32 v{d}, v{d+2}\nv_permlane16_swap_b32 v{d+1}, v{d+3}")
            A(f"buffer_store_dwordx4 {v(d,4)}, v{va}, {s(OUT_,4)}, s{so} offen offset:{off}{c.out_mod}")

    def kernel(self, name, tag, do1, do2):
        A = self.A
        self.tag = tag
        self.entry(name, tag)
        for role in ("q", "h"):
            if role == "h":
                A.label(f"L_HH_{tag}")
            pending = 0
            if do1:
                pending = self.helper1(role)
            else:
                A("s_waitcnt lgkmcnt(0)")
                self.srds_helper2()
                self.p2_loader_setup(role)
            if do2:
                (self.p4_loader if self.c.twin else self.p3_loader if self.c.pair else self.p2_loader)(role, pending)
            self.stamp(7)
            self.stamp_out(8, 1)
            A("s_endpgm")
        for role in ("q", "h"):
            A.label(f"L_{role.upper()}C_{tag}")
            A("; ---- MFMA waves, " + ("attention role" if role == "q" else "hidden-layer role"))
            if do1:
                (self.compute_q if role == "q" else self.compute_h)()
            else:
                self.srds_compute()
            if do2 and not self.selfrun(role):
                (self.p4_compute if self.c.twin else self.p3_compute if self.c.pair else self.p2_compute)(role)
            self.stamp(7)
            self.stamp_out(8, 0)
            A("s_endpgm")
        A.label(f"L_end_{tag}")
        A("s_endpgm")

    def build(self):
        A, c = self.A, self.c
        A(open(os.path.join(os.path.dirname(os.path.abspath(__file__)), "header.txt")).read().rstrip())
        A(DOC.strip())
        if c.split:
            A(f"; @launch kernel=phase1_kernel grid=(256,1,1) block=(512,1,1) lds={LDS_BYTES}")
            A(f"; @launch kernel=phase2_kernel grid=(256,1,1) block=(512,1,1) lds={LDS_BYTES}")
        else:
            A(f"; @launch grid=(256,1,1) block=(512,1,1) lds={LDS_BYTES}")
        A('.amdgcn_target "amdgcn-amd-amdhsa--gfx950"')
        if c.split:
            p2 = c.phase2
            c.phase2 = False
            self.kernel("phase1_kernel", "a", True, False)
            c.phase2 = p2
            self.kernel("phase2_kernel", "b", False, True)
            A(kernel_desc("phase1_kernel", 256, 256)); A(kernel_desc("phase2_kernel", 256, 256))
        else:
            self.kernel(NAME + "_kernel", "a", True, c.phase2)
            A(kernel_desc(NAME + "_kernel", 256, 256))
        t = A.text()
        if c.w_mod:
            t = "\n".join(l.replace(" lds", c.w_mod + " lds") if l.endswith(" lds") and "buffer_load" in l and "sc1" not in l else l for l in t.split("\n"))
        return t

def make(**kw):
    import asmlib
    asmlib.EXTRA.clear(); asmlib.EXTRA.update(kw.pop('extra', {}))
    return Gen(Cfg(**kw)).build()

if __name__ == "__main__":
    kw = {}
    for a_ in sys.argv[2:]:
        k, val = a_.split("=", 1)
        kw[k] = eval(val)
    open(sys.argv[1], "w").write(make(**kw))
```
